```python
import torch

def _softmax(x, axis=-1):
    return torch.softmax(x, dim=axis)
def _gelu(x):
    return torch.nn.functional.gelu(x, approximate="tanh")
def _silu(x):
    return torch.nn.functional.silu(x)
def _sigmoid(x):
    return torch.sigmoid(x)
def _layernorm(x, axis=-1, eps=1e-5):
    m = x.mean(dim=axis, keepdim=True)
    v = x.var(dim=axis, keepdim=True, unbiased=False)
    return (x - m) / torch.sqrt(v + eps)
def _scatter_add(tgt, idx, src, axis=0):
    return tgt.clone().index_add_(axis, idx, src)
def _segment_sum(src, seg, n):
    out = torch.zeros((n,) + src.shape[1:], dtype=src.dtype)
    return out.index_add_(0, seg, src)
def _pad(x, pw):
    flat = tuple(v for pair in reversed(pw) for v in pair)
    return torch.nn.functional.pad(x, flat)

kernel_name = 'gated_mix__compressed_kv_cla__mha_block__prompt'

def setup_inputs():

    _w = (lambda a: (lambda t: t.to(torch.bfloat16) if t.is_floating_point() else t)(torch.as_tensor(a)))
    def _A_setup():
        B, H, Sq, Sk, D, M = 1, 32, 2048, 2048, 128, 512
        Dc = 4 * D
        return {
            "x": _w((lambda *s: torch.randn(*s, dtype=torch.bfloat16) * 0.05)(B, Sq, M)),
            "c_kv": _w((lambda *s: torch.randn(*s, dtype=torch.bfloat16) * 1.6)(B, Sk, Dc)),
            "w_q": _w((lambda *s: torch.randn(*s, dtype=torch.bfloat16) * 3.2)(M, H, D) * (M ** -0.5)),
            "w_uk": _w((lambda *s: torch.randn(*s, dtype=torch.bfloat16) * 3.2)(Dc, H, D) * (Dc ** -0.5)),
            "w_uv": _w((lambda *s: torch.randn(*s, dtype=torch.bfloat16) * 1.6)(Dc, H, D) * (Dc ** -0.5)),
            "w_o": _w((lambda *s: torch.randn(*s, dtype=torch.bfloat16) * 1.6)(H, D, M) * ((H * D) ** -0.5)),
        }
    _A_in = _A_setup()

    def _B_setup():
        B, S, D, H = 1, 2048, 512, 32
        return {
            "x": _w((lambda *s: torch.randn(*s, dtype=torch.bfloat16) * 0.05)(B, S, D)),
            "wqkv": _w((lambda *s: torch.randn(*s, dtype=torch.bfloat16) * 1.6)(D, 3 * D)),
            "wo": _w((lambda *s: torch.randn(*s, dtype=torch.bfloat16) * 0.05)(D, D)),
        }
    _B_in = _B_setup()

    return {
        "A_x": _A_in["x"],
        "A_c_kv": _A_in["c_kv"],
        "A_w_q": _A_in["w_q"],
        "A_w_uk": _A_in["w_uk"],
        "A_w_uv": _A_in["w_uv"],
        "A_w_o": _A_in["w_o"],
        "B_x": _B_in["x"],
        "B_wqkv": _B_in["wqkv"],
        "B_wo": _B_in["wo"],
        "gate_w": _w((lambda *s: torch.randn(*s, dtype=torch.bfloat16) * 0.05)(512) * 16.0),
    }

def reference(A_x, A_c_kv, A_w_q, A_w_uk, A_w_uv, A_w_o, B_x, B_wqkv, B_wo, gate_w):
    def _A_ref(x, c_kv, w_q, w_uk, w_uv, w_o):
        B, Sq, M = x.shape[0], x.shape[1], x.shape[2]
        Sk = c_kv.shape[1]
        H, D = w_q.shape[1], w_q.shape[2]
        q = torch.einsum("bqm,mhd->bhqd", x, w_q)
        k = torch.einsum("bkc,chd->bhkd", c_kv, w_uk)
        v = torch.einsum("bkc,chd->bhkd", c_kv, w_uv)
        scores = torch.einsum("bhqd,bhkd->bhqk", q, k) * (D ** -0.5)
        off = Sk - Sq
        qi = torch.arange(Sq)[:, None]
        kj = torch.arange(Sk)[None, :]
        cmask = kj <= (qi + off)
        scores = torch.where(cmask[None, None], scores, -1e9)
        p = _softmax(scores, axis=-1)
        ctx = torch.einsum("bhqk,bhkd->bhqd", p, v)
        return torch.einsum("bhqd,hdm->bqm", ctx, w_o)

    def _B_ref(x, wqkv, wo):
        B, S, D = x.shape
        H = 32
        Dh = D // H
        qkv = (lambda x, *d: x.permute(*d))((x @ wqkv).reshape(B, S, 3, H, Dh), 2, 0, 3, 1, 4)
        q, k, v = qkv[0], qkv[1], qkv[2]
        scores = torch.einsum("bhqd,bhkd->bhqk", q, k) * (Dh ** -0.5)
        p = _softmax(scores, axis=-1)
        o = torch.einsum("bhqk,bhkd->bhqd", p, v)
        return (lambda x, *d: x.permute(*d))(o, 0, 2, 1, 3).reshape(B, S, D) @ wo

    x = A_x
    g = _sigmoid((x * gate_w).sum(-1, keepdims=True))
    a = _A_ref(x, A_c_kv, A_w_q, A_w_uk, A_w_uv, A_w_o)
    b = _B_ref(x, B_wqkv, B_wo)
    return g * a + (1 - g) * b
```

```python
import re

def vr(b, n=1, k='v'):
    return f"{k}{b}" if n == 1 else f"{k}[{b}:{b+n-1}]"
def ar(b, n=1): return vr(b, n, 'a')
def sr(b, n=1): return vr(b, n, 's')

TRANS = ("v_exp_f32", "v_log_f32", "v_rcp_f32", "v_rsq_f32", "v_sqrt_f32")

def cost(ins):
    m = ins.split()[0]
    if m in TRANS: return 8
    if m.startswith("v_mfma"): return 8
    if m == "s_nop": return 4 * (int(ins.split()[1]) + 1)
    if m.endswith(":") or m.startswith(";") or m.startswith("."): return 0
    return 4

def klass(ins):
    m = ins.split()[0]
    if m.startswith("LG"): return "s"
    if m.startswith("v_"): return "v"
    if m.startswith("ds_") or m.startswith("buffer_") or m.startswith("global_"): return "m"
    return "s"
def vcost(ins):
    m = ins.split()[0]
    if m in TRANS or m.startswith("v_permlane"): return 8
    if m == "s_nop": return 4 * (int(ins.split()[1]) + 1)
    return 4
def conflict(a, b):
    if a.startswith("LG") or b.startswith("LG"): return True
    ma, da, ua, ka = parse(a); mb_, db, ub, kb = parse(b)
    if ka == "ctl" or kb == "ctl": return True
    return bool(set(da) & set(ub) or set(ua) & set(db) or set(da) & set(db))
def order(lst):
    out = []
    for ins in lst:
        p = len(out)
        if klass(ins) != "v":
            while p > 0 and klass(out[p-1]) == "v" and not conflict(out[p-1], ins): p -= 1
            if klass(ins) == "m":
                q = p
                while q > 0 and klass(out[q-1]) == "s" and not conflict(out[q-1], ins) and not out[q-1].startswith("s_"): q -= 1
        out.insert(p, ins)
    return out
def gapcost(lst):
    t = 4; prev = None; nm = 0
    for ins in lst:
        k = klass(ins)
        if k == "v": t = max(t, 8) + vcost(ins)
        elif k == "s": t += vcost(ins)
        else:
            if prev == "v": t += 12
            elif prev == "m": t += 6
            else: t += 8
        prev = k
    return max(t, 8)

class Sched:
    def __init__(self, mfmas, budget):
        self.m = mfmas
        self.n = len(mfmas)
        self.gap = [[] for _ in mfmas]
        self.pre = [[] for _ in mfmas]
        self.budget = budget
    def load(self, g, extra=()):
        l = order(self.gap[g] + list(extra))
        if g + 1 < self.n: l = l + self.pre[g + 1]
        return gapcost(l)
    def add(self, g, ins):
        if isinstance(ins, str): ins = [ins]
        self.gap[g].extend(ins)
    def before(self, g, ins):
        if isinstance(ins, str): ins = [ins]
        self.pre[g].extend(ins)
    def fill(self, items, g0, g1):
        n = len(items); pos = []
        g = g0
        for i, it in enumerate(items):
            grp = [it] if isinstance(it, str) else list(it)
            want = g0 + (i * (g1 - g0)) // n
            g = max(g, want)
            lim = min(g1, g + 6)
            gg = g
            while gg < lim and self.load(gg, grp) > self.budget: gg += 1
            if gg >= lim:
                gg = min(range(g, min(g1, g + 2)), key=lambda x: self.load(x, grp) - max(self.load(x), self.budget))
            g = gg
            self.gap[g].extend(grp); pos.append(g)
        return pos
    def pack(self, items, g0, g1):
        g = g0; pos = []
        for it in items:
            grp = [it] if isinstance(it, str) else list(it)
            while g < g1 - 1 and self.load(g, grp) > self.budget: g += 1
            self.gap[g].extend(grp); pos.append(g)
        return pos
    def emit(self):
        out = []
        for g in range(self.n):
            out += self.pre[g]; out.append(self.m[g]); out += order(self.gap[g])
        return out
    def over(self):
        return sum(max(0, self.load(g) - self.budget) for g in range(self.n))

_R = re.compile(r"^-?(?:abs\()?([vas])(?:\[(\d+):(\d+)\]|(\d+))\)?$")
def regs(op):
    op = op.strip()
    if op in ("vcc",): return ["vcc"]
    if op in ("exec",): return ["exec"]
    if op == "m0": return ["m0"]
    m = _R.match(op)
    if not m: return []
    if m.group(4) is not None: return [m.group(1) + m.group(4)]
    return [m.group(1) + str(i) for i in range(int(m.group(2)), int(m.group(3)) + 1)]

def parse(ins):
    ins = ins.split(";")[0].strip()
    p = ins.split(None, 1)
    m = p[0]
    ops = []
    if len(p) > 1:
        ops = [o.strip() for o in p[1].split(",")]
        last = ops[-1].split()
        ops[-1] = last[0] if last else ""
        mods = last[1:]
    else: mods = []
    R = [regs(o) for o in ops]
    flat = lambda l: [x for y in l for x in y]
    if m.startswith("v_mfma"): return m, R[0], flat(R[1:]), "mfma"
    if m.startswith("ds_read"): return m, R[0], flat(R[1:]), "ldsld"
    if m.startswith("ds_write") or m.startswith("ds_add"): return m, [], flat(R), "ldsst"
    if m.startswith("ds_bpermute") or m.startswith("ds_swizzle"): return m, R[0], flat(R[1:]), "ldsld"
    if m.startswith("buffer_load"):
        if "lds" in mods: return m, [], flat(R) + ["m0"], "dma"
        return m, R[0], flat(R[1:]), "vmld"
    if m.startswith("global_load"): return m, R[0], flat(R[1:]), "vmld"
    if m.startswith("buffer_store") or m.startswith("global_store"): return m, [], flat(R), "vmst"
    if m.startswith("s_load") : return m, R[0], flat(R[1:]), "smem"
    if m.startswith("s_memtime") or m.startswith("s_memrealtime"): return m, R[0], [], "smem"
    if m.startswith("v_permlane"): return m, R[0] + R[1], R[0] + R[1], "valu"
    if m.startswith("v_cmp"): return m, R[0], flat(R[1:]), "valu"
    if m.startswith("v_readfirstlane") or m.startswith("v_readlane"): return m, R[0], flat(R[1:]), "valu"
    if m.startswith("v_fmac") : return m, R[0], flat(R), "valu"
    if m.startswith("v_cndmask"):
        u = flat(R[1:])
        if len(ops) == 3: u.append("vcc")
        return m, R[0], u, "valu"
    if m.startswith("v_"): return m, R[0] if R else [], flat(R[1:]), "valu"
    if m in ("s_waitcnt", "s_barrier", "s_nop", "s_endpgm", "s_setprio") or m.startswith("s_cbranch") or m == "s_branch": return m, [], [], "ctl"
    if m.startswith("s_cmp") or m.startswith("s_bitcmp"): return m, ["scc"], flat(R), "salu"
    if m.startswith("s_"):
        d = list(R[0]) if R else []; u = flat(R[1:])
        if m.startswith("s_cselect") or m.startswith("s_addc") or m.startswith("s_subb"): u = u + ["scc"]
        if not (m.startswith("s_mov") or m.startswith("s_cselect") or m.startswith("s_mul") or m.startswith("s_getpc") or m.startswith("s_getreg")): d = d + ["scc"]
        return m, d, u, "salu"
    raise Exception("unparsed " + ins)

def check_trace(trace, name=""):
    errs = []
    lg = []
    vm = []
    pend = {}
    last = {}
    lastC = {}
    laststore = {}
    st = 0
    for idx, ins in enumerate(trace):
        s = ins.split(";")[0].strip()
        if not s or s.endswith(":") or s.startswith("."): continue
        m, d, u, k = parse(s)
        def err(msg): errs.append(f"{name}[{idx}] {s}: {msg}")
        if m == "s_waitcnt":
            mm = re.search(r"vmcnt\((\d+)\)", s)
            if mm:
                n = int(mm.group(1))
                while len(vm) > n:
                    for r in vm.pop(0): pend.pop(r, None)
            mm = re.search(r"lgkmcnt\((\d+)\)", s)
            if mm:
                n = int(mm.group(1))
                if n > 0 and any(x[0] == "smem" for x in lg): err("counted lgkmcnt with smem outstanding")
                while len(lg) > n:
                    for r in lg.pop(0)[1]: pend.pop(r, None)
            st += 1; continue
        if m == "s_nop":
            st += int(s.split()[1]) + 1; continue
        for r in u + d:
            if r in pend: err(f"{r} has outstanding {pend[r]} load")
        for r in u:
            if r in last:
                ws, wk, wp, wm = last[r]; dist = st - ws - 1
                if wk == "valu" and k == "mfma" and dist < 2: err(f"valu->mfma {r} dist {dist}")
                if wk == "valu" and m.startswith("v_permlane") and dist < 2: err(f"valu->permlane {r} dist {dist}")
                if wk == "valu" and (m.startswith("v_readfirstlane") or m.startswith("v_readlane")) and r[0] == 'v' and r != 'vcc' and dist < 1: err(f"valu->readlane {r}")
                if wk == "valu" and wm in TRANS and k == "valu" and m not in TRANS and dist < 1: err(f"trans->valu {r}")
                if wk == "valu" and (r[0] == 's' or r == 'vcc') and k == "valu" and dist < 2: err(f"valu sgpr->valu {r} dist {dist}")
                if wk == "valu" and r[0] == 's' and k in ("vmld", "vmst", "dma") and dist < 5: err(f"valu sgpr->vmem {r}")
                if wk == "salu" and r == "m0" and k == "dma" and dist < 1: err("m0->dma")
                if wk == "mfma":
                    need = {4: 8, 8: 12}[wp]
                    if k == "mfma":
                        ops = [o.strip() for o in s.split(None, 1)[1].split(",")]
                        inC = r in regs(ops[3]); inAB = r in regs(ops[1]) + regs(ops[2])
                        if inAB and dist < need: err(f"mfma D->mfma A/B {r} dist {dist}")
                        if inC and not inAB:
                            exact = (last[r][3] == (m, ops[3]))
                            if not exact and dist < need - 2: err(f"mfma D->mfma C overlap {r} dist {dist}")
                    elif dist < need: err(f"mfma D->{k} read {r} dist {dist} need {need}")
        for r in d:
            if r in last and last[r][1] == "mfma" and k in ("valu", "ldsld", "vmld"):
                need = {4: 8, 8: 12}[last[r][2]]; dist = st - last[r][0] - 1
                if dist < need: err(f"mfma D->{k} write {r} dist {dist}")
            if r in last and last[r][1] == "mfma" and k == "mfma":
                ops = [o.strip() for o in s.split(None, 1)[1].split(",")]
                if last[r][3] != (m, ops[0]):
                    need = {4: 8, 8: 12}[last[r][2]]; dist = st - last[r][0] - 1
                    if dist < need: err(f"mfma D->mfma D (waw, different shape) {r}")
            if r in lastC and k == "valu":
                need = {4: 3, 8: 7}[lastC[r][1]]; dist = st - lastC[r][0] - 1
                if dist < need: err(f"mfma srcC read -> valu write {r} dist {dist}")
            if r in laststore and k == "valu" and st - laststore[r] - 1 < 2: err(f"store data WAR {r}")
        if k == "mfma":
            passes = 8 if "32x32" in m else 4
            ops = [o.strip() for o in s.split(None, 1)[1].split(",")]
            for r in d: last[r] = (st, "mfma", passes, (m, ops[0]))
            for r in regs(ops[3]): lastC[r] = (st, passes)
        else:
            for r in d: last[r] = (st, k, 0, m)
        if k == "ldsld": lg.append(("lds", d)); [pend.__setitem__(r, "lds") for r in d]
        elif k == "ldsst": lg.append(("lds", []))
        elif k == "smem": lg.append(("smem", d)); [pend.__setitem__(r, "smem") for r in d]
        elif k == "vmld": vm.append(d); [pend.__setitem__(r, "vm") for r in d]
        elif k in ("vmst", "dma"):
            vm.append([])
            if k == "vmst" and ("x4" in m or "x3" in m):
                ops = [o.strip() for o in s.split(None, 1)[1].split(",")]
                for r in regs(ops[0] if m.startswith("buffer") else ops[1]): laststore[r] = st
        if len(vm) > 63: err("vmcnt overflow >63")
        st += 1
    return errs

def resolve_vm(traces):
    res = {}
    for tr in traces:
        ops = []
        for ins in tr:
            s = ins.split(";")[0].strip()
            if not s or s.endswith(":") or s.startswith("."): continue
            mm = re.search(r"vmcnt\(@(\w+):(\d+):(\w+)\)", s)
            if mm:
                wid, k, cls = mm.group(1), int(mm.group(2)), mm.group(3)
                ends = [i for i, o in enumerate(ops) if o == cls]
                if len(ends) > k:
                    n = len(ops) - 1 - ends[len(ends) - 1 - k]
                    res[wid] = min(res.get(wid, 63), n)
                else:
                    raise Exception(f"wait {wid}: no group to wait for")
                continue
            m = s.split()[0]
            if m.startswith("buffer_") or m.startswith("global_"):
                g = re.search(r"grpend:(\w+)", ins)
                ops.append(g.group(1) if g else None)
    return res

def apply_vm(code, res):
    def f(ins):
        return re.sub(r"vmcnt\(@(\w+):(\d+):(\w+)\)", lambda m: f"vmcnt({res[m.group(1)]})", ins)
    return [f(i) for i in code]

def kernel_desc(name, nvgpr, accum, nsgpr=102):
    return f""".amdhsa_kernel {name}
  .amdhsa_next_free_vgpr {nvgpr}
  .amdhsa_next_free_sgpr {nsgpr}
  .amdhsa_accum_offset {accum}
  .amdhsa_group_segment_fixed_size 0
  .amdhsa_kernarg_size 104
  .amdhsa_user_sgpr_count 2
  .amdhsa_user_sgpr_kernarg_segment_ptr 1
  .amdhsa_system_sgpr_workgroup_id_x 1
.end_amdhsa_kernel
"""
def fbits(x):
    import struct
    return struct.unpack("<I", struct.pack("<f", x))[0]

import os
PROF = int(os.environ.get("PROF", "0"))
WS_PROF = 79 * (1 << 20)
def prof_mark(i):
    if not PROF: return []
    if os.environ.get("PROFC") and 1 <= i <= 4:
        return [f"s_memtime s[{84+2*i}:{85+2*i}]", "s_waitcnt lgkmcnt(0)", f"s_sub_u32 s{84+2*i}, s{84+2*i}, s80"]
    return [f"s_memrealtime s[{84+2*i}:{85+2*i}]", "s_waitcnt lgkmcnt(0)"]
def prof_start():
    if not PROF: return []
    return ["s_memtime s[80:81]"] + [f"s_mov_b32 s{i}, 0" for i in range(84, 96)] + prof_mark(0)
def prof_end(kidx, sO, wave_sgpr):
    if not PROF: return []
    c = ["s_waitcnt vmcnt(0)", "s_memtime s[82:83]"] + prof_mark(5)
    c += ["s_sub_u32 s82, s82, s80", f"s_lshl_b32 s96, s2, 3", f"s_add_u32 s96, s96, s{wave_sgpr}", "s_lshl_b32 s96, s96, 5", f"s_add_u32 s96, s96, {WS_PROF + kidx * 131072}",
          "s_mov_b64 exec, 1", "v_mov_b32 v20, 0"]
    for j, s in enumerate([84, 86, 88, 90, 92, 94, 82]):
        c += [f"v_mov_b32 v21, s{s}", f"buffer_store_dword v21, v20, s[{sO}:{sO+3}], s96 offen offset:{4*j}"]
    c += ["s_getreg_b32 s97, hwreg(HW_REG_XCC_ID)", "v_mov_b32 v21, s97", f"buffer_store_dword v21, v20, s[{sO}:{sO+3}], s96 offen offset:28"]
    return c
```

```python
from asmlib import *
from layout import *
import os

NC_T, NX_T = 128, 88
NC_G, NX_G = 19, 13
def group_range(cg):
    if cg < NC_G: return (cg * NC_T) // NC_G, ((cg + 1) * NC_T) // NC_G
    k = cg - NC_G
    return NC_T + (k * NX_T) // NX_G, NC_T + ((k + 1) * NX_T) // NX_G
GATE_CG = [cg for cg in range(NC_G, 32) if group_range(cg)[1] - group_range(cg)[0] == 6][0]

def table():
    rows = []
    for T in range(NC_T + NX_T + 1):
        e = [0] * 16
        one = fbits(1.0)
        if T < 64:
            h, half = T >> 1, T & 1
            e[:12] = [0, T * 128, 8192, 0, 1024, 512, 2048, 16384, 256, one, WS_KV + h * 64 * 16384 + half * 4096, 16384]
        elif T < 128:
            t = T - 64; h, half = t >> 1, t & 1
            e[:12] = [1, t * 128, 8192, 1, 1024, 512, 16384, 2048, 256, one, WS_KV + h * 64 * 16384 + 8192 + half * 4096, 16384]
        elif T < 192:
            t = T - 128; h, half = t >> 1, t & 1
            e[:12] = [0, t * 128, 8192, 0, 1024, 512, 2048, 8192, 256, fbits(LOG2E * 128 ** -0.5), WS_QA + h * 64 * 8192 + half * 4096, 8192]
        elif T < 200:
            t = T - 192
            e[:12] = [1, t * 128, 3072, 0, 65536, 512, 131072, 1024, 256, fbits(LOG2E * 0.25), WS_QB + 4 * t * 65536, 1024]
        elif T < 208:
            t = T - 200
            e[:12] = [1, 1024 + t * 128, 3072, 0, 131072, 512, 262144, 2048, 256, one, WS_KVB + 4 * t * 131072, 2048]
        elif T < 216:
            t = T - 208
            e[:12] = [1, 2048 + t * 128, 3072, 1, 512, 256, 2048, 262144, 131072, one, WS_KVB + 4 * t * 131072 + 1024, 2048]
        rows.append(e)
    return rows

ACC = [64, 128]; WR = [192, 208]; TMP = 224
vW = [1, 2, 3, 4]; vWD = [5, 6]; vXD = [7, 8]; vXR = [9, 10]
vG1, vG2, vJQ, vJV, vEP, vL3, vWC = 11, 12, 13, 14, 15, 16, 17
sX, sW, sO = 8, 12, 16
sWP0, sWP1, sWS0, sWS1 = 20, 22, 24, 25
sWAVE, sRT, sU, sEND = 26, 27, 28, 29
sLW, sLX, sWOFF, sST8, sST104, sXOFF, sTAB, sCG = 30, 31, 32, 33, 34, 35, 36, 38
sO0 = 40
sT0, sT1 = 44, 45
sD = 60
sE = 64
XB = 65536

def xa(rt, ks): return (ks * 4 + rt) * 4
def acc(p, I, J): return ACC[p] + (I * 4 + J) * 4

def mfmas(p, o):
    out = []
    for s in range(4):
        for c in range(4):
            wb = WR[c & 1]
            for r in range(4):
                for ks in range(4):
                    d = acc(p, c, r) if o == 0 else acc(p, r, c)
                    w = vr(wb + 4 * ks, 4); x = ar(xa(r, 4 * s + ks), 4)
                    a, b = (w, x) if o == 0 else (x, w)
                    cin = "0" if (s == 0 and ks == 0) else vr(d, 4)
                    out.append(f"v_mfma_f32_16x16x32_bf16 {vr(d,4)}, {a}, {b}, {cin}")
    return out

def tr_reads(s, c):
    wb = WR[c & 1]
    return [f"ds_read_b64_tr_b16 {vr(wb + 4*ks + 2*e, 2)}, v{vW[c]} offset:{s*16384 + ks*4096 + e*512}" for ks in range(4) for e in range(2)]

def w_dma(s):
    out = []
    for i in range(4):
        out += [f"s_add_u32 m0, s{sLW}, {s*16384 + i*1024}", f"s_add_u32 s{sWOFF}, s{sWOFF}, s{sST104 if i == 0 else sST8}"]
        out.append(f"buffer_load_dwordx4 v{vWD[i&1]}, {sr(sW,4)}, s{sWOFF} offen lds" + (" ; grpend:w" if i == 3 else ""))
    return out

def x_dma(sc):
    out = []
    for i in range(8):
        out += [f"s_add_u32 m0, s{sLX}, {(sc % 3)*8192 + i*1024}", f"s_add_u32 s{sT0}, s{sXOFF}, {sc*128 + i*8192}"]
        out.append(f"buffer_load_dwordx4 v{vXD[i&1]}, {sr(sX,4)}, s{sT0} offen lds" + (" ; grpend:x" if i == 7 else ""))
    return out

def x_reads(sc):
    return [f"ds_read_b128 {ar(xa(rt, 2*sc + k2), 4)}, v{vXR[k2]} offset:{(sc % 3)*8192 + rt*2048}" for k2 in range(2) for rt in range(4)]

def flat(l):
    o = []
    for x in l: o += [x] if isinstance(x, str) else x
    return o

def d_load(nxt):
    return [f"s_lshl_b32 s{sT1}, s{sU}, 6", f"s_add_u32 s{sT1}, s{sT1}, {64*nxt}", f"s_load_dwordx4 {sr(sD,4)}, {sr(sTAB,2)}, s{sT1}"]
def d_proc(nxt):
    o = [[f"s_cmp_eq_u32 s{sD}, 0", f"s_cselect_b64 {sr(sW,2)}, {sr(sWP0,2)}, {sr(sWP1,2)}"],
         [f"s_cmp_eq_u32 s{sD}, 0", f"s_cselect_b32 s{sW+2}, s{sWS0}, s{sWS1}"]]
    if nxt:
        o += [f"s_add_u32 s{sT1}, s{sU}, {nxt if not os.environ.get('K1_NODMA') else 100}", [f"s_cmp_lt_u32 s{sT1}, s{sEND}", f"s_cselect_b32 s{sW+2}, s{sW+2}, 0"]]
    o += [f"s_lshl_b32 s{sST8}, s{sD+2}, 3", f"s_mul_i32 s{sST104}, s{sD+2}, 104",
          f"s_mul_i32 s{sT1}, s{sST8}, s{sWAVE}", f"s_lshl_b32 s{sT1}, s{sT1}, 2",
          f"s_add_u32 s{sWOFF}, s{sT1}, s{sD+1}", f"s_sub_u32 s{sWOFF}, s{sWOFF}, s{sST104}",
          f"v_mad_u32_u24 v{vWD[0]}, v{vL3}, s{sD+2}, v{vWC}", f"v_xor_b32 v{vWD[1]}, 64, v{vWD[0]}"]
    return o
def e_load():
    return [f"s_lshl_b32 s{sT1}, s{sU}, 6", f"s_add_u32 s{sT1}, s{sT1}, 16", f"s_load_dwordx8 {sr(sE,8)}, {sr(sTAB,2)}, s{sT1}"]
def e_proc(o):
    return [f"s_mul_i32 s{sT1}, s{sE+7}, s{sRT}", f"s_add_u32 s{sO0}, s{sE+6}, s{sT1}",
            f"s_add_u32 s{sO0+1}, s{sO0}, s{sE+4}", f"s_add_u32 s{sO0+2}, s{sO0}, s{sE+3}", f"s_add_u32 s{sO0+3}, s{sO0+2}, s{sE+4}",
            f"v_mad_u32_u24 v{vEP}, v{vG1}, s{sE}, v{vJQ if o == 0 else vJV}", f"v_mad_u32_u24 v{vEP}, v{vG2}, s{sE+1}, v{vEP}"]

def epilogue(p):
    out = []; n = 0
    for pp in range(2):
        for J in range(4):
            t = TMP + (n % 4) * 4; n += 1
            T0, T1 = acc(p, 2*pp, J), acc(p, 2*pp+1, J)
            for T in (T0, T1):
                for r in range(4): out.append(f"v_mul_f32 v{T+r}, s{sE+5}, v{T+r}")
            out += [f"v_cvt_pk_bf16_f32 v{t}, v{T0}, v{T0+1}", f"v_cvt_pk_bf16_f32 v{t+2}, v{T1}, v{T1+1}",
                    f"v_cvt_pk_bf16_f32 v{t+1}, v{T0+2}, v{T0+3}", f"v_cvt_pk_bf16_f32 v{t+3}, v{T1+2}, v{T1+3}",
                    f"v_permlane16_swap_b32 v{t}, v{t+2}"]
            out.append(f"s_add_u32 s{sO0+J}, s{sO0+J}, s{sE+2}" if pp == 1 else "s_nop 0")
            out += [f"v_permlane16_swap_b32 v{t+1}, v{t+3}",
                    f"buffer_store_dwordx4 {vr(t,4)}, v{vEP}, {sr(sO,4)}, s{sO0+J} offen" + os.environ.get("K1_STMOD", "") if not os.environ.get("K1_NOST") else "s_nop 0"]
    return out

def body(p, o, first):
    S = Sched(mfmas(p, o), 16)
    tag = f"{'F' if first else 'B'}{o}{p}"
    for s in range(4):
        for c in range(4):
            g0 = s * 64 + c * 16
            w = "s_waitcnt lgkmcnt(0)"
            xs = None
            if first and (s, c) in ((0,1),(0,3),(1,1),(1,3),(2,1),(2,3)):
                xs = 2 * s + 2 + (c == 3)
            if c == 3:
                S.before(g0, [f"s_waitcnt vmcnt(@{tag}w{s}:2:w) lgkmcnt(0)", "s_barrier"])
            else:
                S.before(g0, w)
            if xs is not None:
                S.before(g0, f"s_waitcnt vmcnt(@{tag}x{xs}:{min(2, 7-xs)}:x)")
            ns, nc = (s, c + 1) if c < 3 else ((s + 1) & 3, 0)
            rd = tr_reads(ns, nc)
            for i, r in enumerate(rd): S.add(g0 + i, r)
            if xs is not None:
                for i, r in enumerate(x_reads(xs)): S.add(g0 + i, r)
            if c == 3: S.pack(w_dma(s), g0 + (8 if xs is not None else 0), g0 + 16)
    if first:
        S.pack(x_dma(5), 32, 48); S.pack(x_dma(6), 64, 80); S.pack(x_dma(7), 96, 112)
        S.pack(d_load(1), 0, 16); S.pack(d_proc(1), 16 + 8, 32)
    else:
        S.pack(d_load(1), 0, 16); S.pack(d_proc(1), 16, 32)
        S.fill(epilogue(1 - p), 3, 188)
    S.pack(e_load(), 192, 208); S.pack(e_proc(o), 208, 224)
    code = [f"K1_{tag}:"] + S.emit()
    if first and PROF != 2: code += prof_mark(2)
    code += [f"s_add_u32 s{sU}, s{sU}, 1", f"s_cmp_ge_u32 s{sU}, s{sEND}", f"s_cbranch_scc1 K1_D{p}",
             f"s_cmp_eq_u32 s{sD+3}, 0", f"s_cbranch_scc1 K1_B0{1-p}", f"s_branch K1_B1{1-p}"]
    return code, S.over()

def prologue():
    c = []
    A = c.append
    A("s_cmp_ge_u32 s2, 256"); A("s_cbranch_scc1 K1_END")
    c += prof_start()
    A(f"s_load_dwordx4 s[48:51], s[0:1], {KA_X}")
    A(f"s_load_dwordx4 s[52:55], s[0:1], {KA_WQ}")
    A(f"s_load_dwordx2 s[56:57], s[0:1], {KA_WUV}")
    A(f"s_load_dwordx2 s[58:59], s[0:1], {KA_WQKV}")
    A(f"s_load_dwordx2 {sr(sO,2)}, s[0:1], {KA_WS}")
    A(f"s_getpc_b64 {sr(sTAB,2)}")
    A("K1_PC:")
    A(f"s_add_u32 s{sTAB}, s{sTAB}, K1_TAB-K1_PC"); A(f"s_addc_u32 s{sTAB+1}, s{sTAB+1}, 0")
    A("s_and_b32 s3, s2, 7"); A("s_lshr_b32 s4, s2, 3"); A("s_and_b32 s5, s4, 7")
    A("s_lshr_b32 s4, s4, 3"); A("s_lshl_b32 s3, s3, 2"); A(f"s_add_u32 s{sCG}, s3, s4")
    m19 = (1 << 32) // 19 + 1; m13 = (1 << 32) // 13 + 1
    A(f"s_lshl_b32 s3, s{sCG}, 7"); A(f"s_mul_hi_u32 s6, s3, {m19}"); A("s_add_u32 s3, s3, 128"); A(f"s_mul_hi_u32 s7, s3, {m19}")
    A(f"s_sub_u32 s4, s{sCG}, {NC_G}"); A(f"s_mul_i32 s4, s4, {NX_T}"); A(f"s_mul_hi_u32 s46, s4, {m13}"); A(f"s_add_u32 s4, s4, {NX_T}"); A(f"s_mul_hi_u32 s47, s4, {m13}")
    A("s_add_u32 s46, s46, 128"); A("s_add_u32 s47, s47, 128")
    A(f"s_cmp_lt_u32 s{sCG}, {NC_G}"); A(f"s_cselect_b32 s{sU}, s6, s46"); A(f"s_cselect_b32 s{sEND}, s7, s47")
    A(f"s_lshl_b32 s{sT1}, s{sU}, 6")
    A(f"s_load_dwordx4 {sr(sD,4)}, {sr(sTAB,2)}, s{sT1}")
    for i in range(1, 8):
        A(f"s_add_u32 s{sT1}, s{sT1}, 64"); A(f"s_load_dword s{72+i}, {sr(sTAB,2)}, s{sT1}")
    A("v_lshrrev_b32 v20, 6, v0"); A("v_and_b32 v21, 63, v0")
    A(f"v_readfirstlane_b32 s{sWAVE}, v20")
    A("v_lshrrev_b32 v22, 4, v21")
    A("v_and_b32 v23, 15, v21")
    A(f"v_and_b32 v{vG1}, 1, v22"); A(f"v_lshrrev_b32 v{vG2}, 1, v22")
    A(f"v_lshlrev_b32 v{vJV}, 4, v23")
    A("v_and_b32 v24, 3, v23"); A("v_bfe_u32 v25, v23, 2, 1"); A("v_bfe_u32 v26, v23, 3, 1")
    A("v_lshl_add_u32 v24, v25, 3, v24"); A("v_lshl_add_u32 v24, v26, 2, v24")
    A(f"v_lshlrev_b32 v{vJQ}, 4, v24")
    A("v_lshrrev_b32 v25, 1, v24"); A("v_xor_b32 v25, v25, v22"); A("v_lshlrev_b32 v25, 4, v25"); A(f"v_lshl_add_u32 v{vXR[0]}, v24, 7, v25")
    A(f"v_lshrrev_b32 v{vL3}, 3, v21"); A("v_and_b32 v27, 7, v21")
    A("v_xor_b32 v28, v27, v22"); A("v_lshlrev_b32 v28, 4, v28"); A(f"v_lshl_add_u32 v{vXD[0]}, v{vL3}, 10, v28"); A(f"v_xor_b32 v{vXD[1]}, 64, v{vXD[0]}")
    A(f"v_lshlrev_b32 v28, 1, v{vG1}"); A("v_xor_b32 v28, v28, v27"); A(f"v_lshlrev_b32 v{vWC}, 4, v28")
    A("v_lshrrev_b32 v28, 2, v23"); A("v_lshl_add_u32 v29, v22, 3, v28"); A("v_lshlrev_b32 v29, 7, v29")
    A("v_and_b32 v30, 3, v23"); A("v_lshl_add_u32 v29, v30, 3, v29")
    A("v_lshrrev_b32 v28, 1, v28"); A(f"v_lshl_add_u32 v28, v{vG1}, 1, v28"); A("v_lshlrev_b32 v28, 5, v28")
    A(f"v_add_u32 v{vW[0]}, v29, v28")
    for ct in range(1, 4): A(f"v_xor_b32 v{vW[ct]}, {32*ct}, v{vW[0]}")
    A(f"s_lshl_b32 s{sLW}, s{sWAVE}, 12")
    A(f"s_mul_i32 s{sLX}, s{sWAVE}, 24576"); A(f"s_add_u32 s{sLX}, s{sLX}, {XB}")
    A(f"s_lshl_b32 s{sRT}, s5, 2"); A(f"s_add_u32 s{sRT}, s{sRT}, s{sWAVE}"); A(f"s_lshl_b32 s{sXOFF}, s{sRT}, 16"); A(f"s_lshl_b32 s{sRT}, s{sRT}, 1")
    A(f"v_add_u32 v{vXR[0]}, s{sLX}, v{vXR[0]}"); A(f"v_xor_b32 v{vXR[1]}, 64, v{vXR[0]}")
    A("s_waitcnt lgkmcnt(0)")
    if PROF == 2: c += prof_mark(1)
    A(f"s_cmp_lt_u32 s{sCG}, {NC_G}")
    A(f"s_cselect_b64 {sr(sX,2)}, s[50:51], s[48:49]")
    A(f"s_cselect_b64 {sr(sWP0,2)}, s[54:55], s[52:53]")
    A(f"s_cselect_b64 {sr(sWP1,2)}, s[56:57], s[58:59]")
    A(f"s_mov_b32 s{sWS0}, {4*MB}")
    A(f"s_cselect_b32 s{sWS1}, s{sWS0}, {512*3072}")
    A(f"s_mov_b32 s{sX+2}, {2*MB}"); A(f"s_mov_b32 s{sX+3}, 0x20000")
    A(f"s_mov_b32 s{sW+3}, 0x20000")
    A(f"s_mov_b32 s{sO+2}, {WS_END}"); A(f"s_mov_b32 s{sO+3}, 0x20000")
    c += flat(x_dma(0))
    c += flat(d_proc(0))
    c += flat(w_dma(0)) + flat(x_dma(1)) + flat(w_dma(1)) + flat(x_dma(2)) + flat(w_dma(2)) + flat(w_dma(3))
    if PROF == 2: c += prof_mark(2)
    A("s_waitcnt vmcnt(@Px0:2:x)")
    if PROF == 2: c += prof_mark(3)
    c += x_reads(0)
    A("s_waitcnt vmcnt(@Px1:1:x)"); A("s_barrier"); c += x_reads(1)
    A("s_waitcnt lgkmcnt(8)"); c += tr_reads(0, 0); c += flat(x_dma(3))
    A("s_waitcnt lgkmcnt(8)"); c += flat(x_dma(4))
    c += prof_mark(1 if PROF != 2 else 4)
    A(f"s_cmp_eq_u32 s{sD+3}, 0"); A("s_cbranch_scc0 K1_F10")
    return c

def drain(p):
    return [f"K1_D{p}:"] + (prof_mark(3) if PROF != 2 else []) + ["s_nop 7"] + epilogue(p) + ["s_branch K1_GATE"]

def gate():
    c = ["K1_GATE:", f"s_cmp_lg_u32 s{sCG}, {GATE_CG}", "s_cbranch_scc1 K1_FIN"]
    A = c.append
    A(f"s_load_dwordx2 s[48:49], s[0:1], {KA_GATE}")
    A("v_and_b32 v21, 63, v0"); A("v_lshrrev_b32 v22, 4, v21"); A("v_lshlrev_b32 v20, 4, v22")
    A("s_waitcnt lgkmcnt(0)")
    A("s_mov_b32 s50, 1024"); A("s_mov_b32 s51, 0x20000")
    A("s_nop 1")
    for ks in range(16): A(f"buffer_load_dwordx4 {vr(64+4*ks,4)}, v20, s[48:51], 0 offen offset:{ks*64}")
    A("s_waitcnt vmcnt(0)")
    for rt in range(4):
        for ks in range(16):
            A(f"v_mfma_f32_16x16x32_bf16 {vr(128+4*rt,4)}, {vr(64+4*ks,4)}, {ar(xa(rt,ks),4)}, " + ("0" if ks == 0 else vr(128+4*rt,4)))
    A("s_nop 7")
    A("v_cmp_eq_u32 vcc, 1, v22"); A("s_nop 1"); A("v_cndmask_b32 v128, v128, v132, vcc")
    A("v_cmp_eq_u32 vcc, 2, v22"); A("s_nop 1"); A("v_cndmask_b32 v128, v128, v136, vcc")
    A("v_cmp_eq_u32 vcc, 3, v22"); A("s_nop 1"); A("v_cndmask_b32 v128, v128, v140, vcc")
    A(f"v_mul_f32 v128, {hex(fbits(-LOG2E))}, v128"); A("v_exp_f32 v128, v128"); A("s_nop 0")
    A("v_add_f32 v128, 1.0, v128"); A("v_rcp_f32 v128, v128")
    A(f"v_lshrrev_b32 v23, 2, v{vJQ}"); A("v_lshl_add_u32 v23, v22, 6, v23")
    A(f"s_lshl_b32 s{sT0}, s{sRT}, 7"); A(f"s_add_u32 s{sT0}, s{sT0}, {WS_GATE}")
    A(f"buffer_store_dword v128, v23, {sr(sO,4)}, s{sT0} offen")
    A("K1_FIN:"); c += prof_end(0, sO, sWAVE)
    A("K1_END:"); A("s_endpgm")
    return c

def gen():
    P = prologue()
    segs = {}
    for o in range(2):
        segs[f"F{o}0"], ov = body(0, o, True); print("K1 F over", ov)
        for p in range(2):
            segs[f"B{o}{p}"], ov = body(p, o, False); print("K1 B over", ov)
    D = [drain(0), drain(1)]; G = gate()
    tab = table()
    traces = []
    for cg in range(32):
        a, b = group_range(cg)
        tr = list(P); p = 0
        for u in range(a, b):
            tr += segs[f"{'F' if u == a else 'B'}{tab[u][3]}{p}"]; p ^= 1
        tr += D[p ^ 1] + G
        traces.append(tr)
    res = resolve_vm(traces)
    errs = []
    for cg, tr in enumerate(traces): errs += check_trace(apply_vm(tr, res), f"k1cg{cg}")
    if errs:
        print("\n".join(errs[:30])); raise Exception("K1 hazards")
    code = P + segs["F00"] + segs["F10"] + segs["B00"] + segs["B01"] + segs["B10"] + segs["B11"] + D[0] + D[1] + G
    code = apply_vm(code, res)
    code += [".p2align 6", ".type K1_TAB,@object", "K1_TAB:"] + [".long " + ", ".join(hex(x) for x in e) for e in tab] + [".long " + ", ".join(["0"]*16)] * 7
    print("K1 vm waits", res, "gate cg", GATE_CG)
    return code

if __name__ == "__main__":
    c = gen(); print(len(c))
```

```python
from asmlib import *
from layout import *
import os

O_ = {'L': 0 + 32, 'H': 64 + 32}
S_ = [160, 176]; P_ = [192, 200]; CM = 208; TRI = 224
vK, vV, vL16, vDMA, vLO, vHI, vG = 1, 2, 3, 4, 5, 6, {'L': 7, 'H': 8}
vSUM = {'L': [9, 10], 'H': [11, 12]}
vT = 13
Q_ = {'L': 0, 'H': 32}; K_ = 64; V_ = 96
sWS = 8
sKV = 12
sWAVE, sI, sH, sCNT, sSEQ, sRD, sRK, sRV, sLW, sT0, sT1, sNST, sQL, sQH, sDT = 16, 17, 18, 19, 20, 21, 22, 23, 24, 25, 26, 27, 28, 29, 30
sOFF, s2I = 31, 32
BIG = fbits(-1.0e30)
RING = 5

def qk(j, sb, masked):
    o = []
    for ks in range(8):
        c = (vr(CM, 16) if masked else "0") if ks == 0 else vr(S_[sb], 16)
        o.append(f"v_mfma_f32_32x32x16_bf16 {vr(S_[sb],16)}, {ar(K_+4*ks,4)}, {ar(Q_[j]+4*ks,4)}, {c}")
    return o
def pv(j, pb, first=False):
    o = []
    for f in range(2):
        for dt in range(4):
            d = vr(O_[j] + 16*dt, 16)
            o.append(f"v_mfma_f32_32x32x16_bf16 {d}, {ar(V_+4*(f*4+dt),4)}, {vr(P_[pb]+4*f,4)}, {'0' if (first and f == 0) else d}")
    return o
def kread(t, ks): return f"ds_read_b128 {ar(K_+4*ks,4)}, v{vK} offset:{t*16384 + ks*1024}"
def vread(t, idx):
    f, dt = idx // 4, idx % 4
    return f"ds_read_b128 {ar(V_+4*idx,4)}, v{vV} offset:{t*16384 + 8192 + (dt*2+f)*1024}"
def sm(j, sb, pb):
    S = S_[sb]
    e = lambda r: f"v_exp_f32 v{S+r}, v{S+r}"
    a = lambda r: f"v_add_f32 v{vSUM[j][r&1]}, v{vSUM[j][r&1]}, v{S+r}"
    c = lambda k: f"v_cvt_pk_bf16_f32 v{P_[pb]+k}, v{S+2*k}, v{S+2*k+1}"
    g = [[e(0), e(1)]]
    for i in range(1, 15): g.append([a(i-1)] + ([c((i-2)//2)] if i % 2 == 0 else []) + [e(i+1)])
    g.append([a(14), a(15), c(7)])
    return g
def cm_ops():
    o = [[f"s_cmp_lt_i32 s{sDT}, 0", f"s_cselect_b32 s{sT0}, 0, {hex(BIG)}"], f"v_mov_b32 v{vLO}, s{sT0}",
         [f"s_cmp_le_i32 s{sDT}, 0", f"s_cselect_b32 s{sT0}, 0, {hex(BIG)}"], f"v_mov_b32 v{vHI}, s{sT0}", f"s_add_u32 s{sDT}, s{sDT}, 1"]
    o += [f"v_med3_f32 v{CM+r}, v{TRI+r}, v{vLO}, v{vHI}" for r in range(16)]
    return o
def ring_adv(s, v):
    return [f"s_add_u32 s{s}, s{s}, 32768", [f"s_cmp_eq_u32 s{s}, {RING*32768}", f"s_cselect_b32 s{s}, 0, s{s}"], f"v_add_u32 v{v}, s{s}, v{vL16}"]
def dma_ops():
    o = [[f"s_cmp_le_u32 s{sSEQ}, s{s2I}", f"s_subb_u32 s{sOFF}, s{sSEQ}, 0"],
         f"s_lshl_b32 s{sOFF}, s{sOFF}, 15", f"s_add_u32 s{sSEQ}, s{sSEQ}, 1"]
    for i in range(8):
        if i % 4 == 0:
            o += [f"s_add_u32 m0, s{sRD}, {i*1024}", f"s_add_u32 s{sT1}, s{sOFF}, {i*1024}"]
        o.append(f"buffer_load_dwordx4 v{vDMA}, {sr(sKV,4)}, s{sT1} offen offset:{(i%4)*1024} lds" + (" ; grpend:kv" if i == 7 else ""))
    o += [f"s_add_u32 s{sRD}, s{sRD}, 32768", [f"s_cmp_ge_u32 s{sRD}, {RING*32768}", f"s_cselect_b32 s{sRD}, s{sLW}, s{sRD}"]]
    return o

cnt = [0]
def slot(qi, si, pi, n, kre, vre, bar=False, cm=False, kadv=False, vadv=False, pfirst=False, spill=None, nop=0, dma=None, bark=1):
    m = []
    if qi: m += qk(qi[0], (n + 1) & 1, qi[1])
    nq = len(m)
    if pi: m += pv(pi, (n + 1) & 1, pfirst)
    S = Sched(m, 32); N = len(m)
    cnt[0] += 1; tag = f"A{cnt[0]}"
    pre = []
    if qi: pre.append("LGK")
    if bar: pre += [f"s_waitcnt vmcnt(@{tag}:{bark}:kv)", "s_barrier"]
    S.before(0, pre)
    if pi: S.before(nq, "LGV")
    out_spill = None
    if nop: S.add(0, f"s_nop {nop-1}")
    if si:
        g = sm(si, n & 1, n & 1)
        if N == 16:
            for r in range(16): S.add(r, g[r])
        else:
            for r in range(16): S.add(r * N // 16, g[r])
    if kre is not None:
        for ks in range(8): S.add(ks, kread(kre, ks))
    if vadv: S.pack(ring_adv(sRV, vV), 2, max(3, nq))
    if vre is not None:
        if pi:
            for i in range(8): S.add(nq + i, vread(vre, i))
        else:
            for i in range(8): S.add(min(N - 1, max(3, i)), vread(vre, i))
    if kadv: S.pack(ring_adv(sRK, vK), 8, N)
    if dma:
        d = dma_ops(); parts = {1: d[:9], 2: d[9:], 21: d[9:13], 22: d[13:]}
        S.fill(parts[dma], 0, N)
    if cm: S.fill(cm_ops(), 2, N - 1)
    code = S.emit()
    X = os.environ.get("K2X", "")
    if "b" in X: code = [c for c in code if not (c.startswith("s_barrier") or "vmcnt" in c)]
    if "d" in X: code = [c for c in code if not (c.startswith("buffer_load") and "grpend" not in c)]
    if "e" in X: code = [c for c in code if not c.startswith("v_exp")]
    if "a" in X: code = [c for c in code if not c.startswith("v_add_f32")]
    if "c" in X: code = [c for c in code if not c.startswith("v_cvt")]
    if "r" in X: code = [c for c in code if not c.startswith("ds_read")]
    return code, out_spill, S.over()

def flat(l):
    o = []
    for x in l: o += [x] if isinstance(x, str) else x
    return o

def resolve_lg(traces):
    res = {}
    for tr in traces:
        q = []
        for ins in tr:
            if ins.startswith("LG"):
                lo = K_ if ins[2] == "K" else V_
                need = [i for i, b in enumerate(q) if b is not None and lo <= b < lo + 32]
                n = len(q) - 1 - need[-1] if need else 15
                n = min(n, 15)
                res[ins] = min(res.get(ins, 15), n)
                continue
            mm = re.match(r"ds_read_b128 a\[(\d+):", ins)
            if mm: q.append(int(mm.group(1)))
            elif ins.startswith("ds_"): q.append(None)
    return res

def uniq_lg(code, pfx):
    o = []
    for i, ins in enumerate(code):
        o.append(f"{ins}#{pfx}{i}" if ins in ("LGK", "LGV") else ins)
    return o

def section(slots, name, spill_in):
    code = []; sp = spill_in; ov = 0
    for kw in slots:
        c, sp, o = slot(spill=sp, **kw); code += c; ov += o
    print("K2", name, "over", ov)
    return uniq_lg(code, name), sp

def prologue():
    c = []; A = c.append
    A("s_cmp_ge_u32 s2, 256"); A("s_cbranch_scc1 K2_END")
    c += prof_start()
    A(f"s_load_dwordx2 {sr(sWS,2)}, s[0:1], {KA_WS}")
    A("v_lshrrev_b32 v20, 6, v0"); A("v_and_b32 v21, 63, v0")
    A(f"v_readfirstlane_b32 s{sWAVE}, v20")
    A("s_and_b32 s3, s2, 7"); A("s_lshr_b32 s4, s2, 3"); A(f"s_and_b32 s{sI}, s4, 7"); A("s_lshr_b32 s4, s4, 3")
    A("s_lshl_b32 s3, s3, 2"); A(f"s_add_u32 s{sH}, s3, s4")
    A(f"s_lshl_b32 s{s2I}, s{sI}, 1")
    A(f"v_lshlrev_b32 v{vL16}, 4, v21")
    A(f"s_lshl_b32 s{sLW}, s{sWAVE}, 13")
    A(f"v_add_u32 v{vDMA}, s{sLW}, v{vL16}")
    A(f"s_lshl_b32 s{sQL}, s{sI}, 2"); A(f"s_sub_u32 s{sQH}, 60, s{sQL}")
    A(f"s_add_u32 s{sQL}, s{sQL}, s{sWAVE}"); A(f"s_add_u32 s{sQH}, s{sQH}, s{sWAVE}")
    A(f"s_sub_u32 s{sNST}, 32, s{s2I}")
    A(f"s_lshl_b32 s5, s{sH}, 20"); A(f"s_add_u32 s5, s5, {WS_KV}")
    A(f"s_mov_b32 s{sWS+2}, {WS_END}"); A(f"s_mov_b32 s{sWS+3}, 0x20000")
    A(f"s_lshl_b32 s{sKV+2}, s{sNST}, 15"); A(f"s_mov_b32 s{sKV+3}, 0x20000")
    A("s_waitcnt lgkmcnt(0)")
    A(f"s_add_u32 s{sKV}, s{sWS}, s5"); A(f"s_addc_u32 s{sKV+1}, s{sWS+1}, 0")
    A(f"s_mov_b32 s{sRD}, s{sLW}")
    d0 = flat(dma_ops())
    A(f"s_lshl_b32 s{sOFF}, s{s2I}, 15"); A(f"s_mov_b32 s{sSEQ}, 1")
    c += d0[4:]
    for j, sq in (('L', sQL), ('H', sQH)):
        A(f"s_lshl_b32 s{sT0}, s{sH}, 6"); A(f"s_add_u32 s{sT0}, s{sT0}, s{sq}"); A(f"s_lshl_b32 s{sT0}, s{sT0}, 13")
        if WS_QA: A(f"s_add_u32 s{sT0}, s{sT0}, {WS_QA}")
        A(f"s_add_u32 s{sT1}, s{sT0}, 4096")
        for ks in range(8):
            A(f"buffer_load_dwordx4 {ar(Q_[j]+4*ks,4)}, v{vL16}, {sr(sWS,4)}, s{sT0 if ks < 4 else sT1} offen offset:{(ks%4)*1024}" + (" ; grpend:q" if ks == 7 else ""))
    c += d0
    A("v_and_b32 v22, 31, v21"); A("v_lshlrev_b32 v23, 2, v22")
    for j, sq in (('L', sQL), ('H', sQH)):
        A(f"s_lshl_b32 s{sT0}, s{sq}, 7"); A(f"s_add_u32 s{sT0}, s{sT0}, {WS_GATE}")
        A(f"buffer_load_dword v{vG[j]}, v23, {sr(sWS,4)}, s{sT0} offen")
    A("v_lshrrev_b32 v24, 5, v21"); A("v_lshlrev_b32 v24, 2, v24"); A("v_sub_u32 v24, v22, v24")
    A(f"v_mov_b32 v25, {hex(BIG)}")
    for r in range(16):
        A(f"v_cmp_gt_i32 vcc, {(r>>2)*8 + (r&3)}, v24"); A("s_nop 1"); A(f"v_cndmask_b32 v{TRI+r}, 0, v25, vcc")
    for j in 'LH':
        for k in range(2): A(f"v_mov_b32 v{vSUM[j][k]}, 0")
    A(f"s_sub_u32 s{sDT}, 0, s{sWAVE}")
    c += flat(cm_ops())
    A(f"s_mov_b32 s{sRK}, 0"); A(f"s_mov_b32 s{sRV}, 0"); A(f"v_mov_b32 v{vK}, v{vL16}"); A(f"v_mov_b32 v{vV}, v{vL16}")
    A("s_waitcnt vmcnt(@P0:1:kv)"); A("s_barrier")
    c += [kread(0, ks) for ks in range(8)]
    c += flat(dma_ops()[:9])
    A("s_waitcnt vmcnt(@P1:0:q)")
    c += prof_mark(1)
    return c

def epilogue():
    c = []; A = c.append
    c += prof_mark(3)
    A("s_waitcnt vmcnt(0)")
    T = vT
    for j in 'LH':
        s0, s1 = vSUM[j]
        A(f"v_add_f32 v{s0}, v{s0}, v{s1}"); A(f"v_mov_b32 v{s1}, v{s0}"); A("s_nop 1")
        A(f"v_permlane32_swap_b32 v{s0}, v{s1}"); A(f"v_add_f32 v{s0}, v{s0}, v{s1}")
    A(f"v_min_f32 v{T}, v{vSUM['L'][0]}, v{vSUM['H'][0]}"); A(f"v_max_f32 v{T+1}, v{vSUM['L'][0]}, v{vSUM['H'][0]}")
    A(f"v_add_f32 v{T+2}, v{vSUM['L'][0]}, v{vSUM['H'][0]}")
    A(f"v_cmp_gt_f32 vcc, {hex(fbits(2.0**-64))}, v{T}")
    A(f"v_cmp_nge_f32 s[34:35], v{T+2}, v{T+2}")
    A("s_or_b64 s[34:35], s[34:35], vcc")
    A(f"v_cmp_lt_f32 vcc, {hex(fbits(2.0**64))}, v{T+1}")
    A("s_or_b64 s[34:35], s[34:35], vcc")
    A("s_cbranch_scc1 K2_SLOW" if not os.environ.get("K2X") else "s_cbranch_execz K2_SLOW")
    A("K2_STORE:")
    n = 0
    for j, sq in (('L', sQL), ('H', sQH)):
        s0 = vSUM[j][0]
        A(f"v_rcp_f32 v{s0}, v{s0}")
        A(f"s_mul_i32 s{sT0}, s{sq}, {288*1024}"); A(f"s_lshl_b32 s{sT1}, s{sH}, 13"); A(f"s_add_u32 s{sT0}, s{sT0}, s{sT1}")
        A(f"s_add_u32 s{sT0}, s{sT0}, {WS_CTX}"); A(f"s_add_u32 s{sT1}, s{sT0}, 4096")
        A(f"v_mul_f32 v{s0}, v{s0}, v{vG[j]}")
        for fr in range(8):
            b = O_[j] + 8 * fr; t = 16 + (n % 4) * 4; n += 1
            for r in range(8): A(f"v_mul_f32 v{b+r}, v{b+r}, v{s0}")
            for r in range(4): A(f"v_cvt_pk_bf16_f32 v{t+r}, v{b+2*r}, v{b+2*r+1}")
            A(f"buffer_store_dwordx4 {vr(t,4)}, v{vL16}, {sr(sWS,4)}, s{sT0 if fr < 4 else sT1} offen offset:{(fr%4)*1024}")
    c += prof_end(1, sWS, sWAVE)
    A("K2_END:"); A("s_endpgm")
    return c

def slow():
    c = ["K2_SLOW:"]; A = c.append
    S = S_[0]; P = P_[0]; vM = vT
    def loadk():
        o = [f"s_lshl_b32 s{sT0}, s{sCNT}, 14", f"s_add_u32 s{sT1}, s{sT0}, 4096"]
        o += [f"buffer_load_dwordx4 {ar(K_+4*ks,4)}, v{vL16}, {sr(sKV,4)}, s{sT0 if ks < 4 else sT1} offen offset:{(ks%4)*1024}" for ks in range(8)]
        return o
    def mask(sq):
        return [f"s_sub_u32 s{sDT}, s{sCNT}, s{sq}"] + flat(cm_ops()) + ["s_nop 1"]
    for j, sq in (('L', sQL), ('H', sQH)):
        A(f"v_mov_b32 v{vM}, {hex(BIG)}"); A(f"s_mov_b32 s{sCNT}, 0")
        A(f"K2_SM{j}:")
        c += loadk() + mask(sq); A("s_waitcnt vmcnt(0)")
        c += qk(j, 0, True); A("s_nop 15")
        for r in range(16): A(f"v_max_f32 v{vM}, v{vM}, v{S+r}")
        A(f"s_add_u32 s{sCNT}, s{sCNT}, 1"); A(f"s_cmp_le_u32 s{sCNT}, s{sq}"); A(f"s_cbranch_scc1 K2_SM{j}")
        A(f"v_mov_b32 v{vM+1}, v{vM}"); A("s_nop 1"); A(f"v_permlane32_swap_b32 v{vM}, v{vM+1}"); A(f"v_max_f32 v{vM}, v{vM}, v{vM+1}")
        for r in range(64): A(f"v_mov_b32 v{O_[j]+r}, 0")
        s0, s1 = vSUM[j]
        A(f"v_mov_b32 v{s0}, 0"); A(f"s_mov_b32 s{sCNT}, 0")
        A(f"K2_SP{j}:")
        c += loadk()
        A(f"s_add_u32 s{sT0}, s{sT0}, 8192"); A(f"s_add_u32 s{sT1}, s{sT1}, 8192")
        for idx in range(8):
            f, dt = idx // 4, idx % 4; fo = dt * 2 + f
            A(f"buffer_load_dwordx4 {ar(V_+4*idx,4)}, v{vL16}, {sr(sKV,4)}, s{sT0 if fo < 4 else sT1} offen offset:{(fo%4)*1024}")
        c += mask(sq); A("s_waitcnt vmcnt(0)")
        c += qk(j, 0, True); A("s_nop 15")
        for r in range(16): A(f"v_sub_f32 v{S+r}, v{S+r}, v{vM}")
        for r in range(16): A(f"v_exp_f32 v{S+r}, v{S+r}")
        A("s_nop 0")
        for r in range(16): A(f"v_add_f32 v{s0}, v{s0}, v{S+r}")
        for r in range(8): A(f"v_cvt_pk_bf16_f32 v{P+r}, v{S+2*r}, v{S+2*r+1}")
        A("s_nop 1")
        c += pv(j, 0)
        A(f"s_add_u32 s{sCNT}, s{sCNT}, 1"); A(f"s_cmp_le_u32 s{sCNT}, s{sq}"); A(f"s_cbranch_scc1 K2_SP{j}")
        A(f"v_mov_b32 v{s1}, v{s0}"); A("s_nop 1"); A(f"v_permlane32_swap_b32 v{s0}, v{s1}"); A(f"v_add_f32 v{s0}, v{s0}, v{s1}")
        A("s_nop 15")
    A("s_branch K2_STORE")
    return c

def gen():
    cnt[0] = 0
    P = prologue()
    L, H = 'L', 'H'
    A_, sp = section([
        dict(qi=(L, True),  si=None, pi=None, n=-1, kre=None, vre=None, dma=2),
        dict(qi=(H, False), si=L, pi=None, n=0, kre=1, vre=0, cm=True, nop=10),
        dict(qi=(L, True),  si=H, pi=L, n=1, kre=None, vre=None, pfirst=True, kadv=True, nop=4, cm=True),
        dict(qi=(H, False), si=L, pi=H, n=2, kre=0, vre=1, bar=True, pfirst=True, dma=1),
    ], "stA", None)
    def dual(sp): return section([
        dict(qi=(L, False), si=H, pi=L, n=3, kre=None, vre=None, dma=21),
        dict(qi=(H, False), si=L, pi=H, n=0, kre=1, vre=0, vadv=True),
        dict(qi=(L, False), si=H, pi=L, n=1, kre=None, vre=None, kadv=True, dma=22),
        dict(qi=(H, False), si=L, pi=H, n=2, kre=0, vre=1, bar=True, dma=1),
    ], "dual", sp)
    D_, sp2 = dual(sp); assert sp2 == sp
    B_, sp = section([
        dict(qi=(L, True),  si=H, pi=L, n=3, kre=1, vre=None, cm=True),
        dict(qi=(L, True),  si=L, pi=H, n=0, kre=0, vre=0, vadv=True, dma=21),
        dict(qi=(H, False), si=L, pi=L, n=1, kre=1, vre=1, kadv=True, dma=22),
        dict(qi=(H, False), si=H, pi=L, n=2, kre=0, vre=0, bar=True, dma=1),
    ], "stB", sp)
    setdt = [f"s_sub_u32 s{sDT}, 0, s{sWAVE}"] + flat(cm_ops())
    def single(sp, name, m0, m1, cm0, cm1, bar=True): return section([
        dict(qi=(H, m0), si=H, pi=H, n=3, kre=1, vre=1, cm=cm0, kadv=bar, dma=None if m0 else 2),
        dict(qi=(H, m1), si=H, pi=H, n=0, kre=0 if bar else None, vre=0, bar=bar, vadv=True, cm=cm1, dma=None if m0 else 1, bark=0 if m0 else 1),
    ], name, sp)
    S_1, sp2 = single(sp, "single", False, False, False, False); assert sp2 == sp
    E1, sp = single(sp, "dg1", True, True, True, True)
    E2, sp = single(sp, "dg2", True, True, True, False, bar=False)
    E3, sp = section([
        dict(qi=None, si=H, pi=H, n=3, kre=None, vre=1),
        dict(qi=None, si=None, pi=H, n=0, kre=None, vre=None),
    ], "drain", sp)
    E3 = E3 + ["s_nop 15"]
    EP = epilogue(); SL = slow()
    lD = [f"s_mov_b32 s{sCNT}, s{s2I}", f"s_cmp_eq_u32 s{sCNT}, 0", "s_cbranch_scc1 K2_B", ".p2align 4", "K2_DL:"]
    lDe = [f"s_sub_u32 s{sCNT}, s{sCNT}, 1", f"s_cmp_lg_u32 s{sCNT}, 0", "s_cbranch_scc1 K2_DL", "K2_B:"]
    lS = setdt + [f"s_lshl_b32 s{sCNT}, s{s2I}, 1", f"s_sub_u32 s{sCNT}, 28, s{sCNT}", f"s_cmp_eq_u32 s{sCNT}, 0", "s_cbranch_scc1 K2_E", ".p2align 4", "K2_SL:"]
    lSe = [f"s_sub_u32 s{sCNT}, s{sCNT}, 1", f"s_cmp_lg_u32 s{sCNT}, 0", "s_cbranch_scc1 K2_SL", "K2_E:"]
    pm2 = prof_mark(2)
    traces = []
    for i in range(8):
        tr = P + A_ + lD
        for _ in range(2 * i): tr = tr + D_ + lDe
        tr = tr + B_ + pm2 + lS
        for _ in range(28 - 4 * i): tr = tr + S_1 + lSe
        tr = tr + E1 + E2 + E3 + EP
        traces.append(tr)
    lg = resolve_lg(traces)
    fix = lambda code: [f"s_waitcnt lgkmcnt({lg[x]})" if x.startswith("LG") else x for x in code]
    traces = [fix(t) for t in traces]
    res = resolve_vm(traces)
    errs = []
    for i, tr in enumerate(traces): errs += check_trace(apply_vm(tr, res), f"k2i{i}")
    k = [i for i, x in enumerate(EP) if x == "K2_STORE:"][0]
    errs += check_trace(EP[:k] + SL + EP[k:], "k2slow")
    if errs and not os.environ.get("K2X"):
        print("\n".join(errs[:30])); raise Exception("K2 hazards")
    code = P + A_ + lD + D_ + lDe + B_ + pm2 + lS + S_1 + lSe + E1 + E2 + E3 + EP + SL
    print("K2 vm", res); print("K2 lg", lg)
    return apply_vm(fix(code), res)

if __name__ == "__main__":
    c = gen(); print(len(c))
```

```python
from asmlib import *
from layout import *
import os
BIG = fbits(-1.0e30)
def flat(l):
    o = []
    for x in l: o += [x] if isinstance(x, str) else x
    return o

O_ = 64
S_ = [192, 208]; P_ = [224, 232]
KB = [32, 36]; VB = [40, 48]
Q_ = 0
vL16, vVA, vG = 1, 2, [3, 4]
sWS, sWAVE, sH, sQB, sCNT, sKO, sT0, sT1, sM = 8, 16, 17, 18, 19, 20, 21, 22, 24

def b_qk(j, kb, sb): return f"v_mfma_f32_32x32x16_bf16 {vr(S_[sb],16)}, {vr(KB[kb],4)}, {ar(Q_+4*j,4)}, 0"
def b_pv(j, vb, pb, f):
    d = vr(O_ + 16*j, 16)
    return f"v_mfma_f32_32x32x16_bf16 {d}, {vr(VB[vb]+4*f,4)}, {vr(P_[pb]+4*f,4)}, {d}"
def b_kload(b, off): return f"buffer_load_dwordx4 {vr(KB[b],4)}, v{vL16}, {sr(sWS,4)}, s{sKO} offen offset:{off}"
def b_vload(b, off):
    return [f"s_mov_b64 exec, {sr(sM,2)}"] + [f"buffer_load_dwordx4 {vr(VB[b]+4*f,4)}, v{vVA}, {sr(sWS,4)}, s{sKO} offen offset:{off + 1024 + 512*f}" for f in range(2)] + ["s_mov_b64 exec, -1"]

def b_slot(q, s, p, n, x0=(), x1=(), x2=(), w0=()):
    S = S_[n & 1]; P = P_[n & 1]
    e = lambda r: f"v_exp_f32 v{S+r}, v{S+r}"
    c = lambda k: f"v_cvt_pk_bf16_f32 v{P+k}, v{S+2*k}, v{S+2*k+1}"
    seq = [e(0), e(1), e(2), c(0), e(3), e(4), c(1), e(5),   e(6), c(2), e(7), e(8), c(3), e(9), e(10), c(4),   e(11), e(12), c(5), e(13), e(14), c(6), e(15), "s_nop 0", c(7)]
    if not s: seq = []
    o = list(w0)
    if q: o.append(b_qk(q[0], q[1], (n + 1) & 1))
    o += list(x0) + seq[:8]
    if p: o.append(b_pv(p[0], p[1], (n + 1) & 1, 0))
    o += list(x1) + seq[8:16]
    if p: o.append(b_pv(p[0], p[1], (n + 1) & 1, 1))
    o += list(x2) + seq[16:]
    return o

def b_body():
    o = []
    for n in range(16):
        qn = (n + 1) % 16; pn = (n - 1) % 16
        x0 = []; x2 = []; w0 = []
        if n == 6: x0 = [b_kload(0, 0)]
        if n == 14: x0 = [b_kload(1, 2048)]
        if n == 8: x2 = b_vload(0, 0)
        if n == 0: x2 = b_vload(1, 2048) + [f"s_add_u32 s{sKO}, s{sKO}, 4096"]
        if n in (7, 15): w0 = ["s_waitcnt vmcnt(3)"]
        if n in (1, 9): w0 = ["s_waitcnt vmcnt(3)"]
        o += b_slot((qn % 8, qn // 8), True, (pn % 8, pn // 8), n, x0=x0, x2=x2, w0=w0)
    return o

def attnb():
    c = []; A = c.append
    A("s_cmp_ge_u32 s2, 256"); A("s_cbranch_scc1 K3_END")
    c += prof_start()
    A(f"s_load_dwordx2 {sr(sWS,2)}, s[0:1], {KA_WS}")
    A("v_lshrrev_b32 v20, 6, v0"); A("v_and_b32 v21, 63, v0")
    A(f"v_readfirstlane_b32 s{sWAVE}, v20")
    A("s_and_b32 s3, s2, 7"); A("s_lshr_b32 s4, s2, 3"); A(f"s_and_b32 s{sQB}, s4, 7"); A("s_lshr_b32 s4, s4, 3")
    A("s_lshl_b32 s3, s3, 2"); A(f"s_add_u32 s{sH}, s3, s4")
    A(f"v_lshlrev_b32 v{vL16}, 4, v21")
    A("v_and_b32 v22, 15, v21"); A("v_lshrrev_b32 v23, 5, v21"); A("v_lshl_add_u32 v22, v23, 4, v22"); A(f"v_lshlrev_b32 v{vVA}, 4, v22")
    A(f"s_mov_b32 s{sM}, 0xffff"); A(f"s_mov_b32 s{sM+1}, 0xffff")
    A(f"s_mov_b32 s{sWS+2}, {WS_END}"); A(f"s_mov_b32 s{sWS+3}, 0x20000")
    A("v_and_b32 v22, 31, v21"); A("v_cmp_eq_u32 vcc, 16, v22"); A("v_mov_b32 v23, 0x3f803f80"); A("s_nop 0")
    for r in range(16): A(f"v_cndmask_b32 v{VB[0]+r}, 0, v23, vcc")
    A(f"s_lshl_b32 s{sKO}, s{sH}, 17"); A(f"s_lshl_b32 s{sT0}, s{sWAVE}, 15"); A(f"s_add_u32 s{sKO}, s{sKO}, s{sT0}"); A(f"s_add_u32 s{sKO}, s{sKO}, {WS_KVB}")
    A(f"s_lshl_b32 s{sT0}, s{sH}, 16"); A(f"s_lshl_b32 s{sT1}, s{sQB}, 13"); A(f"s_add_u32 s{sT0}, s{sT0}, s{sT1}"); A(f"s_add_u32 s{sT0}, s{sT0}, {WS_QB}")
    A(f"s_add_u32 s{sT1}, s{sT0}, 4096")
    A("s_waitcnt lgkmcnt(0)")
    A(b_kload(0, 0))
    for j in range(8): A(f"buffer_load_dwordx4 {ar(Q_+4*j,4)}, v{vL16}, {sr(sWS,4)}, s{sT0 if j < 4 else sT1} offen offset:{(j%4)*1024}")
    A("v_lshlrev_b32 v24, 2, v22")
    A(f"s_lshl_b32 s{sT0}, s{sQB}, 10"); A(f"s_lshl_b32 s{sT1}, s{sWAVE}, 8"); A(f"s_add_u32 s{sT0}, s{sT0}, s{sT1}"); A(f"s_add_u32 s{sT0}, s{sT0}, {WS_GATE}")
    for k in range(2): A(f"buffer_load_dword v{vG[k]}, v24, {sr(sWS,4)}, s{sT0} offen offset:{128*k}")
    c += b_vload(0, 0); A(b_kload(1, 2048))
    for r in range(128): A(f"v_mov_b32 v{O_+r}, 0")
    for r in range(8): A(f"v_mov_b32 v{P_[1]+r}, 0")
    A("s_waitcnt vmcnt(5)")
    c += prof_mark(1)
    A(b_qk(0, 0, 0)); A("s_nop 11")
    A(f"s_mov_b32 s{sCNT}, 8")
    pro = c; c = []; A = c.append
    body = [".p2align 4", "K3_L:"] + b_body() + [f"s_sub_u32 s{sCNT}, s{sCNT}, 1", f"s_cmp_lg_u32 s{sCNT}, 0", "s_cbranch_scc1 K3_L"]
    A("s_nop 0")
    A(b_pv(7, 1, 1, 0)); A(b_pv(7, 1, 1, 1))
    c += prof_mark(3)
    A("s_waitcnt vmcnt(0)")
    A(f"s_mul_i32 s{sT0}, s{sWAVE}, 24576"); A(f"v_add_u32 v5, s{sT0}, v{vL16}")
    A(f"s_mul_i32 s{sT0}, s{sWAVE}, 6144"); A(f"v_add_u32 v6, s{sT0}, v{vL16}"); A(f"v_add_u32 v7, 49152, v6")
    A("s_nop 7")
    for j in range(8):
        for k in range(2): A(f"ds_write_b128 v5, {vr(O_+16*j+4*k,4)} offset:{j*3072 + k*1024}")
        A(f"ds_write_b32 v5, v{O_+16*j+8} offset:{j*3072 + 2048}")
    A("s_waitcnt lgkmcnt(0)"); A("s_barrier")
    R = 64
    for k in range(2):
        for w in range(4):
            b = R + (k * 4 + w) * 12; va = 6 if w < 2 else 7; off = (w & 1) * 24576 + k * 3072
            A(f"ds_read_b128 {vr(b,4)}, v{va} offset:{off}"); A(f"ds_read_b128 {vr(b+4,4)}, v{va} offset:{off+1024}"); A(f"ds_read_b32 v{b+8}, v{va} offset:{off+2048}")
        A("s_waitcnt lgkmcnt(0)")
    for k in range(2):
        b = R + k * 48
        for r in range(9):
            A(f"v_add_f32 v{b+r}, v{b+r}, v{b+12+r}"); A(f"v_add_f32 v{b+24+r}, v{b+24+r}, v{b+36+r}")
        for r in range(9): A(f"v_add_f32 v{b+r}, v{b+r}, v{b+24+r}")
        A(f"v_mov_b32 v{b+9}, v{b+8}"); A("s_nop 1"); A(f"v_permlane32_swap_b32 v{b+8}, v{b+9}"); A(f"v_add_f32 v{b+8}, v{b+8}, v{b+9}")
    l0, l1 = R + 8, R + 48 + 8
    A(f"v_min_f32 v8, v{l0}, v{l1}"); A(f"v_max_f32 v9, v{l0}, v{l1}"); A(f"v_add_f32 v10, v{l0}, v{l1}")
    A(f"v_cmp_gt_f32 vcc, {hex(fbits(2.0**-64))}, v8"); A("v_cmp_nge_f32 s[34:35], v10, v10"); A("s_or_b64 s[34:35], s[34:35], vcc")
    A(f"v_cmp_lt_f32 vcc, {hex(fbits(2.0**64))}, v9"); A("s_or_b64 s[34:35], s[34:35], vcc")
    A("s_cbranch_scc1 K3_SLOW")
    mid = c; c = []; A = c.append
    A("K3_STORE:")
    A(f"s_lshl_b32 s{sT0}, s{sQB}, 2"); A(f"s_add_u32 s{sT0}, s{sT0}, s{sWAVE}"); A(f"s_mul_i32 s{sT0}, s{sT0}, {2*288*1024}")
    A(f"s_lshl_b32 s{sT1}, s{sH}, 10"); A(f"s_add_u32 s{sT0}, s{sT0}, s{sT1}"); A(f"s_add_u32 s{sT0}, s{sT0}, {WS_CTX + 256*1024}")
    A(f"s_add_u32 s{sT1}, s{sT0}, {288*1024}")
    for k in range(2):
        b = R + k * 48
        A(f"v_rcp_f32 v{b+8}, v{b+8}"); A(f"v_sub_f32 v{vG[k]}, 1.0, v{vG[k]}"); A(f"v_mul_f32 v{b+8}, v{b+8}, v{vG[k]}")
        for r in range(8): A(f"v_mul_f32 v{b+r}, v{b+r}, v{b+8}")
        for r in range(4): A(f"v_cvt_pk_bf16_f32 v{b+12+r}, v{b+2*r}, v{b+2*r+1}")
        A(f"buffer_store_dwordx4 {vr(b+12,4)}, v{vL16}, {sr(sWS,4)}, s{sT0 if k == 0 else sT1} offen")
    c += prof_end(2, sWS, sWAVE)
    A("K3_END:"); A("s_endpgm")
    end = c; c = []; A = c.append
    A("K3_SLOW:")
    S = S_[0]; P = P_[0]; vM = 8; QS = 12; OA = 160
    for k in range(2):
        b = R + k * 48
        A(f"s_lshl_b32 s{sT0}, s{sH}, 16"); A(f"s_lshl_b32 s{sT1}, s{sQB}, 13"); A(f"s_add_u32 s{sT0}, s{sT0}, s{sT1}")
        A(f"s_lshl_b32 s{sT1}, s{sWAVE}, 11"); A(f"s_add_u32 s{sT0}, s{sT0}, s{sT1}"); A(f"s_add_u32 s{sT0}, s{sT0}, {WS_QB + 1024*k}")
        A(f"buffer_load_dwordx4 {vr(QS,4)}, v{vL16}, {sr(sWS,4)}, s{sT0} offen")
        A(f"v_mov_b32 v{vM}, {hex(BIG)}")
        for ps in range(2):
            A(f"s_lshl_b32 s{sKO}, s{sH}, 17"); A(f"s_add_u32 s{sKO}, s{sKO}, {WS_KVB}"); A(f"s_mov_b32 s{sCNT}, 64")
            if ps == 1:
                for r in range(16): A(f"v_mov_b32 v{OA+r}, 0")
            A(f"K3_S{k}{ps}:")
            A(b_kload(0, 0))
            if ps == 1: c += b_vload(0, 0)
            A("s_waitcnt vmcnt(0)")
            A(f"v_mfma_f32_32x32x16_bf16 {vr(S,16)}, {vr(KB[0],4)}, {vr(QS,4)}, 0"); A("s_nop 15")
            if ps == 0:
                for r in range(16): A(f"v_max_f32 v{vM}, v{vM}, v{S+r}")
            else:
                for r in range(16): A(f"v_sub_f32 v{S+r}, v{S+r}, v{vM}")
                for r in range(16): A(f"v_exp_f32 v{S+r}, v{S+r}")
                A("s_nop 0")
                for r in range(8): A(f"v_cvt_pk_bf16_f32 v{P+r}, v{S+2*r}, v{S+2*r+1}")
                A("s_nop 1")
                for f in range(2): A(f"v_mfma_f32_32x32x16_bf16 {vr(OA,16)}, {vr(VB[0]+4*f,4)}, {vr(P+4*f,4)}, {vr(OA,16)}")
                A("s_nop 7")
            A(f"s_add_u32 s{sKO}, s{sKO}, 2048"); A(f"s_sub_u32 s{sCNT}, s{sCNT}, 1"); A(f"s_cmp_lg_u32 s{sCNT}, 0"); A(f"s_cbranch_scc1 K3_S{k}{ps}")
            if ps == 0:
                A(f"v_mov_b32 v{vM+1}, v{vM}"); A("s_nop 1"); A(f"v_permlane32_swap_b32 v{vM}, v{vM+1}"); A(f"v_max_f32 v{vM}, v{vM}, v{vM+1}")
        A("s_nop 7")
        for r in range(9): A(f"v_mov_b32 v{b+r}, v{OA+r}")
        A(f"v_mov_b32 v{b+9}, v{b+8}"); A("s_nop 1"); A(f"v_permlane32_swap_b32 v{b+8}, v{b+9}"); A(f"v_add_f32 v{b+8}, v{b+8}, v{b+9}")
    A("s_branch K3_STORE")
    slow = c
    errs = check_trace(pro + body * 8 + mid + end, "k3") + check_trace(mid + slow + end, "k3slow")
    if errs:
        print("\n".join(errs[:30])); raise Exception("K3 hazards")
    return pro + body + mid + end + slow

def outproj():
    ACC = 64
    CX = 128
    WF = [192, 200]
    vL16, vWD, vTR = 1, 2, [3, 4]
    sWS, sW, sOUT = 8, 12, 36
    sWAVE, sRT, sCT, sCNT, sC0, sC1, sWO, sLW, sT0, sT1 = 16, 17, 18, 19, 20, 21, 22, 23, 24, 25
    sWB = 28
    def loads(s):
        o = [f"buffer_load_dwordx4 {vr(CX+8*s,4)}, v{vL16}, {sr(sWS,4)}, s{sC0} offen offset:{(s%4)*1024}",
             f"buffer_load_dwordx4 {vr(CX+8*s+4,4)}, v{vL16}, {sr(sWS,4)}, s{sC1} offen offset:{(s%4)*1024}"]
        for i in range(2):
            o += [f"s_add_u32 m0, s{sLW}, {s*2048 + i*1024}", f"s_add_u32 s{sWO}, s{sWO}, 8192",
                  f"buffer_load_dwordx4 v{vWD}, {sr(sW,4)}, s{sWO} offen lds"]
        if s % 4 == 3: o += [f"s_add_u32 s{sC0}, s{sC0}, 4096", f"s_add_u32 s{sC1}, s{sC1}, 4096"]
        return o
    def trs(s):
        return [f"ds_read_b64_tr_b16 {vr(WF[s&1]+4*mt+2*e,2)}, v{vTR[mt]} offset:{s*2048 + e*1024}" for mt in range(2) for e in range(2)]
    c = []; A = c.append
    A("s_cmp_ge_u32 s2, 256"); A("s_cbranch_scc1 K4_END")
    c += prof_start()
    A(f"s_load_dwordx2 {sr(sWS,2)}, s[0:1], {KA_WS}")
    A(f"s_load_dwordx2 {sr(sW,2)}, s[0:1], {KA_WO}")
    A(f"s_load_dwordx2 {sr(sWB,2)}, s[0:1], {KA_BWO}")
    A(f"s_load_dwordx2 {sr(sOUT,2)}, s[0:1], {KA_OUT}")
    A("v_lshrrev_b32 v20, 6, v0"); A("v_and_b32 v21, 63, v0")
    A(f"v_readfirstlane_b32 s{sWAVE}, v20")
    A("s_and_b32 s3, s2, 7"); A("s_lshr_b32 s4, s2, 3"); A(f"s_and_b32 s{sCT}, s4, 7"); A("s_lshr_b32 s4, s4, 3")
    A("s_lshl_b32 s3, s3, 2"); A(f"s_add_u32 s{sRT}, s3, s4")
    A(f"v_lshlrev_b32 v{vL16}, 4, v21")
    A("v_lshrrev_b32 v22, 3, v21"); A("v_and_b32 v23, 7, v21"); A("v_bfe_u32 v24, v21, 4, 1"); A("v_lshlrev_b32 v24, 2, v24"); A("v_xor_b32 v23, v23, v24")
    A("v_lshlrev_b32 v23, 4, v23"); A(f"v_lshl_add_u32 v{vWD}, v22, 10, v23")
    A("v_lshrrev_b32 v22, 5, v21"); A("v_bfe_u32 v23, v21, 2, 2"); A("v_lshl_add_u32 v22, v22, 2, v23"); A("v_lshlrev_b32 v22, 7, v22")
    A("v_bfe_u32 v23, v21, 3, 1"); A("v_lshl_add_u32 v22, v23, 6, v22")
    A("v_bfe_u32 v23, v21, 4, 1"); A("v_lshl_add_u32 v22, v23, 5, v22")
    A("v_and_b32 v23, 3, v21"); A("v_lshl_add_u32 v22, v23, 3, v22")
    A(f"s_lshl_b32 s{sLW}, s{sWAVE}, 14")
    A(f"v_add_u32 v{vTR[0]}, s{sLW}, v22"); A(f"v_xor_b32 v{vTR[1]}, 64, v{vTR[0]}")
    A(f"s_mov_b32 s{sWS+2}, {WS_END}"); A(f"s_mov_b32 s{sWS+3}, 0x20000")
    A(f"s_mov_b32 s{sW+2}, {4*MB}"); A(f"s_mov_b32 s{sW+3}, 0x20000")
    A(f"s_mov_b32 s{sOUT+2}, {2*MB}"); A(f"s_mov_b32 s{sOUT+3}, 0x20000")
    A(f"s_mul_i32 s26, s{sRT}, {2*288*1024}"); A(f"s_add_u32 s26, s26, {WS_CTX}")
    A(f"s_lshl_b32 s{sT0}, s{sWAVE}, 16"); A(f"s_add_u32 s{sC0}, s26, s{sT0}"); A(f"s_add_u32 s{sC1}, s{sC0}, {288*1024}")
    A(f"s_lshl_b32 s27, s{sCT}, 7"); A(f"s_sub_u32 s27, s27, 8192")
    A(f"s_lshl_b32 s{sT0}, s{sWAVE}, 20"); A(f"s_add_u32 s{sWO}, s27, s{sT0}")
    A("s_waitcnt lgkmcnt(0)")
    for s in range(8): c += loads(s)
    for r in range(64): A(f"v_mov_b32 v{ACC+r}, 0")
    A("s_waitcnt vmcnt(28)"); c += trs(0)
    c += prof_mark(1)
    A(f"s_mov_b32 s{sCNT}, 9")
    pro = c; c = []; A = c.append
    A(".p2align 4"); A("K4_L:")
    A(f"s_cmp_gt_u32 s{sCNT}, 2"); A("s_cbranch_scc1 K4_G")
    A(f"s_mov_b64 {sr(sW,2)}, {sr(sWB,2)}")
    A(f"s_cmp_eq_u32 s{sCNT}, 2"); A(f"s_cselect_b32 s{sW+2}, {MB//2}, 0")
    A(f"s_lshl_b32 s{sT0}, s{sWAVE}, 17"); A(f"s_add_u32 s{sWO}, s27, s{sT0}")
    A(f"s_lshl_b32 s{sT0}, s{sWAVE}, 13"); A(f"s_add_u32 s{sC0}, s26, s{sT0}"); A(f"s_add_u32 s{sC0}, s{sC0}, {256*1024}")
    A(f"s_cmp_eq_u32 s{sCNT}, 2"); A(f"s_cselect_b32 s{sC0}, s{sC0}, {WS_END}"); A(f"s_add_u32 s{sC1}, s{sC0}, {288*1024}")
    A("K4_G:")
    for s in range(8):
        A("s_waitcnt vmcnt(24) lgkmcnt(0)")
        m = [f"v_mfma_f32_32x32x16_bf16 {vr(ACC+(mt*2+qt)*16,16)}, {vr(WF[s&1]+4*mt,4)}, {vr(CX+8*s+4*qt,4)}, {vr(ACC+(mt*2+qt)*16,16)}" for qt in range(2) for mt in range(2)]
        t = trs((s + 1) % 8); l = loads(s)
        c += [m[0]] + t[:2] + l[2:5] + [m[1]] + t[2:] + l[5:8] + [m[2], l[0], m[3], l[1]] + l[8:]
    A(f"s_sub_u32 s{sCNT}, s{sCNT}, 1"); A(f"s_cmp_lg_u32 s{sCNT}, 0"); A("s_cbranch_scc1 K4_L")
    body = c; c = []; A = c.append
    c += prof_mark(3)
    A("s_waitcnt vmcnt(0) lgkmcnt(0)")
    A(f"v_add_u32 v5, s{sLW}, v{vL16}")
    A(f"s_lshl_b32 s{sT0}, s{sWAVE}, 12"); A(f"v_add_u32 v6, s{sT0}, v{vL16}")
    A("s_nop 7")
    for k in range(16): A(f"ds_write_b128 v5, {vr(ACC+4*k,4)} offset:{k*1024}")
    A("s_waitcnt lgkmcnt(0)"); A("s_barrier")
    for w in range(4):
        for k in range(4): A(f"ds_read_b128 {vr(128+w*16+4*k,4)}, v6 offset:{w*16384 + k*1024}")
    A("v_and_b32 v22, 31, v21"); A("v_lshlrev_b32 v22, 10, v22"); A("v_lshrrev_b32 v23, 5, v21"); A("v_lshl_add_u32 v22, v23, 4, v22")
    A(f"s_lshl_b32 s{sT0}, s{sRT}, 16"); A(f"s_and_b32 s{sT1}, s{sWAVE}, 1"); A(f"s_lshl_b32 s{sT1}, s{sT1}, 15"); A(f"s_add_u32 s{sT0}, s{sT0}, s{sT1}")
    A(f"s_lshl_b32 s{sT1}, s{sCT}, 7"); A(f"s_add_u32 s{sT0}, s{sT0}, s{sT1}")
    A(f"s_lshr_b32 s{sT1}, s{sWAVE}, 1"); A(f"s_lshl_b32 s{sT1}, s{sT1}, 6"); A(f"s_add_u32 s{sT0}, s{sT0}, s{sT1}")
    A("s_waitcnt lgkmcnt(0)")
    for r in range(16):
        A(f"v_add_f32 v{128+r}, v{128+r}, v{144+r}"); A(f"v_add_f32 v{160+r}, v{160+r}, v{176+r}")
    for r in range(16): A(f"v_add_f32 v{128+r}, v{128+r}, v{160+r}")
    for r in range(8): A(f"v_cvt_pk_bf16_f32 v{64+r}, v{128+2*r}, v{128+2*r+1}")
    A("s_nop 1")
    for pr in range(2):
        b = 64 + 4 * pr
        A(f"v_permlane32_swap_b32 v{b}, v{b+2}"); A(f"v_permlane32_swap_b32 v{b+1}, v{b+3}")
        A(f"buffer_store_dwordx4 {vr(b,4)}, v22, {sr(sOUT,4)}, s{sT0} offen offset:{32*pr}")
    c += prof_end(3, sWS, sWAVE)
    A("K4_END:"); A("s_endpgm")
    end = c
    errs = check_trace(pro + body * 9 + end, "k4")
    if errs:
        print("\n".join(errs[:30])); raise Exception("K4 hazards")
    return pro + body + end

def kernels():
    return [("attnb_kernel", attnb, 256, 256, 98304, 512, 256), ("outproj_kernel", outproj, 256, 256, 65536, 256, 256)]
if __name__ == "__main__":
    print(len(attnb()), len(outproj()))
```

```python
MB = 1 << 20
WS_QA = 0
WS_KV = 16 * MB
WS_QB = 48 * MB
WS_KVB = 50 * MB
WS_GATE = 54 * MB
WS_CTX = 55 * MB
WS_APART = 74 * MB
WS_END = 80 * MB
LOG2E = 1.4426950408889634
KA_X, KA_CKV, KA_WQ, KA_WUK, KA_WUV, KA_WO, KA_BX, KA_WQKV, KA_BWO, KA_GATE, KA_OUT, KA_DBG, KA_WS = [8 * i for i in range(13)]
WS_F1 = 78 * MB
WS_F3 = WS_F1 + 4096
WS_F4 = WS_F3 + 1024
WS_WT = 0
```

```python
import sys, importlib
from asmlib import *
NAME = "gated_mix__compressed_kv_cla__mha_block__prompt"
def build(kernels, path):
    ref = open(f"cdna_kernels/{NAME}.s.ref").read().splitlines()
    head = [l for l in ref if l.startswith(";") and "@launch" not in l and "Override" not in l and "grid=ceil" not in l]
    out = head[:]
    for k in kernels: out.append(f"; @launch kernel={k[0]} grid=({k[2]},1,1) block=({k[3]},1,1) lds={k[4]}")
    out.append(open("header.txt").read().rstrip())
    out += ['.amdgcn_target "amdgcn-amd-amdhsa--gfx950"', ".text"]
    for k in kernels:
        out += [f".globl {k[0]}", ".p2align 8", f".type {k[0]},@function", f"{k[0]}:"]
        for ins in k[1]():
            out.append(ins if (ins.endswith(":") or ins.startswith(".")) else "  " + ins)
    out += ['.section .rodata,"a"']
    for k in kernels: out += [".p2align 6", kernel_desc(k[0], k[5], k[6])]
    open(path, "w").write("\n".join(out) + "\n")
if __name__ == "__main__":
    import k1
    ks = [("proj_kernel", k1.gen, 256, 256, 163840, 512, 256)]
    which = sys.argv[1] if len(sys.argv) > 1 else "all"
    try:
        import k2; ks.append(("attna_kernel", k2.gen, 256, 256, 163840, 512, 256))
        import k3; ks += k3.kernels()
    except ImportError as e: print("missing", e)
    build(ks, f"cdna_kernels/{NAME}.s" if not PROF else os.environ.get("OUT", "prof.s"))
```

```python
import re

def vr(b, n=1, k='v'):
    return f"{k}{b}" if n == 1 else f"{k}[{b}:{b+n-1}]"
def ar(b, n=1): return vr(b, n, 'a')
def sr(b, n=1): return vr(b, n, 's')

TRANS = ("v_exp_f32", "v_log_f32", "v_rcp_f32", "v_rsq_f32", "v_sqrt_f32")

def cost(ins):
    m = ins.split()[0]
    if m in TRANS: return 8
    if m.startswith("v_mfma"): return 8
    if m == "s_nop": return 4 * (int(ins.split()[1]) + 1)
    if m.endswith(":") or m.startswith(";") or m.startswith("."): return 0
    return 4

def klass(ins):
    m = ins.split()[0]
    if m.startswith("LG"): return "s"
    if m.startswith("v_"): return "v"
    if m.startswith("ds_") or m.startswith("buffer_") or m.startswith("global_"): return "m"
    return "s"
def vcost(ins):
    m = ins.split()[0]
    if m in TRANS or m.startswith("v_permlane"): return 8
    if m == "s_nop": return 4 * (int(ins.split()[1]) + 1)
    return 4
def conflict(a, b):
    if a.startswith("LG") or b.startswith("LG"): return True
    ma, da, ua, ka = parse(a); mb_, db, ub, kb = parse(b)
    if ka == "ctl" or kb == "ctl": return True
    return bool(set(da) & set(ub) or set(ua) & set(db) or set(da) & set(db))
def order(lst):
    out = []
    for ins in lst:
        p = len(out)
        if klass(ins) != "v":
            while p > 0 and klass(out[p-1]) == "v" and not conflict(out[p-1], ins): p -= 1
            if klass(ins) == "m":
                q = p
                while q > 0 and klass(out[q-1]) == "s" and not conflict(out[q-1], ins) and not out[q-1].startswith("s_"): q -= 1
        out.insert(p, ins)
    return out
def gapcost(lst):
    t = 4; prev = None; nm = 0
    for ins in lst:
        k = klass(ins)
        if k == "v": t = max(t, 8) + vcost(ins)
        elif k == "s": t += vcost(ins)
        else:
            if prev == "v": t += 12
            elif prev == "m": t += 6
            else: t += 8
        prev = k
    return max(t, 8)

class Sched:
    def __init__(self, mfmas, budget):
        self.m = mfmas
        self.n = len(mfmas)
        self.gap = [[] for _ in mfmas]
        self.pre = [[] for _ in mfmas]
        self.budget = budget
    def load(self, g, extra=()):
        l = order(self.gap[g] + list(extra))
        if g + 1 < self.n: l = l + self.pre[g + 1]
        return gapcost(l)
    def add(self, g, ins):
        if isinstance(ins, str): ins = [ins]
        self.gap[g].extend(ins)
    def before(self, g, ins):
        if isinstance(ins, str): ins = [ins]
        self.pre[g].extend(ins)
    def _try(self, items, g0, g1, pace, bud):
        added = []; g = g0; n = len(items); ok = True
        for i, it in enumerate(items):
            grp = [it] if isinstance(it, str) else list(it)
            g = max(g, g0 + int(pace * i * (g1 - g0) / n))
            while g < g1 and self.load(g, grp) > max(bud(g), self.load(g)): g += 1
            if g >= g1: ok = False; break
            self.gap[g].extend(grp); added.append((g, len(grp)))
        if not ok:
            for g, k in reversed(added): del self.gap[g][-k:]
        return ok
    def fill(self, items, g0, g1):
        if not items: return
        B = self.budget
        for pace in (1.0, 0.9, 0.8, 0.6, 0.4, 0.2, 0.0):
            if self._try(items, g0, g1, pace, lambda g: B): return
        for extra in (4, 8, 12, 16, 24, 32, 48, 64):
            for k in (8, 5, 3, 2, 1):
                if self._try(items, g0, g1, 0.0, lambda g: B + (extra if g % k == 0 else extra - 4)): return
        raise Exception("fill failed")
    def pack(self, items, g0, g1):
        g = g0; pos = []
        for it in items:
            grp = [it] if isinstance(it, str) else list(it)
            while g < g1 - 1 and self.load(g, grp) > self.budget: g += 1
            self.gap[g].extend(grp); pos.append(g)
        return pos
    def emit(self):
        out = []
        for g in range(self.n):
            out += self.pre[g]; out.append(self.m[g]); out += order(self.gap[g])
        return out
    def over(self):
        return sum(max(0, self.load(g) - self.budget) for g in range(self.n))

_R = re.compile(r"^-?(?:abs\()?([vas])(?:\[(\d+):(\d+)\]|(\d+))\)?$")
def regs(op):
    op = op.strip()
    if op in ("vcc",): return ["vcc"]
    if op in ("exec",): return ["exec"]
    if op == "m0": return ["m0"]
    m = _R.match(op)
    if not m: return []
    if m.group(4) is not None: return [m.group(1) + m.group(4)]
    return [m.group(1) + str(i) for i in range(int(m.group(2)), int(m.group(3)) + 1)]

def parse(ins):
    ins = ins.split(";")[0].strip()
    p = ins.split(None, 1)
    m = p[0]
    ops = []
    if len(p) > 1:
        ops = [o.strip() for o in p[1].split(",")]
        last = ops[-1].split()
        ops[-1] = last[0] if last else ""
        mods = last[1:]
    else: mods = []
    R = [regs(o) for o in ops]
    flat = lambda l: [x for y in l for x in y]
    if m.startswith("v_mfma"): return m, R[0], flat(R[1:]), "mfma"
    if m.startswith("ds_read"): return m, R[0], flat(R[1:]), "ldsld"
    if m.startswith("ds_write") or m.startswith("ds_add"): return m, [], flat(R), "ldsst"
    if m.startswith("ds_bpermute") or m.startswith("ds_swizzle"): return m, R[0], flat(R[1:]), "ldsld"
    if m.startswith("buffer_load"):
        if "lds" in mods: return m, [], flat(R) + ["m0"], "dma"
        return m, R[0], flat(R[1:]), "vmld"
    if m.startswith("global_load"): return m, R[0], flat(R[1:]), "vmld"
    if m.startswith("buffer_store") or m.startswith("global_store") or m.startswith("buffer_atomic"): return m, [], flat(R), "vmst"
    if m.startswith("buffer_inv") or m.startswith("buffer_wbl2"): return m, [], [], "vmst"
    if m.startswith("s_load") : return m, R[0], flat(R[1:]), "smem"
    if m.startswith("s_memtime") or m.startswith("s_memrealtime"): return m, R[0], [], "smem"
    if m.startswith("v_permlane"): return m, R[0] + R[1], R[0] + R[1], "valu"
    if m.startswith("v_cmp"): return m, R[0], flat(R[1:]), "valu"
    if m.startswith("v_readfirstlane") or m.startswith("v_readlane"): return m, R[0], flat(R[1:]), "valu"
    if m.startswith("v_fmac") : return m, R[0], flat(R), "valu"
    if m.startswith("v_cndmask"):
        u = flat(R[1:])
        if len(ops) == 3: u.append("vcc")
        return m, R[0], u, "valu"
    if m.startswith("v_"): return m, R[0] if R else [], flat(R[1:]), "valu"
    if m in ("s_waitcnt", "s_barrier", "s_nop", "s_endpgm", "s_setprio", "s_sleep") or m.startswith("s_cbranch") or m == "s_branch": return m, [], [], "ctl"
    if m.startswith("s_cmp") or m.startswith("s_bitcmp"): return m, ["scc"], flat(R), "salu"
    if m.startswith("s_"):
        d = list(R[0]) if R else []; u = flat(R[1:])
        if m.startswith("s_cselect") or m.startswith("s_addc") or m.startswith("s_subb"): u = u + ["scc"]
        if not (m.startswith("s_mov") or m.startswith("s_cselect") or m.startswith("s_mul") or m.startswith("s_getpc") or m.startswith("s_getreg")): d = d + ["scc"]
        return m, d, u, "salu"
    raise Exception("unparsed " + ins)

def check_trace(trace, name=""):
    errs = []
    lg = []
    vm = []
    pend = {}
    last = {}
    lastC = {}
    laststore = {}
    st = 0
    for idx, ins in enumerate(trace):
        s = ins.split(";")[0].strip()
        if not s or s.endswith(":") or s.startswith("."): continue
        m, d, u, k = parse(s)
        def err(msg): errs.append(f"{name}[{idx}] {s}: {msg}")
        if m == "s_waitcnt":
            mm = re.search(r"vmcnt\((\d+)\)", s)
            if mm:
                n = int(mm.group(1))
                while len(vm) > n:
                    for r in vm.pop(0): pend.pop(r, None)
            mm = re.search(r"lgkmcnt\((\d+)\)", s)
            if mm:
                n = int(mm.group(1))
                if n > 0 and any(x[0] == "smem" for x in lg): err("counted lgkmcnt with smem outstanding")
                while len(lg) > n:
                    for r in lg.pop(0)[1]: pend.pop(r, None)
            st += 1; continue
        if m == "s_nop":
            st += int(s.split()[1]) + 1; continue
        for r in u + d:
            if r in pend and not (k == "vmld" and m == "buffer_load_dword" and r in d and r in ("v23", "v27")): err(f"{r} has outstanding {pend[r]} load")
        for r in u:
            if r in last:
                ws, wk, wp, wm = last[r]; dist = st - ws - 1
                if wk == "valu" and k == "mfma" and dist < 2: err(f"valu->mfma {r} dist {dist}")
                if wk == "valu" and m.startswith("v_permlane") and dist < 2: err(f"valu->permlane {r} dist {dist}")
                if wk == "valu" and (m.startswith("v_readfirstlane") or m.startswith("v_readlane")) and r[0] == 'v' and r != 'vcc' and dist < 1: err(f"valu->readlane {r}")
                if wk == "valu" and wm in TRANS and k == "valu" and m not in TRANS and dist < 1: err(f"trans->valu {r}")
                if wk == "valu" and (r[0] == 's' or r == 'vcc') and k == "valu" and dist < 2: err(f"valu sgpr->valu {r} dist {dist}")
                if wk == "valu" and r[0] == 's' and k in ("vmld", "vmst", "dma") and dist < 5: err(f"valu sgpr->vmem {r}")
                if wk == "salu" and r == "m0" and k == "dma" and dist < 1: err("m0->dma")
                if wk == "mfma":
                    need = {4: 8, 8: 12}[wp]
                    if k == "mfma":
                        ops = [o.strip() for o in s.split(None, 1)[1].split(",")]
                        inC = r in regs(ops[3]); inAB = r in regs(ops[1]) + regs(ops[2])
                        if inAB and dist < need: err(f"mfma D->mfma A/B {r} dist {dist}")
                        if inC and not inAB:
                            exact = (last[r][3] == (m, ops[3]))
                            if not exact and dist < need - 2: err(f"mfma D->mfma C overlap {r} dist {dist}")
                    elif dist < need: err(f"mfma D->{k} read {r} dist {dist} need {need}")
        for r in d:
            if r in last and last[r][1] == "mfma" and k in ("valu", "ldsld", "vmld"):
                need = {4: 8, 8: 12}[last[r][2]]; dist = st - last[r][0] - 1
                if dist < need: err(f"mfma D->{k} write {r} dist {dist}")
            if r in last and last[r][1] == "mfma" and k == "mfma":
                ops = [o.strip() for o in s.split(None, 1)[1].split(",")]
                if last[r][3] != (m, ops[0]):
                    need = {4: 8, 8: 12}[last[r][2]]; dist = st - last[r][0] - 1
                    if dist < need: err(f"mfma D->mfma D (waw, different shape) {r}")
            if r in lastC and k == "valu":
                need = {4: 3, 8: 7}[lastC[r][1]]; dist = st - lastC[r][0] - 1
                if dist < need: err(f"mfma srcC read -> valu write {r} dist {dist}")
            if r in laststore and k == "valu" and st - laststore[r] - 1 < 2: err(f"store data WAR {r}")
        if k == "mfma":
            passes = 8 if "32x32" in m else 4
            ops = [o.strip() for o in s.split(None, 1)[1].split(",")]
            for r in d: last[r] = (st, "mfma", passes, (m, ops[0]))
            for r in regs(ops[3]): lastC[r] = (st, passes)
        else:
            for r in d: last[r] = (st, k, 0, m)
        if k == "ldsld": lg.append(("lds", d)); [pend.__setitem__(r, "lds") for r in d]
        elif k == "ldsst": lg.append(("lds", []))
        elif k == "smem": lg.append(("smem", d)); [pend.__setitem__(r, "smem") for r in d]
        elif k == "vmld": vm.append(d); [pend.__setitem__(r, "vm") for r in d]
        elif k in ("vmst", "dma"):
            vm.append([])
            if k == "vmst" and ("x4" in m or "x3" in m):
                ops = [o.strip() for o in s.split(None, 1)[1].split(",")]
                for r in regs(ops[0] if m.startswith("buffer") else ops[1]): laststore[r] = st
        if len(vm) > 63: err("vmcnt overflow >63")
        st += 1
    return errs

def resolve_vm(traces):
    res = {}
    for tr in traces:
        ops = []
        for ins in tr:
            s = ins.split(";")[0].strip()
            if not s or s.endswith(":") or s.startswith("."): continue
            mm = re.search(r"vmcnt\(@(\w+):(\d+):(\w+)\)", s)
            if mm:
                wid, k, cls = mm.group(1), int(mm.group(2)), mm.group(3)
                ends = [i for i, o in enumerate(ops) if o == cls]
                if len(ends) > k:
                    n = len(ops) - 1 - ends[len(ends) - 1 - k]
                    res[wid] = min(res.get(wid, 63), n)
                else:
                    raise Exception(f"wait {wid}: no group to wait for")
                continue
            m = s.split()[0]
            if m.startswith("buffer_") or m.startswith("global_"):
                g = re.search(r"grpend:(\w+)", ins)
                ops.append(g.group(1) if g else None)
    return res

def apply_vm(code, res):
    def f(ins):
        return re.sub(r"vmcnt\(@(\w+):(\d+):(\w+)\)", lambda m: f"vmcnt({res[m.group(1)]})", ins)
    return [f(i) for i in code]

def kernel_desc(name, nvgpr, accum, nsgpr=102):
    return f""".amdhsa_kernel {name}
  .amdhsa_next_free_vgpr {nvgpr}
  .amdhsa_next_free_sgpr {nsgpr}
  .amdhsa_accum_offset {accum}
  .amdhsa_group_segment_fixed_size 0
  .amdhsa_kernarg_size 104
  .amdhsa_user_sgpr_count 2
  .amdhsa_user_sgpr_kernarg_segment_ptr 1
  .amdhsa_system_sgpr_workgroup_id_x 1
.end_amdhsa_kernel
"""
def fbits(x):
    import struct
    return struct.unpack("<I", struct.pack("<f", x))[0]

import os
PROF = int(os.environ.get("PROF", "0"))
WS_PROF = 79 * (1 << 20)
def prof_mark(i):
    if not PROF: return []
    if os.environ.get("PROFC") and 1 <= i <= 4:
        return [f"s_memtime s[{84+2*i}:{85+2*i}]", "s_waitcnt lgkmcnt(0)", f"s_sub_u32 s{84+2*i}, s{84+2*i}, s80"]
    return [f"s_memrealtime s[{84+2*i}:{85+2*i}]", "s_waitcnt lgkmcnt(0)"]
def prof_start():
    if not PROF: return []
    return ["s_memtime s[80:81]"] + [f"s_mov_b32 s{i}, 0" for i in range(84, 96)] + prof_mark(0)
def prof_end(kidx, sO, wave_sgpr):
    if not PROF: return []
    c = ["s_waitcnt vmcnt(0)", "s_memtime s[82:83]"] + prof_mark(5)
    c += ["s_sub_u32 s82, s82, s80", f"s_lshl_b32 s96, s2, 3", f"s_add_u32 s96, s96, s{wave_sgpr}", "s_lshl_b32 s96, s96, 5", f"s_add_u32 s96, s96, {WS_PROF + kidx * 131072}",
          "s_mov_b64 exec, 1", "v_mov_b32 v20, 0"]
    for j, s in enumerate([84, 86, 88, 90, 92, 94, 82]):
        c += [f"v_mov_b32 v21, s{s}", f"buffer_store_dword v21, v20, s[{sO}:{sO+3}], s96 offen offset:{4*j}"]
    c += ["s_getreg_b32 s97, hwreg(HW_REG_XCC_ID)", "v_mov_b32 v21, s97", f"buffer_store_dword v21, v20, s[{sO}:{sO+3}], s96 offen offset:28"]
    return c
```

```python
from asmlib import *
from layout import *
import p1, p3, p4
def strip_w0(tr):
    out = []; i = 0
    while i < len(tr):
        if tr[i] == "s_cmp_lg_u32 s16, 0" and tr[i+1].startswith("s_cbranch_scc1 "):
            lbl = tr[i+1].split()[1] + ":"
            out += tr[i:i+2]
            while tr[i] != lbl: i += 1
        out.append(tr[i]); i += 1
    return out
def gen():
    M = [prof_mark(i) for i in range(6)]
    sel = os.environ.get("MARKS", "p2,p3,ep,b0").split(",")
    mk = lambda name: M[1 + sel.index(name)] if name in sel else []
    head = ["s_cmp_ge_u32 s2, 256", "s_cbranch_scc1 F_END"] + prof_start()
    P = p1.prologue()
    P = P[:-2] + mk("pro") + P[-2:]
    V = [p1.version(0), p1.version(1)]
    Q = p1.p2(p3.kv_setup(p1.vLN), p3.kv_dma0(), p3.kv_dma1())
    Q = Q[:1] + mk("p2") + Q[1:] + mk("p3")
    A, Aslow, Atr = p3.gen(p4.early(), mk("ep"))
    B, Bslow, Btr = p4.gen(mk("b0"), mk("bf"))
    B = mk("p4") + B; Btr = [mk("p4") + t for t in Btr]
    end = prof_end(0, 8, 16) + ["F_END:", "s_endpgm"]
    pm = mk("pair")
    fronts = []
    for v in V:
        fronts.append(head + P + v["head"] + v["pair"] + pm + v["br"] + v["u2"] + v["u3"] + v["u4"])
        fronts.append(head + P + v["head"] + v["pair"] + pm + v["br"] + v["skip"] + v["u3"] + v["u4"])
    sk = V[0]["skip"]; a = sk.index("s_cbranch_scc0 P1_NG"); b = sk.index("P1_NG:")
    fronts.append(head + P + V[0]["head"] + V[0]["pair"] + pm + V[0]["br"] + sk[:a+1] + sk[b:] + V[0]["u3"] + V[0]["u4"])
    traces = [f + Q + Atr[3] + Btr[0] + end for f in fronts] + [fronts[0] + Q + t + Btr[0] + end for t in Atr] + [fronts[0] + Q + Atr[0] + Btr[1] + end]
    traces += [strip_w0(t) for t in traces]
    res = resolve_vm(traces)
    errs = []
    for i, t in enumerate(traces): errs += check_trace(apply_vm(t, res), f"tr{i}")
    if errs:
        print("\n".join(errs[:40])); raise Exception("hazards")
    print("vm", res)
    v0, v1 = V
    code = head + P + v0["head"] + v0["pair"] + pm + v0["br"] + v0["u2"] + v0["u3"] + v0["u4"] + Q + A + B + end
    code += v1["head"] + v1["pair"] + pm + v1["br"] + v1["u2"] + v1["u3"] + v1["u4"] + ["s_branch P2"]
    code += v0["skip"] + v1["skip"] + Aslow + Bslow + p1.tabdata()
    return apply_vm(code, res)
if __name__ == "__main__":
    print(len(gen()))
```

```python
from asmlib import *
from layout import *
import os
def flat(l):
    o = []
    for x in l: o += [x] if isinstance(x, str) else x
    return o
SC = " sc1"
NT = os.environ.get("NT", "")
SCE = os.environ.get("SCE", " sc1")
def table():
    rows = []; one = fbits(1.0)
    for cg in range(32):
        if cg < 13:
            t0 = 5 * cg; n = min(5, 64 - t0)
            e = [1, 0, 8192, 0, t0, 0, t0 * 128, 1024, 512, 2048, 16384, 256, fbits(LOG2E * 128 ** -0.5), WS_KV, MB, 4096]
        elif cg < 26:
            t0 = 5 * (cg - 13); n = min(5, 64 - t0)
            e = [1, 1, 8192, 1, t0, 0, t0 * 128, 1024, 512, 16384, 2048, 256, one, WS_KV + 8192, MB, 4096]
        elif cg < 28:
            t0 = 4 * (cg - 26); n = 4
            e = [0, 2, 3072, 0, t0, 0, t0 * 128, 65536, 512, 131072, 1024, 256, fbits(LOG2E * 0.25), WS_QB, 8 * 65536, 4 * 65536]
        elif cg < 30:
            t0 = 4 * (cg - 28); n = 4
            e = [0, 2, 3072, 0, t0, 0, 1024 + t0 * 128, 131072, 512, 262144, 2048, 256, one, WS_KVB, 8 * 131072, 4 * 131072]
        else:
            t0 = 4 * (cg - 30); n = 4
            e = [0, 2, 3072, 1, t0, 0, 2048 + t0 * 128, 512, 256, 2048, 262144, 131072, one, WS_KVB + 1024, 8 * 131072, 4 * 131072]
        e[5] = (1 if n == 4 else 0) | (2 if cg == GATE_CG else 0)
        rows.append(e)
    return rows
GATE_CG = 26
TOUCH = os.environ.get("TOUCH", "cxpwqo")
TPOS = os.environ.get("TPOS", "b")
vTCH = 23
ACC = [32, 96, 160]; WR = [224, 240]
vW = [1, 2, 3, 4]; vWD = [5, 6, 7, 8]; vXD = [9, 10, 11, 12]; vXR = [13, 14]; vXN = [15, 16]
vEP, vL3, vWC, vLN, vJQ, vFL, vPF = 17, 18, 19, 20, 21, 22, 27
sWS, sW, sWAVE, sH, sI, sDBG, sX, sE = 8, 12, 16, 17, 18, 40, 44, 48
sLW, sLX, sWOFF, sK128, sK128m, sUSW, sXA, sXB, sTE, sT0, sT1, sRT = 19, 20, 21, 22, 23, 24, 25, 26, 27, 28, 29, 30
sO0 = 32
sB0 = 36
sZ0, sZ1 = 37, 31
sWQ, sXP = 52, 54
sTB = 56
T_XSEL, T_WSEL, T_STR, T_OR, T_T0, T_FL, T_WCOL, T_A1, T_A2, T_SP, T_SJ1, T_SJ0, T_SC, T_B0, T_TS1, T_TS0 = [sTB + i for i in range(16)]
XB = 65536
QA_ = 0

def xa(rt, ks): return (ks * 4 + rt) * 4
def acc(p, I, J): return ACC[p] + (I * 4 + J) * 4
def slot_mfmas(p, o, kc):
    out = []
    for c in range(4):
        wb = WR[c & 1]
        for r in range(4):
            for ks in range(4):
                d = acc(p, c, r) if o == 0 else acc(p, r, c)
                w = vr(wb + 4 * ks, 4); x = ar(xa(r, 4 * kc + ks), 4)
                a, b = (w, x) if o == 0 else (x, w)
                cin = "0" if (kc == 0 and ks == 0) else vr(d, 4)
                out.append(f"v_mfma_f32_16x16x32_bf16 {vr(d,4)}, {a}, {b}, {cin}")
    return out
def tr_reads(pos, c):
    wb = WR[c & 1]
    return [f"ds_read_b64_tr_b16 {vr(wb + 4*ks + 2*e, 2)}, v{vW[c]} offset:{pos*16384 + ks*4096 + e*512}" for ks in range(4) for e in range(2)]
def w_dma(pos, step):
    out = [f"s_add_u32 m0, s{sLW}, {pos*16384}"]
    out.append(f"s_add_u32 s{sWOFF}, s{sWOFF}, {step}" if step else "s_nop 0")
    for i in range(4):
        out.append(f"buffer_load_dwordx4 v{vWD[i]}, {sr(sW,4)}, s{sWOFF} offen offset:{i*1024}{NT} lds" + (" ; grpend:w" if i == 3 else ""))
    return out
def x_dma(sc):
    out = []
    for hf in range(2):
        out += [f"s_add_u32 m0, s{sLX}, {(sc % 3)*8192 + hf*4096}", f"s_add_u32 s{sT0}, s{sXB if hf else sXA}, {sc*128}"]
        for i in range(4):
            out.append(f"buffer_load_dwordx4 v{vXD[i]}, {sr(sX,4)}, s{sT0} offen offset:{i*1024} lds" + (" ; grpend:x" if hf == 1 and i == 3 else ""))
    return out
def x_reads(sc, nat):
    v = vXN if nat else vXR
    return [f"ds_read_b128 {ar(xa(rt, 2*sc + k2), 4)}, v{v[k2]} offset:{(sc % 3)*8192 + rt*2048}" for rt in range(4) for k2 in range(2)]
def w_lane_setup(stride):
    o = [f"v_mad_u32_u24 v{vWD[0]}, v{vL3}, {stride}, v{vWC}", f"s_lshl_b32 s{sT1}, {stride}, 3", f"s_sub_u32 s{sT1}, s{sT1}, 1024",
         f"v_xor_b32 v{vWD[1]}, 64, v{vWD[0]}", f"v_add_u32 v{vWD[1]}, s{sT1}, v{vWD[1]}", f"s_lshl_b32 s{sT1}, s{sT1}, 1",
         f"v_add_u32 v{vWD[2]}, s{sT1}, v{vWD[0]}", f"v_add_u32 v{vWD[3]}, s{sT1}, v{vWD[1]}",
         f"s_lshl_b32 s{sK128}, {stride}, 7", f"s_sub_u32 s{sK128m}, s{sK128}, 128", f"s_mul_i32 s{sUSW}, s{sK128}, -3", f"s_add_u32 s{sUSW}, s{sUSW}, 128"]
    return o
def e_addr():
    return [f"s_lshr_b32 s{sT1}, s{sTE}, 1", f"s_mul_i32 s{sO0}, s{sT1}, s{T_TS1}", f"s_and_b32 s{sT1}, s{sTE}, 1", f"s_mul_i32 s{sT1}, s{sT1}, s{T_TS0}",
            f"s_add_u32 s{sO0}, s{sO0}, s{sT1}", f"s_add_u32 s{sO0}, s{sO0}, s{sB0}", f"s_add_u32 s{sTE}, s{sTE}, 1",
            f"s_add_u32 s{sO0+1}, s{sO0}, s{T_SJ0}", f"s_add_u32 s{sO0+2}, s{sO0}, s{T_SJ1}", f"s_add_u32 s{sO0+3}, s{sO0+2}, s{T_SJ0}"]
def pipeline(units):
    out = []; prev = None
    for pre, cv, post in units:
        out += pre + cv[:2]
        if prev: out += prev[:2]
        out += cv[2:]
        if prev: out += prev[2:]
        prev = post
    return out + ["s_nop 1"] + prev
def cvt4(T0, T1):
    return [f"v_cvt_pk_bf16_f32 v{T0}, v{T0}, v{T0+1}", f"v_cvt_pk_bf16_f32 v{T0+1}, v{T0+2}, v{T0+3}",
            f"v_cvt_pk_bf16_f32 v{T0+2}, v{T1}, v{T1+1}", f"v_cvt_pk_bf16_f32 v{T0+3}, v{T1+2}, v{T1+3}"]
def swaps(T0): return [f"v_permlane16_swap_b32 v{T0}, v{T0+2}", f"v_permlane16_swap_b32 v{T0+1}, v{T0+3}"]
def epilogue(p, mul):
    u = []
    for pp in range(2):
        for J in range(4):
            T0, T1 = acc(p, 2*pp, J), acc(p, 2*pp+1, J)
            pre = [f"v_mul_f32 v{T+r}, s{T_SC}, v{T+r}" for T in (T0, T1) for r in range(4)] if mul else []
            post = swaps(T0) + [f"buffer_store_dwordx4 {vr(T0,4)}, v{vEP}, {sr(sE,4)}, s{sO0+J} offen{SCE}" + (" ; grpend:st" if pp == 1 and J == 3 else "")]
            if pp == 0: post.append(f"s_add_u32 s{sO0+J}, s{sO0+J}, s{T_SP}")
            u.append((pre, cvt4(T0, T1), post))
    return e_addr() + pipeline(u)
def q_epilogue(p, u):
    un = []
    for ct in range(4):
        for b in range(2):
            T0, T1 = acc(p, ct, 2*b), acc(p, ct, 2*b+1); q = QA_ + 32*b + 4*(4*u + ct)
            un.append(([], cvt4(T0, T1), swaps(T0) + [f"v_accvgpr_write_b32 a{q+r}, v{T0+r}" for r in range(4)]))
    return pipeline(un)

TRG = [0, 1, 2, 4, 5, 6, 8, 9]; DMAG = [3, 7, 11, 15]; XRG = [3, 7, 10, 11, 12, 13, 14, 15]
def place_dma(S, g0, grp):
    S.add(g0 + 0, grp[0]); S.add(g0 + 1, grp[1])
    for i in range(4): S.add(g0 + DMAG[i], grp[2 + i])
class Block:
    def __init__(self, name, slots, nextpos):
        self.name = name
        m = []
        for s in slots: m += slot_mfmas(s["p"], s["o"], s["kc"])
        S = self.S = Sched(m, 16)
        for q, s in enumerate(slots):
            for c in range(4):
                g0 = q * 64 + c * 16
                pre = []
                if c == 3 and not s.get("nobar"):
                    need = s.get("need", [f"{s.get('wk', 2)}:w"])
                    for k, nd in enumerate(need): pre.append(f"s_waitcnt vmcnt(@{name}{q}w{k}:{nd})")
                    pre[-1] += " lgkmcnt(0)"
                    pre += s.get("prebar", []) + ["s_barrier"] + s.get("postbar", [])
                elif c == 0 and s.get("xr") is not None: pre.append(f"s_waitcnt vmcnt(@{name}{q}x:{s['xk']}:x) lgkmcnt(0)")
                elif c == 1 and s.get("xr") is not None: pre.append("s_waitcnt lgkmcnt(4)")
                else: pre.append("s_waitcnt lgkmcnt(0)")
                S.before(g0, pre)
                if c < 3: rd = tr_reads(s["pos"], c + 1)
                else:
                    np_ = slots[q+1]["pos"] if q + 1 < len(slots) else nextpos
                    rd = tr_reads(np_, 0) if np_ is not None else []
                for i, r in enumerate(rd): S.add(g0 + TRG[i], r)
                if c == 0 and s.get("xr") is not None:
                    for i, r in enumerate(x_reads(s["xr"], s.get("nat", False))): S.add(g0 + XRG[i], r)
                if c == 3 and "wstep" in s: place_dma(S, g0, w_dma(s["pos"], s["wstep"]))
                if c in (1, 2) and s.get("xd") is not None: place_dma(S, g0, x_dma(s["xd"])[6*(c-1):6*c])
    def emit(self):
        print("P1 block", self.name, "over", self.S.over())
        return self.S.emit()

K128, K128M, USW = f"s{sK128}", f"s{sK128m}", f"s{sUSW}"

def pair_slots(pa, pb, o, nat, tailw):
    sl = []
    for q in range(8):
        d = dict(p=pb if q & 1 else pa, o=o, kc=q >> 1, pos=q & 3, nat=nat)
        if q < 4: d["wstep"] = "128" if q & 1 else K128M
        elif tailw: d["wstep"] = USW if q == 4 else K128
        if q < 6: d["xr"] = q + 2; d["xk"] = min(2, 5 - q)
        if q < 3: d["xd"] = q + 5
        if not tailw and q >= 4: d["wk"] = max(0, 6 - q)
        sl.append(d)
    return sl
def unit_slots(p, o): return [dict(p=p, o=o, kc=s, pos=s, wstep=USW if s == 0 else K128) for s in range(4)]

def flag_store(off_code, val):
    return off_code + [f"v_mov_b32 v{vFL}, {val}", "s_mov_b64 exec, 1", f"buffer_store_dword v{vFL}, off, {sr(sWS,4)}, s{sZ0}{SC}", "s_mov_b64 exec, -1"]
def w0only(code, lbl): return [f"s_cmp_lg_u32 s{sWAVE}, 0", f"s_cbranch_scc1 {lbl}"] + code + [f"{lbl}:"]
F1OFF = [f"s_lshl_b32 s{sZ0}, s{sH}, 7", f"s_lshl_b32 s{sZ1}, s{sI}, 2", f"s_add_u32 s{sZ0}, s{sZ0}, s{sZ1}", f"s_add_u32 s{sZ0}, s{sZ0}, {WS_F1}"]

NT = os.environ.get("NT", "")
def lin_touch():
    c = []; A = c.append
    A(f"v_and_b32 v31, 31, v{vLN}"); A("v_lshlrev_b32 v31, 7, v31")
    A("s_mov_b32 s99, 0x20000"); A(f"s_mov_b32 s98, {2*MB}"); A("s_lshl_b32 s100, s2, 1"); A(f"s_and_b32 s101, s{sWAVE}, 1"); A("s_add_u32 s100, s100, s101"); A("s_lshl_b32 s100, s100, 12")
    A(f"s_cmp_lt_u32 s{sWAVE}, 2"); A("s_cselect_b64 s[96:97], s[74:75], s[72:73]")
    A(f"buffer_load_dword v{vTCH}, v31, s[96:99], s100 offen")
    return c
def touch_setup():
    return [f"v_and_b32 v30, 15, v{vLN}", f"s_lshl_b32 s101, s{sRT}, 3", "v_add_u32 v30, s101, v30", f"v_mul_u32_u24 v28, s{T_STR}, v30", "v_lshlrev_b32 v29, 13, v30"]
def touch_w(tile):
    return [f"s_add_u32 s101, s{T_WCOL}, {128*tile}", f"buffer_load_dword v{vTCH}, v28, {sr(sW,4)}, s101 offen{NT}"]
def touch_q(half):
    c = []
    if half == 0: c += [f"s_mov_b64 s[96:97], {sr(sWQ,2)}", f"s_mov_b32 s98, {4*MB}", "s_mov_b32 s99, 0x20000", f"s_lshl_b32 s101, s{sH}, 8"]
    return c + [f"buffer_load_dword v{vTCH}, v29, s[96:99], s101 offen offset:{128*half}{NT}"]
def version(o):
    mul = (o == 0)
    code = [f"P1_V{o}:"]
    code += [f"v_mad_u32_u24 v{vEP}, v24, s{T_A1}, v{vJQ if o == 0 else 26}", f"v_mad_u32_u24 v{vEP}, v25, s{T_A2}, v{vEP}",
             f"s_mul_i32 s{sT1}, s{T_SJ1 if o == 0 else T_SP}, s{sRT}", f"s_add_u32 s{sB0}, s{T_B0}, s{sT1}"]
    sl = pair_slots(0, 1, o, False, True)
    sl[1]["postbar"] = w0only([f"s_and_b32 s{sZ0}, s2, 1", f"s_lshl_b32 s{sZ0}, s{sZ0}, 7", f"v_mov_b32 v{vFL}, 1", "s_mov_b64 exec, 1",
                               f"buffer_atomic_add v{vFL}, off, {sr(sDBG,4)}, s{sZ0} sc1", "s_mov_b64 exec, -1"], f"P1_CL{o}")
    B = Block(f"a{o}", sl, 0)
    T0 = int(os.environ.get("T0", "2"))
    if "w" in TOUCH:
        for k in range(3): B.S.fill(touch_w(2 + k), (T0 + k) * 64 + 24, (T0 + k) * 64 + 40)
    if "q" in TOUCH:
        for k in range(2): B.S.fill(touch_q(k), (T0 + 3 + k) * 64 + 20, (T0 + 3 + k) * 64 + 40)
    pair = B.emit()
    B = Block(f"b{o}", unit_slots(2, o), 0)
    B.S.fill(epilogue(0, mul) + epilogue(1, mul), 3, 250)
    u2 = B.emit()
    sl = unit_slots(0, o); sl[3]["xd"] = 0
    B = Block(f"c{o}", sl, 0)
    B.S.fill(epilogue(2, mul), 3, 180)
    sw = [f"s_mov_b32 s{sE+2}, {WS_END}", f"s_mov_b64 {sr(sX,2)}, {sr(sXP,2)}",
          f"s_lshl_b32 s{sXA}, s{sI}, 2", f"s_sub_u32 s{sXB}, 60, s{sXA}", f"s_add_u32 s{sXA}, s{sXA}, s{sWAVE}", f"s_add_u32 s{sXB}, s{sXB}, s{sWAVE}",
          f"s_lshl_b32 s{sXA}, s{sXA}, 15", f"s_lshl_b32 s{sXB}, s{sXB}, 15"]
    B.S.pack(sw, 192, 206)
    u3 = B.emit()
    sl = unit_slots(1, o)
    sl[0]["wstep"] = None; sl[1]["wstep"] = "128"; sl[2]["wstep"] = K128M; sl[3]["wstep"] = "128"
    sl[0]["xd"] = 1; sl[1]["xd"] = 2
    sl[2].update(xr=0, xk=2, xd=3, nat=True); sl[3].update(xr=1, xk=2, xd=4, nat=True)
    B = Block(f"d{o}", sl, 0)
    sw2 = [f"s_mov_b64 {sr(sW,2)}, {sr(sWQ,2)}", f"s_mov_b32 s{sW+2}, {4*MB}", f"s_mov_b32 s{T_STR}, 8192"] + w_lane_setup(f"s{T_STR}") + \
          [f"s_lshl_b32 s{sWOFF}, s{sWAVE}, 18", f"s_lshl_b32 s{sT1}, s{sH}, 8", f"s_add_u32 s{sWOFF}, s{sWOFF}, s{sT1}"]
    B.S.pack(sw2, 0, 40)
    B.S.fill(epilogue(0, mul), 44, 250)
    u4 = B.emit()
    skip = [f"P1_SK{o}:", "s_nop 7"] + flat(epilogue(0, mul) + epilogue(1, mul)) + (gate() if o == 0 else []) + \
           [f"s_mov_b32 s{sE+2}, 0", f"s_sub_u32 s{sTE}, s{sTE}, 1", f"s_branch P1_U3{o}"]
    br = [f"s_bitcmp1_b32 s{T_FL}, 0", f"s_cbranch_scc1 P1_SK{o}"]
    return dict(head=code, pair=pair, br=br, u2=u2, u3=[f"P1_U3{o}:"] + u3, u4=u4, skip=skip)

def gate():
    c = [f"s_bitcmp1_b32 s{T_FL}, 1", "s_cbranch_scc0 P1_NG"]; A = c.append
    G = ACC[2]; D = ACC[0]
    A(f"s_load_dwordx2 s[72:73], s[0:1], {KA_GATE}")
    A(f"v_lshrrev_b32 v27, 4, v{vLN}"); A("v_lshlrev_b32 v28, 4, v27")
    A("s_mov_b32 s74, 1024"); A("s_mov_b32 s75, 0x20000")
    A("s_waitcnt lgkmcnt(0)")
    for ks in range(16): A(f"buffer_load_dwordx4 {vr(G+4*ks,4)}, v28, s[72:75], 0 offen offset:{ks*64}")
    A("s_waitcnt vmcnt(0)")
    for rt in range(4):
        for ks in range(16):
            A(f"v_mfma_f32_16x16x32_bf16 {vr(D+4*rt,4)}, {vr(G+4*ks,4)}, {ar(xa(rt,ks),4)}, " + ("0" if ks == 0 else vr(D+4*rt,4)))
    A("s_nop 7")
    for g in range(1, 4):
        A(f"v_cmp_eq_u32 vcc, {g}, v27"); A("s_nop 1"); A(f"v_cndmask_b32 v{D}, v{D}, v{D+4*g}, vcc")
    A(f"v_mul_f32 v{D}, {hex(fbits(-LOG2E))}, v{D}"); A(f"v_exp_f32 v{D}, v{D}"); A("s_nop 0")
    A(f"v_add_f32 v{D}, 1.0, v{D}"); A(f"v_rcp_f32 v{D}, v{D}")
    A(f"v_lshrrev_b32 v28, 2, v{vJQ}"); A("v_lshl_add_u32 v28, v27, 6, v28")
    A(f"s_lshl_b32 s{sT0}, s{sRT}, 7"); A(f"s_add_u32 s{sT0}, s{sT0}, {WS_GATE}")
    A(f"buffer_store_dword v{D}, v28, {sr(sWS,4)}, s{sT0} offen{SC}")
    A("s_nop 1")
    A("P1_NG:")
    return c

def prologue():
    c = []; A = c.append
    A(f"s_load_dwordx4 s[72:75], s[0:1], {KA_X}")
    A(f"s_load_dwordx4 s[76:79], s[0:1], {KA_WUK}")
    A(f"s_load_dwordx2 {sr(sWQ,2)}, s[0:1], {KA_WQ}")
    A(f"s_load_dwordx2 s[6:7], s[0:1], {KA_WQKV}")
    A(f"s_load_dwordx2 {sr(sWS,2)}, s[0:1], {KA_WS}")
    A(f"s_load_dwordx2 {sr(sDBG,2)}, s[0:1], {KA_DBG}")
    A("s_getpc_b64 s[4:5]"); A("P1_PC:")
    if "c" in TOUCH:
        A("s_mov_b64 s[96:97], s[4:5]"); A("s_mov_b32 s98, P1_TAB-P1_PC"); A("s_mov_b32 s99, 0x20000")
        A("s_lshr_b32 s3, s2, 3"); A("s_lshl_b32 s3, s3, 12")
        A("v_lshrrev_b32 v31, 3, v0"); A("v_lshlrev_b32 v31, 7, v31")
        A(f"buffer_load_dword v{vTCH}, v31, s[96:99], s3 offen")
    A("s_add_u32 s4, s4, P1_TAB-P1_PC"); A("s_addc_u32 s5, s5, 0")
    A("s_and_b32 s3, s2, 7"); A(f"s_lshr_b32 s{sH}, s2, 3"); A(f"s_and_b32 s{sI}, s{sH}, 7")
    A(f"s_lshr_b32 s{sH}, s{sH}, 3"); A("s_lshl_b32 s3, s3, 2"); A(f"s_add_u32 s{sH}, s{sH}, s3")
    A(f"s_lshl_b32 s3, s{sH}, 6")
    A(f"s_load_dwordx16 {sr(sTB,16)}, s[4:5], s3")
    A("v_lshrrev_b32 v27, 6, v0"); A(f"v_and_b32 v{vLN}, 63, v0")
    A(f"v_readfirstlane_b32 s{sWAVE}, v27")
    A(f"v_lshrrev_b32 v27, 4, v{vLN}")
    A(f"v_and_b32 v28, 15, v{vLN}")
    A("v_and_b32 v24, 1, v27"); A("v_lshrrev_b32 v25, 1, v27"); A("v_lshlrev_b32 v26, 4, v28")
    A("v_and_b32 v29, 3, v28"); A("v_bfe_u32 v30, v28, 2, 1"); A("v_bfe_u32 v31, v28, 3, 1")
    A("v_lshl_add_u32 v29, v30, 3, v29"); A("v_lshl_add_u32 v29, v31, 2, v29")
    A(f"v_lshlrev_b32 v{vJQ}, 4, v29")
    A(f"s_lshl_b32 s{sLW}, s{sWAVE}, 12")
    A(f"s_mul_i32 s{sLX}, s{sWAVE}, 24576"); A(f"s_add_u32 s{sLX}, s{sLX}, {XB}")
    for src, dst in ((29, vXR), (28, vXN)):
        A(f"v_lshrrev_b32 v30, 1, v{src}"); A("v_xor_b32 v30, v30, v27"); A("v_lshlrev_b32 v30, 4, v30"); A(f"v_lshl_add_u32 v30, v{src}, 7, v30")
        A(f"v_add_u32 v{dst[0]}, s{sLX}, v30"); A(f"v_xor_b32 v{dst[1]}, 64, v{dst[0]}")
    A(f"v_lshrrev_b32 v{vL3}, 3, v{vLN}"); A(f"v_and_b32 v31, 7, v{vLN}")
    A("v_xor_b32 v30, v31, v27"); A("v_lshlrev_b32 v30, 4, v30"); A(f"v_lshl_add_u32 v{vXD[0]}, v{vL3}, 10, v30")
    A(f"v_xor_b32 v{vXD[1]}, 64, v{vXD[0]}"); A(f"v_add_u32 v{vXD[1]}, 7168, v{vXD[1]}")
    A(f"v_add_u32 v{vXD[2]}, 14336, v{vXD[0]}"); A(f"v_add_u32 v{vXD[3]}, 14336, v{vXD[1]}")
    A("v_lshlrev_b32 v30, 1, v24"); A("v_xor_b32 v30, v30, v31"); A(f"v_lshlrev_b32 v{vWC}, 4, v30")
    A("v_lshrrev_b32 v30, 2, v28"); A("v_lshl_add_u32 v29, v27, 3, v30"); A("v_lshlrev_b32 v29, 7, v29")
    A("v_and_b32 v31, 3, v28"); A("v_lshl_add_u32 v29, v31, 3, v29")
    A("v_lshrrev_b32 v30, 1, v30"); A("v_lshl_add_u32 v30, v24, 1, v30"); A("v_lshlrev_b32 v30, 5, v30")
    A(f"v_add_u32 v{vW[0]}, v29, v30")
    for ct in range(1, 4): A(f"v_xor_b32 v{vW[ct]}, {32*ct}, v{vW[0]}")
    A(f"s_lshl_b32 s{sRT}, s{sI}, 2"); A(f"s_add_u32 s{sRT}, s{sRT}, s{sWAVE}"); A(f"s_lshl_b32 s{sXA}, s{sRT}, 16"); A(f"s_add_u32 s{sXB}, s{sXA}, 32768")
    A(f"s_lshl_b32 s{sRT}, s{sRT}, 1")
    for s, n in ((sWS, WS_END), (sE, WS_END), (sX, 2*MB), (sDBG, 256), (sW, 4*MB)):
        A(f"s_mov_b32 s{s+2}, {n}"); A(f"s_mov_b32 s{s+3}, 0x20000")
    A("s_waitcnt lgkmcnt(0)")
    if TPOS == "a" and "x" in TOUCH: c += lin_touch()
    A(f"s_cmp_eq_u32 s{T_XSEL}, 0"); A(f"s_cselect_b64 {sr(sX,2)}, s[72:73], s[74:75]")
    c += x_dma(0)
    A(f"s_mov_b64 {sr(sXP,2)}, s[72:73]"); A(f"s_mov_b64 {sr(sE,2)}, {sr(sWS,2)}")
    A(f"s_cmp_eq_u32 s{T_WSEL}, 0"); A(f"s_cselect_b64 {sr(sW,2)}, s[76:77], s[78:79]")
    A(f"s_cmp_eq_u32 s{T_WSEL}, 2"); A(f"s_cselect_b64 {sr(sW,2)}, s[6:7], {sr(sW,2)}"); A(f"s_cselect_b32 s{sW+2}, {512*3072}, s{sW+2}")
    c += w_lane_setup(f"s{T_STR}")
    A(f"s_mul_i32 s{sWOFF}, s{T_STR}, s{sWAVE}"); A(f"s_lshl_b32 s{sWOFF}, s{sWOFF}, 5"); A(f"s_add_u32 s{sWOFF}, s{sWOFF}, s{T_WCOL}")
    A(f"s_mov_b32 s{sTE}, s{T_T0}")
    c += w_dma(0, None) + x_dma(1) + w_dma(1, "128")
    if TPOS == "b" and "x" in TOUCH: c += lin_touch()
    z = F1OFF + [f"v_mov_b32 v{vFL}, 0", "s_mov_b64 exec, 1", f"buffer_store_dword v{vFL}, off, {sr(sWS,4)}, s{sZ0}{SC}",
                 f"s_lshl_b32 s{sZ0}, s{sI}, 7", f"s_lshl_b32 s{sZ1}, s{sH}, 2", f"s_add_u32 s{sZ0}, s{sZ0}, s{sZ1}", f"s_add_u32 s{sZ0}, s{sZ0}, {WS_F3}",
                 f"buffer_store_dword v{vFL}, off, {sr(sWS,4)}, s{sZ0}{SC}", f"buffer_store_dword v{vFL}, off, {sr(sWS,4)}, s{sZ0} offset:{WS_F4 - WS_F3}{SC}", "s_mov_b64 exec, -1"]
    c += touch_setup()
    if "p" in TOUCH: c += touch_w(0) + touch_w(1)
    A("s_waitcnt vmcnt(@Px0:1:x)"); c += x_reads(0, False)
    c += w0only(z, "P1_Z")
    c += x_dma(2) + w_dma(2, K128M) + w_dma(3, "128")
    A("s_waitcnt vmcnt(@Px1:1:x)"); A("s_barrier"); c += x_reads(1, False)
    A("s_waitcnt lgkmcnt(8)"); c += tr_reads(0, 0); c += x_dma(3)
    A("s_waitcnt lgkmcnt(8)"); c += x_dma(4)
    if TPOS == "c" and "x" in TOUCH: c += lin_touch()
    A(f"s_cmp_eq_u32 s{T_OR}, 0"); A("s_cbranch_scc0 P1_V1")
    return c

def p2(kv_setup, kv_dma0, kv_dma1):
    sl = pair_slots(2, 0, 0, True, False)
    sl[2]["need"] = ["2:w", "0:st"]
    sl[2]["postbar"] = w0only(flag_store(F1OFF, 1), "P2_S")
    def spin(lbl, load, cmp):
        return [f"s_mov_b32 s{sZ1}, 0x100000", f"{lbl}L:", "s_waitcnt vmcnt(0)", cmp, "s_nop 0", f"s_cbranch_vccz {lbl}",
                "s_sleep 8", load, f"s_sub_u32 s{sZ1}, s{sZ1}, 1", f"s_cmp_lg_u32 s{sZ1}, 0", f"s_cbranch_scc1 {lbl}L", "s_waitcnt vmcnt(0)"]
    ld0 = f"buffer_load_dword v31, v29, {sr(sDBG,4)}, 0 offen sc1"
    ld1 = f"buffer_load_dword v31, v{vPF}, {sr(sWS,4)}, 0 offen sc1"
    sl[4]["prebar"] = w0only(spin("P2_C", ld0, "v_cmp_ne_u32 vcc, v30, v31"), "P2_C")
    sl[3]["postbar"] = w0only([ld0], "P2_L0")
    sl[5]["postbar"] = w0only([ld1], "P2_L1")
    sl[6]["prebar"] = w0only(spin("P2_D", ld1, "v_cmp_ne_u32 vcc, 1, v31"), "P2_D")
    sl[7]["nobar"] = True
    B = Block("q", sl, None)
    B.S.fill(epilogue(1, True), 3, 150)
    B.S.fill(paddr(), 3 * 64, 3 * 64 + 46)
    B.S.fill(kv_setup, 5 * 64, 6 * 64 + 40)
    B.S.fill(kv_dma0, 6 * 64 + 48, 7 * 64 + 16)
    B.S.fill(kv_dma1, 7 * 64 + 16, 7 * 64 + 56)
    B.S.fill(q_epilogue(2, 0), 7 * 64 + 4, 8 * 64)
    return ["P2:"] + B.emit() + ["s_nop 3"] + flat(q_epilogue(0, 1))
def paddr():
    m5 = (1 << 32) // 5 + 1
    o = [f"s_lshl_b32 s{sT1}, s{sH}, 1", f"s_mul_hi_u32 s72, s{sT1}, {m5}", f"s_add_u32 s{sT1}, s{sT1}, 1", f"s_mul_hi_u32 s73, s{sT1}, {m5}",
         "s_add_u32 s74, s72, 13", "s_add_u32 s75, s73, 13", f"s_lshr_b32 s{sT1}, s{sH}, 4", f"s_add_u32 s76, s{sT1}, 26", f"s_add_u32 s77, s{sT1}, 28", f"s_add_u32 s78, s{sT1}, 30",
         f"v_mov_b32 v{vPF}, {GATE_CG}"]
    for k in range(7):
        o += [f"v_cmp_eq_u32 vcc, {k}, v{vL3}", f"v_mov_b32 v29, s{72+k}", "s_nop 0", f"v_cndmask_b32 v{vPF}, v{vPF}, v29, vcc"]
    o += [f"v_and_b32 v29, 7, v{vLN}", "v_lshlrev_b32 v29, 2, v29", f"v_lshl_add_u32 v{vPF}, v{vPF}, 7, v29", f"v_add_u32 v{vPF}, {WS_F1}, v{vPF}",
          f"v_and_b32 v29, 1, v{vLN}", "v_lshlrev_b32 v29, 7, v29", "v_mov_b32 v30, 128"]
    return o
def tabdata():
    return [".p2align 6", ".type P1_TAB,@object", "P1_TAB:"] + [".long " + ", ".join(hex(x) for x in e) for e in table()]
```

```python
from asmlib import *
from layout import *
import os

O_ = {'L': 0 + 32, 'H': 64 + 32}
S_ = [160, 176]; P_ = [192, 200]; CM = 208; TRI = 224
vK, vV, vL16, vDMA, vLO, vHI, vG = 1, 2, 3, 24, 5, 6, {'L': 7, 'H': 8}
SC = ' sc1'
vSUM = {'L': [9, 10], 'H': [11, 12]}
vT = 13
Q_ = {'L': 0, 'H': 32}; K_ = 64; V_ = 96
sWS = 8
sKV = 12
sWAVE, sH, sI = 16, 17, 18
sCNT, sSEQ, sRD, sRK, sRV, sLW, sT0, sT1, sNST, sQL, sQH, sDT, sOFF, s2I = range(56, 70)
BIG = fbits(-1.0e30)
RING = 5

def qk(j, sb, masked):
    o = []
    for ks in range(8):
        c = (vr(CM, 16) if masked else "0") if ks == 0 else vr(S_[sb], 16)
        o.append(f"v_mfma_f32_32x32x16_bf16 {vr(S_[sb],16)}, {ar(K_+4*ks,4)}, {ar(Q_[j]+4*ks,4)}, {c}")
    return o
def pv(j, pb, first=False):
    o = []
    for f in range(2):
        for dt in range(4):
            d = vr(O_[j] + 16*dt, 16)
            o.append(f"v_mfma_f32_32x32x16_bf16 {d}, {ar(V_+4*(f*4+dt),4)}, {vr(P_[pb]+4*f,4)}, {'0' if (first and f == 0) else d}")
    return o
def kread(t, ks): return f"ds_read_b128 {ar(K_+4*ks,4)}, v{vK} offset:{t*16384 + ks*1024}"
def vread(t, idx):
    f, dt = idx // 4, idx % 4
    return f"ds_read_b128 {ar(V_+4*idx,4)}, v{vV} offset:{t*16384 + 8192 + (dt*2+f)*1024}"
def sm(j, sb, pb):
    S = S_[sb]
    e = lambda r: f"v_exp_f32 v{S+r}, v{S+r}"
    a = lambda r: f"v_add_f32 v{vSUM[j][r&1]}, v{vSUM[j][r&1]}, v{S+r}"
    c = lambda k: f"v_cvt_pk_bf16_f32 v{P_[pb]+k}, v{S+2*k}, v{S+2*k+1}"
    g = [[e(0), e(1)]]
    for i in range(1, 15): g.append([a(i-1)] + ([c((i-2)//2)] if i % 2 == 0 else []) + [e(i+1)])
    g.append([a(14), a(15), c(7)])
    return g
def cm_ops():
    o = [[f"s_cmp_lt_i32 s{sDT}, 0", f"s_cselect_b32 s{sT0}, 0, {hex(BIG)}"], f"v_mov_b32 v{vLO}, s{sT0}",
         [f"s_cmp_le_i32 s{sDT}, 0", f"s_cselect_b32 s{sT0}, 0, {hex(BIG)}"], f"v_mov_b32 v{vHI}, s{sT0}", f"s_add_u32 s{sDT}, s{sDT}, 1"]
    o += [f"v_med3_f32 v{CM+r}, v{TRI+r}, v{vLO}, v{vHI}" for r in range(16)]
    return o
def ring_adv(s, v):
    return [f"s_add_u32 s{s}, s{s}, 32768", [f"s_cmp_eq_u32 s{s}, {RING*32768}", f"s_cselect_b32 s{s}, 0, s{s}"], f"v_add_u32 v{v}, s{s}, v{vL16}"]
def dma_ops():
    o = [[f"s_cmp_le_u32 s{sSEQ}, s{s2I}", f"s_subb_u32 s{sOFF}, s{sSEQ}, 0"],
         f"s_lshl_b32 s{sOFF}, s{sOFF}, 15", f"s_add_u32 s{sSEQ}, s{sSEQ}, 1"]
    for i in range(8):
        if i % 4 == 0:
            o += [f"s_add_u32 m0, s{sRD}, {i*1024}", f"s_add_u32 s{sT1}, s{sOFF}, {i*1024}"]
        o.append(f"buffer_load_dwordx4 v{vDMA}, {sr(sKV,4)}, s{sT1} offen offset:{(i%4)*1024}{SC} lds" + (" ; grpend:kv" if i == 7 else ""))
    o += [f"s_add_u32 s{sRD}, s{sRD}, 32768", [f"s_cmp_ge_u32 s{sRD}, {RING*32768}", f"s_cselect_b32 s{sRD}, s{sLW}, s{sRD}"]]
    return o

cnt = [0]
def slot(qi, si, pi, n, kre, vre, bar=False, cm=False, kadv=False, vadv=False, pfirst=False, spill=None, nop=0, dma=None, bark=1):
    m = []
    if qi: m += qk(qi[0], (n + 1) & 1, qi[1])
    nq = len(m)
    if pi: m += pv(pi, (n + 1) & 1, pfirst)
    S = Sched(m, 32); N = len(m)
    cnt[0] += 1; tag = f"A{cnt[0]}"
    pre = []
    if qi: pre.append("LGK")
    if bar: pre += [f"s_waitcnt vmcnt(@{tag}:{bark}:kv)", "s_barrier"]
    S.before(0, pre)
    if pi: S.before(nq, "LGV")
    out_spill = None
    if nop: S.add(0, f"s_nop {nop-1}")
    if si:
        g = sm(si, n & 1, n & 1)
        if N == 16:
            for r in range(16): S.add(r, g[r])
        else:
            for r in range(16): S.add(r * N // 16, g[r])
    if kre is not None:
        for ks in range(8): S.add(ks, kread(kre, ks))
    if vadv: S.pack(ring_adv(sRV, vV), 2, max(3, nq))
    if vre is not None:
        if pi:
            for i in range(8): S.add(nq + i, vread(vre, i))
        else:
            for i in range(8): S.add(min(N - 1, max(3, i)), vread(vre, i))
    if kadv: S.pack(ring_adv(sRK, vK), 8, N)
    if dma:
        d = dma_ops(); parts = {1: d[:9], 2: d[9:], 21: d[9:13], 22: d[13:]}
        S.fill(parts[dma], 0, N)
    if cm: S.fill(cm_ops(), 2, N - 1)
    code = S.emit()
    X = os.environ.get("K2X", "")
    if "b" in X: code = [c for c in code if not (c.startswith("s_barrier") or "vmcnt" in c)]
    if "d" in X: code = [c for c in code if not (c.startswith("buffer_load") and "grpend" not in c)]
    if "e" in X: code = [c for c in code if not c.startswith("v_exp")]
    if "a" in X: code = [c for c in code if not c.startswith("v_add_f32")]
    if "c" in X: code = [c for c in code if not c.startswith("v_cvt")]
    if "r" in X: code = [c for c in code if not c.startswith("ds_read")]
    return code, out_spill, S.over()

def flat(l):
    o = []
    for x in l: o += [x] if isinstance(x, str) else x
    return o

def resolve_lg(traces):
    res = {}
    for tr in traces:
        q = []
        for ins in tr:
            if ins.startswith("LG"):
                lo = K_ if ins[2] == "K" else V_
                need = [i for i, b in enumerate(q) if b is not None and lo <= b < lo + 32]
                n = len(q) - 1 - need[-1] if need else 15
                n = min(n, 15)
                res[ins] = min(res.get(ins, 15), n)
                continue
            mm = re.match(r"ds_read_b128 a\[(\d+):", ins)
            if mm: q.append(int(mm.group(1)))
            elif ins.startswith("ds_"): q.append(None)
    return res

def uniq_lg(code, pfx):
    o = []
    for i, ins in enumerate(code):
        o.append(f"{ins}#{pfx}{i}" if ins in ("LGK", "LGV") else ins)
    return o

def section(slots, name, spill_in):
    code = []; sp = spill_in; ov = 0
    for kw in slots:
        c, sp, o = slot(spill=sp, **kw); code += c; ov += o
    print("K2", name, "over", ov)
    return uniq_lg(code, name), sp

def kv_setup(vLN):
    c = []; A = c.append
    A(f"s_lshl_b32 s{s2I}, s{sI}, 1")
    A(f"s_lshl_b32 s{sLW}, s{sWAVE}, 13")
    A(f"v_lshlrev_b32 v{vDMA}, 4, v{vLN}"); A(f"v_add_u32 v{vDMA}, s{sLW}, v{vDMA}")
    A(f"s_lshl_b32 s{sQL}, s{sI}, 2"); A(f"s_sub_u32 s{sQH}, 60, s{sQL}")
    A(f"s_add_u32 s{sQL}, s{sQL}, s{sWAVE}"); A(f"s_add_u32 s{sQH}, s{sQH}, s{sWAVE}")
    A(f"s_sub_u32 s{sNST}, 32, s{s2I}")
    A(f"s_lshl_b32 s{sT0}, s{sH}, 20"); A(f"s_add_u32 s{sT0}, s{sT0}, {WS_KV}")
    A(f"s_lshl_b32 s{sKV+2}, s{sNST}, 15")
    A([f"s_add_u32 s{sKV}, s{sWS}, s{sT0}", f"s_addc_u32 s{sKV+1}, s{sWS+1}, 0"])
    A(f"s_add_u32 s{sRD}, s{sLW}, 65536")
    A(f"s_lshl_b32 s{sOFF}, s{s2I}, 15"); A(f"s_mov_b32 s{sSEQ}, 1")
    return c
def kv_dma0(): return dma_ops()[3:]
def kv_dma1(): return dma_ops()
def prologue():
    c = []; A = c.append
    A("v_and_b32 v21, 63, v0")
    A(f"v_lshlrev_b32 v{vL16}, 4, v21")
    A("v_and_b32 v22, 31, v21"); A("v_lshlrev_b32 v23, 2, v22")
    for j, sq in (('L', sQL), ('H', sQH)):
        A(f"s_lshl_b32 s{sT0}, s{sq}, 7"); A(f"s_add_u32 s{sT0}, s{sT0}, {WS_GATE}")
        A(f"buffer_load_dword v{vG[j]}, v23, {sr(sWS,4)}, s{sT0} offen{SC}")
    A(f"s_mov_b32 s{sRK}, 65536"); A(f"s_mov_b32 s{sRV}, 65536"); A(f"v_add_u32 v{vK}, s{sRK}, v{vL16}"); A(f"v_mov_b32 v{vV}, v{vK}")
    A("s_waitcnt vmcnt(@P30:1:kv)"); A("s_barrier")
    c += [kread(0, ks) for ks in range(8)]
    c += flat(dma_ops()[:9])
    if "o" in os.environ.get("TOUCH", "cwqo"):
        A(f"s_load_dwordx2 s[96:97], s[0:1], {KA_WO}"); A(f"s_load_dwordx2 s[72:73], s[0:1], {KA_BWO}")
        A(f"s_lshl_b32 s{sT0}, s2, 2"); A(f"s_add_u32 s{sT0}, s{sT0}, s{sWAVE}"); A(f"s_lshl_b32 s{sT0}, s{sT0}, 12")
        A("v_lshlrev_b32 v28, 7, v22"); A(f"s_mov_b32 s98, {4*MB}"); A("s_mov_b32 s99, 0x20000"); A(f"s_mov_b32 s74, {MB//2}"); A("s_mov_b32 s75, 0x20000")
        A("s_waitcnt lgkmcnt(0)")
        A(f"buffer_load_dword v27, v28, s[96:99], s{sT0} offen")
        A(f"buffer_load_dword v27, v28, s[72:75], s{sT0} offen")
    A("v_lshrrev_b32 v25, 5, v21"); A("v_lshlrev_b32 v25, 2, v25"); A("v_sub_u32 v25, v22, v25")
    A(f"v_mov_b32 v26, {hex(BIG)}")
    pr = ["s[72:73]", "s[74:75]", "s[76:77]", "s[78:79]"]
    for r0 in range(0, 16, 4):
        for r in range(r0, r0 + 4): A(f"v_cmp_gt_i32 {pr[r&3]}, {(r>>2)*8 + (r&3)}, v25")
        for r in range(r0, r0 + 4): A(f"v_cndmask_b32 v{TRI+r}, 0, v26, {pr[r&3]}")
    for j in 'LH':
        for k in range(2): A(f"v_mov_b32 v{vSUM[j][k]}, 0")
    A(f"s_sub_u32 s{sDT}, 0, s{sWAVE}")
    c += flat(cm_ops())
    A("s_nop 0")
    return c

def epilogue(early):
    c = []; A = c.append
    A("s_waitcnt vmcnt(0)")
    c += early
    T = vT
    for j in 'LH':
        s0, s1 = vSUM[j]
        A(f"v_add_f32 v{s0}, v{s0}, v{s1}"); A(f"v_mov_b32 v{s1}, v{s0}"); A("s_nop 1")
        A(f"v_permlane32_swap_b32 v{s0}, v{s1}"); A(f"v_add_f32 v{s0}, v{s0}, v{s1}")
    A(f"v_min_f32 v{T}, v{vSUM['L'][0]}, v{vSUM['H'][0]}"); A(f"v_max_f32 v{T+1}, v{vSUM['L'][0]}, v{vSUM['H'][0]}")
    A(f"v_add_f32 v{T+2}, v{vSUM['L'][0]}, v{vSUM['H'][0]}")
    A(f"v_cmp_gt_f32 vcc, {hex(fbits(2.0**-64))}, v{T}")
    A(f"v_cmp_nge_f32 s[70:71], v{T+2}, v{T+2}")
    A("s_or_b64 s[70:71], s[70:71], vcc")
    A(f"v_cmp_lt_f32 vcc, {hex(fbits(2.0**64))}, v{T+1}")
    A("s_or_b64 s[70:71], s[70:71], vcc")
    A("s_cbranch_scc1 K2_SLOW" if not os.environ.get("K2X") else "s_cbranch_execz K2_SLOW")
    A("K2_STORE:")
    n = 0
    for j, sq in (('L', sQL), ('H', sQH)):
        s0 = vSUM[j][0]
        A(f"v_rcp_f32 v{s0}, v{s0}")
        A(f"s_mul_i32 s{sT0}, s{sq}, {288*1024}"); A(f"s_lshl_b32 s{sT1}, s{sH}, 13"); A(f"s_add_u32 s{sT0}, s{sT0}, s{sT1}")
        A(f"s_add_u32 s{sT0}, s{sT0}, {WS_CTX}"); A(f"s_add_u32 s{sT1}, s{sT0}, 4096")
        A(f"v_mul_f32 v{s0}, v{s0}, v{vG[j]}")
        for fr in range(8):
            b = O_[j] + 8 * fr; t = 16 + (n % 4) * 4; n += 1
            for r in range(8): A(f"v_mul_f32 v{b+r}, v{b+r}, v{s0}")
            for r in range(4): A(f"v_cvt_pk_bf16_f32 v{t+r}, v{b+2*r}, v{b+2*r+1}")
            A(f"buffer_store_dwordx4 {vr(t,4)}, v{vL16}, {sr(sWS,4)}, s{sT0 if fr < 4 else sT1} offen offset:{(fr%4)*1024}{SC}" + (" ; grpend:ca" if j == 'H' and fr == 7 else ""))
    return c

def slow():
    c = ["K2_SLOW:"]; A = c.append
    S = S_[0]; P = P_[0]; vM = vT
    def loadk():
        o = [f"s_lshl_b32 s{sT0}, s{sCNT}, 14", f"s_add_u32 s{sT1}, s{sT0}, 4096"]
        o += [f"buffer_load_dwordx4 {ar(K_+4*ks,4)}, v{vL16}, {sr(sKV,4)}, s{sT0 if ks < 4 else sT1} offen offset:{(ks%4)*1024}{SC}" for ks in range(8)]
        return o
    def mask(sq):
        return [f"s_sub_u32 s{sDT}, s{sCNT}, s{sq}"] + flat(cm_ops()) + ["s_nop 1"]
    for j, sq in (('L', sQL), ('H', sQH)):
        A(f"v_mov_b32 v{vM}, {hex(BIG)}"); A(f"s_mov_b32 s{sCNT}, 0")
        A(f"K2_SM{j}:")
        c += loadk() + mask(sq); A("s_waitcnt vmcnt(0)")
        c += qk(j, 0, True); A("s_nop 15")
        for r in range(16): A(f"v_max_f32 v{vM}, v{vM}, v{S+r}")
        A(f"s_add_u32 s{sCNT}, s{sCNT}, 1"); A(f"s_cmp_le_u32 s{sCNT}, s{sq}"); A(f"s_cbranch_scc1 K2_SM{j}")
        A(f"v_mov_b32 v{vM+1}, v{vM}"); A("s_nop 1"); A(f"v_permlane32_swap_b32 v{vM}, v{vM+1}"); A(f"v_max_f32 v{vM}, v{vM}, v{vM+1}")
        for r in range(64): A(f"v_mov_b32 v{O_[j]+r}, 0")
        s0, s1 = vSUM[j]
        A(f"v_mov_b32 v{s0}, 0"); A(f"s_mov_b32 s{sCNT}, 0")
        A(f"K2_SP{j}:")
        c += loadk()
        A(f"s_add_u32 s{sT0}, s{sT0}, 8192"); A(f"s_add_u32 s{sT1}, s{sT1}, 8192")
        for idx in range(8):
            f, dt = idx // 4, idx % 4; fo = dt * 2 + f
            A(f"buffer_load_dwordx4 {ar(V_+4*idx,4)}, v{vL16}, {sr(sKV,4)}, s{sT0 if fo < 4 else sT1} offen offset:{(fo%4)*1024}{SC}")
        c += mask(sq); A("s_waitcnt vmcnt(0)")
        c += qk(j, 0, True); A("s_nop 15")
        for r in range(16): A(f"v_sub_f32 v{S+r}, v{S+r}, v{vM}")
        for r in range(16): A(f"v_exp_f32 v{S+r}, v{S+r}")
        A("s_nop 0")
        for r in range(16): A(f"v_add_f32 v{s0}, v{s0}, v{S+r}")
        for r in range(8): A(f"v_cvt_pk_bf16_f32 v{P+r}, v{S+2*r}, v{S+2*r+1}")
        A("s_nop 1")
        c += pv(j, 0)
        A(f"s_add_u32 s{sCNT}, s{sCNT}, 1"); A(f"s_cmp_le_u32 s{sCNT}, s{sq}"); A(f"s_cbranch_scc1 K2_SP{j}")
        A(f"v_mov_b32 v{s1}, v{s0}"); A("s_nop 1"); A(f"v_permlane32_swap_b32 v{s0}, v{s1}"); A(f"v_add_f32 v{s0}, v{s0}, v{s1}")
        A("s_nop 15")
    A("s_branch K2_STORE")
    return c

def gen(early, mark):
    cnt[0] = 0
    P = prologue()
    L, H = 'L', 'H'
    A_, sp = section([
        dict(qi=(L, True),  si=None, pi=None, n=-1, kre=None, vre=None, dma=2),
        dict(qi=(H, False), si=L, pi=None, n=0, kre=1, vre=0, cm=True, nop=10),
        dict(qi=(L, True),  si=H, pi=L, n=1, kre=None, vre=None, pfirst=True, kadv=True, nop=4, cm=True),
        dict(qi=(H, False), si=L, pi=H, n=2, kre=0, vre=1, bar=True, pfirst=True, dma=1),
    ], "stA", None)
    def dual(sp): return section([
        dict(qi=(L, False), si=H, pi=L, n=3, kre=None, vre=None, dma=21),
        dict(qi=(H, False), si=L, pi=H, n=0, kre=1, vre=0, vadv=True),
        dict(qi=(L, False), si=H, pi=L, n=1, kre=None, vre=None, kadv=True, dma=22),
        dict(qi=(H, False), si=L, pi=H, n=2, kre=0, vre=1, bar=True, dma=1),
    ], "dual", sp)
    D_, sp2 = dual(sp); assert sp2 == sp
    B_, sp = section([
        dict(qi=(L, True),  si=H, pi=L, n=3, kre=1, vre=None, cm=True),
        dict(qi=(L, True),  si=L, pi=H, n=0, kre=0, vre=0, vadv=True, dma=21),
        dict(qi=(H, False), si=L, pi=L, n=1, kre=1, vre=1, kadv=True, dma=22),
        dict(qi=(H, False), si=H, pi=L, n=2, kre=0, vre=0, bar=True, dma=1),
    ], "stB", sp)
    setdt = [f"s_sub_u32 s{sDT}, 0, s{sWAVE}"] + flat(cm_ops())
    def single(sp, name, m0, m1, cm0, cm1, bar=True): return section([
        dict(qi=(H, m0), si=H, pi=H, n=3, kre=1, vre=1, cm=cm0, kadv=bar, dma=None if m0 else 2),
        dict(qi=(H, m1), si=H, pi=H, n=0, kre=0 if bar else None, vre=0, bar=bar, vadv=True, cm=cm1, dma=None if m0 else 1, bark=0 if m0 else 1),
    ], name, sp)
    S_1, sp2 = single(sp, "single", False, False, False, False); assert sp2 == sp
    E1, sp = single(sp, "dg1", True, True, True, True)
    E2, sp = single(sp, "dg2", True, True, True, False, bar=False)
    E3, sp = section([
        dict(qi=None, si=H, pi=H, n=3, kre=None, vre=1),
        dict(qi=None, si=None, pi=H, n=0, kre=None, vre=None),
    ], "drain", sp)
    E3 = E3 + ["s_nop 7"]
    EP = epilogue(early); SL = slow()
    lD = [f"s_mov_b32 s{sCNT}, s{s2I}", f"s_cmp_eq_u32 s{sCNT}, 0", "s_cbranch_scc1 K2_B", ".p2align 4", "K2_DL:"]
    lDe = [f"s_sub_u32 s{sCNT}, s{sCNT}, 1", f"s_cmp_lg_u32 s{sCNT}, 0", "s_cbranch_scc1 K2_DL", "K2_B:"]
    lS = setdt + [f"s_lshl_b32 s{sCNT}, s{s2I}, 1", f"s_sub_u32 s{sCNT}, 28, s{sCNT}", f"s_cmp_eq_u32 s{sCNT}, 0", "s_cbranch_scc1 K2_E", ".p2align 4", "K2_SL:"]
    lSe = [f"s_sub_u32 s{sCNT}, s{sCNT}, 1", f"s_cmp_lg_u32 s{sCNT}, 0", "s_cbranch_scc1 K2_SL", "K2_E:"]
    traces = []
    for i in range(8):
        tr = P + A_ + lD
        for _ in range(2 * i): tr = tr + D_ + lDe
        tr = tr + B_ + lS
        for _ in range(28 - 4 * i): tr = tr + S_1 + lSe
        tr = tr + E1 + E2 + E3 + mark + EP
        traces.append(tr)
    lg = resolve_lg(traces)
    fix = lambda code: [f"s_waitcnt lgkmcnt({lg[x]})" if x.startswith("LG") else x for x in code]
    traces = [fix(t) for t in traces]
    k = [i for i, x in enumerate(EP) if x == "K2_STORE:"][0]
    slowtrace = traces[7][:len(traces[7]) - len(EP)] + EP[:k] + SL + EP[k:]
    code = P + A_ + lD + D_ + lDe + B_ + lS + S_1 + lSe + E1 + E2 + E3 + mark + EP
    return fix(code), SL, traces + [slowtrace]
```

```python
from asmlib import *
from layout import *
import os
BIG = fbits(-1.0e30)
def flat(l):
    o = []
    for x in l: o += [x] if isinstance(x, str) else x
    return o
SC = " sc1"
O_ = 64; S_ = [192, 208]; P_ = [224, 232]; WF = [16, 24]
vL16 = 3
vVA, vG, vL16b, vTR, vWD, vLN = 240, [241, 242], 243, [244, 245], [246, 247, 248, 249], 250
T0_, T1_, T2_, T3_, T4_ = 251, 252, 253, 254, 255
ACC = 0; CX = 64; Q_ = 128; KB = [160 + 4*b for b in range(4)]; VB = [176 + 8*b for b in range(4)]
sWS, sW, sDBG, sOUT = 8, 12, 40, 44
sWAVE, sH, sQB = 16, 17, 18
sRT, sCT = 17, 18
sCNT, sKK, sKV, sT0, sT1, sC0, sWO, sLW, sCB, sWC = range(19, 29)
sM, sWB, sWA = 30, 32, 34
sZ0, sZ1 = 36, 37
RED = 65536

def b_qk(j, kb, sb): return f"v_mfma_f32_32x32x16_bf16 {vr(S_[sb],16)}, {ar(KB[kb],4)}, {ar(Q_+4*j,4)}, 0"
def b_pv(j, vb, pb, f):
    d = vr(O_ + 16*j, 16)
    return f"v_mfma_f32_32x32x16_bf16 {d}, {ar(VB[vb]+4*f,4)}, {vr(P_[pb]+4*f,4)}, {d}"
def b_kload(b): return [f"buffer_load_dwordx4 {ar(KB[b],4)}, v{vL16}, {sr(sWS,4)}, s{sKK} offen{SC} ; grpend:k{b}", f"s_add_u32 s{sKK}, s{sKK}, 2048"]
def b_vload(b):
    return [f"s_mov_b64 exec, {sr(sM,2)}"] + [f"buffer_load_dwordx4 {ar(VB[b]+4*f,4)}, v{vVA}, {sr(sWS,4)}, s{sKV} offen offset:{1024 + 512*f}{SC}" + (f" ; grpend:v{b}" if f else "") for f in range(2)] + \
           ["s_mov_b64 exec, -1", f"s_add_u32 s{sKV}, s{sKV}, 2048"]
def o_mf(s, i):
    qt, mt = i >> 1, i & 1
    d = ar(ACC + (mt*2+qt)*16, 16)
    return f"v_mfma_f32_32x32x16_bf16 {d}, {vr(WF[s&1]+4*mt,4)}, {ar(CX+8*s+4*qt,4)}, {d}"
def o_ctx(s, qt): return f"buffer_load_dwordx4 {ar(CX+8*s+4*qt,4)}, v{vL16b if qt else vL16}, {sr(sWS,4)}, s{sC0} offen offset:{(s%4)*1024}{SC}" + (" ; grpend:o" if qt else "")
def o_dma(s, i, tag=""):
    k = (s & 1) * 2 + i
    return f"buffer_load_dwordx4 v{vWD[k]}, {sr(sW,4)}, s{sWO} offen offset:{k*1024} lds" + tag
def o_pre(s): return [f"s_add_u32 m0, s{sLW}, {s*2048}", f"s_add_u32 s{sWO}, s{sWO}, 32768"] if s % 2 == 0 else []
def o_post(s): return [f"s_add_u32 s{sC0}, s{sC0}, 4096"] if s % 4 == 3 else []
def o_trs(s): return [f"ds_read_b64_tr_b16 {vr(WF[s&1]+4*mt+2*e,2)}, v{vTR[mt]} offset:{s*2048 + e*1024}" for mt in range(2) for e in range(2)]
def w0only(code, lbl): return [f"s_cmp_lg_u32 s{sWAVE}, 0", f"s_cbranch_scc1 {lbl}"] + code + [f"{lbl}:"]
def flag_store(base):
    return [f"s_lshl_b32 s{sZ0}, s{sQB}, 7", f"s_lshl_b32 s{sZ1}, s{sH}, 2", f"s_add_u32 s{sZ0}, s{sZ0}, s{sZ1}", f"s_add_u32 s{sZ0}, s{sZ0}, {base}",
            f"v_mov_b32 v{T0_}, 1", "s_mov_b64 exec, 1", f"buffer_store_dword v{T0_}, off, {sr(sWS,4)}, s{sZ0}{SC}", "s_mov_b64 exec, -1"]
def flag_load(): return f"buffer_load_dword v{T1_}, v{T2_}, {sr(sWS,4)}, s{sZ0} offen{SC}"
def flag_lane(): return [f"v_and_b32 v{T2_}, 31, v{vLN}", f"v_lshlrev_b32 v{T2_}, 2, v{T2_}"]
def spin(lbl):
    return [f"s_mov_b32 s{sZ1}, 0x100000", f"{lbl}L:", "s_waitcnt vmcnt(0)", f"v_cmp_ne_u32 vcc, 1, v{T1_}", "s_nop 0", f"s_cbranch_vccz {lbl}",
            "s_sleep 4", flag_load(), f"s_sub_u32 s{sZ1}, s{sZ1}, 1", f"s_cmp_lg_u32 s{sZ1}, 0", f"s_cbranch_scc1 {lbl}L", "s_waitcnt vmcnt(0)"]

def smseq(n):
    S = S_[n & 1]; P = P_[n & 1]
    e = lambda r: f"v_exp_f32 v{S+r}, v{S+r}"
    c = lambda k: f"v_cvt_pk_bf16_f32 v{P+k}, v{S+2*k}, v{S+2*k+1}"
    return [e(0), e(1), e(2), c(0), e(3), e(4), c(1), e(5), e(6), c(2), e(7), e(8), c(3), e(9), e(10), c(4), e(11), e(12), c(5), e(13), e(14), e(15), c(6), c(7)]

def body(fused, tag, extra=None):
    o = []
    for n in range(32):
        qn = (n + 1) % 32; pn = (n - 1) % 32
        QK = b_qk(qn % 8, qn // 8, (n + 1) & 1); PV = [b_pv(pn % 8, pn // 8, (n + 1) & 1, f) for f in range(2)]
        xq = []; xp = []
        if n % 8 == 6: xq = b_kload(n // 8)
        if n % 8 == 0: xp = b_vload((n // 8 - 1) % 4)
        if n % 8 == 6: xp = xp + [f"s_waitcnt vmcnt(@{tag}{n}:0:k{(n // 8 + 1) % 4})"]
        if n % 8 == 1: xq = xq + [f"s_waitcnt vmcnt(@{tag}{n}:0:v{n // 8})"]
        q = smseq(n)
        if not fused:
            ex = (extra or {}).get(n, [[], [], []])
            o += [QK] + xq + ex[0] + q[:8] + [PV[0]] + ex[1] + q[8:16] + [PV[1]] + xp + ex[2] + q[16:]
        else:
            s = (n // 2) % 8; t = o_trs((s + 1) % 8)
            if n % 2 == 0:
                sh = [[f"s_waitcnt vmcnt(@{tag}o{n}:6:o) lgkmcnt(0)"], [t[0]], [t[1]], [t[2]], [t[3]]]
                M = [QK, o_mf(s, 0), PV[0], o_mf(s, 1), PV[1]]
                sh[4] = sh[4] + o_pre(s)
            else:
                sh = [[o_dma(s, 0)], [o_dma(s, 1)], [o_ctx(s, 0)], [o_ctx(s, 1)], o_post(s)]
                M = [QK, o_mf(s, 2), PV[0], o_mf(s, 3), PV[1]]
            sh[0] = xq + sh[0] if n % 2 == 0 else sh[0] + xq
            sh[4] = sh[4] + xp
            cuts = [0, 5, 10, 14, 19, 24]
            for g in range(5): o += [M[g]] + sh[g] + q[cuts[g]:cuts[g+1]]
    return o

def o_body(tag, mode, mid=None):
    c = []
    for s in range(8):
        m = [o_mf(s, i) for i in range(4)]
        if mid and s in mid: c += mid[s]
        if mode == "full":
            t = o_trs((s + 1) % 8)
            c += [f"s_waitcnt vmcnt(@{tag}{s}:6:o) lgkmcnt(0)", m[0]] + t[:2] + o_pre(s) + [m[1]] + t[2:] + [o_dma(s, 0), m[2], o_dma(s, 1), o_ctx(s, 0), m[3], o_ctx(s, 1)] + o_post(s)
        elif mode == "w":
            t = o_trs(s + 1) if s < 7 else []
            c += [f"s_waitcnt vmcnt(@{tag}{s}:{max(0, 6 - s)}:o) lgkmcnt(0)", m[0]] + t[:2] + o_pre(s) + [m[1]] + t[2:] + [o_dma(s, 0), m[2], o_dma(s, 1, " ; grpend:wb"), m[3]]
        else:
            t = o_trs(s + 1) if s < 7 else []
            c += [f"s_waitcnt vmcnt(@{tag}{s}:{7 - s}:o) lgkmcnt(0)", m[0]] + t[:2] + [m[1]] + t[2:] + [m[2], m[3]]
    return c

def early():
    c = []; A = c.append
    A(f"s_load_dwordx2 {sr(sWA,2)}, s[0:1], {KA_WO}"); A(f"s_load_dwordx2 {sr(sWB,2)}, s[0:1], {KA_BWO}"); A(f"s_load_dwordx2 {sr(sOUT,2)}, s[0:1], {KA_OUT}")
    A(f"v_and_b32 v{vLN}, 63, v0")
    A(f"v_and_b32 v{T0_}, 15, v{vLN}"); A(f"v_lshrrev_b32 v{T1_}, 5, v{vLN}"); A(f"v_lshl_add_u32 v{T0_}, v{T1_}, 4, v{T0_}"); A(f"v_lshlrev_b32 v{vVA}, 4, v{T0_}")
    A(f"s_mov_b32 s{sM}, 0xffff"); A(f"s_mov_b32 s{sM+1}, 0xffff")
    A(f"v_and_b32 v{T2_}, 31, v{vLN}"); A(f"v_cmp_eq_u32 vcc, 16, v{T2_}"); A(f"v_mov_b32 v{T3_}, 0x3f803f80")
    A(f"s_lshl_b32 s{sKK}, s{sH}, 17"); A(f"v_cndmask_b32 v{T3_}, 0, v{T3_}, vcc")
    A(f"s_lshl_b32 s{sT0}, s{sWAVE}, 15"); A(f"s_add_u32 s{sKK}, s{sKK}, s{sT0}"); A(f"s_add_u32 s{sKK}, s{sKK}, {WS_KVB}"); A(f"s_mov_b32 s{sKV}, s{sKK}")
    A(f"s_lshl_b32 s{sT0}, s{sH}, 16"); A(f"s_lshl_b32 s{sT1}, s{sQB}, 13"); A(f"s_add_u32 s{sT0}, s{sT0}, s{sT1}"); A(f"s_add_u32 s{sT0}, s{sT0}, {WS_QB}")
    A(f"s_add_u32 s{sT1}, s{sT0}, 4096")
    c += b_kload(0)
    for j in range(8): A(f"buffer_load_dwordx4 {ar(Q_+4*j,4)}, v{vL16}, {sr(sWS,4)}, s{sT0 if j < 4 else sT1} offen offset:{(j%4)*1024}{SC}" + (" ; grpend:q" if j == 7 else ""))
    for r in range(32): A(f"v_accvgpr_write_b32 a{VB[0]+r}, v{T3_}")
    A(f"v_lshlrev_b32 v{T2_}, 2, v{T2_}")
    A(f"s_lshl_b32 s{sT0}, s{sQB}, 10"); A(f"s_lshl_b32 s{sT1}, s{sWAVE}, 8"); A(f"s_add_u32 s{sT0}, s{sT0}, s{sT1}"); A(f"s_add_u32 s{sT0}, s{sT0}, {WS_GATE}")
    for k in range(2): A(f"buffer_load_dword v{vG[k]}, v{T2_}, {sr(sWS,4)}, s{sT0} offen offset:{128*k}{SC}")
    c += b_vload(0) + b_kload(1) + b_vload(1) + b_kload(2) + b_vload(2) + b_kload(3)
    A("s_waitcnt lgkmcnt(0)")
    return c
def o_setup():
    c = []; A = c.append
    A(f"v_add_u32 v{vL16b}, {288*1024}, v{vL16}")
    A(f"v_lshrrev_b32 v{T3_}, 3, v{vLN}"); A(f"v_and_b32 v{T4_}, 7, v{vLN}"); A(f"v_bfe_u32 v{vWD[1]}, v{vLN}, 4, 1"); A(f"v_lshlrev_b32 v{vWD[1]}, 2, v{vWD[1]}"); A(f"v_xor_b32 v{T4_}, v{T4_}, v{vWD[1]}")
    A(f"v_lshlrev_b32 v{T4_}, 4, v{T4_}"); A(f"v_lshl_add_u32 v{vWD[0]}, v{T3_}, 10, v{T4_}")
    for k in range(1, 4): A(f"v_add_u32 v{vWD[k]}, {k*7168}, v{vWD[0]}")
    A(f"v_lshrrev_b32 v{T3_}, 5, v{vLN}"); A(f"v_bfe_u32 v{T4_}, v{vLN}, 2, 2"); A(f"v_lshl_add_u32 v{T3_}, v{T3_}, 2, v{T4_}"); A(f"v_lshlrev_b32 v{T3_}, 7, v{T3_}")
    A(f"v_bfe_u32 v{T4_}, v{vLN}, 3, 1"); A(f"v_lshl_add_u32 v{T3_}, v{T4_}, 6, v{T3_}")
    A(f"v_bfe_u32 v{T4_}, v{vLN}, 4, 1"); A(f"v_lshl_add_u32 v{T3_}, v{T4_}, 5, v{T3_}")
    A(f"v_and_b32 v{T4_}, 3, v{vLN}"); A(f"v_lshl_add_u32 v{T3_}, v{T4_}, 3, v{T3_}")
    A(f"s_lshl_b32 s{sLW}, s{sWAVE}, 14")
    A(f"v_add_u32 v{vTR[0]}, s{sLW}, v{T3_}"); A(f"v_xor_b32 v{vTR[1]}, 64, v{vTR[0]}")
    A(f"s_mul_i32 s{sCB}, s{sRT}, {2*288*1024}"); A(f"s_add_u32 s{sCB}, s{sCB}, {WS_CTX}")
    A(f"s_lshl_b32 s{sT0}, s{sWAVE}, 16"); A(f"s_add_u32 s{sC0}, s{sCB}, s{sT0}")
    A(f"s_lshl_b32 s{sWC}, s{sCT}, 7"); A(f"s_sub_u32 s{sWC}, s{sWC}, 32768")
    A(f"s_lshl_b32 s{sT0}, s{sWAVE}, 20"); A(f"s_add_u32 s{sWO}, s{sWC}, s{sT0}")
    A(f"s_mov_b64 {sr(sW,2)}, {sr(sWA,2)}"); A(f"s_mov_b32 s{sW+2}, {4*MB}")
    return c
R = 64
def b_finish():
    c = []; A = c.append
    A("s_nop 0"); A(b_pv(7, 3, 1, 0)); A(b_pv(7, 3, 1, 1))
    A(f"s_mul_i32 s{sT0}, s{sWAVE}, 24576"); A(f"s_add_u32 s{sT0}, s{sT0}, {RED}"); A(f"v_add_u32 v{T0_}, s{sT0}, v{vL16}")
    A(f"s_mul_i32 s{sT0}, s{sWAVE}, 6144"); A(f"s_add_u32 s{sT0}, s{sT0}, {RED}"); A(f"v_add_u32 v{T1_}, s{sT0}, v{vL16}"); A(f"v_add_u32 v{T2_}, 49152, v{T1_}")
    for j in range(8):
        for k in range(2): A(f"ds_write_b128 v{T0_}, {vr(O_+16*j+4*k,4)} offset:{j*3072 + k*1024}")
        A(f"ds_write_b32 v{T0_}, v{O_+16*j+8} offset:{j*3072 + 2048}")
    A("s_waitcnt lgkmcnt(0)"); A("s_barrier")
    for k in range(2):
        for w in range(4):
            b = R + (k * 4 + w) * 12; va = T1_ if w < 2 else T2_; off = (w & 1) * 24576 + k * 3072
            A(f"ds_read_b128 {vr(b,4)}, v{va} offset:{off}"); A(f"ds_read_b128 {vr(b+4,4)}, v{va} offset:{off+1024}"); A(f"ds_read_b32 v{b+8}, v{va} offset:{off+2048}")
    for k in range(2):
        A(f"s_waitcnt lgkmcnt({12 if k == 0 else 0})")
        b = R + k * 48
        for r in range(9):
            A(f"v_add_f32 v{b+r}, v{b+r}, v{b+12+r}"); A(f"v_add_f32 v{b+24+r}, v{b+24+r}, v{b+36+r}")
        for r in range(8, -1, -1): A(f"v_add_f32 v{b+r}, v{b+r}, v{b+24+r}")
        A(f"v_mov_b32 v{b+9}, v{b+8}"); A("s_nop 1"); A(f"v_permlane32_swap_b32 v{b+8}, v{b+9}"); A(f"v_add_f32 v{b+8}, v{b+8}, v{b+9}")
    l0, l1 = R + 8, R + 48 + 8
    A(f"v_min_f32 v{T0_}, v{l0}, v{l1}"); A(f"v_max_f32 v{T1_}, v{l0}, v{l1}"); A(f"v_add_f32 v{T2_}, v{l0}, v{l1}")
    A(f"v_cmp_gt_f32 vcc, {hex(fbits(2.0**-64))}, v{T0_}"); A(f"v_cmp_nge_f32 s[70:71], v{T2_}, v{T2_}"); A("s_or_b64 s[70:71], s[70:71], vcc")
    A(f"v_cmp_lt_f32 vcc, {hex(fbits(2.0**64))}, v{T1_}"); A("s_or_b64 s[70:71], s[70:71], vcc")
    A("s_cbranch_scc1 P4_SLOW")
    return c
def b_store():
    c = ["P4_STORE:"]; A = c.append
    A(f"s_lshl_b32 s{sT0}, s{sQB}, 2"); A(f"s_add_u32 s{sT0}, s{sT0}, s{sWAVE}"); A(f"s_mul_i32 s{sT0}, s{sT0}, {2*288*1024}")
    A(f"s_lshl_b32 s{sT1}, s{sH}, 10"); A(f"s_add_u32 s{sT0}, s{sT0}, s{sT1}"); A(f"s_add_u32 s{sT0}, s{sT0}, {WS_CTX + 256*1024}")
    for k in range(2):
        b = R + k * 48
        A(f"v_rcp_f32 v{b+8}, v{b+8}"); A(f"v_sub_f32 v{vG[k]}, 1.0, v{vG[k]}"); A(f"v_mul_f32 v{b+8}, v{b+8}, v{vG[k]}")
        for r in range(8): A(f"v_mul_f32 v{b+r}, v{b+r}, v{b+8}")
        for r in range(4): A(f"v_cvt_pk_bf16_f32 v{b+12+r}, v{b+2*r}, v{b+2*r+1}")
        A(f"buffer_store_dwordx4 {vr(b+12,4)}, v{vL16b if k else vL16}, {sr(sWS,4)}, s{sT0} offen{SC}" + (" ; grpend:cb" if k else ""))
    return c
def final():
    c = []; A = c.append
    A(f"v_add_u32 v{T0_}, s{sLW}, v{vL16}")
    A(f"s_lshl_b32 s{sT0}, s{sWAVE}, 12"); A(f"v_add_u32 v{T1_}, s{sT0}, v{vL16}")
    A(f"v_and_b32 v{T2_}, 31, v{vLN}"); A(f"v_lshlrev_b32 v{T2_}, 10, v{T2_}"); A(f"v_lshrrev_b32 v{T3_}, 5, v{vLN}"); A(f"v_lshl_add_u32 v{T2_}, v{T3_}, 4, v{T2_}")
    A(f"s_lshl_b32 s{sT0}, s{sRT}, 16"); A(f"s_and_b32 s{sT1}, s{sWAVE}, 1"); A(f"s_lshl_b32 s{sT1}, s{sT1}, 15"); A(f"s_add_u32 s{sT0}, s{sT0}, s{sT1}")
    A(f"s_lshl_b32 s{sT1}, s{sCT}, 7"); A(f"s_add_u32 s{sT0}, s{sT0}, s{sT1}")
    A(f"s_lshr_b32 s{sT1}, s{sWAVE}, 1"); A(f"s_lshl_b32 s{sT1}, s{sT1}, 6"); A(f"s_add_u32 s{sT0}, s{sT0}, s{sT1}")
    for k in range(16): A(f"ds_write_b128 v{T0_}, {ar(ACC+4*k,4)} offset:{k*1024}")
    A("s_waitcnt lgkmcnt(0)"); A("s_barrier")
    for w in range(4):
        for k in range(4): A(f"ds_read_b128 {vr(128+w*16+4*k,4)}, v{T1_} offset:{w*16384 + k*1024}")
    A("s_waitcnt lgkmcnt(0)")
    for r in range(16):
        A(f"v_add_f32 v{128+r}, v{128+r}, v{144+r}"); A(f"v_add_f32 v{160+r}, v{160+r}, v{176+r}")
    for r in range(16): A(f"v_add_f32 v{128+r}, v{128+r}, v{160+r}")
    for r in range(8): A(f"v_cvt_pk_bf16_f32 v{64+r}, v{128+2*r}, v{128+2*r+1}")
    A("s_nop 1")
    for pr in range(2):
        b = 64 + 4 * pr
        A(f"v_permlane32_swap_b32 v{b}, v{b+2}"); A(f"v_permlane32_swap_b32 v{b+1}, v{b+3}")
        A(f"buffer_store_dwordx4 {vr(b,4)}, v{T2_}, {sr(sOUT,4)}, s{sT0} offen offset:{32*pr}")
    return c
def b_slow():
    c = ["P4_SLOW:"]; A = c.append
    S = S_[0]; P = P_[0]; vM = T0_; QS = 4; OA = 160
    strip = lambda x: x.split(" ;")[0]
    for k in range(2):
        b = R + k * 48
        A(f"s_lshl_b32 s{sT0}, s{sH}, 16"); A(f"s_lshl_b32 s{sT1}, s{sQB}, 13"); A(f"s_add_u32 s{sT0}, s{sT0}, s{sT1}")
        A(f"s_lshl_b32 s{sT1}, s{sWAVE}, 11"); A(f"s_add_u32 s{sT0}, s{sT0}, s{sT1}"); A(f"s_add_u32 s{sT0}, s{sT0}, {WS_QB + 1024*k}")
        A("s_waitcnt vmcnt(0)")
        A(f"buffer_load_dwordx4 {vr(QS,4)}, v{vL16}, {sr(sWS,4)}, s{sT0} offen{SC}")
        A(f"v_mov_b32 v{vM}, {hex(BIG)}")
        for ps in range(2):
            A(f"s_lshl_b32 s{sKK}, s{sH}, 17"); A(f"s_add_u32 s{sKK}, s{sKK}, {WS_KVB}"); A(f"s_mov_b32 s{sKV}, s{sKK}"); A(f"s_mov_b32 s{sCNT}, 64")
            if ps == 1:
                for r in range(16): A(f"v_mov_b32 v{OA+r}, 0")
            A(f"P4_S{k}{ps}:")
            c += [strip(x) for x in b_kload(0)]
            if ps == 1: c += [strip(x) for x in b_vload(0)]
            A("s_waitcnt vmcnt(0)")
            A(f"v_mfma_f32_32x32x16_bf16 {vr(S,16)}, {ar(KB[0],4)}, {vr(QS,4)}, 0"); A("s_nop 15")
            if ps == 0:
                for r in range(16): A(f"v_max_f32 v{vM}, v{vM}, v{S+r}")
            else:
                for r in range(16): A(f"v_sub_f32 v{S+r}, v{S+r}, v{vM}")
                for r in range(16): A(f"v_exp_f32 v{S+r}, v{S+r}")
                A("s_nop 0")
                for r in range(8): A(f"v_cvt_pk_bf16_f32 v{P+r}, v{S+2*r}, v{S+2*r+1}")
                A("s_nop 1")
                for f in range(2): A(f"v_mfma_f32_32x32x16_bf16 {vr(OA,16)}, {ar(VB[0]+4*f,4)}, {vr(P+4*f,4)}, {vr(OA,16)}")
                A("s_nop 7")
            A(f"s_sub_u32 s{sCNT}, s{sCNT}, 1"); A(f"s_cmp_lg_u32 s{sCNT}, 0"); A(f"s_cbranch_scc1 P4_S{k}{ps}")
            if ps == 0:
                A(f"v_mov_b32 v{vM+1}, v{vM}"); A("s_nop 1"); A(f"v_permlane32_swap_b32 v{vM}, v{vM+1}"); A(f"v_max_f32 v{vM}, v{vM}, v{vM+1}")
        A("s_nop 7")
        for r in range(9): A(f"v_mov_b32 v{b+r}, v{OA+r}")
        A(f"v_mov_b32 v{b+9}, v{b+8}"); A("s_nop 1"); A(f"v_permlane32_swap_b32 v{b+8}, v{b+9}"); A(f"v_add_f32 v{b+8}, v{b+8}, v{b+9}")
    A("s_branch P4_STORE")
    return c

def gen(mark_a, mark_b, mark_c, mark_d):
    SIG, PL, CHK = [int(x) for x in os.environ.get("P4T", "9,17,21").split(",")]
    c = []; A = c.append
    A("s_waitcnt vmcnt(@p4q:0:q)")
    A(b_qk(0, 0, 0))
    A("s_nop 1")
    c += [f"v_mov_b32 v{O_+r}, 0" for r in range(128)] + [f"v_mov_b32 v{P_[1]+r}, 0" for r in range(8)]
    c += [f"v_accvgpr_write_b32 a{ACC+r}, 0" for r in range(64)]
    c += o_setup()
    pro = c
    ex = {n: [[], [], []] for n in range(32)}
    ex[SIG][1] = ["s_waitcnt vmcnt(@p4s:0:ca)", "s_barrier"] + w0only(flag_store(WS_F3), "P4_S3")
    f3 = [f"s_lshr_b32 s{sZ0}, s{sRT}, 1", f"s_sub_u32 s{sZ1}, 15, s{sZ0}", f"s_min_u32 s{sZ0}, s{sZ0}, s{sZ1}", f"s_lshl_b32 s{sZ0}, s{sZ0}, 7", f"s_add_u32 s{sZ0}, s{sZ0}, {WS_F3}"]
    ex[PL][2] = ex[PL][2] + w0only(f3 + flag_lane() + [flag_load()], "P4_L3")
    ex[CHK][1] = ex[CHK][1] + w0only(spin("P4_C3"), "P4_C3") + ["s_barrier"]
    for s in range(8):
        n = CHK + s
        if s == 0: ex[n][2] += o_pre(s) + [o_dma(s, 0), o_dma(s, 1), o_ctx(s, 0), o_ctx(s, 1)]
        else:
            ex[n][0] += o_pre(s) + [o_dma(s, 0), o_dma(s, 1)]; ex[n][1] += [o_ctx(s, 0)]; ex[n][2] += [o_ctx(s, 1)] + o_post(s)
    t = o_trs(0)
    ex[31][0] += ["s_waitcnt vmcnt(@p4t:7:o)"] + t[:1]; ex[31][1] += t[1:3]; ex[31][2] += t[3:]
    b0 = body(False, "b", ex) + mark_a + [f"s_mov_b32 s{sCNT}, 3"]
    loop = [".p2align 4", "P4_L:"] + body(True, "f") + [f"s_sub_u32 s{sCNT}, s{sCNT}, 1", f"s_cmp_lg_u32 s{sCNT}, 0", "s_cbranch_scc1 P4_L"]
    fin = mark_b + b_finish()
    st = b_store() + mark_c
    sig4 = ["s_waitcnt vmcnt(@p4u:0:cb)", "s_barrier"] + w0only(flag_store(WS_F4), "P4_S4")
    f4 = [f"s_lshr_b32 s{sZ0}, s{sRT}, 2", f"s_lshl_b32 s{sZ0}, s{sZ0}, 7", f"s_add_u32 s{sZ0}, s{sZ0}, {WS_F4}"]
    tail = o_body("g", "full", {3: sig4})
    tail += [f"s_mov_b64 {sr(sW,2)}, {sr(sWB,2)}", f"s_mov_b32 s{sW+2}, {MB//2}", f"s_lshl_b32 s{sT0}, s{sWAVE}, 17", f"s_add_u32 s{sWO}, s{sWC}, s{sT0}"]
    tail += o_body("h", "w", {5: w0only(f4 + flag_lane() + [flag_load()], "P4_L4")})
    tail += w0only(spin("P4_C4"), "P4_C4") + ["s_barrier"] + mark_d
    tail += [f"s_lshl_b32 s{sT0}, s{sWAVE}, 13", f"s_add_u32 s{sC0}, s{sCB}, s{sT0}", f"s_add_u32 s{sC0}, s{sC0}, {256*1024}"]
    for s in range(8): tail += [o_ctx(s, 0), o_ctx(s, 1)] + o_post(s)
    tail += ["s_waitcnt vmcnt(@p4w:0:wb)"] + o_trs(0)
    tail += o_body("i", "none") + final()
    slow = b_slow()
    return pro + b0 + loop + fin + st + tail, slow, [pro + b0 + loop * 3 + fin + st + tail, pro + b0 + loop * 3 + fin + slow + st + tail]
```

```python
import sys, importlib
from asmlib import *
NAME = "gated_mix__compressed_kv_cla__mha_block__prompt"
def build(kernels, path):
    ref = open(f"cdna_kernels/{NAME}.s.ref").read().splitlines()
    head = [l for l in ref if l.startswith(";") and "@launch" not in l and "Override" not in l and "grid=ceil" not in l]
    out = head[:]
    if len(kernels) == 1: out.append(f"; @launch grid=({kernels[0][2]},1,1) block=({kernels[0][3]},1,1) lds={kernels[0][4]}")
    else:
        for k in kernels: out.append(f"; @launch kernel={k[0]} grid=({k[2]},1,1) block=({k[3]},1,1) lds={k[4]}")
    out.append(open("header.txt").read().rstrip())
    out += ['.amdgcn_target "amdgcn-amd-amdhsa--gfx950"', ".text"]
    for k in kernels:
        out += [f".globl {k[0]}", ".p2align 8", f".type {k[0]},@function", f"{k[0]}:"]
        for ins in k[1]():
            out.append(ins if (ins.endswith(":") or ins.startswith(".")) else "  " + ins)
    out += ['.section .rodata,"a"']
    for k in kernels: out += [".p2align 6", kernel_desc(k[0], k[5], k[6])]
    open(path, "w").write("\n".join(out) + "\n")
if __name__ == "__main__":
    import fused
    ks = [(NAME + "_kernel", fused.gen, 256, 256, 163840, 512, 256)]
    build(ks, os.environ.get("OUT") or (f"cdna_kernels/{NAME}.s" if not PROF else "prof.s"))
```

```python
import re

def vr(b, n=1, k='v'):
    return f"{k}{b}" if n == 1 else f"{k}[{b}:{b+n-1}]"
def ar(b, n=1): return vr(b, n, 'a')
def sr(b, n=1): return vr(b, n, 's')

TRANS = ("v_exp_f32", "v_log_f32", "v_rcp_f32", "v_rsq_f32", "v_sqrt_f32")

def cost(ins):
    m = ins.split()[0]
    if m in TRANS: return 8
    if m.startswith("v_mfma"): return 8
    if m == "s_nop": return 4 * (int(ins.split()[1]) + 1)
    if m.endswith(":") or m.startswith(";") or m.startswith("."): return 0
    return 4

def klass(ins):
    m = ins.split()[0]
    if m.startswith("LG"): return "s"
    if m.startswith("v_"): return "v"
    if m.startswith("ds_") or m.startswith("buffer_") or m.startswith("global_"): return "m"
    return "s"
def vcost(ins):
    m = ins.split()[0]
    if m in TRANS or m.startswith("v_permlane"): return 8
    if m == "s_nop": return 4 * (int(ins.split()[1]) + 1)
    return 4
def conflict(a, b):
    if a.startswith("LG") or b.startswith("LG"): return True
    ma, da, ua, ka = parse(a); mb_, db, ub, kb = parse(b)
    if ka == "ctl" or kb == "ctl": return True
    return bool(set(da) & set(ub) or set(ua) & set(db) or set(da) & set(db))
def order(lst):
    out = []
    for ins in lst:
        p = len(out)
        if klass(ins) != "v":
            while p > 0 and klass(out[p-1]) == "v" and not conflict(out[p-1], ins): p -= 1
            if klass(ins) == "m":
                q = p
                while q > 0 and klass(out[q-1]) == "s" and not conflict(out[q-1], ins) and not out[q-1].startswith("s_"): q -= 1
        out.insert(p, ins)
    return out
def gapcost(lst):
    t = 4; prev = None; nm = 0
    for ins in lst:
        k = klass(ins)
        if k == "v": t = max(t, 8) + vcost(ins)
        elif k == "s": t += vcost(ins)
        else:
            if prev == "v": t += 12
            elif prev == "m": t += 6
            else: t += 8
        prev = k
    return max(t, 8)

class Sched:
    def __init__(self, mfmas, budget):
        self.m = mfmas
        self.n = len(mfmas)
        self.gap = [[] for _ in mfmas]
        self.pre = [[] for _ in mfmas]
        self.budget = budget
    def load(self, g, extra=()):
        l = order(self.gap[g] + list(extra))
        if g + 1 < self.n: l = l + self.pre[g + 1]
        return gapcost(l)
    def add(self, g, ins):
        if isinstance(ins, str): ins = [ins]
        self.gap[g].extend(ins)
    def before(self, g, ins):
        if isinstance(ins, str): ins = [ins]
        self.pre[g].extend(ins)
    def _try(self, items, g0, g1, pace, bud):
        added = []; g = g0; n = len(items); ok = True
        for i, it in enumerate(items):
            grp = [it] if isinstance(it, str) else list(it)
            g = max(g, g0 + int(pace * i * (g1 - g0) / n))
            while g < g1 and self.load(g, grp) > max(bud(g), self.load(g)): g += 1
            if g >= g1: ok = False; break
            self.gap[g].extend(grp); added.append((g, len(grp)))
        if not ok:
            for g, k in reversed(added): del self.gap[g][-k:]
        return ok
    def fill(self, items, g0, g1):
        if not items: return
        B = self.budget
        for pace in (1.0, 0.9, 0.8, 0.6, 0.4, 0.2, 0.0):
            if self._try(items, g0, g1, pace, lambda g: B): return
        for extra in (4, 8, 12, 16, 24, 32, 48, 64):
            for k in (8, 5, 3, 2, 1):
                if self._try(items, g0, g1, 0.0, lambda g: B + (extra if g % k == 0 else extra - 4)): return
        raise Exception("fill failed")
    def pack(self, items, g0, g1):
        g = g0; pos = []
        for it in items:
            grp = [it] if isinstance(it, str) else list(it)
            while g < g1 - 1 and self.load(g, grp) > self.budget: g += 1
            self.gap[g].extend(grp); pos.append(g)
        return pos
    def emit(self):
        out = []
        for g in range(self.n):
            out += self.pre[g]; out.append(self.m[g]); out += order(self.gap[g])
        return out
    def over(self):
        return sum(max(0, self.load(g) - self.budget) for g in range(self.n))

_R = re.compile(r"^-?(?:abs\()?([vas])(?:\[(\d+):(\d+)\]|(\d+))\)?$")
def regs(op):
    op = op.strip()
    if op in ("vcc",): return ["vcc"]
    if op in ("exec",): return ["exec"]
    if op == "m0": return ["m0"]
    m = _R.match(op)
    if not m: return []
    if m.group(4) is not None: return [m.group(1) + m.group(4)]
    return [m.group(1) + str(i) for i in range(int(m.group(2)), int(m.group(3)) + 1)]

def parse(ins):
    ins = ins.split(";")[0].strip()
    p = ins.split(None, 1)
    m = p[0]
    ops = []
    if len(p) > 1:
        ops = [o.strip() for o in p[1].split(",")]
        last = ops[-1].split()
        ops[-1] = last[0] if last else ""
        mods = last[1:]
    else: mods = []
    R = [regs(o) for o in ops]
    flat = lambda l: [x for y in l for x in y]
    if m.startswith("v_mfma"): return m, R[0], flat(R[1:]), "mfma"
    if m.startswith("ds_read"): return m, R[0], flat(R[1:]), "ldsld"
    if m.startswith("ds_write") or m.startswith("ds_add"): return m, [], flat(R), "ldsst"
    if m.startswith("ds_bpermute") or m.startswith("ds_swizzle"): return m, R[0], flat(R[1:]), "ldsld"
    if m.startswith("buffer_load"):
        if "lds" in mods: return m, [], flat(R) + ["m0"], "dma"
        return m, R[0], flat(R[1:]), "vmld"
    if m.startswith("global_load"): return m, R[0], flat(R[1:]), "vmld"
    if m.startswith("buffer_store") or m.startswith("global_store") or m.startswith("buffer_atomic"): return m, [], flat(R), "vmst"
    if m.startswith("buffer_inv") or m.startswith("buffer_wbl2"): return m, [], [], "vmst"
    if m.startswith("s_load") : return m, R[0], flat(R[1:]), "smem"
    if m.startswith("s_memtime") or m.startswith("s_memrealtime"): return m, R[0], [], "smem"
    if m.startswith("v_permlane"): return m, R[0] + R[1], R[0] + R[1], "valu"
    if m.startswith("v_cmp"): return m, R[0], flat(R[1:]), "valu"
    if m.startswith("v_readfirstlane") or m.startswith("v_readlane"): return m, R[0], flat(R[1:]), "valu"
    if m.startswith("v_fmac") : return m, R[0], flat(R), "valu"
    if m.startswith("v_cndmask"):
        u = flat(R[1:])
        if len(ops) == 3: u.append("vcc")
        return m, R[0], u, "valu"
    if m.startswith("v_"): return m, R[0] if R else [], flat(R[1:]), "valu"
    if m in ("s_waitcnt", "s_barrier", "s_nop", "s_endpgm", "s_setprio", "s_sleep") or m.startswith("s_cbranch") or m == "s_branch": return m, [], [], "ctl"
    if m.startswith("s_cmp") or m.startswith("s_bitcmp"): return m, ["scc"], flat(R), "salu"
    if m.startswith("s_"):
        d = list(R[0]) if R else []; u = flat(R[1:])
        if m.startswith("s_cselect") or m.startswith("s_addc") or m.startswith("s_subb"): u = u + ["scc"]
        if not (m.startswith("s_mov") or m.startswith("s_cselect") or m.startswith("s_mul") or m.startswith("s_getpc") or m.startswith("s_getreg")): d = d + ["scc"]
        return m, d, u, "salu"
    raise Exception("unparsed " + ins)

def check_trace(trace, name=""):
    errs = []
    lg = []
    vm = []
    pend = {}
    last = {}
    lastC = {}
    laststore = {}
    st = 0
    for idx, ins in enumerate(trace):
        s = ins.split(";")[0].strip()
        if not s or s.endswith(":") or s.startswith("."): continue
        m, d, u, k = parse(s)
        def err(msg): errs.append(f"{name}[{idx}] {s}: {msg}")
        if m == "s_waitcnt":
            mm = re.search(r"vmcnt\((\d+)\)", s)
            if mm:
                n = int(mm.group(1))
                while len(vm) > n:
                    for r in vm.pop(0): pend.pop(r, None)
            mm = re.search(r"lgkmcnt\((\d+)\)", s)
            if mm:
                n = int(mm.group(1))
                if n > 0 and any(x[0] == "smem" for x in lg): err("counted lgkmcnt with smem outstanding")
                while len(lg) > n:
                    for r in lg.pop(0)[1]: pend.pop(r, None)
            st += 1; continue
        if m == "s_nop":
            st += int(s.split()[1]) + 1; continue
        for r in u + d:
            if r in pend and not (k == "vmld" and m == "buffer_load_dword" and r in d and r in ("v23", "v27")): err(f"{r} has outstanding {pend[r]} load")
        for r in u:
            if r in last:
                ws, wk, wp, wm = last[r]; dist = st - ws - 1
                if wk == "valu" and k == "mfma" and dist < 2: err(f"valu->mfma {r} dist {dist}")
                if wk == "valu" and m.startswith("v_permlane") and dist < 2: err(f"valu->permlane {r} dist {dist}")
                if wk == "valu" and (m.startswith("v_readfirstlane") or m.startswith("v_readlane")) and r[0] == 'v' and r != 'vcc' and dist < 1: err(f"valu->readlane {r}")
                if wk == "valu" and wm in TRANS and k == "valu" and m not in TRANS and dist < 1: err(f"trans->valu {r}")
                if wk == "valu" and (r[0] == 's' or r == 'vcc') and k == "valu" and dist < 2: err(f"valu sgpr->valu {r} dist {dist}")
                if wk == "valu" and r[0] == 's' and k in ("vmld", "vmst", "dma") and dist < 5: err(f"valu sgpr->vmem {r}")
                if wk == "salu" and r == "m0" and k == "dma" and dist < 1: err("m0->dma")
                if wk == "mfma":
                    need = {4: 8, 8: 12}[wp]
                    if k == "mfma":
                        ops = [o.strip() for o in s.split(None, 1)[1].split(",")]
                        inC = r in regs(ops[3]); inAB = r in regs(ops[1]) + regs(ops[2])
                        if inAB and dist < need: err(f"mfma D->mfma A/B {r} dist {dist}")
                        if inC and not inAB:
                            exact = (last[r][3] == (m, ops[3]))
                            if not exact and dist < need - 2: err(f"mfma D->mfma C overlap {r} dist {dist}")
                    elif dist < need: err(f"mfma D->{k} read {r} dist {dist} need {need}")
        for r in d:
            if r in last and last[r][1] == "mfma" and k in ("valu", "ldsld", "vmld"):
                need = {4: 8, 8: 12}[last[r][2]]; dist = st - last[r][0] - 1
                if dist < need: err(f"mfma D->{k} write {r} dist {dist}")
            if r in last and last[r][1] == "mfma" and k == "mfma":
                ops = [o.strip() for o in s.split(None, 1)[1].split(",")]
                if last[r][3] != (m, ops[0]):
                    need = {4: 8, 8: 12}[last[r][2]]; dist = st - last[r][0] - 1
                    if dist < need: err(f"mfma D->mfma D (waw, different shape) {r}")
            if r in lastC and k == "valu":
                need = {4: 3, 8: 7}[lastC[r][1]]; dist = st - lastC[r][0] - 1
                if dist < need: err(f"mfma srcC read -> valu write {r} dist {dist}")
            if r in laststore and k == "valu" and st - laststore[r] - 1 < 2: err(f"store data WAR {r}")
        if k == "mfma":
            passes = 8 if "32x32" in m else 4
            ops = [o.strip() for o in s.split(None, 1)[1].split(",")]
            for r in d: last[r] = (st, "mfma", passes, (m, ops[0]))
            for r in regs(ops[3]): lastC[r] = (st, passes)
        else:
            for r in d: last[r] = (st, k, 0, m)
        if k == "ldsld": lg.append(("lds", d)); [pend.__setitem__(r, "lds") for r in d]
        elif k == "ldsst": lg.append(("lds", []))
        elif k == "smem": lg.append(("smem", d)); [pend.__setitem__(r, "smem") for r in d]
        elif k == "vmld": vm.append(d); [pend.__setitem__(r, "vm") for r in d]
        elif k in ("vmst", "dma"):
            vm.append([])
            if k == "vmst" and ("x4" in m or "x3" in m):
                ops = [o.strip() for o in s.split(None, 1)[1].split(",")]
                for r in regs(ops[0] if m.startswith("buffer") else ops[1]): laststore[r] = st
        if len(vm) > 63: err("vmcnt overflow >63")
        st += 1
    return errs

def resolve_vm(traces):
    res = {}
    for tr in traces:
        ops = []
        for ins in tr:
            s = ins.split(";")[0].strip()
            if not s or s.endswith(":") or s.startswith("."): continue
            mm = re.search(r"vmcnt\(@(\w+):(\d+):(\w+)\)", s)
            if mm:
                wid, k, cls = mm.group(1), int(mm.group(2)), mm.group(3)
                ends = [i for i, o in enumerate(ops) if o == cls]
                if len(ends) > k:
                    n = len(ops) - 1 - ends[len(ends) - 1 - k]
                    res[wid] = min(res.get(wid, 63), n)
                else:
                    raise Exception(f"wait {wid}: no group to wait for")
                continue
            m = s.split()[0]
            if m.startswith("buffer_") or m.startswith("global_"):
                g = re.search(r"grpend:(\w+)", ins)
                ops.append(g.group(1) if g else None)
    return res

def apply_vm(code, res):
    def f(ins):
        return re.sub(r"vmcnt\(@(\w+):(\d+):(\w+)\)", lambda m: f"vmcnt({res[m.group(1)]})", ins)
    return [f(i) for i in code]

def kernel_desc(name, nvgpr, accum, nsgpr=102):
    return f""".amdhsa_kernel {name}
  .amdhsa_next_free_vgpr {nvgpr}
  .amdhsa_next_free_sgpr {nsgpr}
  .amdhsa_accum_offset {accum}
  .amdhsa_group_segment_fixed_size 0
  .amdhsa_kernarg_size 104
  .amdhsa_user_sgpr_count 2
  .amdhsa_user_sgpr_kernarg_segment_ptr 1
  .amdhsa_system_sgpr_workgroup_id_x 1
.end_amdhsa_kernel
"""
def fbits(x):
    import struct
    return struct.unpack("<I", struct.pack("<f", x))[0]

import os
PROF = int(os.environ.get("PROF", "0"))
WS_PROF = 79 * (1 << 20)
NMARK = 11
def prof_mark(i):
    if not PROF: return []
    op = "s_memtime" if (os.environ.get("PROFC") and i >= 1) else "s_memrealtime"
    return [f"{op} s[94:95]", "s_waitcnt lgkmcnt(0)", f"s_mov_b32 s{83+i}, s94"]
def prof_start():
    if not PROF: return []
    return ["s_memtime s[80:81]"] + [f"s_mov_b32 s{i}, 0" for i in range(83, 94)] + prof_mark(0)
def prof_end(kidx, sO, wave_sgpr):
    if not PROF: return []
    c = ["s_waitcnt vmcnt(0)", "s_memtime s[96:97]", "s_memrealtime s[94:95]", "s_waitcnt lgkmcnt(0)", "s_mov_b32 s82, s96"]
    c += [f"s_lshl_b32 s96, s2, 2", f"s_add_u32 s96, s96, s{wave_sgpr}", "s_lshl_b32 s96, s96, 6", f"s_add_u32 s96, s96, {WS_PROF}",
          "s_mov_b64 exec, 1", "v_mov_b32 v20, 0"]
    for j, s in enumerate(list(range(83, 94)) + [94, 80, 82]):
        c += [f"v_mov_b32 v21, s{s}", f"buffer_store_dword v21, v20, s[{sO}:{sO+3}], s96 offen offset:{4*j}"]
    c += ["s_getreg_b32 s97, hwreg(HW_REG_XCC_ID)", "v_mov_b32 v21, s97", f"buffer_store_dword v21, v20, s[{sO}:{sO+3}], s96 offen offset:60"]
    return c
```

```python
from asmlib import *
from layout import *
import p1, p3, p4
def strip_w0(tr):
    out = []; i = 0
    while i < len(tr):
        if tr[i] == "s_cmp_lg_u32 s16, 0" and tr[i+1].startswith("s_cbranch_scc1 "):
            lbl = tr[i+1].split()[1] + ":"
            out += tr[i:i+2]
            while tr[i] != lbl: i += 1
        out.append(tr[i]); i += 1
    return out
def gen():
    M = [prof_mark(i) for i in range(11)]
    sel = os.environ.get("MARKS", "pro,pair,p2,p3,ep,p4,b0,bf,st,pl").split(",")
    mk = lambda name: M[1 + sel.index(name)] if name in sel else []
    head = ["s_cmp_ge_u32 s2, 256", "s_cbranch_scc1 F_END"] + prof_start()
    P = p1.prologue(mk)
    P = P[:-2] + mk("pro") + P[-2:]
    V = [p1.version(0), p1.version(1)]
    Q = p1.p2(p3.kv_setup(p1.vLN), p3.kv_dma0(), p3.kv_dma1())
    Q = Q[:1] + mk("p2") + Q[1:] + mk("p3")
    A, Aslow, Atr = p3.gen(p4.early(), mk("ep"))
    B, Bslow, Btr = p4.gen(mk("b0"), mk("bf"), mk("st"), mk("pl"))
    B = mk("p4") + B; Btr = [mk("p4") + t for t in Btr]
    end = prof_end(0, 8, 16) + ["F_END:", "s_endpgm"]
    pm = mk("pair")
    fronts = []
    for v in V:
        fronts.append(head + P + v["head"] + v["pair"] + pm + v["br"] + v["u2"] + v["u3"] + v["u4"])
        fronts.append(head + P + v["head"] + v["pair"] + pm + v["br"] + v["skip"] + v["u3"] + v["u4"])
    sk = V[0]["skip"]; a = sk.index("s_cbranch_scc0 P1_NG"); b = sk.index("P1_NG:")
    fronts.append(head + P + V[0]["head"] + V[0]["pair"] + pm + V[0]["br"] + sk[:a+1] + sk[b:] + V[0]["u3"] + V[0]["u4"])
    traces = [f + Q + Atr[3] + Btr[0] + end for f in fronts] + [fronts[0] + Q + t + Btr[0] + end for t in Atr] + [fronts[0] + Q + Atr[0] + Btr[1] + end]
    traces += [strip_w0(t) for t in traces]
    res = resolve_vm(traces)
    errs = []
    for i, t in enumerate(traces): errs += check_trace(apply_vm(t, res), f"tr{i}")
    if errs:
        print("\n".join(errs[:40])); raise Exception("hazards")
    print("vm", res)
    v0, v1 = V
    code = head + P + v0["head"] + v0["pair"] + pm + v0["br"] + v0["u2"] + v0["u3"] + v0["u4"] + Q + A + B + end
    code += v1["head"] + v1["pair"] + pm + v1["br"] + v1["u2"] + v1["u3"] + v1["u4"] + ["s_branch P2"]
    code += v0["skip"] + v1["skip"] + Aslow + Bslow + p1.tabdata()
    return apply_vm(code, res)
if __name__ == "__main__":
    print(len(gen()))
```

```python
from asmlib import *
from layout import *
import os
def flat(l):
    o = []
    for x in l: o += [x] if isinstance(x, str) else x
    return o
SC = " sc1"
NT = os.environ.get("NT", "")
SCE = os.environ.get("SCE", " sc1")
def table():
    rows = []; one = fbits(1.0)
    for cg in range(32):
        if cg < 13:
            t0 = 5 * cg; n = min(5, 64 - t0)
            e = [1, 0, 8192, 0, t0, 0, t0 * 128, 1024, 512, 2048, 16384, 256, fbits(LOG2E * 128 ** -0.5), WS_KV, MB, 4096]
        elif cg < 26:
            t0 = 5 * (cg - 13); n = min(5, 64 - t0)
            e = [1, 1, 8192, 1, t0, 0, t0 * 128, 1024, 512, 16384, 2048, 256, one, WS_KV + 8192, MB, 4096]
        elif cg < 28:
            t0 = 4 * (cg - 26); n = 4
            e = [0, 2, 3072, 0, t0, 0, t0 * 128, 65536, 512, 131072, 1024, 256, fbits(LOG2E * 0.25), WS_QB, 8 * 65536, 4 * 65536]
        elif cg < 30:
            t0 = 4 * (cg - 28); n = 4
            e = [0, 2, 3072, 0, t0, 0, 1024 + t0 * 128, 131072, 512, 262144, 2048, 256, one, WS_KVB, 8 * 131072, 4 * 131072]
        else:
            t0 = 4 * (cg - 30); n = 4
            e = [0, 2, 3072, 1, t0, 0, 2048 + t0 * 128, 512, 256, 2048, 262144, 131072, one, WS_KVB + 1024, 8 * 131072, 4 * 131072]
        e[5] = (1 if n == 4 else 0) | (2 if cg == GATE_CG else 0)
        rows.append(e)
    return rows
GATE_CG = 26
TOUCH = os.environ.get("TOUCH", "cxpwqo")
TPOS = os.environ.get("TPOS", "b")
vTCH = 23
ACC = [32, 96, 160]; WR = [224, 240]
vW = [1, 2, 3, 4]; vWD = [5, 6, 7, 8]; vXD = [9, 10, 11, 12]; vXR = [13, 14]; vXN = [15, 16]
vEP, vL3, vWC, vLN, vJQ, vFL, vPF = 17, 18, 19, 20, 21, 22, 27
sWS, sW, sWAVE, sH, sI, sDBG, sX, sE = 8, 12, 16, 17, 18, 40, 44, 48
sLW, sLX, sWOFF, sK128, sK128m, sUSW, sXA, sXB, sTE, sT0, sT1, sRT = 19, 20, 21, 22, 23, 24, 25, 26, 27, 28, 29, 30
sO0 = 32
sB0 = 36
sZ0, sZ1 = 37, 31
sWQ, sXP = 52, 54
sTB = 56
T_XSEL, T_WSEL, T_STR, T_OR, T_T0, T_FL, T_WCOL, T_A1, T_A2, T_SP, T_SJ1, T_SJ0, T_SC, T_B0, T_TS1, T_TS0 = [sTB + i for i in range(16)]
XB = 65536
QA_ = 0

def xa(rt, ks): return (ks * 4 + rt) * 4
def acc(p, I, J): return ACC[p] + (I * 4 + J) * 4
def slot_mfmas(p, o, kc):
    out = []
    for c in range(4):
        wb = WR[c & 1]
        for r in range(4):
            for ks in range(4):
                d = acc(p, c, r) if o == 0 else acc(p, r, c)
                w = vr(wb + 4 * ks, 4); x = ar(xa(r, 4 * kc + ks), 4)
                a, b = (w, x) if o == 0 else (x, w)
                cin = "0" if (kc == 0 and ks == 0) else vr(d, 4)
                out.append(f"v_mfma_f32_16x16x32_bf16 {vr(d,4)}, {a}, {b}, {cin}")
    return out
def tr_reads(pos, c):
    wb = WR[c & 1]
    return [f"ds_read_b64_tr_b16 {vr(wb + 4*ks + 2*e, 2)}, v{vW[c]} offset:{pos*16384 + ks*4096 + e*512}" for ks in range(4) for e in range(2)]
def w_dma(pos, step):
    out = [f"s_add_u32 m0, s{sLW}, {pos*16384}"]
    out.append(f"s_add_u32 s{sWOFF}, s{sWOFF}, {step}" if step else "s_nop 0")
    for i in range(4):
        out.append(f"buffer_load_dwordx4 v{vWD[i]}, {sr(sW,4)}, s{sWOFF} offen offset:{i*1024}{NT} lds" + (" ; grpend:w" if i == 3 else ""))
    return out
def x_dma(sc):
    out = []
    for hf in range(2):
        out += [f"s_add_u32 m0, s{sLX}, {(sc % 3)*8192 + hf*4096}", f"s_add_u32 s{sT0}, s{sXB if hf else sXA}, {sc*128}"]
        for i in range(4):
            out.append(f"buffer_load_dwordx4 v{vXD[i]}, {sr(sX,4)}, s{sT0} offen offset:{i*1024} lds" + (" ; grpend:x" if hf == 1 and i == 3 else ""))
    return out
def x_reads(sc, nat):
    v = vXN if nat else vXR
    return [f"ds_read_b128 {ar(xa(rt, 2*sc + k2), 4)}, v{v[k2]} offset:{(sc % 3)*8192 + rt*2048}" for rt in range(4) for k2 in range(2)]
def w_lane_setup(stride):
    o = [f"v_mad_u32_u24 v{vWD[0]}, v{vL3}, {stride}, v{vWC}", f"s_lshl_b32 s{sT1}, {stride}, 3", f"s_sub_u32 s{sT1}, s{sT1}, 1024",
         f"v_xor_b32 v{vWD[1]}, 64, v{vWD[0]}", f"v_add_u32 v{vWD[1]}, s{sT1}, v{vWD[1]}", f"s_lshl_b32 s{sT1}, s{sT1}, 1",
         f"v_add_u32 v{vWD[2]}, s{sT1}, v{vWD[0]}", f"v_add_u32 v{vWD[3]}, s{sT1}, v{vWD[1]}",
         f"s_lshl_b32 s{sK128}, {stride}, 7", f"s_sub_u32 s{sK128m}, s{sK128}, 128", f"s_mul_i32 s{sUSW}, s{sK128}, -3", f"s_add_u32 s{sUSW}, s{sUSW}, 128"]
    return o
def e_addr():
    return [f"s_lshr_b32 s{sT1}, s{sTE}, 1", f"s_mul_i32 s{sO0}, s{sT1}, s{T_TS1}", f"s_and_b32 s{sT1}, s{sTE}, 1", f"s_mul_i32 s{sT1}, s{sT1}, s{T_TS0}",
            f"s_add_u32 s{sO0}, s{sO0}, s{sT1}", f"s_add_u32 s{sO0}, s{sO0}, s{sB0}", f"s_add_u32 s{sTE}, s{sTE}, 1",
            f"s_add_u32 s{sO0+1}, s{sO0}, s{T_SJ0}", f"s_add_u32 s{sO0+2}, s{sO0}, s{T_SJ1}", f"s_add_u32 s{sO0+3}, s{sO0+2}, s{T_SJ0}"]
def pipeline(units):
    out = []; prev = None
    for pre, cv, post in units:
        out += pre + cv[:2]
        if prev: out += prev[:2]
        out += cv[2:]
        if prev: out += prev[2:]
        prev = post
    return out + ["s_nop 1"] + prev
def cvt4(T0, T1):
    return [f"v_cvt_pk_bf16_f32 v{T0}, v{T0}, v{T0+1}", f"v_cvt_pk_bf16_f32 v{T0+1}, v{T0+2}, v{T0+3}",
            f"v_cvt_pk_bf16_f32 v{T0+2}, v{T1}, v{T1+1}", f"v_cvt_pk_bf16_f32 v{T0+3}, v{T1+2}, v{T1+3}"]
def swaps(T0): return [f"v_permlane16_swap_b32 v{T0}, v{T0+2}", f"v_permlane16_swap_b32 v{T0+1}, v{T0+3}"]
def epilogue(p, mul):
    u = []
    for pp in range(2):
        for J in range(4):
            T0, T1 = acc(p, 2*pp, J), acc(p, 2*pp+1, J)
            pre = [f"v_mul_f32 v{T+r}, s{T_SC}, v{T+r}" for T in (T0, T1) for r in range(4)] if mul else []
            post = swaps(T0) + [f"buffer_store_dwordx4 {vr(T0,4)}, v{vEP}, {sr(sE,4)}, s{sO0+J} offen{SCE}" + (" ; grpend:st" if pp == 1 and J == 3 else "")]
            if pp == 0: post.append(f"s_add_u32 s{sO0+J}, s{sO0+J}, s{T_SP}")
            u.append((pre, cvt4(T0, T1), post))
    return e_addr() + pipeline(u)
def q_epilogue(p, u):
    un = []
    for ct in range(4):
        for b in range(2):
            T0, T1 = acc(p, ct, 2*b), acc(p, ct, 2*b+1); q = QA_ + 32*b + 4*(4*u + ct)
            un.append(([], cvt4(T0, T1), swaps(T0) + [f"v_accvgpr_write_b32 a{q+r}, v{T0+r}" for r in range(4)]))
    return pipeline(un)

TRG = [0, 1, 2, 4, 5, 6, 8, 9]; DMAG = [3, 7, 11, 15]; XRG = [3, 7, 10, 11, 12, 13, 14, 15]
def place_dma(S, g0, grp):
    S.add(g0 + 0, grp[0]); S.add(g0 + 1, grp[1])
    for i in range(4): S.add(g0 + DMAG[i], grp[2 + i])
class Block:
    def __init__(self, name, slots, nextpos, qx=None, qd=None):
        self.name = name
        qx = dict(qx or {}); qd = dict(qd or {})
        m = []
        for q, s in enumerate(slots):
            m += slot_mfmas(s["p"], s["o"], s["kc"])
            if s.get("xr") is not None: qx[4*q] = (s["xr"], s["xk"])
            if s.get("xd") is not None: qd[4*q+1] = x_dma(s["xd"])[:6]; qd[4*q+2] = x_dma(s["xd"])[6:]
            if "wstep" in s: qd[4*q+3] = w_dma(s["pos"], s["wstep"])
        S = self.S = Sched(m, 16)
        for q, s in enumerate(slots):
            for c in range(4):
                Q = 4 * q + c; g0 = Q * 16
                lg = "lgkmcnt(4)" if (Q - 1) in qx else "lgkmcnt(0)"
                pre = []
                if Q in qx: pre.append(f"s_waitcnt vmcnt(@{name}{Q}x:{qx[Q][1]}:x)")
                if c == 3 and not s.get("nobar"):
                    need = s.get("need", [f"{s.get('wk', 2)}:w"])
                    for k, nd in enumerate(need): pre.append(f"s_waitcnt vmcnt(@{name}{q}w{k}:{nd})")
                    pre[-1] += " " + lg
                    pre += s.get("prebar", []) + ["s_barrier"] + s.get("postbar", [])
                elif pre: pre[-1] += " " + lg
                else: pre.append("s_waitcnt " + lg)
                S.before(g0, pre)
                if c < 3: rd = tr_reads(s["pos"], c + 1)
                else:
                    np_ = slots[q+1]["pos"] if q + 1 < len(slots) else nextpos
                    rd = tr_reads(np_, 0) if np_ is not None else []
                for i, r in enumerate(rd): S.add(g0 + TRG[i], r)
                if Q in qx:
                    for i, r in enumerate(x_reads(qx[Q][0], s.get("nat", False))): S.add(g0 + XRG[i], r)
                if Q in qd: place_dma(S, g0, qd[Q])
    def emit(self):
        print("P1 block", self.name, "over", self.S.over())
        return self.S.emit()

K128, K128M, USW = f"s{sK128}", f"s{sK128m}", f"s{sUSW}"

def pair_slots(pa, pb, o, nat, tailw):
    sl = []
    for q in range(8):
        d = dict(p=pb if q & 1 else pa, o=o, kc=q >> 1, pos=q & 3, nat=nat)
        if q < 4: d["wstep"] = "128" if q & 1 else K128M
        elif tailw: d["wstep"] = USW if q == 4 else K128
        if q < 6: d["xr"] = q + 2; d["xk"] = min(2, 5 - q)
        if q < 3: d["xd"] = q + 5
        if not tailw and q >= 4: d["wk"] = max(0, 6 - q)
        sl.append(d)
    return sl
def unit_slots(p, o): return [dict(p=p, o=o, kc=s, pos=s, wstep=USW if s == 0 else K128) for s in range(4)]

def flag_store(off_code, val):
    return off_code + [f"v_mov_b32 v{vFL}, {val}", "s_mov_b64 exec, 1", f"buffer_store_dword v{vFL}, off, {sr(sWS,4)}, s{sZ0}{SC}", "s_mov_b64 exec, -1"]
def w0only(code, lbl): return [f"s_cmp_lg_u32 s{sWAVE}, 0", f"s_cbranch_scc1 {lbl}"] + code + [f"{lbl}:"]
F1OFF = [f"s_lshl_b32 s{sZ0}, s{sH}, 7", f"s_lshl_b32 s{sZ1}, s{sI}, 2", f"s_add_u32 s{sZ0}, s{sZ0}, s{sZ1}", f"s_add_u32 s{sZ0}, s{sZ0}, {WS_F1}"]

NT = os.environ.get("NT", "")
def lin_touch():
    c = []; A = c.append
    A(f"v_and_b32 v31, 31, v{vLN}"); A("v_lshlrev_b32 v31, 7, v31")
    A("s_mov_b32 s99, 0x20000"); A(f"s_mov_b32 s98, {2*MB}"); A("s_lshl_b32 s100, s2, 1"); A(f"s_and_b32 s101, s{sWAVE}, 1"); A("s_add_u32 s100, s100, s101"); A("s_lshl_b32 s100, s100, 12")
    A(f"s_cmp_lt_u32 s{sWAVE}, 2"); A("s_cselect_b64 s[96:97], s[74:75], s[72:73]")
    A(f"buffer_load_dword v{vTCH}, v31, s[96:99], s100 offen")
    return c
def touch_setup():
    return [f"v_and_b32 v30, 15, v{vLN}", f"s_lshl_b32 s101, s{sRT}, 3", "v_add_u32 v30, s101, v30", f"v_mul_u32_u24 v28, s{T_STR}, v30", "v_lshlrev_b32 v29, 13, v30"]
def touch_w(tile):
    return [f"s_add_u32 s101, s{T_WCOL}, {128*tile}", f"buffer_load_dword v{vTCH}, v28, {sr(sW,4)}, s101 offen{NT}"]
def touch_q(half):
    c = []
    if half == 0: c += [f"s_mov_b64 s[96:97], {sr(sWQ,2)}", f"s_mov_b32 s98, {4*MB}", "s_mov_b32 s99, 0x20000", f"s_lshl_b32 s101, s{sH}, 8"]
    return c + [f"buffer_load_dword v{vTCH}, v29, s[96:99], s101 offen offset:{128*half}{NT}"]
def version(o):
    mul = (o == 0)
    code = [f"P1_V{o}:"]
    code += [f"v_mad_u32_u24 v{vEP}, v24, s{T_A1}, v{vJQ if o == 0 else 26}", f"v_mad_u32_u24 v{vEP}, v25, s{T_A2}, v{vEP}",
             f"s_mul_i32 s{sT1}, s{T_SJ1 if o == 0 else T_SP}, s{sRT}", f"s_add_u32 s{sB0}, s{T_B0}, s{sT1}"]
    sl = pair_slots(0, 1, o, False, True)
    for d in sl:
        for k in ("xr", "xk", "xd"): d.pop(k, None)
    del sl[0]["wstep"]
    X = lambda sc, h: x_dma(sc)[6*h:6*h+6]
    qd = {0: X(3,0), 1: X(3,1), 2: w_dma(2, K128M), 3: w_dma(3, "128"), 4: X(4,0), 5: X(4,1), 6: w_dma(0, K128M),
          8: X(5,0), 9: X(5,1), 10: X(6,0), 12: X(6,1), 13: X(7,0), 14: X(7,1)}
    qx = {4: (2, 1), 6: (3, 1), 10: (4, 1), 14: (5, 1), 18: (6, 1), 22: (7, 0)}
    sl[0]["wk"] = 1
    sl[1]["postbar"] = w0only([f"s_and_b32 s{sZ0}, s2, 1", f"s_lshl_b32 s{sZ0}, s{sZ0}, 7", f"v_mov_b32 v{vFL}, 1", "s_mov_b64 exec, 1",
                               f"buffer_atomic_add v{vFL}, off, {sr(sDBG,4)}, s{sZ0} sc1", "s_mov_b64 exec, -1"], f"P1_CL{o}")
    B = Block(f"a{o}", sl, 0, qx, qd)
    T0 = int(os.environ.get("T0", "2"))
    if "w" in TOUCH:
        for k in range(3): B.S.fill(touch_w(2 + k), (T0 + k) * 64 + 24, (T0 + k) * 64 + 40)
    if "q" in TOUCH:
        for k in range(2): B.S.fill(touch_q(k), (T0 + 3 + k) * 64 + 20, (T0 + 3 + k) * 64 + 40)
    pair = B.emit()
    B = Block(f"b{o}", unit_slots(2, o), 0)
    B.S.fill(epilogue(0, mul) + epilogue(1, mul), 3, 250)
    u2 = B.emit()
    sl = unit_slots(0, o); sl[3]["xd"] = 0
    B = Block(f"c{o}", sl, 0)
    B.S.fill(epilogue(2, mul), 3, 180)
    sw = [f"s_mov_b32 s{sE+2}, {WS_END}", f"s_mov_b64 {sr(sX,2)}, {sr(sXP,2)}",
          f"s_lshl_b32 s{sXA}, s{sI}, 2", f"s_sub_u32 s{sXB}, 60, s{sXA}", f"s_add_u32 s{sXA}, s{sXA}, s{sWAVE}", f"s_add_u32 s{sXB}, s{sXB}, s{sWAVE}",
          f"s_lshl_b32 s{sXA}, s{sXA}, 15", f"s_lshl_b32 s{sXB}, s{sXB}, 15"]
    B.S.pack(sw, 192, 206)
    u3 = B.emit()
    sl = unit_slots(1, o)
    sl[0]["wstep"] = None; sl[1]["wstep"] = "128"; sl[2]["wstep"] = K128M; sl[3]["wstep"] = "128"
    sl[0]["xd"] = 1; sl[1]["xd"] = 2
    sl[2].update(xr=0, xk=2, xd=3, nat=True); sl[3].update(xr=1, xk=2, xd=4, nat=True)
    B = Block(f"d{o}", sl, 0)
    sw2 = [f"s_mov_b64 {sr(sW,2)}, {sr(sWQ,2)}", f"s_mov_b32 s{sW+2}, {4*MB}", f"s_mov_b32 s{T_STR}, 8192"] + w_lane_setup(f"s{T_STR}") + \
          [f"s_lshl_b32 s{sWOFF}, s{sWAVE}, 18", f"s_lshl_b32 s{sT1}, s{sH}, 8", f"s_add_u32 s{sWOFF}, s{sWOFF}, s{sT1}"]
    B.S.pack(sw2, 0, 40)
    B.S.fill(epilogue(0, mul), 44, 250)
    u4 = B.emit()
    skip = [f"P1_SK{o}:", "s_nop 7"] + flat(epilogue(0, mul) + epilogue(1, mul)) + (gate() if o == 0 else []) + \
           [f"s_mov_b32 s{sE+2}, 0", f"s_sub_u32 s{sTE}, s{sTE}, 1", f"s_branch P1_U3{o}"]
    br = [f"s_bitcmp1_b32 s{T_FL}, 0", f"s_cbranch_scc1 P1_SK{o}"]
    return dict(head=code, pair=pair, br=br, u2=u2, u3=[f"P1_U3{o}:"] + u3, u4=u4, skip=skip)

def gate():
    c = [f"s_bitcmp1_b32 s{T_FL}, 1", "s_cbranch_scc0 P1_NG"]; A = c.append
    G = ACC[2]; D = ACC[0]
    A(f"s_load_dwordx2 s[72:73], s[0:1], {KA_GATE}")
    A(f"v_lshrrev_b32 v27, 4, v{vLN}"); A("v_lshlrev_b32 v28, 4, v27")
    A("s_mov_b32 s74, 1024"); A("s_mov_b32 s75, 0x20000")
    A("s_waitcnt lgkmcnt(0)")
    for ks in range(16): A(f"buffer_load_dwordx4 {vr(G+4*ks,4)}, v28, s[72:75], 0 offen offset:{ks*64}")
    A("s_waitcnt vmcnt(0)")
    for rt in range(4):
        for ks in range(16):
            A(f"v_mfma_f32_16x16x32_bf16 {vr(D+4*rt,4)}, {vr(G+4*ks,4)}, {ar(xa(rt,ks),4)}, " + ("0" if ks == 0 else vr(D+4*rt,4)))
    A("s_nop 7")
    for g in range(1, 4):
        A(f"v_cmp_eq_u32 vcc, {g}, v27"); A("s_nop 1"); A(f"v_cndmask_b32 v{D}, v{D}, v{D+4*g}, vcc")
    A(f"v_mul_f32 v{D}, {hex(fbits(-LOG2E))}, v{D}"); A(f"v_exp_f32 v{D}, v{D}"); A("s_nop 0")
    A(f"v_add_f32 v{D}, 1.0, v{D}"); A(f"v_rcp_f32 v{D}, v{D}")
    A(f"v_lshrrev_b32 v28, 2, v{vJQ}"); A("v_lshl_add_u32 v28, v27, 6, v28")
    A(f"s_lshl_b32 s{sT0}, s{sRT}, 7"); A(f"s_add_u32 s{sT0}, s{sT0}, {WS_GATE}")
    A(f"buffer_store_dword v{D}, v28, {sr(sWS,4)}, s{sT0} offen{SC}")
    A("s_nop 1")
    A("P1_NG:")
    return c

def prologue(mk=lambda n: []):
    c = []; A = c.append
    A(f"s_load_dwordx4 s[72:75], s[0:1], {KA_X}")
    A(f"s_load_dwordx4 s[76:79], s[0:1], {KA_WUK}")
    A(f"s_load_dwordx2 {sr(sWQ,2)}, s[0:1], {KA_WQ}")
    A(f"s_load_dwordx2 s[6:7], s[0:1], {KA_WQKV}")
    A(f"s_load_dwordx2 {sr(sWS,2)}, s[0:1], {KA_WS}")
    A(f"s_load_dwordx2 {sr(sDBG,2)}, s[0:1], {KA_DBG}")
    A("s_getpc_b64 s[4:5]"); A("P1_PC:")
    if "c" in TOUCH:
        A("s_mov_b64 s[96:97], s[4:5]"); A("s_mov_b32 s98, P1_TAB-P1_PC"); A("s_mov_b32 s99, 0x20000")
        A("s_lshr_b32 s3, s2, 3"); A("s_lshl_b32 s3, s3, 12")
        A("v_lshrrev_b32 v31, 3, v0"); A("v_lshlrev_b32 v31, 7, v31")
        A(f"buffer_load_dword v{vTCH}, v31, s[96:99], s3 offen")
    A("s_add_u32 s4, s4, P1_TAB-P1_PC"); A("s_addc_u32 s5, s5, 0")
    A("s_and_b32 s3, s2, 7"); A(f"s_lshr_b32 s{sH}, s2, 3"); A(f"s_and_b32 s{sI}, s{sH}, 7")
    A(f"s_lshr_b32 s{sH}, s{sH}, 3"); A("s_lshl_b32 s3, s3, 2"); A(f"s_add_u32 s{sH}, s{sH}, s3")
    A(f"s_lshl_b32 s3, s{sH}, 6")
    A(f"s_load_dwordx16 {sr(sTB,16)}, s[4:5], s3")
    A("v_lshrrev_b32 v27, 6, v0"); A(f"v_and_b32 v{vLN}, 63, v0")
    A(f"v_readfirstlane_b32 s{sWAVE}, v27")
    A(f"v_lshrrev_b32 v27, 4, v{vLN}")
    A(f"v_and_b32 v28, 15, v{vLN}")
    A("v_and_b32 v24, 1, v27"); A("v_lshrrev_b32 v25, 1, v27"); A("v_lshlrev_b32 v26, 4, v28")
    A("v_and_b32 v29, 3, v28"); A("v_bfe_u32 v30, v28, 2, 1"); A("v_bfe_u32 v31, v28, 3, 1")
    A("v_lshl_add_u32 v29, v30, 3, v29"); A("v_lshl_add_u32 v29, v31, 2, v29")
    A(f"v_lshlrev_b32 v{vJQ}, 4, v29")
    A(f"s_lshl_b32 s{sLW}, s{sWAVE}, 12")
    A(f"s_mul_i32 s{sLX}, s{sWAVE}, 24576"); A(f"s_add_u32 s{sLX}, s{sLX}, {XB}")
    for src, dst in ((29, vXR), (28, vXN)):
        A(f"v_lshrrev_b32 v30, 1, v{src}"); A("v_xor_b32 v30, v30, v27"); A("v_lshlrev_b32 v30, 4, v30"); A(f"v_lshl_add_u32 v30, v{src}, 7, v30")
        A(f"v_add_u32 v{dst[0]}, s{sLX}, v30"); A(f"v_xor_b32 v{dst[1]}, 64, v{dst[0]}")
    A(f"v_lshrrev_b32 v{vL3}, 3, v{vLN}"); A(f"v_and_b32 v31, 7, v{vLN}")
    A("v_xor_b32 v30, v31, v27"); A("v_lshlrev_b32 v30, 4, v30"); A(f"v_lshl_add_u32 v{vXD[0]}, v{vL3}, 10, v30")
    A(f"v_xor_b32 v{vXD[1]}, 64, v{vXD[0]}"); A(f"v_add_u32 v{vXD[1]}, 7168, v{vXD[1]}")
    A(f"v_add_u32 v{vXD[2]}, 14336, v{vXD[0]}"); A(f"v_add_u32 v{vXD[3]}, 14336, v{vXD[1]}")
    A("v_lshlrev_b32 v30, 1, v24"); A("v_xor_b32 v30, v30, v31"); A(f"v_lshlrev_b32 v{vWC}, 4, v30")
    A("v_lshrrev_b32 v30, 2, v28"); A("v_lshl_add_u32 v29, v27, 3, v30"); A("v_lshlrev_b32 v29, 7, v29")
    A("v_and_b32 v31, 3, v28"); A("v_lshl_add_u32 v29, v31, 3, v29")
    A("v_lshrrev_b32 v30, 1, v30"); A("v_lshl_add_u32 v30, v24, 1, v30"); A("v_lshlrev_b32 v30, 5, v30")
    A(f"v_add_u32 v{vW[0]}, v29, v30")
    for ct in range(1, 4): A(f"v_xor_b32 v{vW[ct]}, {32*ct}, v{vW[0]}")
    A(f"s_lshl_b32 s{sRT}, s{sI}, 2"); A(f"s_add_u32 s{sRT}, s{sRT}, s{sWAVE}"); A(f"s_lshl_b32 s{sXA}, s{sRT}, 16"); A(f"s_add_u32 s{sXB}, s{sXA}, 32768")
    A(f"s_lshl_b32 s{sRT}, s{sRT}, 1")
    for s, n in ((sWS, WS_END), (sE, WS_END), (sX, 2*MB), (sDBG, 256), (sW, 4*MB)):
        A(f"s_mov_b32 s{s+2}, {n}"); A(f"s_mov_b32 s{s+3}, 0x20000")
    A("s_waitcnt lgkmcnt(0)")
    c += mk("ka")
    if TPOS == "a" and "x" in TOUCH: c += lin_touch()
    A(f"s_cmp_eq_u32 s{T_XSEL}, 0"); A(f"s_cselect_b64 {sr(sX,2)}, s[72:73], s[74:75]")
    c += x_dma(0)
    A(f"s_mov_b64 {sr(sXP,2)}, s[72:73]"); A(f"s_mov_b64 {sr(sE,2)}, {sr(sWS,2)}")
    A(f"s_cmp_eq_u32 s{T_WSEL}, 0"); A(f"s_cselect_b64 {sr(sW,2)}, s[76:77], s[78:79]")
    A(f"s_cmp_eq_u32 s{T_WSEL}, 2"); A(f"s_cselect_b64 {sr(sW,2)}, s[6:7], {sr(sW,2)}"); A(f"s_cselect_b32 s{sW+2}, {512*3072}, s{sW+2}")
    c += w_lane_setup(f"s{T_STR}")
    A(f"s_mul_i32 s{sWOFF}, s{T_STR}, s{sWAVE}"); A(f"s_lshl_b32 s{sWOFF}, s{sWOFF}, 5"); A(f"s_add_u32 s{sWOFF}, s{sWOFF}, s{T_WCOL}")
    A(f"s_mov_b32 s{sTE}, s{T_T0}")
    c += mk("i0")
    c += w_dma(0, None) + x_dma(1)
    c += mk("i1")
    if TPOS == "b" and "x" in TOUCH: c += lin_touch()
    z = F1OFF + [f"v_mov_b32 v{vFL}, 0", "s_mov_b64 exec, 1", f"buffer_store_dword v{vFL}, off, {sr(sWS,4)}, s{sZ0}{SC}",
                 f"s_lshl_b32 s{sZ0}, s{sI}, 7", f"s_lshl_b32 s{sZ1}, s{sH}, 2", f"s_add_u32 s{sZ0}, s{sZ0}, s{sZ1}", f"s_add_u32 s{sZ0}, s{sZ0}, {WS_F3}",
                 f"buffer_store_dword v{vFL}, off, {sr(sWS,4)}, s{sZ0}{SC}", f"buffer_store_dword v{vFL}, off, {sr(sWS,4)}, s{sZ0} offset:{WS_F4 - WS_F3}{SC}", "s_mov_b64 exec, -1"]
    c += touch_setup()
    c += w_dma(1, "128")
    if "p" in TOUCH: c += touch_w(0) + touch_w(1)
    c += w0only(z, "P1_Z")
    c += mk("i2")
    A("s_waitcnt vmcnt(@Px0:1:x)"); c += mk("l0"); c += x_reads(0, False)
    c += x_dma(2)
    c += mk("i3")
    A("s_waitcnt vmcnt(@Px1:1:x)"); c += mk("l1"); A("s_barrier"); c += tr_reads(0, 0) + x_reads(1, False)
    A(f"s_cmp_eq_u32 s{T_OR}, 0"); A("s_cbranch_scc0 P1_V1")
    return c

def p2(kv_setup, kv_dma0, kv_dma1):
    sl = pair_slots(2, 0, 0, True, False)
    sl[2]["need"] = ["2:w", "0:st"]
    sl[2]["postbar"] = w0only(flag_store(F1OFF, 1), "P2_S")
    def spin(lbl, load, cmp):
        return [f"s_mov_b32 s{sZ1}, 0x100000", f"{lbl}L:", "s_waitcnt vmcnt(0)", cmp, "s_nop 0", f"s_cbranch_vccz {lbl}",
                "s_sleep 8", load, f"s_sub_u32 s{sZ1}, s{sZ1}, 1", f"s_cmp_lg_u32 s{sZ1}, 0", f"s_cbranch_scc1 {lbl}L", "s_waitcnt vmcnt(0)"]
    ld0 = f"buffer_load_dword v31, v29, {sr(sDBG,4)}, 0 offen sc1"
    ld1 = f"buffer_load_dword v31, v{vPF}, {sr(sWS,4)}, 0 offen sc1"
    sl[4]["prebar"] = w0only(spin("P2_C", ld0, "v_cmp_gt_u32 vcc, v30, v31"), "P2_C")
    sl[3]["postbar"] = w0only([ld0], "P2_L0")
    sl[5]["postbar"] = w0only([ld1], "P2_L1")
    sl[6]["prebar"] = w0only(spin("P2_D", ld1, "v_cmp_ne_u32 vcc, 1, v31"), "P2_D")
    sl[7]["nobar"] = True
    B = Block("q", sl, None)
    B.S.fill(epilogue(1, True), 3, 150)
    B.S.fill(paddr(), 3 * 64, 3 * 64 + 46)
    B.S.fill(kv_setup, 5 * 64, 6 * 64 + 40)
    B.S.fill(kv_dma0, 6 * 64 + 48, 7 * 64 + 16)
    B.S.fill(kv_dma1, 7 * 64 + 16, 7 * 64 + 56)
    B.S.fill(q_epilogue(2, 0), 7 * 64 + 4, 8 * 64)
    return ["P2:"] + B.emit() + ["s_nop 3"] + flat(q_epilogue(0, 1))
def paddr():
    m5 = (1 << 32) // 5 + 1
    o = [f"s_lshl_b32 s{sT1}, s{sH}, 1", f"s_mul_hi_u32 s72, s{sT1}, {m5}", f"s_add_u32 s{sT1}, s{sT1}, 1", f"s_mul_hi_u32 s73, s{sT1}, {m5}",
         "s_add_u32 s74, s72, 13", "s_add_u32 s75, s73, 13", f"s_lshr_b32 s{sT1}, s{sH}, 4", f"s_add_u32 s76, s{sT1}, 26", f"s_add_u32 s77, s{sT1}, 28", f"s_add_u32 s78, s{sT1}, 30",
         f"v_mov_b32 v{vPF}, {GATE_CG}"]
    for k in range(7):
        o += [f"v_cmp_eq_u32 vcc, {k}, v{vL3}", f"v_mov_b32 v29, s{72+k}", "s_nop 0", f"v_cndmask_b32 v{vPF}, v{vPF}, v29, vcc"]
    o += [f"v_and_b32 v29, 7, v{vLN}", "v_lshlrev_b32 v29, 2, v29", f"v_lshl_add_u32 v{vPF}, v{vPF}, 7, v29", f"v_add_u32 v{vPF}, {WS_F1}, v{vPF}",
          f"v_and_b32 v29, 1, v{vLN}", "v_lshlrev_b32 v29, 7, v29", "v_mov_b32 v30, 128"]
    return o
def tabdata():
    return [".p2align 6", ".type P1_TAB,@object", "P1_TAB:"] + [".long " + ", ".join(hex(x) for x in e) for e in table()]
```

```python
import re

def vr(b, n=1, k='v'):
    return f"{k}{b}" if n == 1 else f"{k}[{b}:{b+n-1}]"
def ar(b, n=1): return vr(b, n, 'a')
def sr(b, n=1): return vr(b, n, 's')

TRANS = ("v_exp_f32", "v_log_f32", "v_rcp_f32", "v_rsq_f32", "v_sqrt_f32")

def cost(ins):
    m = ins.split()[0]
    if m in TRANS: return 8
    if m.startswith("v_mfma"): return 8
    if m == "s_nop": return 4 * (int(ins.split()[1]) + 1)
    if m.endswith(":") or m.startswith(";") or m.startswith("."): return 0
    return 4

def klass(ins):
    m = ins.split()[0]
    if m.startswith("LG"): return "s"
    if m.startswith("v_"): return "v"
    if m.startswith("ds_") or m.startswith("buffer_") or m.startswith("global_"): return "m"
    return "s"
def vcost(ins):
    m = ins.split()[0]
    if m in TRANS or m.startswith("v_permlane"): return 8
    if m == "s_nop": return 4 * (int(ins.split()[1]) + 1)
    return 4
def conflict(a, b):
    if a.startswith("LG") or b.startswith("LG"): return True
    ma, da, ua, ka = parse(a); mb_, db, ub, kb = parse(b)
    if ka == "ctl" or kb == "ctl": return True
    return bool(set(da) & set(ub) or set(ua) & set(db) or set(da) & set(db))
def order(lst):
    out = []
    for ins in lst:
        p = len(out)
        if klass(ins) != "v":
            while p > 0 and klass(out[p-1]) == "v" and not conflict(out[p-1], ins): p -= 1
            if klass(ins) == "m":
                q = p
                while q > 0 and klass(out[q-1]) == "s" and not conflict(out[q-1], ins) and not out[q-1].startswith("s_"): q -= 1
        out.insert(p, ins)
    return out
def gapcost(lst):
    t = 4; prev = None; nm = 0
    for ins in lst:
        k = klass(ins)
        if k == "v": t = max(t, 8) + vcost(ins)
        elif k == "s": t += vcost(ins)
        else:
            if prev == "v": t += 12
            elif prev == "m": t += 6
            else: t += 8
        prev = k
    return max(t, 8)

class Sched:
    def __init__(self, mfmas, budget):
        self.m = mfmas
        self.n = len(mfmas)
        self.gap = [[] for _ in mfmas]
        self.pre = [[] for _ in mfmas]
        self.budget = budget
        self.tail = []
    def load(self, g, extra=()):
        l = order(self.gap[g] + list(extra))
        l = l + (self.pre[g + 1] if g + 1 < self.n else self.tail)
        return gapcost(l)
    def add(self, g, ins):
        if isinstance(ins, str): ins = [ins]
        self.gap[g].extend(ins)
    def before(self, g, ins):
        if isinstance(ins, str): ins = [ins]
        self.pre[g].extend(ins)
    def _try(self, items, g0, g1, pace, bud):
        added = []; g = g0; n = len(items); ok = True
        for i, it in enumerate(items):
            grp = [it] if isinstance(it, str) else list(it)
            g = max(g, g0 + int(pace * i * (g1 - g0) / n))
            while g < g1 and self.load(g, grp) > max(bud(g), self.load(g)): g += 1
            if g >= g1: ok = False; break
            self.gap[g].extend(grp); added.append((g, len(grp)))
        if not ok:
            for g, k in reversed(added): del self.gap[g][-k:]
        return ok
    def fill(self, items, g0, g1):
        if not items: return
        B = self.budget
        for pace in (1.0, 0.9, 0.8, 0.6, 0.4, 0.2, 0.0):
            if self._try(items, g0, g1, pace, lambda g: B): return
        for extra in (4, 8, 12, 16, 24, 32, 48, 64):
            for k in (8, 5, 3, 2, 1):
                if self._try(items, g0, g1, 0.0, lambda g: B + (extra if g % k == 0 else extra - 4)): return
        raise Exception("fill failed")
    def pack(self, items, g0, g1):
        g = g0; pos = []
        for it in items:
            grp = [it] if isinstance(it, str) else list(it)
            while g < g1 - 1 and self.load(g, grp) > self.budget: g += 1
            self.gap[g].extend(grp); pos.append(g)
        return pos
    def emit(self):
        out = []
        for g in range(self.n):
            out += self.pre[g]; out.append(self.m[g]); out += order(self.gap[g])
        return out
    def over(self):
        return sum(max(0, self.load(g) - self.budget) for g in range(self.n))

_R = re.compile(r"^-?(?:abs\()?([vas])(?:\[(\d+):(\d+)\]|(\d+))\)?$")
def regs(op):
    op = op.strip()
    if op in ("vcc",): return ["vcc"]
    if op in ("exec",): return ["exec"]
    if op == "m0": return ["m0"]
    m = _R.match(op)
    if not m: return []
    if m.group(4) is not None: return [m.group(1) + m.group(4)]
    return [m.group(1) + str(i) for i in range(int(m.group(2)), int(m.group(3)) + 1)]

def parse(ins):
    ins = ins.split(";")[0].strip()
    p = ins.split(None, 1)
    m = p[0]
    ops = []
    if len(p) > 1:
        ops = [o.strip() for o in p[1].split(",")]
        last = ops[-1].split()
        ops[-1] = last[0] if last else ""
        mods = last[1:]
    else: mods = []
    R = [regs(o) for o in ops]
    flat = lambda l: [x for y in l for x in y]
    if m.startswith("v_mfma"): return m, R[0], flat(R[1:]), "mfma"
    if m.startswith("ds_read"): return m, R[0], flat(R[1:]), "ldsld"
    if m.startswith("ds_write") or m.startswith("ds_add"): return m, [], flat(R), "ldsst"
    if m.startswith("ds_bpermute") or m.startswith("ds_swizzle"): return m, R[0], flat(R[1:]), "ldsld"
    if m.startswith("buffer_load"):
        if "lds" in mods: return m, [], flat(R) + ["m0"], "dma"
        return m, R[0], flat(R[1:]), "vmld"
    if m.startswith("global_load"): return m, R[0], flat(R[1:]), "vmld"
    if m.startswith("buffer_store") or m.startswith("global_store") or m.startswith("buffer_atomic"): return m, [], flat(R), "vmst"
    if m.startswith("buffer_inv") or m.startswith("buffer_wbl2"): return m, [], [], "vmst"
    if m.startswith("s_load") : return m, R[0], flat(R[1:]), "smem"
    if m.startswith("s_memtime") or m.startswith("s_memrealtime"): return m, R[0], [], "smem"
    if m.startswith("v_permlane"): return m, R[0] + R[1], R[0] + R[1], "valu"
    if m.startswith("v_cmp"): return m, R[0], flat(R[1:]), "valu"
    if m.startswith("v_readfirstlane") or m.startswith("v_readlane"): return m, R[0], flat(R[1:]), "valu"
    if m.startswith("v_fmac") : return m, R[0], flat(R), "valu"
    if m.startswith("v_cndmask"):
        u = flat(R[1:])
        if len(ops) == 3: u.append("vcc")
        return m, R[0], u, "valu"
    if m.startswith("v_"): return m, R[0] if R else [], flat(R[1:]), "valu"
    if m in ("s_waitcnt", "s_barrier", "s_nop", "s_endpgm", "s_setprio", "s_sleep") or m.startswith("s_cbranch") or m == "s_branch": return m, [], [], "ctl"
    if m.startswith("s_cmp") or m.startswith("s_bitcmp"): return m, ["scc"], flat(R), "salu"
    if m.startswith("s_"):
        d = list(R[0]) if R else []; u = flat(R[1:])
        if m.startswith("s_cselect") or m.startswith("s_addc") or m.startswith("s_subb"): u = u + ["scc"]
        if not (m.startswith("s_mov") or m.startswith("s_cselect") or m.startswith("s_mul") or m.startswith("s_getpc") or m.startswith("s_getreg")): d = d + ["scc"]
        return m, d, u, "salu"
    raise Exception("unparsed " + ins)

def check_trace(trace, name=""):
    errs = []
    lg = []
    vm = []
    pend = {}
    last = {}
    lastC = {}
    laststore = {}
    st = 0
    for idx, ins in enumerate(trace):
        s = ins.split(";")[0].strip()
        if not s or s.endswith(":") or s.startswith("."): continue
        m, d, u, k = parse(s)
        def err(msg): errs.append(f"{name}[{idx}] {s}: {msg}")
        if m == "s_waitcnt":
            mm = re.search(r"vmcnt\((\d+)\)", s)
            if mm:
                n = int(mm.group(1))
                while len(vm) > n:
                    for r in vm.pop(0): pend.pop(r, None)
            mm = re.search(r"lgkmcnt\((\d+)\)", s)
            if mm:
                n = int(mm.group(1))
                if n > 0 and any(x[0] == "smem" for x in lg): err("counted lgkmcnt with smem outstanding")
                while len(lg) > n:
                    for r in lg.pop(0)[1]: pend.pop(r, None)
            st += 1; continue
        if m == "s_nop":
            st += int(s.split()[1]) + 1; continue
        if "scc" in u or m.startswith("s_cbranch_scc"):
            w = last.get("scc", (0, 0, 0, ""))[3]
            ok = w.startswith("s_cmp") or w.startswith("s_bitcmp")
            if m.startswith("s_addc"): ok = w == "s_add_u32"
            if m.startswith("s_cbranch"): ok = ok or w == "s_or_b64"
            if not ok: err(f"scc comes from {w}")
        for r in u + d:
            if r in pend and not (k == "vmld" and m == "buffer_load_dword" and r in d and r in ("v23", "v27")): err(f"{r} has outstanding {pend[r]} load")
        for r in u:
            if r in last:
                ws, wk, wp, wm = last[r]; dist = st - ws - 1
                if wk == "valu" and k == "mfma" and dist < 2: err(f"valu->mfma {r} dist {dist}")
                if wk == "valu" and m.startswith("v_permlane") and dist < 2: err(f"valu->permlane {r} dist {dist}")
                if wk == "valu" and (m.startswith("v_readfirstlane") or m.startswith("v_readlane")) and r[0] == 'v' and r != 'vcc' and dist < 1: err(f"valu->readlane {r}")
                if wk == "valu" and wm in TRANS and k == "valu" and m not in TRANS and dist < 1: err(f"trans->valu {r}")
                if wk == "valu" and (r[0] == 's' or r == 'vcc') and k == "valu" and dist < 2: err(f"valu sgpr->valu {r} dist {dist}")
                if wk == "valu" and r[0] == 's' and k in ("vmld", "vmst", "dma") and dist < 5: err(f"valu sgpr->vmem {r}")
                if wk == "salu" and r == "m0" and k == "dma" and dist < 1: err("m0->dma")
                if wk == "mfma":
                    need = {4: 8, 8: 12}[wp]
                    if k == "mfma":
                        ops = [o.strip() for o in s.split(None, 1)[1].split(",")]
                        inC = r in regs(ops[3]); inAB = r in regs(ops[1]) + regs(ops[2])
                        if inAB and dist < need: err(f"mfma D->mfma A/B {r} dist {dist}")
                        if inC and not inAB:
                            exact = (last[r][3] == (m, ops[3]))
                            if not exact and dist < need - 2: err(f"mfma D->mfma C overlap {r} dist {dist}")
                    elif dist < need: err(f"mfma D->{k} read {r} dist {dist} need {need}")
        for r in d:
            if r in last and last[r][1] == "mfma" and k in ("valu", "ldsld", "vmld"):
                need = {4: 8, 8: 12}[last[r][2]]; dist = st - last[r][0] - 1
                if dist < need: err(f"mfma D->{k} write {r} dist {dist}")
            if r in last and last[r][1] == "mfma" and k == "mfma":
                ops = [o.strip() for o in s.split(None, 1)[1].split(",")]
                if last[r][3] != (m, ops[0]):
                    need = {4: 8, 8: 12}[last[r][2]]; dist = st - last[r][0] - 1
                    if dist < need: err(f"mfma D->mfma D (waw, different shape) {r}")
            if r in lastC and k == "valu":
                need = {4: 3, 8: 7}[lastC[r][1]]; dist = st - lastC[r][0] - 1
                if dist < need: err(f"mfma srcC read -> valu write {r} dist {dist}")
            if r in laststore and k == "valu" and st - laststore[r] - 1 < 2: err(f"store data WAR {r}")
        if k == "mfma":
            passes = 8 if "32x32" in m else 4
            ops = [o.strip() for o in s.split(None, 1)[1].split(",")]
            for r in d: last[r] = (st, "mfma", passes, (m, ops[0]))
            for r in regs(ops[3]): lastC[r] = (st, passes)
        else:
            for r in d: last[r] = (st, k, 0, m)
        if k == "ldsld": lg.append(("lds", d)); [pend.__setitem__(r, "lds") for r in d]
        elif k == "ldsst": lg.append(("lds", []))
        elif k == "smem": lg.append(("smem", d)); [pend.__setitem__(r, "smem") for r in d]
        elif k == "vmld": vm.append(d); [pend.__setitem__(r, "vm") for r in d]
        elif k in ("vmst", "dma"):
            vm.append([])
            if k == "vmst" and ("x4" in m or "x3" in m):
                ops = [o.strip() for o in s.split(None, 1)[1].split(",")]
                for r in regs(ops[0] if m.startswith("buffer") else ops[1]): laststore[r] = st
        if len(vm) > 63: err("vmcnt overflow >63")
        st += 1
    return errs

def resolve_vm(traces):
    res = {}
    for tr in traces:
        ops = []
        for ins in tr:
            s = ins.split(";")[0].strip()
            if not s or s.endswith(":") or s.startswith("."): continue
            mm = re.search(r"vmcnt\(@(\w+):(\d+):(\w+)\)", s)
            if mm:
                wid, k, cls = mm.group(1), int(mm.group(2)), mm.group(3)
                ends = [i for i, o in enumerate(ops) if o == cls]
                if len(ends) > k:
                    n = len(ops) - 1 - ends[len(ends) - 1 - k]
                    res[wid] = min(res.get(wid, 63), n)
                else:
                    raise Exception(f"wait {wid}: no group to wait for")
                continue
            m = s.split()[0]
            if m.startswith("buffer_") or m.startswith("global_"):
                g = re.search(r"grpend:(\w+)", ins)
                ops.append(g.group(1) if g else None)
    return res

def apply_vm(code, res):
    def f(ins):
        return re.sub(r"vmcnt\(@(\w+):(\d+):(\w+)\)", lambda m: f"vmcnt({res[m.group(1)]})", ins)
    return [f(i) for i in code]

def kernel_desc(name, nvgpr, accum, nsgpr=102):
    return f""".amdhsa_kernel {name}
  .amdhsa_next_free_vgpr {nvgpr}
  .amdhsa_next_free_sgpr {nsgpr}
  .amdhsa_accum_offset {accum}
  .amdhsa_group_segment_fixed_size 0
  .amdhsa_kernarg_size 104
  .amdhsa_user_sgpr_count 2
  .amdhsa_user_sgpr_kernarg_segment_ptr 1
  .amdhsa_system_sgpr_workgroup_id_x 1
.end_amdhsa_kernel
"""
def fbits(x):
    import struct
    return struct.unpack("<I", struct.pack("<f", x))[0]

import os
PROF = int(os.environ.get("PROF", "0"))
WS_PROF = 79 * (1 << 20)
NMARK = 11
def prof_mark(i):
    if not PROF: return []
    op = "s_memtime" if (os.environ.get("PROFC") and i >= 1) else "s_memrealtime"
    return [f"{op} s[94:95]", "s_waitcnt lgkmcnt(0)", f"s_mov_b32 s{83+i}, s94"]
def prof_start():
    if not PROF: return []
    return ["s_memtime s[80:81]"] + [f"s_mov_b32 s{i}, 0" for i in range(83, 94)] + prof_mark(0)
def prof_end(kidx, sO, wave_sgpr):
    if not PROF: return []
    c = ["s_waitcnt vmcnt(0)", "s_memtime s[96:97]", "s_memrealtime s[94:95]", "s_waitcnt lgkmcnt(0)", "s_mov_b32 s82, s96"]
    c += [f"s_lshl_b32 s96, s2, 2", f"s_add_u32 s96, s96, s{wave_sgpr}", "s_lshl_b32 s96, s96, 6", f"s_add_u32 s96, s96, {WS_PROF}",
          "s_mov_b64 exec, 1", "v_mov_b32 v20, 0"]
    for j, s in enumerate(list(range(83, 94)) + [94, 80, 82]):
        c += [f"v_mov_b32 v21, s{s}", f"buffer_store_dword v21, v20, s[{sO}:{sO+3}], s96 offen offset:{4*j}"]
    c += ["s_getreg_b32 s97, hwreg(HW_REG_XCC_ID)", "v_mov_b32 v21, s97", f"buffer_store_dword v21, v20, s[{sO}:{sO+3}], s96 offen offset:60"]
    return c
```

```python
from asmlib import *
from layout import *
import p1, p3, p4
def strip_w0(tr):
    out = []; i = 0
    while i < len(tr):
        if tr[i] == "s_cmp_lg_u32 s16, 0" and tr[i+1].startswith("s_cbranch_scc1 "):
            lbl = tr[i+1].split()[1] + ":"
            out += tr[i:i+2]
            while tr[i] != lbl: i += 1
        if tr[i].startswith("s_cbranch_scc0 P1_N") and not tr[i].startswith("s_cbranch_scc0 P1_NG"):
            lbl = tr[i].split()[1] + ":"
            out.append(tr[i])
            while tr[i] != lbl: i += 1
        out.append(tr[i]); i += 1
    return out
def gen():
    M = [prof_mark(i) for i in range(11)]
    sel = os.environ.get("MARKS", "pro,pair,p2,p3,ep,p4,b0,bf,st,pl").split(",")
    mk = lambda name: M[1 + sel.index(name)] if name in sel else []
    head = ["s_cmp_ge_u32 s2, 256", "s_cbranch_scc1 F_END"] + prof_start()
    P = p1.prologue(mk)
    P = P[:-2] + mk("pro") + P[-2:]
    p1.MK[0] = mk
    V = [p1.version(0), p1.version(1)]
    Q = p1.p2(p3.kv_setup(p1.vLN), p3.kv_dma0(), p3.kv_dma1())
    Q = Q[:1] + mk("p2") + Q[1:] + mk("p3")
    A, Aslow, Atr = p3.gen(p4.early(), mk("ep"))
    B, Bslow, Btr = p4.gen(p3.h_stores(), mk("b0"), mk("bf"), mk("st"), mk("pl"))
    B = mk("p4") + B; Btr = [mk("p4") + t for t in Btr]
    end = prof_end(0, 8, 16) + ["F_END:", "s_endpgm"]
    pm = mk("pair")
    fronts = []
    for v in V:
        fronts.append(head + P + v["head"] + v["pair"] + pm + v["br"] + v["u2"] + v["u3"] + v["u4"])
        fronts.append(head + P + v["head"] + v["pair"] + pm + v["br"] + v["skip"] + v["u3"] + v["u4"])
    sk = V[0]["skip"]
    for l in ("P1_NG0", "P1_NG"):
        a = sk.index("s_cbranch_scc0 " + l); b = sk.index(l + ":"); sk = sk[:a+1] + sk[b:]
    fronts.append(head + P + V[0]["head"] + V[0]["pair"] + pm + V[0]["br"] + sk + V[0]["u3"] + V[0]["u4"])
    traces = [f + Q + Atr[3] + Btr[0] + end for f in fronts] + [fronts[0] + Q + t + Btr[0] + end for t in Atr] + [fronts[0] + Q + Atr[0] + Btr[1] + end]
    traces += [strip_w0(t) for t in traces]
    res = resolve_vm(traces)
    errs = []
    for i, t in enumerate(traces): errs += check_trace(apply_vm(t, res), f"tr{i}")
    if errs:
        print("\n".join(errs[:40])); raise Exception("hazards")
    print("vm", res)
    v0, v1 = V
    code = head + P + v0["head"] + v0["pair"] + pm + v0["br"] + v0["u2"] + v0["u3"] + v0["u4"] + Q + A + B + end
    code += v1["head"] + v1["pair"] + pm + v1["br"] + v1["u2"] + v1["u3"] + v1["u4"] + ["s_branch P2"]
    code += v0["skip"] + v1["skip"] + Aslow + Bslow + p1.tabdata()
    return apply_vm(code, res)
if __name__ == "__main__":
    print(len(gen()))
```

```python
from asmlib import *
from layout import *
import os
def flat(l):
    o = []
    for x in l: o += [x] if isinstance(x, str) else x
    return o
SC = " sc1"
NT = os.environ.get("NT", " nt")
SCE = os.environ.get("SCE", " sc1")
def table():
    rows = []; one = fbits(1.0)
    for cg in range(32):
        if cg < 13:
            t0 = 5 * cg; n = min(5, 64 - t0)
            e = [1, 0, 8192, 0, t0, 0, t0 * 128, 256, 512, 1024, 16384, 128, fbits(LOG2E * 128 ** -0.5), WS_KV, MB, 2048]
        elif cg < 26:
            t0 = 5 * (cg - 13); n = min(5, 64 - t0)
            e = [1, 1, 8192, 1, t0, 0, t0 * 128, 512, 256, 16384, 2048, 1024, one, WS_KV + 8192, MB, 4096]
        elif cg < 28:
            t0 = 4 * (cg - 26); n = 4
            e = [0, 2, 3072, 0, t0, 0, t0 * 128, 65536, 512, 131072, 1024, 256, fbits(LOG2E * 0.25), WS_QB, 8 * 65536, 4 * 65536]
        elif cg < 30:
            t0 = 4 * (cg - 28); n = 4
            e = [0, 2, 3072, 0, t0, 0, 1024 + t0 * 128, 131072, 512, 262144, 2048, 256, one, WS_KVB, 8 * 131072, 4 * 131072]
        else:
            t0 = 4 * (cg - 30); n = 4
            e = [0, 2, 3072, 1, t0, 0, 2048 + t0 * 128, 512, 256, 2048, 262144, 131072, one, WS_KVB + 1024, 8 * 131072, 4 * 131072]
        e[5] = (1 if n == 4 else 0) | (2 if cg == GATE_CG else 0)
        if n == 4: e[5] |= [12, 25, 26, 27, 28, 29, 30, 31].index(cg) << 8
        e[5] |= cg << 16
        rows.append(e)
    slack = [12, 25, 26, 27, 28, 29, 30, 31]; reg = [g for g in range(32) if g not in slack]
    order = []
    sl_order = [12, 26, 27, 28, 25, 29, 30, 31]
    for j in range(8): order += reg[3*j:3*j+3] + [sl_order[j]]
    return [rows[g] for g in order] if os.environ.get('SPREAD') else rows
GATE_CG = 28
TOUCH = os.environ.get("TOUCH", "cjwqo")
TPOS = os.environ.get("TPOS", "c")
vTCH = 23
ACC = [32, 96, 160]; WR = [224, 240]
vW = [1, 2, 3, 4]; vWD = [5, 6, 7, 8]; vXD = [9, 10, 11, 12]; vXR = [13, 14]; vXN = [15, 16]
vEP, vL3, vWC, vLN, vJQ, vFL, vPF = 17, 18, 19, 20, 21, 22, 27
sWS, sW, sWAVE, sH, sI, sDBG, sX, sE = 8, 12, 16, 17, 18, 40, 44, 48
sLW, sLX, sWOFF, sK128, sK128m, sUSW, sXA, sXB, sTE, sT0, sT1, sRT = 19, 20, 21, 22, 23, 24, 25, 26, 27, 28, 29, 30
sO0 = 32
sB0 = 36
sZ0, sZ1 = 37, 31
sK128t, sEN = 38, 39
sPW, sCG = 5, 4
sWQ, sXP = 52, 54
sTB = 56
T_XSEL, T_WSEL, T_STR, T_OR, T_T0, T_FL, T_WCOL, T_A1, T_A2, T_SP, T_SJ1, T_SJ0, T_SC, T_B0, T_TS1, T_TS0 = [sTB + i for i in range(16)]
XB = 65536
QA_ = 0

def xa(rt, ks): return (ks * 4 + rt) * 4
def acc(p, I, J): return ACC[p] + (I * 4 + J) * 4
def slot_mfmas(p, o, kc):
    out = []
    for c in range(4):
        wb = WR[c & 1]
        for r in range(4):
            for ks in range(4):
                d = acc(p, c, r) if o == 0 else acc(p, r, c)
                w = vr(wb + 4 * ks, 4); x = ar(xa(r, 4 * kc + ks), 4)
                a, b = (w, x) if o == 0 else (x, w)
                cin = "0" if (kc == 0 and ks == 0) else vr(d, 4)
                out.append(f"v_mfma_f32_16x16x32_bf16 {vr(d,4)}, {a}, {b}, {cin}")
    return out
def tr_reads(pos, c):
    wb = WR[c & 1]
    return [f"ds_read_b64_tr_b16 {vr(wb + 4*ks + 2*e, 2)}, v{vW[c]} offset:{pos*16384 + ks*4096 + e*512}" for ks in range(4) for e in range(2)]
def w_dma(pos, step, nt=''):
    out = [f"s_add_u32 m0, s{sLW}, {pos*16384}"]
    out.append(f"s_add_u32 s{sWOFF}, s{sWOFF}, {step}" if step else "s_nop 0")
    for i in range(4):
        out.append(f"buffer_load_dwordx4 v{vWD[i]}, {sr(sW,4)}, s{sWOFF} offen offset:{i*1024}{nt} lds" + (" ; grpend:w" if i == 3 else ""))
    return out
def x_dma(sc):
    out = []
    for hf in range(2):
        out += [f"s_add_u32 m0, s{sLX}, {(sc % 3)*8192 + hf*4096}", f"s_add_u32 s{sT0}, s{sXB if hf else sXA}, {sc*128}"]
        for i in range(4):
            out.append(f"buffer_load_dwordx4 v{vXD[i]}, {sr(sX,4)}, s{sT0} offen offset:{i*1024} lds" + (" ; grpend:x" if hf == 1 and i == 3 else ""))
    return out
def x_reads(sc, nat):
    v = vXN if nat else vXR
    return [f"ds_read_b128 {ar(xa(rt, 2*sc + k2), 4)}, v{v[k2]} offset:{(sc % 3)*8192 + rt*2048}" for rt in range(4) for k2 in range(2)]
def w_lane_setup(stride, t):
    o = [f"v_mad_u32_u24 v{vWD[0]}, v{vL3}, {stride}, v{vWC}", f"s_lshl_b32 s{t}, {stride}, 3", f"s_sub_u32 s{t}, s{t}, 1024",
         f"v_xor_b32 v{vWD[1]}, 64, v{vWD[0]}", f"v_add_u32 v{vWD[1]}, s{t}, v{vWD[1]}", f"s_lshl_b32 s{t}, s{t}, 1",
         f"v_add_u32 v{vWD[2]}, s{t}, v{vWD[0]}", f"v_add_u32 v{vWD[3]}, s{t}, v{vWD[1]}",
         f"s_lshl_b32 s{sK128}, {stride}, 7", f"s_sub_u32 s{sK128m}, s{sK128}, 128", f"s_mul_i32 s{sUSW}, s{sK128}, -3", f"s_add_u32 s{sUSW}, s{sUSW}, 128"]
    return o
def e_addr():
    return [f"s_lshr_b32 s{sT1}, s{sTE}, 1", f"s_mul_i32 s{sO0}, s{sT1}, s{T_TS1}", f"s_and_b32 s{sT1}, s{sTE}, 1", f"s_mul_i32 s{sT1}, s{sT1}, s{T_TS0}",
            f"s_add_u32 s{sO0}, s{sO0}, s{sT1}", f"s_add_u32 s{sO0}, s{sO0}, s{sB0}", f"s_add_u32 s{sTE}, s{sTE}, 1",
            f"s_add_u32 s{sO0+1}, s{sO0}, s{T_SJ0}", f"s_add_u32 s{sO0+2}, s{sO0}, s{T_SJ1}", f"s_add_u32 s{sO0+3}, s{sO0+2}, s{T_SJ0}"]
def pipeline(units):
    out = []; prev = None
    for pre, cv, post in units:
        out += pre + cv[:2]
        if prev: out += prev[:2]
        out += cv[2:]
        if prev: out += prev[2:]
        prev = post
    return out + ["s_nop 1"] + prev
def cvt4(T0, T1):
    return [f"v_cvt_pk_bf16_f32 v{T0}, v{T0}, v{T0+1}", f"v_cvt_pk_bf16_f32 v{T0+1}, v{T0+2}, v{T0+3}",
            f"v_cvt_pk_bf16_f32 v{T0+2}, v{T1}, v{T1+1}", f"v_cvt_pk_bf16_f32 v{T0+3}, v{T1+2}, v{T1+3}"]
def swaps(T0): return [f"v_permlane16_swap_b32 v{T0}, v{T0+2}", f"v_permlane16_swap_b32 v{T0+1}, v{T0+3}"]
def epilogue(p, mul):
    u = []
    for pp in range(2):
        for J in range(4):
            T0, T1 = acc(p, 2*pp, J), acc(p, 2*pp+1, J)
            pre = [f"v_mul_f32 v{T+r}, s{T_SC}, v{T+r}" for T in (T0, T1) for r in range(4)] if mul else []
            post = swaps(T0) + [f"buffer_store_dwordx4 {vr(T0,4)}, v{vEP}, {sr(sE,4)}, s{sO0+J} offen{SCE}" + (" ; grpend:st" if pp == 1 and J == 3 else "")]
            if pp == 0: post.append(f"s_add_u32 s{sO0+J}, s{sO0+J}, s{T_SP}")
            u.append((pre, cvt4(T0, T1), post))
    return e_addr() + pipeline(u)
def q_epilogue(p, u):
    un = []
    for a in range(2):
        for rt in range(4):
            T0, T1 = acc(p, 2*a, rt), acc(p, 2*a+1, rt); q = QA_ + 16*rt + 4*(2*u + a)
            un.append(([], cvt4(T0, T1), swaps(T0) + [f"v_accvgpr_write_b32 a{q+r}, v{T0+r}" for r in range(4)]))
    return pipeline(un)

TRG = [0, 1, 2, 4, 5, 6, 8, 9]; DMAG = [3, 7, 11, 15]; XRG = [3, 7, 10, 11, 12, 13, 14, 15]
def place_dma(S, g0, grp):
    S.add(g0 + 0, grp[0]); S.add(g0 + 1, grp[1])
    for i in range(4): S.add(g0 + DMAG[i], grp[2 + i])
class Block:
    def __init__(self, name, slots, nextpos, qx=None, qd=None):
        self.name = name
        qx = dict(qx or {}); qd = dict(qd or {})
        m = []
        for q, s in enumerate(slots):
            m += slot_mfmas(s["p"], s["o"], s["kc"])
            if s.get("xr") is not None: qx[4*q] = (s["xr"], s["xk"])
            if s.get("xd") is not None: qd[4*q+1] = x_dma(s["xd"])[:6]; qd[4*q+2] = x_dma(s["xd"])[6:]
            if "wstep" in s: qd[4*q+3] = w_dma(s["pos"], s["wstep"], s.get("nt", ""))
        S = self.S = Sched(m, 16)
        for q, s in enumerate(slots):
            for c in range(4):
                Q = 4 * q + c; g0 = Q * 16
                lg = "lgkmcnt(4)" if (Q - 1) in qx else "lgkmcnt(0)"
                pre = []
                if Q in qx: pre.append(f"s_waitcnt vmcnt(@{name}{Q}x:{qx[Q][1]}:x)")
                if c == 3 and not s.get("nobar"):
                    need = s.get("need", [f"{s.get('wk', 2)}:w"])
                    for k, nd in enumerate(need): pre.append(f"s_waitcnt vmcnt(@{name}{q}w{k}:{nd})")
                    pre[-1] += " " + lg
                    pre += s.get("prebar", []) + ["s_barrier"] + s.get("postbar", [])
                elif pre: pre[-1] += " " + lg
                else: pre.append("s_waitcnt " + lg)
                S.before(g0, pre)
                if c < 3: rd = tr_reads(s["pos"], c + 1)
                else:
                    np_ = slots[q+1]["pos"] if q + 1 < len(slots) else nextpos
                    rd = tr_reads(np_, 0) if np_ is not None else []
                for i, r in enumerate(rd): S.add(g0 + TRG[i], r)
                if Q in qx:
                    for i, r in enumerate(x_reads(qx[Q][0], s.get("nat", False))): S.add(g0 + XRG[i], r)
                if Q in qd: place_dma(S, g0, qd[Q])
    def emit(self):
        print("P1 block", self.name, "over", self.S.over())
        return self.S.emit()

K128, K128M, USW, K128T = f"s{sK128}", f"s{sK128m}", f"s{sUSW}", f"s{sK128t}"

def pair_slots(pa, pb, o, nat, tailw):
    sl = []
    for q in range(8):
        d = dict(p=pb if q & 1 else pa, o=o, kc=q >> 1, pos=q & 3, nat=nat)
        if q < 4: d["wstep"] = "128" if q & 1 else K128M
        elif tailw: d["wstep"] = USW if q == 4 else K128
        if q < 6: d["xr"] = q + 2; d["xk"] = min(2, 5 - q)
        if q < 3: d["xd"] = q + 5
        if not tailw and q >= 4: d["wk"] = max(0, 6 - q)
        sl.append(d)
    return sl
def unit_slots(p, o): return [dict(p=p, o=o, kc=s, pos=s, wstep=USW if s == 0 else K128) for s in range(4)]

def flag_store(off_code, val):
    return off_code + [f"v_mov_b32 v{vFL}, {val}", "s_mov_b64 exec, 1", f"buffer_store_dword v{vFL}, off, {sr(sWS,4)}, s{sZ0}{SC}", "s_mov_b64 exec, -1"]
def w0only(code, lbl): return [f"s_cmp_lg_u32 s{sWAVE}, 0", f"s_cbranch_scc1 {lbl}"] + code + [f"{lbl}:"]
F1OFF = [f"s_lshl_b32 s{sZ0}, s{sCG}, 7", f"s_lshl_b32 s{sZ1}, s{sI}, 2", f"s_add_u32 s{sZ0}, s{sZ0}, s{sZ1}", f"s_add_u32 s{sZ0}, s{sZ0}, {WS_F1}"]

NT = os.environ.get("NT", " nt")
def lin_touch():
    c = []; A = c.append
    A(f"v_and_b32 v31, 31, v{vLN}"); A("v_lshlrev_b32 v31, 7, v31")
    A("s_mov_b32 s99, 0x20000"); A(f"s_mov_b32 s98, {2*MB}"); A("s_lshl_b32 s100, s2, 1"); A(f"s_and_b32 s101, s{sWAVE}, 1"); A("s_add_u32 s100, s100, s101"); A("s_lshl_b32 s100, s100, 12")
    A(f"s_cmp_lt_u32 s{sWAVE}, 2"); A("s_cselect_b64 s[96:97], s[74:75], s[72:73]")
    A(f"buffer_load_dword v{vTCH}, v31, s[96:99], s100 offen")
    return c
def touch_setup():
    return [f"v_and_b32 v30, 15, v{vLN}", f"s_lshl_b32 s101, s{sRT}, 3", "v_add_u32 v30, s101, v30", f"v_mul_u32_u24 v28, s{T_STR}, v30", "v_lshlrev_b32 v29, 13, v30",
            "v_lshl_add_u32 v29, v24, 7, v29", "v_lshl_add_u32 v30, v24, 7, v28", f"v_lshrrev_b32 v31, 4, v{vLN}", "v_min_u32 v31, 2, v31", "v_lshl_add_u32 v28, v31, 7, v28"]
def touch_w3(): return [f"buffer_load_dword v{vTCH}, v28, {sr(sW,4)}, s{T_WCOL} offen{NT}"]
def touch_w2(): return [f"buffer_load_dword v{vTCH}, v30, {sr(sW,4)}, s{T_WCOL} offen offset:384"]
def touch_q():
    return [f"s_mov_b64 s[96:97], {sr(sWQ,2)}", f"s_mov_b32 s98, {4*MB}", "s_mov_b32 s99, 0x20000", f"s_lshl_b32 s101, s{sH}, 8",
            f"buffer_load_dword v{vTCH}, v29, s[96:99], s101 offen"]
MK = [lambda n: []]
def version(o):
    mul = (o == 0)
    code = [f"P1_V{o}:"]
    code += [f"v_mad_u32_u24 v{vEP}, v24, s{T_A1}, v{vJQ if o == 0 else 26}", f"v_mad_u32_u24 v{vEP}, v25, s{T_A2}, v{vEP}"]
    if o == 0:
        code += [f"s_mul_i32 s{sT1}, s{T_XSEL}, {4096 - 128}", f"v_bfe_u32 v27, v{vLN}, 2, 1", f"v_mad_u32_u24 v{vEP}, v27, s{sT1}, v{vEP}"]
    code += [
             f"s_mul_i32 s{sT1}, s{T_SJ1 if o == 0 else T_SP}, s{sRT}", f"s_add_u32 s{sB0}, s{T_B0}, s{sT1}"]
    step = lambda e: (K128T if e % 3 == 0 else "128") if e < 12 else (USW if e == 12 else K128)
    sl = [dict(p=q % 3, o=o, kc=q // 3, pos=q & 3, wstep=step(q + 4)) for q in range(12)]
    del sl[0]["wstep"]; del sl[1]["wstep"]
    X = lambda sc, h: x_dma(sc)[6*h:6*h+6]
    qd = {2: w_dma(3, step(3), NT), 3: X(2,0), 4: X(2,1), 5: X(3,0), 6: X(3,1), 7: w_dma(0, step(4), NT), 8: w_dma(1, step(5), NT),
          12: X(4,0), 13: X(4,1), 14: X(5,0), 16: X(5,1), 17: X(6,0), 18: X(6,1), 21: X(7,0), 22: X(7,1)}
    qx = {9: (2, 1), 10: (3, 0), 20: (4, 2), 22: (5, 1), 24: (6, 1), 28: (7, 0)}
    sl[1]["wk"] = 1
    for q in range(8): sl[q]["nt"] = NT
    sl[2]["postbar"] = w0only([f"s_and_b32 s{sZ0}, s2, 1", f"s_lshl_b32 s{sZ0}, s{sZ0}, 7", f"v_mov_b32 v{vFL}, 1", "s_mov_b64 exec, 1",
                               f"buffer_atomic_add v{vFL}, off, {sr(sDBG,4)}, s{sZ0} sc1", "s_mov_b64 exec, -1"], f"P1_CL{o}")
    B = Block(f"a{o}", sl, 0, qx, qd)
    TQ = [int(x) for x in os.environ.get("TQ", "25,30").split(",")]
    B.S.fill(touch_w2(), TQ[0] * 16, TQ[0] * 16 + 16)
    B.S.fill(touch_q(), TQ[1] * 16, TQ[1] * 16 + 16)
    B.S.fill(epilogue(0, mul), 10 * 64 + 3, 12 * 64 - 2)
    for q in range(1, 12): B.S.before(q * 64, MK[0](f"s{q}"))
    pair = B.emit()
    e1, e2, e3 = epilogue(1, mul), epilogue(2, mul), epilogue(0, mul)
    cut = [i for i, x in enumerate(e2) if x.startswith("buffer_store")][3] + 2
    sw = [f"s_mov_b64 {sr(sX,2)}, {sr(sXP,2)}",
          f"s_lshl_b32 s{sXA}, s{sI}, 2", f"s_sub_u32 s{sXB}, 60, s{sXA}", f"s_add_u32 s{sXA}, s{sXA}, s{sWAVE}", f"s_add_u32 s{sXB}, s{sXB}, s{sWAVE}",
          f"s_lshl_b32 s{sXA}, s{sXA}, 15", f"s_lshl_b32 s{sXB}, s{sXB}, 15"]
    sl = unit_slots(0, o); sl[3]["xd"] = 0
    B = Block(f"c{o}", sl, 0)
    B.S.pack(sw, 192, 206)
    B.S.fill(e1 + e2[:cut], 0, 254)
    u3 = B.emit()
    sl = unit_slots(1, o)
    sl[0]["wstep"] = None; sl[1]["wstep"] = "128"; sl[2]["wstep"] = K128M; sl[3]["wstep"] = "128"
    sl[0]["xd"] = 1; sl[1]["xd"] = 2
    sl[2].update(xr=0, xk=2, xd=3, nat=True); sl[3].update(xr=1, xk=2, xd=4, nat=True)
    B = Block(f"d{o}", sl, 0)
    sw2 = [f"s_mov_b64 {sr(sW,2)}, {sr(sWQ,2)}", f"s_mov_b32 s{sW+2}, {4*MB}", f"s_mov_b32 s{T_STR}, 8192"] + w_lane_setup(f"s{T_STR}", sZ1) + \
          [f"s_lshl_b32 s{sWOFF}, s{sWAVE}, 18", f"s_lshl_b32 s{sZ1}, s{sH}, 8", f"s_add_u32 s{sWOFF}, s{sWOFF}, s{sZ1}"]
    B.S.pack(sw2, 0, 40)
    B.S.fill(e2[cut:] + [f"s_mov_b32 s{sE+2}, s{sEN}"] + e3 + [f"s_mov_b32 s{sE+2}, {WS_END}"], 0, 254)
    u4 = B.emit()
    skip = [f"P1_SK{o}:"] + sw + (gate_load() if o == 0 else []) + x_dma(0) + flat(e1) + (gate() if o == 0 else []) + flat(e2[:cut]) + \
           [f"s_mov_b32 s{sEN}, 0", f"s_sub_u32 s{sTE}, s{sTE}, 1", f"s_branch P1_U4{o}"]
    br = [f"s_bitcmp1_b32 s{T_FL}, 0", f"s_cbranch_scc1 P1_SK{o}"]
    return dict(head=code, pair=pair, br=br, u2=u3, u3=[], u4=[f"P1_U4{o}:"] + u4, skip=skip)

sGW = 72
def gate_load():
    c = [f"s_bitcmp1_b32 s{T_FL}, 1", "s_cbranch_scc0 P1_NG0"]; A = c.append
    G = ACC[0]
    A(f"v_lshrrev_b32 v27, 4, v{vLN}"); A("v_lshlrev_b32 v28, 4, v27")
    for ks in range(16): A(f"buffer_load_dwordx4 {vr(G+4*ks,4)}, v28, {sr(sGW,4)}, 0 offen offset:{ks*64}" + (" ; grpend:gw" if ks == 15 else ""))
    A("P1_NG0:")
    return c
def gate():
    c = [f"s_bitcmp1_b32 s{T_FL}, 1", "s_cbranch_scc0 P1_NG"]; A = c.append
    G = ACC[0]; D = WR[1]
    A("s_waitcnt vmcnt(@gw:0:gw)")
    for rt in range(4):
        for ks in range(16):
            A(f"v_mfma_f32_16x16x32_bf16 {vr(D+4*rt,4)}, {vr(G+4*ks,4)}, {ar(xa(rt,ks),4)}, " + ("0" if ks == 0 else vr(D+4*rt,4)))
    A("s_nop 7")
    for g in range(1, 4):
        A(f"v_cmp_eq_u32 vcc, {g}, v27"); A("s_nop 1"); A(f"v_cndmask_b32 v{D}, v{D}, v{D+4*g}, vcc")
    A(f"v_mul_f32 v{D}, {hex(fbits(-LOG2E))}, v{D}"); A(f"v_exp_f32 v{D}, v{D}"); A("s_nop 0")
    A(f"v_add_f32 v{D}, 1.0, v{D}"); A(f"v_rcp_f32 v{D}, v{D}")
    A(f"v_lshrrev_b32 v28, 2, v{vJQ}"); A("v_lshl_add_u32 v28, v27, 6, v28")
    A(f"s_lshl_b32 s{sT0}, s{sRT}, 7"); A(f"s_add_u32 s{sT0}, s{sT0}, {WS_GATE}")
    A(f"buffer_store_dword v{D}, v28, {sr(sWS,4)}, s{sT0} offen{SC}")
    A("s_nop 1")
    A("P1_NG:")
    return c

def prologue(mk=lambda n: []):
    c = []; A = c.append
    A(f"s_load_dwordx4 s[72:75], s[0:1], {KA_X}")
    A(f"s_load_dwordx4 s[76:79], s[0:1], {KA_WUK}")
    A(f"s_load_dwordx2 {sr(sWQ,2)}, s[0:1], {KA_WQ}")
    A(f"s_load_dwordx2 s[6:7], s[0:1], {KA_WQKV}")
    A(f"s_load_dwordx2 {sr(sWS,2)}, s[0:1], {KA_WS}")
    A(f"s_load_dwordx2 {sr(sDBG,2)}, s[0:1], {KA_DBG}")
    A(f"s_load_dwordx2 s[32:33], s[0:1], {KA_GATE}")
    A("s_getpc_b64 s[4:5]"); A("P1_PC:")
    if "c" in TOUCH:
        A("s_mov_b64 s[96:97], s[4:5]"); A("s_mov_b32 s98, P1_TAB-P1_PC"); A("s_mov_b32 s99, 0x20000")
        A("s_lshr_b32 s3, s2, 3"); A("s_lshl_b32 s3, s3, 12")
        A("v_lshrrev_b32 v31, 3, v0"); A("v_lshlrev_b32 v31, 7, v31")
        A(f"buffer_load_dword v{vTCH}, v31, s[96:99], s3 offen")
    A("s_add_u32 s4, s4, P1_TAB-P1_PC"); A("s_addc_u32 s5, s5, 0")
    A("s_and_b32 s3, s2, 7"); A(f"s_lshr_b32 s{sH}, s2, 3"); A(f"s_and_b32 s{sI}, s{sH}, 7")
    A(f"s_lshr_b32 s{sH}, s{sH}, 3"); A("s_lshl_b32 s3, s3, 2"); A(f"s_add_u32 s{sH}, s{sH}, s3")
    A(f"s_lshl_b32 s3, s{sH}, 6")
    A(f"s_load_dwordx16 {sr(sTB,16)}, s[4:5], s3")
    A("v_lshrrev_b32 v27, 6, v0"); A(f"v_and_b32 v{vLN}, 63, v0")
    A(f"v_readfirstlane_b32 s{sWAVE}, v27")
    A(f"v_lshrrev_b32 v27, 4, v{vLN}")
    A(f"v_and_b32 v28, 15, v{vLN}")
    A("v_and_b32 v24, 1, v27"); A("v_lshrrev_b32 v25, 1, v27"); A("v_lshlrev_b32 v26, 4, v28")
    A("v_and_b32 v29, 3, v28"); A("v_bfe_u32 v30, v28, 2, 1"); A("v_bfe_u32 v31, v28, 3, 1")
    A("v_lshl_add_u32 v29, v30, 3, v29"); A("v_lshl_add_u32 v29, v31, 2, v29")
    A(f"v_lshlrev_b32 v{vJQ}, 4, v29")
    A(f"s_lshl_b32 s{sLW}, s{sWAVE}, 12")
    A(f"s_mul_i32 s{sLX}, s{sWAVE}, 24576"); A(f"s_add_u32 s{sLX}, s{sLX}, {XB}")
    for src, dst in ((29, vXR), (28, vXN)):
        A(f"v_lshrrev_b32 v30, 1, v{src}"); A("v_xor_b32 v30, v30, v27"); A("v_lshlrev_b32 v30, 4, v30"); A(f"v_lshl_add_u32 v30, v{src}, 7, v30")
        A(f"v_add_u32 v{dst[0]}, s{sLX}, v30"); A(f"v_xor_b32 v{dst[1]}, 64, v{dst[0]}")
    A(f"v_lshrrev_b32 v{vL3}, 3, v{vLN}"); A(f"v_and_b32 v31, 7, v{vLN}")
    A("v_xor_b32 v30, v31, v27"); A("v_lshlrev_b32 v30, 4, v30"); A(f"v_lshl_add_u32 v{vXD[0]}, v{vL3}, 10, v30")
    A(f"v_xor_b32 v{vXD[1]}, 64, v{vXD[0]}"); A(f"v_add_u32 v{vXD[1]}, 7168, v{vXD[1]}")
    A(f"v_add_u32 v{vXD[2]}, 14336, v{vXD[0]}"); A(f"v_add_u32 v{vXD[3]}, 14336, v{vXD[1]}")
    A("v_lshlrev_b32 v30, 1, v24"); A("v_xor_b32 v30, v30, v31"); A(f"v_lshlrev_b32 v{vWC}, 4, v30")
    A("v_lshrrev_b32 v30, 2, v28"); A("v_lshl_add_u32 v29, v27, 3, v30"); A("v_lshlrev_b32 v29, 7, v29")
    A("v_and_b32 v31, 3, v28"); A("v_lshl_add_u32 v29, v31, 3, v29")
    A("v_lshrrev_b32 v30, 1, v30"); A("v_lshl_add_u32 v30, v24, 1, v30"); A("v_lshlrev_b32 v30, 5, v30")
    A(f"v_add_u32 v{vW[0]}, v29, v30")
    for ct in range(1, 4): A(f"v_xor_b32 v{vW[ct]}, {32*ct}, v{vW[0]}")
    A(f"s_lshl_b32 s{sRT}, s{sI}, 2"); A(f"s_add_u32 s{sRT}, s{sRT}, s{sWAVE}"); A(f"s_lshl_b32 s{sXA}, s{sRT}, 16"); A(f"s_add_u32 s{sXB}, s{sXA}, 32768")
    A(f"s_lshl_b32 s{sRT}, s{sRT}, 1")
    for s, n in ((sWS, WS_END), (sE, WS_END), (sX, 2*MB), (sDBG, 256), (sW, 4*MB)):
        A(f"s_mov_b32 s{s+2}, {n}"); A(f"s_mov_b32 s{s+3}, 0x20000")
    A("s_waitcnt lgkmcnt(0)")
    c += mk("ka")
    A(f"s_lshr_b32 s{sCG}, s{T_FL}, 16")
    A(f"s_cmp_eq_u32 s{T_XSEL}, 0"); A(f"s_cselect_b64 {sr(sX,2)}, s[72:73], s[74:75]")
    c += x_dma(0)
    A(f"s_mov_b64 {sr(sXP,2)}, s[72:73]"); A(f"s_mov_b64 {sr(sE,2)}, {sr(sWS,2)}")
    A(f"s_cmp_eq_u32 s{T_WSEL}, 0"); A(f"s_cselect_b64 {sr(sW,2)}, s[76:77], s[78:79]")
    A(f"s_cmp_eq_u32 s{T_WSEL}, 2"); A(f"s_cselect_b64 {sr(sW,2)}, s[6:7], {sr(sW,2)}"); A(f"s_cselect_b32 s{sW+2}, {512*3072}, s{sW+2}")
    c += w_lane_setup(f"s{T_STR}", sT1)
    A(f"s_sub_u32 s{sK128t}, s{sK128}, 256"); A(f"s_mov_b32 s{sEN}, {WS_END}")
    A(f"s_mul_i32 s{sWOFF}, s{T_STR}, s{sWAVE}"); A(f"s_lshl_b32 s{sWOFF}, s{sWOFF}, 5"); A(f"s_add_u32 s{sWOFF}, s{sWOFF}, s{T_WCOL}")
    A(f"s_mov_b32 s{sTE}, s{T_T0}")
    c += touch_setup()
    if TPOS == "a": c += lin_touch() + touch_w3()
    c += mk("i0")
    c += w_dma(0, None, NT) + x_dma(1)
    c += mk("i1")
    if TPOS == "b": c += lin_touch() + touch_w3()
    z = F1OFF + [f"v_mov_b32 v{vFL}, 0", "s_mov_b64 exec, 1", f"buffer_store_dword v{vFL}, off, {sr(sWS,4)}, s{sZ0}{SC}",
                 f"s_lshl_b32 s{sZ0}, s{sI}, 7", f"s_lshl_b32 s{sZ1}, s{sH}, 2", f"s_add_u32 s{sZ0}, s{sZ0}, s{sZ1}", f"s_add_u32 s{sZ0}, s{sZ0}, {WS_F3}",
                 f"buffer_store_dword v{vFL}, off, {sr(sWS,4)}, s{sZ0}{SC}", f"buffer_store_dword v{vFL}, off, {sr(sWS,4)}, s{sZ0} offset:{WS_F4 - WS_F3}{SC}", "s_mov_b64 exec, -1"]
    c += w_dma(1, "128", NT) + w_dma(2, "128", NT)
    if TPOS == "c": c += lin_touch() + touch_w3()
    A(f"s_mov_b64 {sr(sGW,2)}, s[32:33]"); A(f"s_mov_b32 s{sGW+2}, 1024"); A(f"s_mov_b32 s{sGW+3}, 0x20000")
    z = [f"buffer_load_dword v{vTCH}, v31, {sr(sGW,4)}, 0 offen"] + z
    c += w0only(z, "P1_Z")
    c += mk("i2")
    A("s_waitcnt vmcnt(@Px0:1:x)"); c += mk("l0"); c += x_reads(0, False)
    A("s_waitcnt vmcnt(@Px1:0:x)"); c += mk("l1"); A("s_barrier"); c += tr_reads(0, 0) + x_reads(1, False)
    A(f"s_cmp_eq_u32 s{T_OR}, 0"); A("s_cbranch_scc0 P1_V1")
    return c

def p2(kv_setup, kv_dma0, kv_dma1):
    sl = pair_slots(2, 0, 0, True, False)
    sl[2]["need"] = ["2:w", "0:st"]
    sl[2]["postbar"] = w0only(flag_store(F1OFF, 1), "P2_S")
    def spin(lbl, load, cmp):
        return [f"s_mov_b32 s{sZ1}, 0x100000", f"{lbl}L:", "s_waitcnt vmcnt(0)", cmp, "s_nop 0", f"s_cbranch_vccz {lbl}",
                "s_sleep 8", load, f"s_sub_u32 s{sZ1}, s{sZ1}, 1", f"s_cmp_lg_u32 s{sZ1}, 0", f"s_cbranch_scc1 {lbl}L", "s_waitcnt vmcnt(0)"]
    ld0 = f"buffer_load_dword v31, v29, {sr(sDBG,4)}, 0 offen sc1"
    ld1 = f"buffer_load_dword v31, v{vPF}, {sr(sWS,4)}, 0 offen sc1"
    sl[4]["prebar"] = w0only(spin("P2_C", ld0, "v_cmp_gt_u32 vcc, v30, v31"), "P2_C")
    sl[3]["postbar"] = w0only([ld0], "P2_L0")
    sl[5]["postbar"] = w0only([ld1], "P2_L1")
    sl[6]["prebar"] = w0only(spin("P2_D", ld1, "v_cmp_ne_u32 vcc, 1, v31"), "P2_D")
    sl[7]["nobar"] = True
    B = Block("q", sl, None)
    B.S.fill(epilogue(1, True), 3, 150)
    B.S.fill(paddr(), 3 * 64, 3 * 64 + 46)
    B.S.fill(kv_setup, 5 * 64, 6 * 64 + 40)
    B.S.fill(kv_dma0, 6 * 64 + 48, 7 * 64 + 16)
    B.S.fill(kv_dma1, 7 * 64 + 16, 7 * 64 + 56)
    B.S.fill(q_epilogue(2, 0), 7 * 64 + 4, 8 * 64)
    return ["P2:"] + B.emit() + ["s_nop 3"] + flat(q_epilogue(0, 1))
def paddr():
    m5 = (1 << 32) // 5 + 1
    o = [f"s_lshl_b32 s{sT1}, s{sH}, 1", f"s_mul_hi_u32 s72, s{sT1}, {m5}", f"s_add_u32 s{sT1}, s{sT1}, 1", f"s_mul_hi_u32 s73, s{sT1}, {m5}",
         "s_add_u32 s74, s72, 13", "s_add_u32 s75, s73, 13", f"s_lshr_b32 s{sT1}, s{sH}, 4", f"s_add_u32 s76, s{sT1}, 26", f"s_add_u32 s77, s{sT1}, 28", f"s_add_u32 s78, s{sT1}, 30",
         f"v_mov_b32 v{vPF}, {GATE_CG}"]
    for k in range(7):
        o += [f"v_cmp_eq_u32 vcc, {k}, v{vL3}", f"v_mov_b32 v29, s{72+k}", "s_nop 0", f"v_cndmask_b32 v{vPF}, v{vPF}, v29, vcc"]
    o += [f"v_and_b32 v29, 7, v{vLN}", "v_lshlrev_b32 v29, 2, v29", f"v_lshl_add_u32 v{vPF}, v{vPF}, 7, v29", f"v_add_u32 v{vPF}, {WS_F1}, v{vPF}",
          f"v_and_b32 v29, 1, v{vLN}", "v_lshlrev_b32 v29, 7, v29", "v_mov_b32 v30, 128"]
    return o
def tabdata():
    return [".p2align 6", ".type P1_TAB,@object", "P1_TAB:"] + [".long " + ", ".join(hex(x) for x in e) for e in table()]
```

```python
from asmlib import *
from layout import *
import os

O_ = {'L': 0 + 32, 'H': 64 + 32}
S_ = [160, 176]; P_ = [192, 200]; CM = 208; TRI = 224
vK, vV, vL16, vDMA, vLO, vHI, vG = 1, 2, 3, 24, 5, 6, {'L': [7, 8], 'H': [9, 10]}
SC = ' sc1'
SUM_ = {'L': 208, 'H': 216}
ONE = 28
vT = 13
Q_ = {'L': 0, 'H': 32}; K_ = 64; V_ = 96
sWS = 8
sKV = 12
sWAVE, sH, sI = 16, 17, 18
sCNT, sSEQ, sRD, sRK, sRV, sLW, sT0, sT1, sNST, sQL, sQH, sDT, sOFF, s2I = range(56, 70)
BIG = fbits(-1.0e30)
RING = 5

MF = "v_mfma_f32_16x16x32_bf16"
def qk(j, sb, masked):
    o = []
    for s in range(2):
        for qs in range(2):
            x = (qs * 2 + s) * 4; d = vr(S_[sb] + x, 4)
            for ks in range(4):
                c = (vr(CM + x, 4) if masked else "0") if ks == 0 else d
                o.append(f"{MF} {d}, {ar(K_+4*(s*4+ks),4)}, {ar(Q_[j]+4*(qs*4+ks),4)}, {c}")
    return o
def pv(j, pb, first=False):
    o = []
    for dt in range(8):
        for qs in range(2):
            d = vr(O_[j] + (dt*2+qs)*4, 4)
            o.append(f"{MF} {d}, {ar(V_+4*dt,4)}, {vr(P_[pb]+4*qs,4)}, {'0' if first else d}")
    for qs in range(2):
        d = ar(SUM_[j] + 4*qs, 4)
        o.append(f"{MF} {d}, {vr(ONE,4)}, {vr(P_[pb]+4*qs,4)}, {'0' if first else d}")
    return o
def kread(t, i): return f"ds_read_b128 {ar(K_+4*i,4)}, v{vK} offset:{t*16384 + i*1024}"
def vread(t, i): return f"ds_read_b128 {ar(V_+4*i,4)}, v{vV} offset:{t*16384 + 8192 + i*1024}"
def sm(sb, pb):
    S = S_[sb]
    e = lambda r: f"v_exp_f32 v{S+r}, v{S+r}"
    c = lambda k: f"v_cvt_pk_bf16_f32 v{P_[pb]+k}, v{S+2*k}, v{S+2*k+1}"
    seq = [e(0)]
    for r in range(1, 16):
        seq.append(e(r))
        if r % 2 == 0 and r < 14: seq.append(c(r // 2 - 1))
    return seq + [c(6), c(7)]
def cm_ops():
    o = [[f"s_cmp_lt_i32 s{sDT}, 0", f"s_cselect_b32 s{sT0}, 0, {hex(BIG)}"], f"v_mov_b32 v{vLO}, s{sT0}",
         [f"s_cmp_le_i32 s{sDT}, 0", f"s_cselect_b32 s{sT0}, 0, {hex(BIG)}"], f"v_mov_b32 v{vHI}, s{sT0}", f"s_add_u32 s{sDT}, s{sDT}, 1"]
    o += [f"v_med3_f32 v{CM+r}, v{TRI+r}, v{vLO}, v{vHI}" for r in range(16)]
    return o
def ring_adv(s, v):
    return [f"s_add_u32 s{s}, s{s}, 32768", [f"s_cmp_eq_u32 s{s}, {RING*32768}", f"s_cselect_b32 s{s}, 0, s{s}"], f"v_add_u32 v{v}, s{s}, v{vL16}"]
def dma_ops():
    o = [[f"s_cmp_le_u32 s{sSEQ}, s{s2I}", f"s_subb_u32 s{sOFF}, s{sSEQ}, 0"],
         f"s_lshl_b32 s{sOFF}, s{sOFF}, 15", f"s_add_u32 s{sSEQ}, s{sSEQ}, 1"]
    for i in range(8):
        if i % 4 == 0:
            o += [f"s_add_u32 m0, s{sRD}, {i*1024}", f"s_add_u32 s{sT1}, s{sOFF}, {i*1024}"]
        o.append(f"buffer_load_dwordx4 v{vDMA}, {sr(sKV,4)}, s{sT1} offen offset:{(i%4)*1024}{SC} lds" + (" ; grpend:kv" if i == 7 else ""))
    o += [f"s_add_u32 s{sRD}, s{sRD}, 32768", [f"s_cmp_ge_u32 s{sRD}, {RING*32768}", f"s_cselect_b32 s{sRD}, s{sLW}, s{sRD}"]]
    return o

cnt = [0]
EG = [0, 2, 3, 5, 7, 9, 11, 13, 16, 18, 20, 22, 24, 26, 28, 30]
CG = [4, 6, 10, 14, 19, 23, 27, 31]
KG = [4, 6, 8, 10, 12, 14, 15, 17]; VG = [19, 21, 23, 25, 27, 29, 31, 32]
def slot(qi, si, pi, n, kre, vre, bar=False, cm=False, kadv=False, vadv=False, pfirst=False, spill=None, nop=0, dma=None, bark=1, rsv=1, extra=None):
    m = []
    if qi: m += qk(qi[0], (n + 1) & 1, qi[1])
    nq = len(m)
    if pi: m += pv(pi, (n + 1) & 1, pfirst)
    S = Sched(m, 16); N = len(m)
    cnt[0] += 1; tag = f"A{cnt[0]}"
    pre = []
    if qi: pre.append("LGK")
    if bar: pre += [f"s_waitcnt vmcnt(@{tag}:{bark}:kv)", "s_barrier"]
    S.before(0, pre)
    if pi: S.before(nq, "LGV")
    S.tail = ["s_nop 0"] * rsv
    d = flat(dma_ops())
    c = flat(cm_ops()) if cm else []
    mk = c[7:]; mk = mk[0:4] + mk[8:12] + mk[4:8] + mk[12:16]
    if N == 34:
        e, cv = [x for x in sm(n & 1, n & 1) if "exp" in x], [x for x in sm(n & 1, n & 1) if "cvt" in x]
        if kre is not None:
            for i in range(8): S.add(KG[i], kread(kre, i))
        if vre is not None:
            for i in range(8): S.add(VG[i], vread(vre, i))
        if dma == 1:
            S.add(0, d[0]); S.add(1, [d[1], d[2], d[4]]); S.add(2, d[5]); S.add(3, d[3])
            for g, x in zip([8, 17, 25, 29], d[6:10]): S.add(g, x)
        if dma in (2, 21):
            S.add(0, d[10]); S.add(1, [d[11], d[12]])
            S.add(8 if dma == 2 else 17, d[13])
        if dma in (2, 22):
            for g, x in zip([17, 25] if dma == 2 else [1, 17], d[14:16]): S.add(g, x)
            for g, x in zip([26, 28, 30], d[16:19]): S.add(g, x)
        if vadv:
            r = flat(ring_adv(sRV, vV))
            for g, x in zip([5, 7, 9, 12], r): S.add(g, x)
        if kadv:
            r = flat(ring_adv(sRK, vK))
            for g, x in zip([16, 18, 20, 21], r): S.add(g, x)
        for g, x in zip(EG, e): S.add(g, x)
        for g, x in zip(CG, cv): S.add(g, x)
        if cm:
            assert dma is None
            S.add(0, c[0]); S.add(1, [c[1], c[2]]); S.add(2, c[3]); S.add(3, c[4]); S.add(8, c[5]); S.add(11, c[6])
            if qi[1]:
                S.fill(mk[:8], 9, 22); S.fill(mk[8:], 16, 33)
            else: S.fill(mk, 9, 33)
    else:
        if kre is not None:
            for i in range(8): S.add([4, 5, 6, 7, 12, 13, 14, 15][i], kread(kre, i))
        if vre is not None:
            for i in range(8): S.add([1, 3, 5, 7, 9, 11, 13, 15][i] if pi else [0, 1, 2, 3, 8, 9, 10, 11][i], vread(vre, i))
        assert not vadv and not kadv
        if dma: S.fill(dma_ops()[9:], 0, N)
        if cm: S.fill(cm_ops()[:5] + mk, 13 if qi[1] else 0, N)
        if si: S.fill(sm(n & 1, n & 1), nop, N)
    if extra: S.fill(extra, 0, N)
    code = S.emit()
    if cm:
        a = max(i for i, x in enumerate(code) if x.startswith(f"v_mov_b32 v{vHI}") or x.startswith(f"v_mov_b32 v{vLO}"))
        assert a < min(i for i, x in enumerate(code) if x.startswith("v_med3"))
    return code, None, S.over()

def flat(l):
    o = []
    for x in l: o += [x] if isinstance(x, str) else x
    return o

def resolve_lg(traces):
    res = {}
    for tr in traces:
        q = []
        for ins in tr:
            if ins.startswith("LG"):
                lo = K_ if ins[2] == "K" else V_
                need = [i for i, b in enumerate(q) if b is not None and lo <= b < lo + 32]
                n = len(q) - 1 - need[-1] if need else 15
                n = min(n, 15)
                res[ins] = min(res.get(ins, 15), n)
                continue
            mm = re.match(r"ds_read_b128 a\[(\d+):", ins)
            if mm: q.append(int(mm.group(1)))
            elif ins.startswith("ds_"): q.append(None)
    return res

def uniq_lg(code, pfx):
    o = []
    for i, ins in enumerate(code):
        o.append(f"{ins}#{pfx}{i}" if ins in ("LGK", "LGV") else ins)
    return o

def section(slots, name, spill_in):
    code = []; sp = spill_in; ov = 0
    for kw in slots:
        c, sp, o = slot(spill=sp, **kw); code += c; ov += o
    print("K2", name, "over", ov)
    return uniq_lg(code, name), sp

def kv_setup(vLN):
    c = []; A = c.append
    A(f"s_lshl_b32 s{s2I}, s{sI}, 1")
    A(f"s_lshl_b32 s{sLW}, s{sWAVE}, 13")
    A(f"v_lshlrev_b32 v{vDMA}, 4, v{vLN}"); A(f"v_add_u32 v{vDMA}, s{sLW}, v{vDMA}")
    A(f"s_lshl_b32 s{sQL}, s{sI}, 2"); A(f"s_sub_u32 s{sQH}, 60, s{sQL}")
    A(f"s_add_u32 s{sQL}, s{sQL}, s{sWAVE}"); A(f"s_add_u32 s{sQH}, s{sQH}, s{sWAVE}")
    A(f"s_sub_u32 s{sNST}, 32, s{s2I}")
    A(f"s_lshl_b32 s{sT0}, s{sH}, 20"); A(f"s_add_u32 s{sT0}, s{sT0}, {WS_KV}")
    A(f"s_lshl_b32 s{sKV+2}, s{sNST}, 15")
    A([f"s_add_u32 s{sKV}, s{sWS}, s{sT0}", f"s_addc_u32 s{sKV+1}, s{sWS+1}, 0"])
    A(f"s_add_u32 s{sRD}, s{sLW}, 65536")
    A(f"s_lshl_b32 s{sOFF}, s{s2I}, 15"); A(f"s_mov_b32 s{sSEQ}, 1")
    return c
def kv_dma0(): return dma_ops()[3:]
def kv_dma1(): return dma_ops()
def prologue():
    c = []; A = c.append
    A("v_and_b32 v21, 63, v0")
    A(f"v_lshlrev_b32 v{vL16}, 4, v21")
    A("v_and_b32 v22, 31, v21"); A("v_and_b32 v20, 15, v21"); A("v_lshlrev_b32 v23, 2, v20")
    for j, sq in (('L', sQL), ('H', sQH)):
        A(f"s_lshl_b32 s{sT0}, s{sq}, 7"); A(f"s_add_u32 s{sT0}, s{sT0}, {WS_GATE}")
        for qs in range(2): A(f"buffer_load_dword v{vG[j][qs]}, v23, {sr(sWS,4)}, s{sT0} offen offset:{64*qs}{SC}")
    A(f"s_mov_b32 s{sRK}, 65536"); A(f"s_mov_b32 s{sRV}, 65536"); A(f"v_add_u32 v{vK}, s{sRK}, v{vL16}"); A(f"v_mov_b32 v{vV}, v{vK}")
    A("s_waitcnt vmcnt(@P30:1:kv)"); A("s_barrier")
    c += [kread(0, ks) for ks in range(8)]
    c += flat(dma_ops()[:9])
    if "o" in os.environ.get("TOUCH", "cwqo"):
        A(f"s_load_dwordx2 s[96:97], s[0:1], {KA_WO}"); A(f"s_load_dwordx2 s[72:73], s[0:1], {KA_BWO}")
        A(f"s_lshl_b32 s{sT0}, s2, 2"); A(f"s_add_u32 s{sT0}, s{sT0}, s{sWAVE}"); A(f"s_lshl_b32 s{sT0}, s{sT0}, 12")
        A("v_lshlrev_b32 v19, 7, v22"); A(f"s_mov_b32 s98, {4*MB}"); A("s_mov_b32 s99, 0x20000"); A(f"s_mov_b32 s74, {MB//2}"); A("s_mov_b32 s75, 0x20000")
        A("s_waitcnt lgkmcnt(0)")
        A(f"buffer_load_dword v27, v19, s[96:99], s{sT0} offen")
        A(f"buffer_load_dword v27, v19, s[72:75], s{sT0} offen")
    A("v_lshrrev_b32 v25, 5, v21"); A("v_lshlrev_b32 v25, 4, v25"); A("v_sub_u32 v25, v20, v25")
    A("v_bfe_u32 v26, v21, 4, 1"); A("v_lshlrev_b32 v26, 2, v26"); A("v_sub_u32 v25, v25, v26")
    A(f"v_mov_b32 v26, {hex(BIG)}")
    pr = ["s[72:73]", "s[74:75]", "s[76:77]", "s[78:79]"]
    for r0 in range(0, 16, 4):
        for r in range(r0, r0 + 4): A(f"v_cmp_gt_i32 {pr[r&3]}, {8*((r>>2)&1) + (r&3) - 16*(r>>3)}, v25")
        for r in range(r0, r0 + 4): A(f"v_cndmask_b32 v{TRI+r}, 0, v26, {pr[r&3]}")
    A("v_and_b32 v25, 3, v21"); A("v_cmp_eq_u32 vcc, 0, v25"); A("v_mov_b32 v26, 0x3f803f80"); A("s_nop 0")
    for r in range(4): A(f"v_cndmask_b32 v{ONE+r}, 0, v26, vcc")
    A(f"s_sub_u32 s{sDT}, 0, s{sWAVE}")
    c += flat(cm_ops())
    A("s_nop 0")
    return c

sBAD = 70
sCA = 72
HP = 32
vLS = [11, 12]
def rowsum(j): return [f"v_accvgpr_read_b32 v{vLS[qs]}, a{SUM_[j]+4*qs}" for qs in range(2)]
def check(j):
    c = []
    for qs in range(2):
        c += [f"v_cmp_nle_f32 vcc, {hex(fbits(2.0**-64))}, v{vLS[qs]}"]
        c += [f"s_mov_b64 {sr(sBAD,2)}, vcc"] if (j == 'L' and qs == 0) else [f"s_or_b64 {sr(sBAD,2)}, {sr(sBAD,2)}, vcc"]
        c += [f"v_cmp_nge_f32 vcc, {hex(fbits(2.0**64))}, v{vLS[qs]}", f"s_or_b64 {sr(sBAD,2)}, {sr(sBAD,2)}, vcc"]
    return c
def ctx_off(sq, a):
    return [f"s_mul_i32 s{a}, s{sq}, {288*1024}", f"s_lshl_b32 s{a+1}, s{sH}, 13", f"s_add_u32 s{a}, s{a}, s{a+1}",
            f"s_add_u32 s{a}, s{a}, {WS_CTX}", f"s_add_u32 s{a+1}, s{a}, 4096"]
def scale_pack(j, store):
    c = []; A = c.append
    sc = [vT, vT + 1]
    for qs in range(2): A(f"v_rcp_f32 v{sc[qs]}, v{vLS[qs]}")
    c += ctx_off(sQL if j == 'L' else sQH, sCA)
    for qs in range(2): A(f"v_mul_f32 v{sc[qs]}, v{sc[qs]}, v{vG[j][qs]}")
    prev = []
    for fr in range(8):
        b = O_[j] + 8 * fr; t = b if store else HP + 4 * fr
        for r in range(8): A(f"v_mul_f32 v{b+r}, v{b+r}, v{sc[r >> 2]}")
        c += prev
        for r in range(4): A(f"v_cvt_pk_bf16_f32 v{t+r}, v{b+2*r}, v{b+2*r+1}")
        prev = [f"v_permlane16_swap_b32 v{t}, v{t+2}", f"v_permlane16_swap_b32 v{t+1}, v{t+3}"]
        if store: prev.append(f"buffer_store_dwordx4 {vr(t,4)}, v{vL16}, {sr(sWS,4)}, s{sCA + fr//4} offen offset:{(fr%4)*1024}{SC}")
    return c + ["s_nop 1"] + prev
def h_stores():
    return [f"buffer_store_dwordx4 {vr(HP+4*fr,4)}, v{vL16}, {sr(sWS,4)}, s{sCA + fr//4} offen offset:{(fr%4)*1024}{SC}" + (" ; grpend:ca" if fr == 7 else "") for fr in range(8)]
def l_epilogue(): return rowsum('L') + check('L') + scale_pack('L', True)
def epilogue(early):
    c = list(early) + rowsum('H') + check('H')
    c.append("s_cbranch_scc1 K2_SLOW")
    c.append("K2_STORE:")
    return c + scale_pack('H', False)

def slow():
    c = ["K2_SLOW:", "s_waitcnt vmcnt(0)"]; A = c.append
    S = S_[0]; P = P_[0]; vM = [15, 16]; vX = 17
    def loads(base, extra):
        o = [f"s_lshl_b32 s{sT0}, s{sCNT}, 14", f"s_add_u32 s{sT0}, s{sT0}, {extra}", f"s_add_u32 s{sT1}, s{sT0}, 4096"]
        o += [f"buffer_load_dwordx4 {ar(base+4*i,4)}, v{vL16}, {sr(sKV,4)}, s{sT0 if i < 4 else sT1} offen offset:{(i%4)*1024}{SC}" for i in range(8)]
        return o
    def mask(sq):
        return [f"s_sub_u32 s{sDT}, s{sCNT}, s{sq}"] + flat(cm_ops()) + ["s_nop 1"]
    for j, sq in (('L', sQL), ('H', sQH)):
        for qs in range(2): A(f"v_mov_b32 v{vM[qs]}, {hex(BIG)}")
        A(f"s_mov_b32 s{sCNT}, 0")
        A(f"K2_SM{j}:")
        c += loads(K_, 0) + mask(sq); A("s_waitcnt vmcnt(0)")
        c += qk(j, 0, True); A("s_nop 15")
        for r in range(16): A(f"v_max_f32 v{vM[r>>3]}, v{vM[r>>3]}, v{S+r}")
        A(f"s_add_u32 s{sCNT}, s{sCNT}, 1"); A(f"s_cmp_le_u32 s{sCNT}, s{sq}"); A(f"s_cbranch_scc1 K2_SM{j}")
        for qs in range(2):
            for op in ("v_permlane16_swap_b32", "v_permlane32_swap_b32"):
                A(f"v_mov_b32 v{vX}, v{vM[qs]}"); A("s_nop 1"); A(f"{op} v{vM[qs]}, v{vX}"); A(f"v_max_f32 v{vM[qs]}, v{vM[qs]}, v{vX}")
        for r in range(64): A(f"v_mov_b32 v{O_[j]+r}, 0")
        for r in range(8): A(f"v_accvgpr_write_b32 a{SUM_[j]+r}, 0")
        A(f"s_mov_b32 s{sCNT}, 0")
        A(f"K2_SP{j}:")
        c += loads(K_, 0) + loads(V_, 8192) + mask(sq); A("s_waitcnt vmcnt(0)")
        c += qk(j, 0, True); A("s_nop 15")
        for r in range(16): A(f"v_sub_f32 v{S+r}, v{S+r}, v{vM[r>>3]}")
        for r in range(16): A(f"v_exp_f32 v{S+r}, v{S+r}")
        A("s_nop 0")
        for r in range(8): A(f"v_cvt_pk_bf16_f32 v{P+r}, v{S+2*r}, v{S+2*r+1}")
        A("s_nop 1")
        c += pv(j, 0)
        A(f"s_add_u32 s{sCNT}, s{sCNT}, 1"); A(f"s_cmp_le_u32 s{sCNT}, s{sq}"); A(f"s_cbranch_scc1 K2_SP{j}")
        A("s_nop 15")
        c += rowsum(j)
        if j == 'L': c += scale_pack('L', True)
    A("s_branch K2_STORE")
    return c

def gen(early, mark):
    cnt[0] = 0
    P = prologue()
    L, H = 'L', 'H'
    A_, sp = section([
        dict(qi=(L, True),  si=None, pi=None, n=-1, kre=None, vre=None, dma=2),
        dict(qi=(H, False), si=L, pi=None, n=0, kre=1, vre=0, cm=True, nop=0),
        dict(qi=(L, True),  si=H, pi=L, n=1, kre=None, vre=None, pfirst=True, kadv=True, nop=0, cm=True, rsv=3),
        dict(qi=(H, False), si=L, pi=H, n=2, kre=0, vre=1, bar=True, pfirst=True, dma=1),
    ], "stA", None)
    def dual(sp): return section([
        dict(qi=(L, False), si=H, pi=L, n=3, kre=None, vre=None, dma=21),
        dict(qi=(H, False), si=L, pi=H, n=0, kre=1, vre=0, vadv=True),
        dict(qi=(L, False), si=H, pi=L, n=1, kre=None, vre=None, kadv=True, dma=22, rsv=3),
        dict(qi=(H, False), si=L, pi=H, n=2, kre=0, vre=1, bar=True, dma=1, rsv=3),
    ], "dual", sp)
    D_, sp2 = dual(sp); assert sp2 == sp
    B_, sp = section([
        dict(qi=(L, True),  si=H, pi=L, n=3, kre=1, vre=None, cm=True),
        dict(qi=(L, True),  si=L, pi=H, n=0, kre=0, vre=0, vadv=True, dma=21),
        dict(qi=(H, False), si=L, pi=L, n=1, kre=1, vre=1, kadv=True, dma=22, rsv=3),
        dict(qi=(H, False), si=H, pi=L, n=2, kre=0, vre=0, bar=True, dma=1),
    ], "stB", sp)
    setdt = [f"s_sub_u32 s{sDT}, 0, s{sWAVE}"] + flat(cm_ops())
    def single(sp, name, m0, m1, cm0, cm1, bar=True): return section([
        dict(qi=(H, m0), si=H, pi=H, n=3, kre=1, vre=1, cm=cm0, kadv=bar, dma=None if m0 else 2, rsv=3 if bar else 1),
        dict(qi=(H, m1), si=H, pi=H, n=0, kre=0 if bar else None, vre=0, bar=bar, vadv=True, cm=cm1, dma=None if m0 else 1, bark=0 if m0 else 1, rsv=1 if m0 else 3),
    ], name, sp)
    S_1, sp2 = single(sp, "single", False, False, False, False); assert sp2 == sp
    E1, sp = single(sp, "dg1", True, True, True, True)
    E2, sp = single(sp, "dg2", True, True, True, False, bar=False)
    E3, sp = section([
        dict(qi=None, si=H, pi=H, n=3, kre=None, vre=1),
        dict(qi=None, si=None, pi=H, n=0, kre=None, vre=None),
    ], "drain", sp)
    EP = epilogue(early); SL = slow()
    lD = [f"s_mov_b32 s{sCNT}, s{s2I}", f"s_cmp_eq_u32 s{sCNT}, 0", "s_cbranch_scc1 K2_B", ".p2align 4", "K2_DL:"]
    lDe = [f"s_sub_u32 s{sCNT}, s{sCNT}, 1", f"s_cmp_lg_u32 s{sCNT}, 0", "s_cbranch_scc1 K2_DL", "K2_B:"]
    lS = setdt + l_epilogue() + [f"s_lshl_b32 s{sCNT}, s{s2I}, 1", f"s_sub_u32 s{sCNT}, 28, s{sCNT}", f"s_cmp_eq_u32 s{sCNT}, 0", "s_cbranch_scc1 K2_E", ".p2align 4", "K2_SL:"]
    lSe = [f"s_sub_u32 s{sCNT}, s{sCNT}, 1", f"s_cmp_lg_u32 s{sCNT}, 0", "s_cbranch_scc1 K2_SL", "K2_E:"]
    traces = []
    for i in range(8):
        tr = P + A_ + lD
        for _ in range(2 * i): tr = tr + D_ + lDe
        tr = tr + B_ + lS
        for _ in range(28 - 4 * i): tr = tr + S_1 + lSe
        tr = tr + E1 + E2 + E3 + mark + EP
        traces.append(tr)
    lg = resolve_lg(traces)
    fix = lambda code: [f"s_waitcnt lgkmcnt({lg[x]})" if x.startswith("LG") else x for x in code]
    traces = [fix(t) for t in traces]
    k = [i for i, x in enumerate(EP) if x == "K2_STORE:"][0]
    slowtrace = traces[7][:len(traces[7]) - len(EP)] + EP[:k] + SL + EP[k:]
    code = P + A_ + lD + D_ + lDe + B_ + lS + S_1 + lSe + E1 + E2 + E3 + mark + EP
    return fix(code), SL, traces + [slowtrace]
```

```python
from asmlib import *
from layout import *
import os
BIG = fbits(-1.0e30)
def flat(l):
    o = []
    for x in l: o += [x] if isinstance(x, str) else x
    return o
SC = " sc1"
O_ = 64; S_ = [192, 208]; P_ = [224, 232]; WF = [16, 24]
vL16 = 3
vVA, vG, vL16b, vTR, vWD, vLN = 240, [241, 242], 243, [244, 245], [246, 247, 248, 249], 250
T0_, T1_, T2_, T3_, T4_ = 251, 252, 253, 254, 255
ACC = 0; CX = 64; Q_ = 128; KB = [160 + 4*b for b in range(4)]; VB = [176 + 8*b for b in range(4)]
sWS, sW, sDBG, sOUT = 8, 12, 40, 44
sWAVE, sH, sQB = 16, 17, 18
sRT, sCT = 17, 18
sCNT, sKK, sKV, sT0, sT1, sC0, sWO, sLW, sCB, sWC = range(19, 29)
sM, sWB, sWA = 30, 32, 34
sZ0, sZ1 = 36, 37
RED = 65536

def b_qk(j, kb, sb): return f"v_mfma_f32_32x32x16_bf16 {vr(S_[sb],16)}, {ar(KB[kb],4)}, {ar(Q_+4*j,4)}, 0"
def b_pv(j, vb, pb, f, first=False):
    d = vr(O_ + 16*j, 16)
    return f"v_mfma_f32_32x32x16_bf16 {d}, {ar(VB[vb]+4*f,4)}, {vr(P_[pb]+4*f,4)}, {'0' if first and f == 0 else d}"
def b_kload(b): return [f"buffer_load_dwordx4 {ar(KB[b],4)}, v{vL16}, {sr(sWS,4)}, s{sKK} offen{SC} ; grpend:k{b}", f"s_add_u32 s{sKK}, s{sKK}, 2048"]
def b_vload(b):
    return [f"s_mov_b64 exec, {sr(sM,2)}"] + [f"buffer_load_dwordx4 {ar(VB[b]+4*f,4)}, v{vVA}, {sr(sWS,4)}, s{sKV} offen offset:{1024 + 512*f}{SC}" + (f" ; grpend:v{b}" if f else "") for f in range(2)] + \
           ["s_mov_b64 exec, -1", f"s_add_u32 s{sKV}, s{sKV}, 2048"]
def o_mf(s, i):
    qt, mt = i >> 1, i & 1
    d = ar(ACC + (mt*2+qt)*16, 16)
    return f"v_mfma_f32_32x32x16_bf16 {d}, {vr(WF[s&1]+4*mt,4)}, {ar(CX+8*s+4*qt,4)}, {d}"
def o_ctx(s, qt): return f"buffer_load_dwordx4 {ar(CX+8*s+4*qt,4)}, v{vL16b if qt else vL16}, {sr(sWS,4)}, s{sC0} offen offset:{(s%4)*1024}{SC}" + (" ; grpend:o" if qt else "")
def o_dma(s, i, tag=""):
    k = (s & 1) * 2 + i
    return f"buffer_load_dwordx4 v{vWD[k]}, {sr(sW,4)}, s{sWO} offen offset:{k*1024} lds" + tag
def o_pre(s): return [f"s_add_u32 m0, s{sLW}, {s*2048}", f"s_add_u32 s{sWO}, s{sWO}, 32768"] if s % 2 == 0 else []
def o_post(s): return [f"s_add_u32 s{sC0}, s{sC0}, 4096"] if s % 4 == 3 else []
def o_trs(s): return [f"ds_read_b64_tr_b16 {vr(WF[s&1]+4*mt+2*e,2)}, v{vTR[mt]} offset:{s*2048 + e*512}" for mt in range(2) for e in range(2)]
def w0only(code, lbl): return [f"s_cmp_lg_u32 s{sWAVE}, 0", f"s_cbranch_scc1 {lbl}"] + code + [f"{lbl}:"]
def flag_store(base):
    return [f"s_lshl_b32 s{sZ0}, s{sQB}, 7", f"s_lshl_b32 s{sZ1}, s{sH}, 2", f"s_add_u32 s{sZ0}, s{sZ0}, s{sZ1}", f"s_add_u32 s{sZ0}, s{sZ0}, {base}",
            f"v_mov_b32 v{T0_}, 1", "s_mov_b64 exec, 1", f"buffer_store_dword v{T0_}, off, {sr(sWS,4)}, s{sZ0}{SC}", "s_mov_b64 exec, -1"]
def flag_load(): return f"buffer_load_dword v{T1_}, v{T2_}, {sr(sWS,4)}, s{sZ0} offen{SC}"
def flag_lane(): return [f"v_and_b32 v{T2_}, 31, v{vLN}", f"v_lshlrev_b32 v{T2_}, 2, v{T2_}"]
def spin(lbl):
    return [f"s_mov_b32 s{sZ1}, 0x100000", f"{lbl}L:", "s_waitcnt vmcnt(0)", f"v_cmp_ne_u32 vcc, 1, v{T1_}", "s_nop 0", f"s_cbranch_vccz {lbl}",
            "s_sleep 4", flag_load(), f"s_sub_u32 s{sZ1}, s{sZ1}, 1", f"s_cmp_lg_u32 s{sZ1}, 0", f"s_cbranch_scc1 {lbl}L", "s_waitcnt vmcnt(0)"]

def smseq(n):
    S = S_[n & 1]; P = P_[n & 1]
    e = lambda r: f"v_exp_f32 v{S+r}, v{S+r}"
    c = lambda k: f"v_cvt_pk_bf16_f32 v{P+k}, v{S+2*k}, v{S+2*k+1}"
    return [e(0), e(1), e(2), c(0), e(3), e(4), c(1), e(5), e(6), c(2), e(7), e(8), c(3), e(9), e(10), c(4), e(11), e(12), c(5), e(13), e(14), e(15), c(6), c(7)]

def red_writes(j):
    return [f"ds_write_b128 v{T0_}, {vr(O_+16*j+4*k,4)} offset:{j*3072 + k*1024}" for k in range(2)] + [f"ds_write_b32 v{T0_}, v{O_+16*j+8} offset:{j*3072 + 2048}"]
def body(fused, tag, extra=None, first=False, last=False):
    o = []
    for n in range(32):
        qn = (n + 1) % 32; pn = (n - 1) % 32
        QK = [b_qk(qn % 8, qn // 8, (n + 1) & 1)]; PV = [[b_pv(pn % 8, pn // 8, (n + 1) & 1, f, first and pn < 8)] for f in range(2)]
        if first and n == 0: PV = [[], []]
        if last and n == 31: QK = []
        xq = []; xp = []
        if n % 8 == 6 and not last: xq = b_kload(n // 8)
        if n % 8 == 0 and not (first and n == 0) and not (last and n > 0): xp = b_vload((n // 8 - 1) % 4)
        if n % 8 == 6 and not (last and n == 30): xp = xp + [f"s_waitcnt vmcnt(@{tag}{n}:0:k{(n // 8 + 1) % 4})"]
        if n % 8 == 1: xq = xq + [f"s_waitcnt vmcnt(@{tag}{n}:0:v{n // 8})"]
        q = smseq(n)
        if not fused:
            ex = (extra or {}).get(n, [[], [], []])
            o += QK + xq + ex[0] + q[:8] + PV[0] + ex[1] + q[8:16] + PV[1] + xp + ex[2] + q[16:]
        else:
            s = (n // 2) % 8; t = o_trs((s + 1) % 8)
            if n % 2 == 0:
                sh = [[f"s_waitcnt vmcnt(@{tag}o{n}:6:o) lgkmcnt({3 if last and n >= 28 else 0})"], [t[0]], [t[1]], [t[2]], [t[3]]]
                M = [QK, [o_mf(s, 0)], PV[0], [o_mf(s, 1)], PV[1]]
                sh[4] = sh[4] + o_pre(s)
            else:
                sh = [[o_dma(s, 0)], [o_dma(s, 1)], [o_ctx(s, 0)], [o_ctx(s, 1)], o_post(s)]
                M = [QK, [o_mf(s, 2)], PV[0], [o_mf(s, 3)], PV[1]]
            sh[0] = xq + sh[0] if n % 2 == 0 else sh[0] + xq
            sh[4] = sh[4] + xp
            if last and n >= 26:
                w = red_writes(n - 26)
                if n % 2 == 0: sh[1] = [w[0]] + sh[1]; sh[2] = [w[1]] + sh[2]; sh[3] = [w[2]] + sh[3]
                else: sh[2] = sh[2] + [w[0]]; sh[3] = sh[3] + [w[1]]; sh[4] = [w[2]] + sh[4]
            cuts = [0, 5, 10, 14, 19, 24]
            for g in range(5): o += M[g] + sh[g] + q[cuts[g]:cuts[g+1]]
    return o

def o_body(tag, mode, mid=None):
    c = []
    for s in range(8):
        m = [o_mf(s, i) for i in range(4)]
        if mid and s in mid: c += mid[s]
        if mode == "full":
            t = o_trs((s + 1) % 8)
            c += [f"s_waitcnt vmcnt(@{tag}{s}:6:o) lgkmcnt(0)", m[0]] + t[:2] + o_pre(s) + [m[1]] + t[2:] + [o_dma(s, 0), m[2], o_dma(s, 1), o_ctx(s, 0), m[3], o_ctx(s, 1)] + o_post(s)
        elif mode == "w":
            t = o_trs(s + 1) if s < 7 else []
            c += [f"s_waitcnt vmcnt(@{tag}{s}:{max(0, 6 - s)}:o) lgkmcnt(0)", m[0]] + t[:2] + o_pre(s) + [m[1]] + t[2:] + [o_dma(s, 0), m[2], o_dma(s, 1, " ; grpend:wb"), m[3]]
        else:
            t = o_trs(s + 1) if s < 7 else []
            c += [f"s_waitcnt vmcnt(@{tag}{s}:{7 - s}:o) lgkmcnt(0)", m[0]] + t[:2] + [m[1]] + t[2:] + [m[2], m[3]]
    return c

def early():
    c = []; A = c.append
    A(f"s_load_dwordx2 {sr(sWA,2)}, s[0:1], {KA_WO}"); A(f"s_load_dwordx2 {sr(sWB,2)}, s[0:1], {KA_BWO}"); A(f"s_load_dwordx2 {sr(sOUT,2)}, s[0:1], {KA_OUT}")
    A(f"v_and_b32 v{vLN}, 63, v0")
    A(f"v_and_b32 v{T0_}, 15, v{vLN}"); A(f"v_lshrrev_b32 v{T1_}, 5, v{vLN}"); A(f"v_lshl_add_u32 v{T0_}, v{T1_}, 4, v{T0_}"); A(f"v_lshlrev_b32 v{vVA}, 4, v{T0_}")
    A(f"s_mov_b32 s{sM}, 0xffff"); A(f"s_mov_b32 s{sM+1}, 0xffff")
    A(f"v_and_b32 v{T2_}, 31, v{vLN}"); A(f"v_cmp_eq_u32 vcc, 16, v{T2_}"); A(f"v_mov_b32 v{T3_}, 0x3f803f80")
    A(f"s_lshl_b32 s{sKK}, s{sH}, 17"); A(f"v_cndmask_b32 v{T3_}, 0, v{T3_}, vcc")
    A(f"s_lshl_b32 s{sT0}, s{sWAVE}, 15"); A(f"s_add_u32 s{sKK}, s{sKK}, s{sT0}"); A(f"s_add_u32 s{sKK}, s{sKK}, {WS_KVB}"); A(f"s_mov_b32 s{sKV}, s{sKK}")
    A(f"s_lshl_b32 s{sT0}, s{sH}, 16"); A(f"s_lshl_b32 s{sT1}, s{sQB}, 13"); A(f"s_add_u32 s{sT0}, s{sT0}, s{sT1}"); A(f"s_add_u32 s{sT0}, s{sT0}, {WS_QB}")
    A(f"s_add_u32 s{sT1}, s{sT0}, 4096")
    c += b_kload(0)
    for j in range(8): A(f"buffer_load_dwordx4 {ar(Q_+4*j,4)}, v{vL16}, {sr(sWS,4)}, s{sT0 if j < 4 else sT1} offen offset:{(j%4)*1024}{SC}" + (" ; grpend:q" if j == 7 else ""))
    for r in range(32): A(f"v_accvgpr_write_b32 a{VB[0]+r}, v{T3_}")
    A(f"v_lshlrev_b32 v{T2_}, 2, v{T2_}")
    A(f"s_lshl_b32 s{sT0}, s{sQB}, 10"); A(f"s_lshl_b32 s{sT1}, s{sWAVE}, 8"); A(f"s_add_u32 s{sT0}, s{sT0}, s{sT1}"); A(f"s_add_u32 s{sT0}, s{sT0}, {WS_GATE}")
    for k in range(2): A(f"buffer_load_dword v{vG[k]}, v{T2_}, {sr(sWS,4)}, s{sT0} offen offset:{128*k}{SC}")
    c += b_vload(0) + b_kload(1) + b_vload(1) + b_kload(2) + b_vload(2) + b_kload(3) + b_vload(3)
    A("s_waitcnt lgkmcnt(0)")
    return c
def o_setup():
    c = []; A = c.append
    A(f"v_add_u32 v{vL16b}, {288*1024}, v{vL16}")
    A(f"v_lshrrev_b32 v{T3_}, 3, v{vLN}"); A(f"v_and_b32 v{T4_}, 7, v{vLN}"); A(f"v_bfe_u32 v{vWD[1]}, v{vLN}, 4, 1"); A(f"v_lshlrev_b32 v{vWD[1]}, 2, v{vWD[1]}"); A(f"v_xor_b32 v{T4_}, v{T4_}, v{vWD[1]}")
    A(f"v_lshlrev_b32 v{T4_}, 4, v{T4_}"); A(f"v_lshl_add_u32 v{vWD[0]}, v{T3_}, 10, v{T4_}")
    for k in range(1, 4): A(f"v_add_u32 v{vWD[k]}, {k*7168}, v{vWD[0]}")
    A(f"v_lshrrev_b32 v{T3_}, 5, v{vLN}"); A(f"v_bfe_u32 v{T4_}, v{vLN}, 2, 2"); A(f"v_lshl_add_u32 v{T3_}, v{T3_}, 3, v{T4_}"); A(f"v_lshlrev_b32 v{T3_}, 7, v{T3_}")
    A(f"v_bfe_u32 v{T4_}, v{vLN}, 3, 1"); A(f"v_lshl_add_u32 v{T3_}, v{T4_}, 6, v{T3_}")
    A(f"v_bfe_u32 v{T4_}, v{vLN}, 4, 1"); A(f"v_lshl_add_u32 v{T3_}, v{T4_}, 5, v{T3_}")
    A(f"v_and_b32 v{T4_}, 3, v{vLN}"); A(f"v_lshl_add_u32 v{T3_}, v{T4_}, 3, v{T3_}")
    A(f"s_lshl_b32 s{sLW}, s{sWAVE}, 14")
    A(f"v_add_u32 v{vTR[0]}, s{sLW}, v{T3_}"); A(f"v_xor_b32 v{vTR[1]}, 64, v{vTR[0]}")
    A(f"s_mul_i32 s{sCB}, s{sRT}, {2*288*1024}"); A(f"s_add_u32 s{sCB}, s{sCB}, {WS_CTX}")
    A(f"s_lshl_b32 s{sT0}, s{sWAVE}, 16"); A(f"s_add_u32 s{sC0}, s{sCB}, s{sT0}")
    A(f"s_lshl_b32 s{sWC}, s{sCT}, 7"); A(f"s_sub_u32 s{sWC}, s{sWC}, 32768")
    A(f"s_lshl_b32 s{sT0}, s{sWAVE}, 20"); A(f"s_add_u32 s{sWO}, s{sWC}, s{sT0}")
    A(f"s_mov_b64 {sr(sW,2)}, {sr(sWA,2)}"); A(f"s_mov_b32 s{sW+2}, {4*MB}")
    return c
R = 64
def red_addr():
    return [f"s_mul_i32 s{sT0}, s{sWAVE}, 24576", f"s_add_u32 s{sT0}, s{sT0}, {RED}", f"v_add_u32 v{T0_}, s{sT0}, v{vL16}",
            f"s_mul_i32 s{sT0}, s{sWAVE}, 6144", f"s_add_u32 s{sT0}, s{sT0}, {RED}", f"v_add_u32 v{T1_}, s{sT0}, v{vL16}", f"v_add_u32 v{T2_}, 49152, v{T1_}"]
def b_finish():
    c = []; A = c.append
    A("s_nop 0"); A(b_pv(7, 3, 1, 0)); A(b_pv(7, 3, 1, 1))
    A("s_nop 3")
    c += red_writes(6)
    A("s_nop 4")
    c += red_writes(7)
    A("s_waitcnt lgkmcnt(0)"); A("s_barrier")
    for k in range(2):
        for w in range(4):
            b = R + (k * 4 + w) * 12; va = T1_ if w < 2 else T2_; off = (w & 1) * 24576 + k * 3072
            A(f"ds_read_b128 {vr(b,4)}, v{va} offset:{off}"); A(f"ds_read_b128 {vr(b+4,4)}, v{va} offset:{off+1024}"); A(f"ds_read_b32 v{b+8}, v{va} offset:{off+2048}")
    for k in range(2):
        A(f"s_waitcnt lgkmcnt({12 if k == 0 else 0})")
        b = R + k * 48
        for r in range(9):
            A(f"v_add_f32 v{b+r}, v{b+r}, v{b+12+r}"); A(f"v_add_f32 v{b+24+r}, v{b+24+r}, v{b+36+r}")
        for r in range(8, -1, -1): A(f"v_add_f32 v{b+r}, v{b+r}, v{b+24+r}")
        A(f"v_mov_b32 v{b+9}, v{b+8}"); A("s_nop 1"); A(f"v_permlane32_swap_b32 v{b+8}, v{b+9}"); A(f"v_add_f32 v{b+8}, v{b+8}, v{b+9}")
    l0, l1 = R + 8, R + 48 + 8
    A(f"v_min_f32 v{T0_}, v{l0}, v{l1}"); A(f"v_max_f32 v{T1_}, v{l0}, v{l1}"); A(f"v_add_f32 v{T2_}, v{l0}, v{l1}")
    A(f"v_cmp_gt_f32 vcc, {hex(fbits(2.0**-64))}, v{T0_}"); A(f"v_cmp_nge_f32 s[70:71], v{T2_}, v{T2_}"); A("s_or_b64 s[70:71], s[70:71], vcc")
    A(f"v_cmp_lt_f32 vcc, {hex(fbits(2.0**64))}, v{T1_}"); A("s_or_b64 s[70:71], s[70:71], vcc")
    A("s_cbranch_scc1 P4_SLOW")
    return c
def b_store():
    c = ["P4_STORE:"]; A = c.append
    A(f"s_lshl_b32 s{sT0}, s{sQB}, 2"); A(f"s_add_u32 s{sT0}, s{sT0}, s{sWAVE}"); A(f"s_mul_i32 s{sT0}, s{sT0}, {2*288*1024}")
    A(f"s_lshl_b32 s{sT1}, s{sH}, 10"); A(f"s_add_u32 s{sT0}, s{sT0}, s{sT1}"); A(f"s_add_u32 s{sT0}, s{sT0}, {WS_CTX + 256*1024}")
    for k in range(2):
        b = R + k * 48
        A(f"v_rcp_f32 v{b+8}, v{b+8}"); A(f"v_sub_f32 v{vG[k]}, 1.0, v{vG[k]}"); A(f"v_mul_f32 v{b+8}, v{b+8}, v{vG[k]}")
        for r in range(8): A(f"v_mul_f32 v{b+r}, v{b+r}, v{b+8}")
        for r in range(4): A(f"v_cvt_pk_bf16_f32 v{b+12+r}, v{b+2*r}, v{b+2*r+1}")
        A("s_nop 1"); A(f"v_permlane32_swap_b32 v{b+12}, v{b+14}"); A(f"v_permlane32_swap_b32 v{b+13}, v{b+15}")
        A(f"buffer_store_dwordx4 {vr(b+12,4)}, v{vL16b if k else vL16}, {sr(sWS,4)}, s{sT0} offen{SC}" + (" ; grpend:cb" if k else ""))
    return c
def final():
    c = []; A = c.append
    A(f"v_add_u32 v{T0_}, s{sLW}, v{vL16}")
    A(f"s_lshl_b32 s{sT0}, s{sWAVE}, 12"); A(f"v_add_u32 v{T1_}, s{sT0}, v{vL16}")
    A(f"v_and_b32 v{T2_}, 31, v{vLN}"); A(f"v_lshlrev_b32 v{T2_}, 10, v{T2_}"); A(f"v_lshrrev_b32 v{T3_}, 5, v{vLN}"); A(f"v_lshl_add_u32 v{T2_}, v{T3_}, 4, v{T2_}")
    A(f"s_lshl_b32 s{sT0}, s{sRT}, 16"); A(f"s_and_b32 s{sT1}, s{sWAVE}, 1"); A(f"s_lshl_b32 s{sT1}, s{sT1}, 15"); A(f"s_add_u32 s{sT0}, s{sT0}, s{sT1}")
    A(f"s_lshl_b32 s{sT1}, s{sCT}, 7"); A(f"s_add_u32 s{sT0}, s{sT0}, s{sT1}")
    A(f"s_lshr_b32 s{sT1}, s{sWAVE}, 1"); A(f"s_lshl_b32 s{sT1}, s{sT1}, 6"); A(f"s_add_u32 s{sT0}, s{sT0}, s{sT1}")
    for k in range(16): A(f"ds_write_b128 v{T0_}, {ar(ACC+4*k,4)} offset:{k*1024}")
    A("s_waitcnt lgkmcnt(0)"); A("s_barrier")
    for w in range(4):
        for k in range(4): A(f"ds_read_b128 {vr(128+w*16+4*k,4)}, v{T1_} offset:{w*16384 + k*1024}")
    A("s_waitcnt lgkmcnt(0)")
    for r in range(16):
        A(f"v_add_f32 v{128+r}, v{128+r}, v{144+r}"); A(f"v_add_f32 v{160+r}, v{160+r}, v{176+r}")
    for r in range(16): A(f"v_add_f32 v{128+r}, v{128+r}, v{160+r}")
    for r in range(8): A(f"v_cvt_pk_bf16_f32 v{64+r}, v{128+2*r}, v{128+2*r+1}")
    A("s_nop 1")
    for pr in range(2):
        b = 64 + 4 * pr
        A(f"v_permlane32_swap_b32 v{b}, v{b+2}"); A(f"v_permlane32_swap_b32 v{b+1}, v{b+3}")
        A(f"buffer_store_dwordx4 {vr(b,4)}, v{T2_}, {sr(sOUT,4)}, s{sT0} offen offset:{32*pr}")
    return c
def b_slow():
    c = ["P4_SLOW:"]; A = c.append
    S = S_[0]; P = P_[0]; vM = T0_; QS = 4; OA = 160
    strip = lambda x: x.split(" ;")[0]
    for k in range(2):
        b = R + k * 48
        A(f"s_lshl_b32 s{sT0}, s{sH}, 16"); A(f"s_lshl_b32 s{sT1}, s{sQB}, 13"); A(f"s_add_u32 s{sT0}, s{sT0}, s{sT1}")
        A(f"s_lshl_b32 s{sT1}, s{sWAVE}, 11"); A(f"s_add_u32 s{sT0}, s{sT0}, s{sT1}"); A(f"s_add_u32 s{sT0}, s{sT0}, {WS_QB + 1024*k}")
        A("s_waitcnt vmcnt(0)")
        A(f"buffer_load_dwordx4 {vr(QS,4)}, v{vL16}, {sr(sWS,4)}, s{sT0} offen{SC}")
        A(f"v_mov_b32 v{vM}, {hex(BIG)}")
        for ps in range(2):
            A(f"s_lshl_b32 s{sKK}, s{sH}, 17"); A(f"s_add_u32 s{sKK}, s{sKK}, {WS_KVB}"); A(f"s_mov_b32 s{sKV}, s{sKK}"); A(f"s_mov_b32 s{sCNT}, 64")
            if ps == 1:
                for r in range(16): A(f"v_mov_b32 v{OA+r}, 0")
            A(f"P4_S{k}{ps}:")
            c += [strip(x) for x in b_kload(0)]
            if ps == 1: c += [strip(x) for x in b_vload(0)]
            A("s_waitcnt vmcnt(0)")
            A(f"v_mfma_f32_32x32x16_bf16 {vr(S,16)}, {ar(KB[0],4)}, {vr(QS,4)}, 0"); A("s_nop 15")
            if ps == 0:
                for r in range(16): A(f"v_max_f32 v{vM}, v{vM}, v{S+r}")
            else:
                for r in range(16): A(f"v_sub_f32 v{S+r}, v{S+r}, v{vM}")
                for r in range(16): A(f"v_exp_f32 v{S+r}, v{S+r}")
                A("s_nop 0")
                for r in range(8): A(f"v_cvt_pk_bf16_f32 v{P+r}, v{S+2*r}, v{S+2*r+1}")
                A("s_nop 1")
                for f in range(2): A(f"v_mfma_f32_32x32x16_bf16 {vr(OA,16)}, {ar(VB[0]+4*f,4)}, {vr(P+4*f,4)}, {vr(OA,16)}")
                A("s_nop 7")
            A(f"s_sub_u32 s{sCNT}, s{sCNT}, 1"); A(f"s_cmp_lg_u32 s{sCNT}, 0"); A(f"s_cbranch_scc1 P4_S{k}{ps}")
            if ps == 0:
                A(f"v_mov_b32 v{vM+1}, v{vM}"); A("s_nop 1"); A(f"v_permlane32_swap_b32 v{vM}, v{vM+1}"); A(f"v_max_f32 v{vM}, v{vM}, v{vM+1}")
        A("s_nop 7")
        for r in range(9): A(f"v_mov_b32 v{b+r}, v{OA+r}")
        A(f"v_mov_b32 v{b+9}, v{b+8}"); A("s_nop 1"); A(f"v_permlane32_swap_b32 v{b+8}, v{b+9}"); A(f"v_add_f32 v{b+8}, v{b+8}, v{b+9}")
    A("s_branch P4_STORE")
    return c

def gen(hst, mark_a, mark_b, mark_c, mark_d):
    SIG, PL, CHK = [int(x) for x in os.environ.get("P4T", "12,19,23").split(",")]
    c = []; A = c.append
    A("s_waitcnt vmcnt(@p4q:0:q)")
    A(b_qk(0, 0, 0))
    c += hst[:2]
    c += [f"v_mov_b32 v{P_[1]+r}, 0" for r in range(4)]
    c += o_setup()
    pro = c
    ex = {n: [[], [], []] for n in range(32)}
    z = vr(P_[1], 4)
    zm = [f"v_mfma_f32_32x32x16_bf16 {ar(ACC+16*k,16)}, {z}, {z}, 0" for k in range(4)]
    pro += [zm[0], hst[2]]
    ex[0][1] += [zm[1], hst[3]]; ex[0][2] += [zm[2]]
    k = 4
    for n in range(1, 4):
        ex[n][0] += hst[k:k+1]; k += 1
        if n != 2: ex[n][2] += hst[k:k+1]; k += 1
    assert k >= 8
    ex[SIG][1] = ["s_waitcnt vmcnt(@p4s:0:ca)", "s_barrier"] + w0only(flag_store(WS_F3), "P4_S3")
    f3 = [f"s_lshr_b32 s{sZ0}, s{sRT}, 1", f"s_sub_u32 s{sZ1}, 15, s{sZ0}", f"s_min_u32 s{sZ0}, s{sZ0}, s{sZ1}", f"s_lshl_b32 s{sZ0}, s{sZ0}, 7", f"s_add_u32 s{sZ0}, s{sZ0}, {WS_F3}"]
    ex[PL][2] = ex[PL][2] + w0only(f3 + flag_lane() + [flag_load()], "P4_L3")
    ex[CHK][1] = ex[CHK][1] + w0only(spin("P4_C3"), "P4_C3") + ["s_barrier"]
    for s in range(8):
        n = CHK + s
        if s == 0: ex[n][2] += o_pre(s) + [o_dma(s, 0), o_dma(s, 1), o_ctx(s, 0), o_ctx(s, 1)]
        else:
            ex[n][0] += o_pre(s) + [o_dma(s, 0), o_dma(s, 1)]; ex[n][1] += [o_ctx(s, 0)]; ex[n][2] += [o_ctx(s, 1)] + o_post(s)
    t = o_trs(0)
    ex[31][0] += ["s_waitcnt vmcnt(@p4t:7:o)"] + t[:1]; ex[31][1] += t[1:3]; ex[31][2] += t[3:]
    b0 = body(False, "b", ex, first=True)
    i = b0.index(zm[2]); b0 = b0[:i+5] + [zm[3]] + b0[i+5:]
    b0 += mark_a + [f"s_mov_b32 s{sCNT}, 2"]
    loop = [".p2align 4", "P4_L:"] + body(True, "f") + [f"s_sub_u32 s{sCNT}, s{sCNT}, 1", f"s_cmp_lg_u32 s{sCNT}, 0", "s_cbranch_scc1 P4_L"]
    lastb = red_addr() + body(True, "l", last=True)
    fin = lastb + mark_b + b_finish()
    st = b_store() + mark_c
    sig4 = ["s_waitcnt vmcnt(@p4u:0:cb)", "s_barrier"] + w0only(flag_store(WS_F4), "P4_S4")
    f4 = [f"s_lshr_b32 s{sZ0}, s{sRT}, 2", f"s_lshl_b32 s{sZ0}, s{sZ0}, 7", f"s_add_u32 s{sZ0}, s{sZ0}, {WS_F4}"]
    tail = o_body("g", "full", {3: sig4})
    tail += [f"s_mov_b64 {sr(sW,2)}, {sr(sWB,2)}", f"s_mov_b32 s{sW+2}, {MB//2}", f"s_lshl_b32 s{sT0}, s{sWAVE}, 17", f"s_add_u32 s{sWO}, s{sWC}, s{sT0}"]
    tail += o_body("h", "w", {5: w0only(f4 + flag_lane() + [flag_load()], "P4_L4")})
    tail += w0only(spin("P4_C4"), "P4_C4") + ["s_barrier"] + mark_d
    tail += [f"s_lshl_b32 s{sT0}, s{sWAVE}, 13", f"s_add_u32 s{sC0}, s{sCB}, s{sT0}", f"s_add_u32 s{sC0}, s{sC0}, {256*1024}"]
    for s in range(8): tail += [o_ctx(s, 0), o_ctx(s, 1)] + o_post(s)
    tail += ["s_waitcnt vmcnt(@p4w:0:wb)"] + o_trs(0)
    tail += o_body("i", "none") + final()
    slow = b_slow()
    return pro + b0 + loop + fin + st + tail, slow, [pro + b0 + loop * 2 + fin + st + tail, pro + b0 + loop * 2 + fin + slow + st + tail]
```

```python
import re

def vr(b, n=1, k='v'):
    return f"{k}{b}" if n == 1 else f"{k}[{b}:{b+n-1}]"
def ar(b, n=1): return vr(b, n, 'a')
def sr(b, n=1): return vr(b, n, 's')

TRANS = ("v_exp_f32", "v_log_f32", "v_rcp_f32", "v_rsq_f32", "v_sqrt_f32")

def cost(ins):
    m = ins.split()[0]
    if m in TRANS: return 8
    if m.startswith("v_mfma"): return 8
    if m == "s_nop": return 4 * (int(ins.split()[1]) + 1)
    if m.endswith(":") or m.startswith(";") or m.startswith("."): return 0
    return 4

def klass(ins):
    m = ins.split()[0]
    if m.startswith("LG"): return "s"
    if m.startswith("v_"): return "v"
    if m.startswith("ds_") or m.startswith("buffer_") or m.startswith("global_"): return "m"
    return "s"
def vcost(ins):
    m = ins.split()[0]
    if m in TRANS or m.startswith("v_permlane"): return 8
    if m == "s_nop": return 4 * (int(ins.split()[1]) + 1)
    return 4
def conflict(a, b):
    if a.startswith("LG") or b.startswith("LG"): return True
    ma, da, ua, ka = parse(a); mb_, db, ub, kb = parse(b)
    if ka == "ctl" or kb == "ctl": return True
    if "exec" in da or "exec" in db: return True
    return bool(set(da) & set(ub) or set(ua) & set(db) or set(da) & set(db))
def order(lst):
    out = []
    for ins in lst:
        p = len(out)
        if klass(ins) != "v":
            while p > 0 and klass(out[p-1]) == "v" and not conflict(out[p-1], ins): p -= 1
            if klass(ins) == "m":
                q = p
                while q > 0 and klass(out[q-1]) == "s" and not conflict(out[q-1], ins) and not out[q-1].startswith("s_"): q -= 1
        out.insert(p, ins)
    return out
import os
MMP = int(os.environ.get('MMP', '0'))
def gapcost(lst):
    t = 4; prev = None; nm = 0
    for ins in lst:
        k = klass(ins)
        if k == "v": t = max(t, 8) + vcost(ins)
        elif k == "s": t += vcost(ins)
        else:
            if prev == "v": t += 12
            elif prev == "m": t += 6
            else: t += 8
        prev = k
    if MMP and t == 16 and len([x for x in lst if klass(x) == "v"]) == 2: t += MMP
    return max(t, 8)

class Sched:
    def __init__(self, mfmas, budget):
        self.m = mfmas
        self.n = len(mfmas)
        self.gap = [[] for _ in mfmas]
        self.pre = [[] for _ in mfmas]
        self.budget = budget
        self.tail = []
    def load(self, g, extra=()):
        l = order(self.gap[g] + list(extra))
        l = l + (self.pre[g + 1] if g + 1 < self.n else self.tail)
        return gapcost(l)
    def add(self, g, ins):
        if isinstance(ins, str): ins = [ins]
        self.gap[g].extend(ins)
    def before(self, g, ins):
        if isinstance(ins, str): ins = [ins]
        self.pre[g].extend(ins)
    def _try(self, items, g0, g1, pace, bud):
        added = []; g = g0; n = len(items); ok = True
        for i, it in enumerate(items):
            grp = [it] if isinstance(it, str) else list(it)
            g = max(g, g0 + int(pace * i * (g1 - g0) / n))
            while g < g1 and self.load(g, grp) > max(bud(g), self.load(g)): g += 1
            if g >= g1: ok = False; break
            self.gap[g].extend(grp); added.append((g, len(grp)))
        if not ok:
            for g, k in reversed(added): del self.gap[g][-k:]
        return ok
    def fill(self, items, g0, g1):
        if not items: return
        B = self.budget
        for pace in (1.0, 0.9, 0.8, 0.6, 0.4, 0.2, 0.0):
            if self._try(items, g0, g1, pace, lambda g: B): return
        its = [[it] if isinstance(it, str) else list(it) for it in items]
        n = len(its); INF = 10 ** 9
        best = [0] + [INF] * n; back = []
        for g in range(g0, g1):
            base = max(self.load(g), B); nb = [INF] * (n + 1); bk = [0] * (n + 1)
            lo = max(0, n - (g1 - g) * 6 - 6);
            for i in range(lo, n + 1):
                if best[i] >= INF: continue
                ex = []
                for k in range(0, min(6, n - i) + 1):
                    if k: ex = ex + its[i + k - 1]
                    cst = best[i] + (max(self.load(g, ex), B) - base if k else 0)
                    if cst < nb[i + k]: nb[i + k] = cst; bk[i + k] = k
            best = nb; back.append(bk)
        if best[n] < INF:
            i = n; plan = []
            for g in range(g1 - 1, g0 - 1, -1):
                k = back[g - g0][i]; plan.append((g, i - k, i)); i -= k
            for g, a, b in reversed(plan):
                for x in its[a:b]: self.gap[g].extend(x)
            return
        raise Exception("fill failed")
    def pack(self, items, g0, g1):
        g = g0; pos = []
        for it in items:
            grp = [it] if isinstance(it, str) else list(it)
            while g < g1 - 1 and self.load(g, grp) > self.budget: g += 1
            self.gap[g].extend(grp); pos.append(g)
        return pos
    def emit(self):
        out = []
        for g in range(self.n):
            out += self.pre[g]; out.append(self.m[g]); out += order(self.gap[g])
        return out
    def over(self):
        return sum(max(0, self.load(g) - self.budget) for g in range(self.n))

_R = re.compile(r"^-?(?:abs\()?([vas])(?:\[(\d+):(\d+)\]|(\d+))\)?$")
def regs(op):
    op = op.strip()
    if op in ("vcc",): return ["vcc"]
    if op in ("exec",): return ["exec"]
    if op == "m0": return ["m0"]
    m = _R.match(op)
    if not m: return []
    if m.group(4) is not None: return [m.group(1) + m.group(4)]
    return [m.group(1) + str(i) for i in range(int(m.group(2)), int(m.group(3)) + 1)]

import functools
@functools.lru_cache(maxsize=None)
def parse(ins):
    ins = ins.split(";")[0].strip()
    p = ins.split(None, 1)
    m = p[0]
    ops = []
    if len(p) > 1:
        ops = [o.strip() for o in p[1].split(",")]
        last = ops[-1].split()
        ops[-1] = last[0] if last else ""
        mods = last[1:]
    else: mods = []
    R = [regs(o) for o in ops]
    flat = lambda l: [x for y in l for x in y]
    if m.startswith("v_mfma"): return m, R[0], flat(R[1:]), "mfma"
    if m.startswith("ds_read"): return m, R[0], flat(R[1:]), "ldsld"
    if m.startswith("ds_write") or m.startswith("ds_add"): return m, [], flat(R), "ldsst"
    if m.startswith("ds_bpermute") or m.startswith("ds_swizzle"): return m, R[0], flat(R[1:]), "ldsld"
    if m.startswith("buffer_load"):
        if "lds" in mods: return m, [], flat(R) + ["m0"], "dma"
        return m, R[0], flat(R[1:]), "vmld"
    if m.startswith("global_load"): return m, R[0], flat(R[1:]), "vmld"
    if m.startswith("buffer_store") or m.startswith("global_store") or m.startswith("buffer_atomic"): return m, [], flat(R), "vmst"
    if m.startswith("buffer_inv") or m.startswith("buffer_wbl2"): return m, [], [], "vmst"
    if m.startswith("s_load") : return m, R[0], flat(R[1:]), "smem"
    if m.startswith("s_memtime") or m.startswith("s_memrealtime"): return m, R[0], [], "smem"
    if m.startswith("v_permlane"): return m, R[0] + R[1], R[0] + R[1], "valu"
    if m.startswith("v_cmp"): return m, R[0], flat(R[1:]), "valu"
    if m.startswith("v_readfirstlane") or m.startswith("v_readlane"): return m, R[0], flat(R[1:]), "valu"
    if m.startswith("v_fmac") : return m, R[0], flat(R), "valu"
    if m.startswith("v_cndmask"):
        u = flat(R[1:])
        if len(ops) == 3: u.append("vcc")
        return m, R[0], u, "valu"
    if m.startswith("v_"): return m, R[0] if R else [], flat(R[1:]), "valu"
    if m in ("s_waitcnt", "s_barrier", "s_nop", "s_endpgm", "s_setprio", "s_sleep") or m.startswith("s_cbranch") or m == "s_branch": return m, [], [], "ctl"
    if m.startswith("s_cmp") or m.startswith("s_bitcmp"): return m, ["scc"], flat(R), "salu"
    if m.startswith("s_"):
        d = list(R[0]) if R else []; u = flat(R[1:])
        if m.startswith("s_cselect") or m.startswith("s_addc") or m.startswith("s_subb"): u = u + ["scc"]
        if not (m.startswith("s_mov") or m.startswith("s_cselect") or m.startswith("s_mul") or m.startswith("s_getpc") or m.startswith("s_getreg")): d = d + ["scc"]
        return m, d, u, "salu"
    raise Exception("unparsed " + ins)

def check_trace(trace, name=""):
    errs = []
    lg = []
    vm = []
    pend = {}
    last = {}
    lastC = {}
    laststore = {}
    st = 0
    for idx, ins in enumerate(trace):
        s = ins.split(";")[0].strip()
        if not s or s.endswith(":") or s.startswith("."): continue
        m, d, u, k = parse(s)
        def err(msg): errs.append(f"{name}[{idx}] {s}: {msg}")
        if m == "s_waitcnt":
            mm = re.search(r"vmcnt\((\d+)\)", s)
            if mm:
                n = int(mm.group(1))
                while len(vm) > n:
                    for r in vm.pop(0): pend.pop(r, None)
            mm = re.search(r"lgkmcnt\((\d+)\)", s)
            if mm:
                n = int(mm.group(1))
                if n > 0 and any(x[0] == "smem" for x in lg): err("counted lgkmcnt with smem outstanding")
                while len(lg) > n:
                    for r in lg.pop(0)[1]: pend.pop(r, None)
            st += 1; continue
        if m == "s_nop":
            st += int(s.split()[1]) + 1; continue
        if "scc" in u or m.startswith("s_cbranch_scc"):
            w = last.get("scc", (0, 0, 0, ""))[3]
            ok = w.startswith("s_cmp") or w.startswith("s_bitcmp")
            if m.startswith("s_addc"): ok = w == "s_add_u32"
            if m.startswith("s_cbranch"): ok = ok or w in ("s_or_b64", "s_sub_u32")
            if not ok: err(f"scc comes from {w}")
        for r in u + d:
            if r in pend and not (k == "vmld" and m == "buffer_load_dword" and r in d and r in ("v23", "v27", "v13")): err(f"{r} has outstanding {pend[r]} load")
        for r in u:
            if r in last:
                ws, wk, wp, wm = last[r]; dist = st - ws - 1
                if wk == "valu" and k == "mfma" and dist < 2: err(f"valu->mfma {r} dist {dist}")
                if wk == "valu" and m.startswith("v_permlane") and dist < 2: err(f"valu->permlane {r} dist {dist}")
                if wk == "valu" and (m.startswith("v_readfirstlane") or m.startswith("v_readlane")) and r[0] == 'v' and r != 'vcc' and dist < 1: err(f"valu->readlane {r}")
                if wk == "valu" and wm in TRANS and k == "valu" and m not in TRANS and dist < 1: err(f"trans->valu {r}")
                if wk == "valu" and (r[0] == 's' or r == 'vcc') and k == "valu" and dist < 2: err(f"valu sgpr->valu {r} dist {dist}")
                if wk == "valu" and r[0] == 's' and k in ("vmld", "vmst", "dma") and dist < 5: err(f"valu sgpr->vmem {r}")
                if wk == "salu" and r == "m0" and k == "dma" and dist < 1: err("m0->dma")
                if wk == "mfma":
                    need = {4: 8, 8: 12}[wp]
                    if k == "mfma":
                        ops = [o.strip() for o in s.split(None, 1)[1].split(",")]
                        inC = r in regs(ops[3]); inAB = r in regs(ops[1]) + regs(ops[2])
                        if inAB and dist < need: err(f"mfma D->mfma A/B {r} dist {dist}")
                        if inC and not inAB:
                            exact = (last[r][3] == (m, ops[3]))
                            if not exact and dist < need - 2: err(f"mfma D->mfma C overlap {r} dist {dist}")
                    elif dist < need: err(f"mfma D->{k} read {r} dist {dist} need {need}")
        for r in d:
            if r in last and last[r][1] == "mfma" and k in ("valu", "ldsld", "vmld"):
                need = {4: 8, 8: 12}[last[r][2]]; dist = st - last[r][0] - 1
                if dist < need: err(f"mfma D->{k} write {r} dist {dist}")
            if r in last and last[r][1] == "mfma" and k == "mfma":
                ops = [o.strip() for o in s.split(None, 1)[1].split(",")]
                if last[r][3] != (m, ops[0]):
                    need = {4: 8, 8: 12}[last[r][2]]; dist = st - last[r][0] - 1
                    if dist < need: err(f"mfma D->mfma D (waw, different shape) {r}")
            if r in lastC and k == "valu":
                need = {4: 3, 8: 7}[lastC[r][1]]; dist = st - lastC[r][0] - 1
                if dist < need: err(f"mfma srcC read -> valu write {r} dist {dist}")
            if r in laststore and k == "valu" and st - laststore[r] - 1 < 2: err(f"store data WAR {r}")
        if k == "mfma":
            passes = 8 if "32x32" in m else 4
            ops = [o.strip() for o in s.split(None, 1)[1].split(",")]
            for r in d: last[r] = (st, "mfma", passes, (m, ops[0]))
            for r in regs(ops[3]): lastC[r] = (st, passes)
        else:
            for r in d: last[r] = (st, k, 0, m)
        if k == "ldsld": lg.append(("lds", d)); [pend.__setitem__(r, "lds") for r in d]
        elif k == "ldsst": lg.append(("lds", []))
        elif k == "smem": lg.append(("smem", d)); [pend.__setitem__(r, "smem") for r in d]
        elif k == "vmld": vm.append(d); [pend.__setitem__(r, "vm") for r in d]
        elif k in ("vmst", "dma"):
            vm.append([])
            if k == "vmst" and ("x4" in m or "x3" in m):
                ops = [o.strip() for o in s.split(None, 1)[1].split(",")]
                for r in regs(ops[0] if m.startswith("buffer") else ops[1]): laststore[r] = st
        if len(vm) > 63: err("vmcnt overflow >63")
        st += 1
    return errs

def resolve_vm(traces):
    res = {}
    for tr in traces:
        ops = []
        for ins in tr:
            s = ins.split(";")[0].strip()
            if not s or s.endswith(":") or s.startswith("."): continue
            mm = re.search(r"vmcnt\(@(\w+):(\d+):(\w+)\)", s)
            if mm:
                wid, k, cls = mm.group(1), int(mm.group(2)), mm.group(3)
                ends = [i for i, o in enumerate(ops) if o == cls]
                if len(ends) > k:
                    n = len(ops) - 1 - ends[len(ends) - 1 - k]
                    res[wid] = min(res.get(wid, 63), n)
                else:
                    raise Exception(f"wait {wid}: no group to wait for")
                continue
            m = s.split()[0]
            if m.startswith("buffer_") or m.startswith("global_"):
                g = re.search(r"grpend:(\w+)", ins)
                ops.append(g.group(1) if g else None)
    return res

def apply_vm(code, res):
    def f(ins):
        return re.sub(r"vmcnt\(@(\w+):(\d+):(\w+)\)", lambda m: f"vmcnt({res[m.group(1)]})", ins)
    return [f(i) for i in code]

def kernel_desc(name, nvgpr, accum, nsgpr=102):
    return f""".amdhsa_kernel {name}
  .amdhsa_next_free_vgpr {nvgpr}
  .amdhsa_next_free_sgpr {nsgpr}
  .amdhsa_accum_offset {accum}
  .amdhsa_group_segment_fixed_size 0
  .amdhsa_kernarg_size 104
  .amdhsa_user_sgpr_count 2
  .amdhsa_user_sgpr_kernarg_segment_ptr 1
  .amdhsa_system_sgpr_workgroup_id_x 1
.end_amdhsa_kernel
"""
def fbits(x):
    import struct
    return struct.unpack("<I", struct.pack("<f", x))[0]

import os
PROF = int(os.environ.get("PROF", "0"))
WS_PROF = 79 * (1 << 20)
NMARK = 11
def prof_mark(i):
    if not PROF: return []
    op = "s_memtime" if (os.environ.get("PROFC") and i >= 1) else "s_memrealtime"
    return [f"{op} s[94:95]", "s_waitcnt lgkmcnt(0)", f"s_mov_b32 s{83+i}, s94"]
def prof_start():
    if not PROF: return []
    return ["s_memtime s[80:81]"] + [f"s_mov_b32 s{i}, 0" for i in range(83, 94)] + prof_mark(0)
def prof_end(kidx, sO, wave_sgpr):
    if not PROF: return []
    c = ["s_waitcnt vmcnt(0)", "s_memtime s[96:97]", "s_memrealtime s[94:95]", "s_waitcnt lgkmcnt(0)", "s_mov_b32 s82, s96"]
    c += [f"s_lshl_b32 s96, s2, 2", f"s_add_u32 s96, s96, s{wave_sgpr}", "s_lshl_b32 s96, s96, 6", f"s_add_u32 s96, s96, {WS_PROF}",
          "s_mov_b64 exec, 1", "v_mov_b32 v20, 0"]
    for j, s in enumerate(list(range(83, 94)) + [94, 80, 82]):
        c += [f"v_mov_b32 v21, s{s}", f"buffer_store_dword v21, v20, s[{sO}:{sO+3}], s96 offen offset:{4*j}"]
    c += ["s_getreg_b32 s97, hwreg(HW_REG_XCC_ID)", "v_mov_b32 v21, s97", f"buffer_store_dword v21, v20, s[{sO}:{sO+3}], s96 offen offset:60"]
    return c
```

```python
from asmlib import *
from layout import *
import p1, p3, p4
def strip_w0(tr):
    out = []; i = 0
    while i < len(tr):
        if tr[i] == "s_cmp_lg_u32 s16, 0" and tr[i+1].startswith("s_cbranch_scc1 "):
            lbl = tr[i+1].split()[1] + ":"
            out += tr[i:i+2]
            while tr[i] != lbl: i += 1
        if tr[i].startswith("s_cbranch_scc0 P1_N") and not tr[i].startswith("s_cbranch_scc0 P1_NG"):
            lbl = tr[i].split()[1] + ":"
            out.append(tr[i])
            while tr[i] != lbl: i += 1
        out.append(tr[i]); i += 1
    return out
def gen():
    M = [prof_mark(i) for i in range(11)]
    sel = os.environ.get("MARKS", "pro,pair,p2,p3,ep,p4,b0,bf,st,pl").split(",")
    mk = lambda name: M[1 + sel.index(name)] if name in sel else []
    head = ["s_cmp_ge_u32 s2, 256", "s_cbranch_scc1 F_END"] + prof_start()
    P = p1.prologue(mk)
    P = P[:-2] + mk("pro") + P[-2:]
    p1.MK[0] = mk
    V = [p1.version(0), p1.version(1)]
    Q = p1.p2(p3.kv_setup(p1.vLN), p3.kv_dma0(), p3.kv_dma1(), p3.kv_dma2(), p3.mask_setup(p1.vLN), p3.wo_ptrs(), p3.wo_touch(p1.vLN), p3.out_ptr())
    Q = Q[:1] + mk("p2") + Q[1:] + mk("p3")
    A, Aslow, Atr = p3.gen(p1.vLN, p4.early(), mk("ep"), mk)
    B, Bslow, Btr = p4.gen(p3.h_stores(), mk("b0"), mk("bf"), mk("st"), mk("pl"))
    B = mk("p4") + B; Btr = [mk("p4") + t for t in Btr]
    end = prof_end(0, 8, 16) + ["F_END:", "s_endpgm"]
    pm = mk("pair")
    fronts = []
    for v in V:
        fronts.append(head + P + v["head"] + v["pair"] + pm + v["br"] + v["u2"] + v["u3"] + v["u4"])
        fronts.append(head + P + v["head"] + v["pair"] + pm + v["br"] + v["skip"] + v["u3"] + v["u4"])
    sk = V[0]["skip"]
    for l in ("P1_NG0", "P1_NG"):
        a = sk.index("s_cbranch_scc0 " + l); b = sk.index(l + ":"); sk = sk[:a+1] + sk[b:]
    fronts.append(head + P + V[0]["head"] + V[0]["pair"] + pm + V[0]["br"] + sk + V[0]["u3"] + V[0]["u4"])
    traces = [f + Q + Atr[3] + Btr[0] + end for f in fronts] + [fronts[0] + Q + t + Btr[0] + end for t in Atr] + [fronts[0] + Q + Atr[0] + Btr[1] + end]
    traces += [strip_w0(t) for t in traces]
    res = resolve_vm(traces)
    errs = []
    for i, t in enumerate(traces): errs += check_trace(apply_vm(t, res), f"tr{i}")
    if errs and not os.environ.get('K2X'):
        print("\n".join(errs[:40])); raise Exception("hazards")
    print("vm", res)
    v0, v1 = V
    code = head + P + v0["head"] + v0["pair"] + pm + v0["br"] + v0["u2"] + v0["u3"] + v0["u4"] + Q + A + B + end
    code += v1["head"] + v1["pair"] + pm + v1["br"] + v1["u2"] + v1["u3"] + v1["u4"] + ["s_branch P2"]
    code += v0["skip"] + v1["skip"] + Aslow + Bslow + p1.tabdata()
    return apply_vm(code, res)
if __name__ == "__main__":
    print(len(gen()))
```

```python
from asmlib import *
from layout import *
import os
def flat(l):
    o = []
    for x in l: o += [x] if isinstance(x, str) else x
    return o
SC = " sc1"
NT = os.environ.get("NT", " nt")
SCE = os.environ.get("SCE", " sc1")
def table():
    rows = []; one = fbits(1.0)
    for cg in range(32):
        if cg < 13:
            t0 = 5 * cg; n = min(5, 64 - t0)
            e = [1, 0, 8192, 0, t0, 0, t0 * 128, 256, 512, 1024, 16384, 128, fbits(LOG2E * 128 ** -0.5), WS_KV, MB, 2048]
        elif cg < 26:
            t0 = 5 * (cg - 13); n = min(5, 64 - t0)
            e = [1, 1, 8192, 1, t0, 0, t0 * 128, 512, 256, 16384, 2048, 1024, one, WS_KV + 8192, MB, 4096]
        elif cg < 28:
            t0 = 4 * (cg - 26); n = 4
            e = [0, 2, 3072, 0, t0, 0, t0 * 128, 65536, 512, 131072, 1024, 256, fbits(LOG2E * 0.25), WS_QB, 8 * 65536, 4 * 65536]
        elif cg < 30:
            t0 = 4 * (cg - 28); n = 4
            e = [0, 2, 3072, 0, t0, 0, 1024 + t0 * 128, 131072, 512, 262144, 2048, 256, one, WS_KVB, 8 * 131072, 4 * 131072]
        else:
            t0 = 4 * (cg - 30); n = 4
            e = [0, 2, 3072, 1, t0, 0, 2048 + t0 * 128, 512, 256, 2048, 262144, 131072, one, WS_KVB + 1024, 8 * 131072, 4 * 131072]
        e[5] = (1 if n == 4 else 0) | (2 if cg == GATE_CG else 0)
        if n == 4: e[5] |= [12, 25, 26, 27, 28, 29, 30, 31].index(cg) << 8
        e[5] |= cg << 16
        rows.append(e)
    slack = [12, 25, 26, 27, 28, 29, 30, 31]; reg = [g for g in range(32) if g not in slack]
    order = []
    sl_order = [12, 26, 27, 28, 25, 29, 30, 31]
    for j in range(8): order += reg[3*j:3*j+3] + [sl_order[j]]
    return [rows[g] for g in order] if os.environ.get('SPREAD') else rows
GATE_CG = 28
TOUCH = os.environ.get("TOUCH", "cjwqo")
RT = os.environ.get("RT", "0")
TPOS = os.environ.get("TPOS", "c")
vTCH = 23
vCT = 22
ACC = [32, 96, 160]; WR = [224, 240]
vW = [1, 2, 3, 4]; vWD = [5, 6, 7, 8]; vXD = [9, 10, 11, 12]; vXR = [13, 14]; vXN = [15, 16]
vEP, vL3, vWC, vLN, vJQ, vFL, vPF = 17, 18, 19, 20, 21, 26, 27
sWS, sW, sWAVE, sH, sI, sDBG, sX, sE = 8, 12, 16, 17, 18, 40, 44, 48
sLW, sLX, sWOFF, sK128, sK128m, sUSW, sXA, sXB, sTE, sT0, sT1, sRT = 19, 20, 21, 22, 23, 24, 25, 26, 27, 28, 29, 30
sO0 = 32
sB0 = 36
sZ0, sZ1 = 37, 31
sK128t, sEN = 38, 39
sPW, sCG = 5, 4
sWQ, sXP = 52, 54
sTB = 56
T_XSEL, T_WSEL, T_STR, T_OR, T_T0, T_FL, T_WCOL, T_A1, T_A2, T_SP, T_SJ1, T_SJ0, T_SC, T_B0, T_TS1, T_TS0 = [sTB + i for i in range(16)]
XB = 65536
QA_ = 0

def xa(rt, ks): return (ks * 4 + rt) * 4
def acc(p, I, J): return ACC[p] + (I * 4 + J) * 4
def slot_mfmas(p, o, kc):
    out = []
    for c in range(4):
        wb = WR[c & 1]
        for r in range(4):
            for ks in range(4):
                d = acc(p, c, r) if o == 0 else acc(p, r, c)
                w = vr(wb + 4 * ks, 4); x = ar(xa(r, 4 * kc + ks), 4)
                a, b = (w, x) if o == 0 else (x, w)
                cin = "0" if (kc == 0 and ks == 0) else vr(d, 4)
                out.append(f"v_mfma_f32_16x16x32_bf16 {vr(d,4)}, {a}, {b}, {cin}")
    return out
def tr_reads(pos, c):
    wb = WR[c & 1]
    return [f"ds_read_b64_tr_b16 {vr(wb + 4*ks + 2*e, 2)}, v{vW[c]} offset:{pos*16384 + ks*4096 + e*512}" for ks in range(4) for e in range(2)]
def w_dma(pos, step, nt=''):
    out = [f"s_add_u32 m0, s{sLW}, {pos*16384}"]
    out.append(f"s_add_u32 s{sWOFF}, s{sWOFF}, {step}" if step else "s_nop 0")
    for i in range(4):
        out.append(f"buffer_load_dwordx4 v{vWD[i]}, {sr(sW,4)}, s{sWOFF} offen offset:{i*1024}{nt} lds" + (" ; grpend:w" if i == 3 else ""))
    return out
def x_dma(sc):
    out = []
    for hf in range(2):
        out += [f"s_add_u32 m0, s{sLX}, {(sc % 3)*8192 + hf*4096}", f"s_add_u32 s{sT0}, s{sXB if hf else sXA}, {sc*128}"]
        for i in range(4):
            out.append(f"buffer_load_dwordx4 v{vXD[i]}, {sr(sX,4)}, s{sT0} offen offset:{i*1024} lds" + (" ; grpend:x" if hf == 1 and i == 3 else ""))
    return out
def x_reads(sc, nat):
    v = vXN if nat else vXR
    return [f"ds_read_b128 {ar(xa(rt, 2*sc + k2), 4)}, v{v[k2]} offset:{(sc % 3)*8192 + rt*2048}" for rt in range(4) for k2 in range(2)]
def w_lane_setup(stride, t):
    o = [f"v_mad_u32_u24 v{vWD[0]}, v{vL3}, {stride}, v{vWC}", f"s_lshl_b32 s{t}, {stride}, 3", f"s_sub_u32 s{t}, s{t}, 1024",
         f"v_xor_b32 v{vWD[1]}, 64, v{vWD[0]}", f"v_add_u32 v{vWD[1]}, s{t}, v{vWD[1]}", f"s_lshl_b32 s{t}, s{t}, 1",
         f"v_add_u32 v{vWD[2]}, s{t}, v{vWD[0]}", f"v_add_u32 v{vWD[3]}, s{t}, v{vWD[1]}",
         f"s_lshl_b32 s{sK128}, {stride}, 7", f"s_sub_u32 s{sK128m}, s{sK128}, 128", f"s_mul_i32 s{sUSW}, s{sK128}, -3", f"s_add_u32 s{sUSW}, s{sUSW}, 128"]
    return o
def e_addr():
    return [f"s_lshr_b32 s{sT1}, s{sTE}, 1", f"s_mul_i32 s{sO0}, s{sT1}, s{T_TS1}", f"s_and_b32 s{sT1}, s{sTE}, 1", f"s_mul_i32 s{sT1}, s{sT1}, s{T_TS0}",
            f"s_add_u32 s{sO0}, s{sO0}, s{sT1}", f"s_add_u32 s{sO0}, s{sO0}, s{sB0}", f"s_add_u32 s{sTE}, s{sTE}, 1",
            f"s_add_u32 s{sO0+1}, s{sO0}, s{T_SJ0}", f"s_add_u32 s{sO0+2}, s{sO0}, s{T_SJ1}", f"s_add_u32 s{sO0+3}, s{sO0+2}, s{T_SJ0}"]
def pipeline(units):
    out = []; prev = None
    for pre, cv, post in units:
        out += pre + cv[:2]
        if prev: out += prev[:2]
        out += cv[2:]
        if prev: out += prev[2:]
        prev = post
    return out + ["s_nop 1"] + prev
def cvt4(T0, T1):
    return [f"v_cvt_pk_bf16_f32 v{T0}, v{T0}, v{T0+1}", f"v_cvt_pk_bf16_f32 v{T0+1}, v{T0+2}, v{T0+3}",
            f"v_cvt_pk_bf16_f32 v{T0+2}, v{T1}, v{T1+1}", f"v_cvt_pk_bf16_f32 v{T0+3}, v{T1+2}, v{T1+3}"]
def swaps(T0): return [f"v_permlane16_swap_b32 v{T0}, v{T0+2}", f"v_permlane16_swap_b32 v{T0+1}, v{T0+3}"]
def epilogue(p, mul):
    u = []
    for pp in range(2):
        for J in range(4):
            T0, T1 = acc(p, 2*pp, J), acc(p, 2*pp+1, J)
            pre = [f"v_mul_f32 v{T+r}, s{T_SC}, v{T+r}" for T in (T0, T1) for r in range(4)] if mul else []
            post = swaps(T0) + [f"buffer_store_dwordx4 {vr(T0,4)}, v{vEP}, {sr(sE,4)}, s{sO0+J} offen{SCE}" + (" ; grpend:st" if pp == 1 and J == 3 else "")]
            if pp == 0: post.append(f"s_add_u32 s{sO0+J}, s{sO0+J}, s{T_SP}")
            u.append((pre, cvt4(T0, T1), post))
    return e_addr() + pipeline(u)
def q_epilogue(p, u, a):
    un = []
    if True:
        for rt in range(4):
            T0, T1 = acc(p, 2*a, rt), acc(p, 2*a+1, rt); q = QA_ + 16*rt + 4*(2*u + a)
            un.append(([], cvt4(T0, T1), swaps(T0) + [f"v_accvgpr_write_b32 a{q+r}, v{T0+r}" for r in range(4)]))
    return pipeline(un)

TRG = [0, 1, 2, 4, 5, 6, 8, 9]; DMAG = [3, 7, 11, 15]; XRG = [3, 7, 10, 11, 12, 13, 14, 15]
def place_dma(S, g0, grp):
    S.add(g0 + 0, grp[0]); S.add(g0 + 1, grp[1])
    for i in range(4): S.add(g0 + DMAG[i], grp[2 + i])
class Block:
    def __init__(self, name, slots, nextpos, qx=None, qd=None):
        self.name = name
        qx = dict(qx or {}); qd = dict(qd or {})
        m = []
        for q, s in enumerate(slots):
            m += slot_mfmas(s["p"], s["o"], s["kc"])
            if s.get("xr") is not None: qx[4*q] = (s["xr"], s["xk"])
            if s.get("xd") is not None: qd[4*q+1] = x_dma(s["xd"])[:6]; qd[4*q+2] = x_dma(s["xd"])[6:]
            if "wstep" in s: qd[4*q+3] = w_dma(s["pos"], s["wstep"], s.get("nt", ""))
        S = self.S = Sched(m, 16)
        for q, s in enumerate(slots):
            for c in range(4):
                Q = 4 * q + c; g0 = Q * 16
                lg = "lgkmcnt(4)" if (Q - 1) in qx else "lgkmcnt(0)"
                pre = []
                if Q in qx: pre.append(f"s_waitcnt vmcnt(@{name}{Q}x:{qx[Q][1]}:x)")
                if c == 3 and not s.get("nobar"):
                    need = s.get("need", [f"{s.get('wk', 2)}:w"])
                    for k, nd in enumerate(need): pre.append(f"s_waitcnt vmcnt(@{name}{q}w{k}:{nd})")
                    pre[-1] += " " + lg
                    pre += s.get("prebar", []) + ["s_barrier"] + s.get("postbar", [])
                elif pre: pre[-1] += " " + lg
                else: pre.append("s_waitcnt " + lg)
                S.before(g0, pre)
                if c < 3: rd = tr_reads(s["pos"], c + 1)
                else:
                    np_ = slots[q+1]["pos"] if q + 1 < len(slots) else nextpos
                    rd = tr_reads(np_, 0) if np_ is not None else []
                for i, r in enumerate(rd): S.add(g0 + TRG[i], r)
                if Q in qx:
                    for i, r in enumerate(x_reads(qx[Q][0], s.get("nat", False))): S.add(g0 + XRG[i], r)
                if Q in qd: place_dma(S, g0, qd[Q])
    def emit(self):
        print("P1 block", self.name, "over", self.S.over())
        return self.S.emit()

K128, K128M, USW, K128T = f"s{sK128}", f"s{sK128m}", f"s{sUSW}", f"s{sK128t}"

def pair_slots(pa, pb, o, nat, tailw):
    sl = []
    for q in range(8):
        d = dict(p=pb if q & 1 else pa, o=o, kc=q >> 1, pos=q & 3, nat=nat)
        if q < 4: d["wstep"] = "128" if q & 1 else K128M
        elif tailw: d["wstep"] = USW if q == 4 else K128
        if q < 6: d["xr"] = q + 2; d["xk"] = min(2, 5 - q)
        if q < 3: d["xd"] = q + 5
        if not tailw and q >= 4: d["wk"] = max(0, 6 - q)
        sl.append(d)
    return sl
def unit_slots(p, o): return [dict(p=p, o=o, kc=s, pos=s, wstep=USW if s == 0 else K128) for s in range(4)]

def flag_store(off_code, val):
    return off_code + [f"v_mov_b32 v{vFL}, {val}", "s_mov_b64 exec, 1", f"buffer_store_dword v{vFL}, off, {sr(sWS,4)}, s{sZ0}{SC}", "s_mov_b64 exec, -1"]
def w0only(code, lbl): return [f"s_cmp_lg_u32 s{sWAVE}, 0", f"s_cbranch_scc1 {lbl}"] + code + [f"{lbl}:"]
F1OFF = [f"s_lshl_b32 s{sZ0}, s{sCG}, 7", f"s_lshl_b32 s{sZ1}, s{sI}, 2", f"s_add_u32 s{sZ0}, s{sZ0}, s{sZ1}", f"s_add_u32 s{sZ0}, s{sZ0}, {WS_F1}"]

NT = os.environ.get("NT", " nt")
def lin_touch():
    c = []; A = c.append
    A(f"v_and_b32 v31, 31, v{vLN}"); A("v_lshlrev_b32 v31, 7, v31")
    A("s_mov_b32 s99, 0x20000"); A(f"s_mov_b32 s98, {2*MB}"); A("s_lshl_b32 s100, s2, 1"); A(f"s_and_b32 s101, s{sWAVE}, 1"); A("s_add_u32 s100, s100, s101"); A("s_lshl_b32 s100, s100, 12")
    A(f"s_cmp_lt_u32 s{sWAVE}, 2"); A("s_cselect_b64 s[96:97], s[74:75], s[72:73]")
    A(f"buffer_load_dword v{vTCH}, v31, s[96:99], s100 offen")
    return c
def touch_setup():
    return [f"v_and_b32 v30, 15, v{vLN}", f"s_lshl_b32 s101, s{sRT}, 3", "v_add_u32 v30, s101, v30", f"v_mul_u32_u24 v28, s{T_STR}, v30", "v_lshlrev_b32 v29, 13, v30",
            "v_lshl_add_u32 v29, v24, 7, v29", "v_lshl_add_u32 v30, v24, 7, v28", f"v_lshrrev_b32 v31, 4, v{vLN}", "v_min_u32 v31, 2, v31", "v_lshl_add_u32 v28, v31, 7, v28"]
def touch_w3(): return [f"buffer_load_dword v{vTCH}, v28, {sr(sW,4)}, s{T_WCOL} offen{NT}"]
def touch_w2(): return [f"buffer_load_dword v{vTCH}, v30, {sr(sW,4)}, s{T_WCOL} offen offset:384"]
def touch_q():
    return [f"s_mov_b64 s[96:97], {sr(sWQ,2)}", f"s_mov_b32 s98, {4*MB}", "s_mov_b32 s99, 0x20000", f"s_lshl_b32 s101, s{sH}, 8",
            f"buffer_load_dword v{vTCH}, v29, s[96:99], s101 offen"]
def touch_x(k):
    c = []
    if k == 0:
        c = [f"s_mov_b64 s[96:97], {sr(sXP,2)}", f"s_mov_b32 s98, {2*MB}", "s_lshr_b32 s100, s2, 3", "s_lshl_b32 s100, s100, 2", f"s_add_u32 s100, s100, s{sWAVE}",
             "s_lshl_b32 s100, s100, 14", f"v_and_b32 v31, 15, v{vLN}", "v_lshlrev_b32 v31, 10, v31", "v_lshl_add_u32 v31, v24, 7, v31"]
    return c + [f"buffer_load_dword v{vTCH}, v31, s[96:99], s100 offen offset:{256*k}"]
def code_touch(srd):
    return [f"s_mov_b64 {sr(srd,2)}, s[6:7]", f"s_mov_b32 s{srd+2}, P1_TAB-P1_PC", f"s_mov_b32 s{srd+3}, 0x20000", f"buffer_load_dword v{vTCH}, v{vCT}, {sr(srd,4)}, 0 offen"]
MK = [lambda n: []]
def version(o):
    mul = (o == 0)
    code = [f"P1_V{o}:"]
    code += [f"v_mad_u32_u24 v{vEP}, v24, s{T_A1}, v{vJQ if o == 0 else 26}", f"v_mad_u32_u24 v{vEP}, v25, s{T_A2}, v{vEP}"]
    if o == 0:
        code += [f"s_mul_i32 s{sT1}, s{T_XSEL}, {4096 - 128}", f"v_bfe_u32 v27, v{vLN}, 2, 1", f"v_mad_u32_u24 v{vEP}, v27, s{sT1}, v{vEP}"]
    code += [
             f"s_mul_i32 s{sT1}, s{T_SJ1 if o == 0 else T_SP}, s{sRT}", f"s_add_u32 s{sB0}, s{T_B0}, s{sT1}"]
    RO = os.environ.get("RO", "0") == "1"
    seq = [(q % 3, q // 3) for q in range(12)]
    if RO: seq = seq[:6] + [(0, 2), (0, 3), (1, 2), (1, 3), (2, 2), (2, 3)]
    seq += [(3, k) for k in range(4)]
    def step(e):
        d = (seq[e][0] - seq[e-1][0], seq[e][1] - seq[e-1][1])
        return {(1, 0): "128", (-2, 1): K128T, (0, 1): K128, (1, -3): USW, (1, -1): "s3"}[d]
    code += [f"s_sub_u32 s3, 128, s{sK128}"]
    sl = [dict(p=seq[q][0], o=o, kc=seq[q][1], pos=q & 3, wstep=step(q + 4)) for q in range(12)]
    del sl[0]["wstep"]; del sl[1]["wstep"]
    X = lambda sc, h: x_dma(sc)[6*h:6*h+6]
    qd = {2: w_dma(3, step(3), NT), 3: X(2,0), 4: X(2,1), 5: X(3,0), 6: X(3,1), 7: w_dma(0, step(4), NT), 8: w_dma(1, step(5), NT),
          12: X(4,0), 13: X(4,1), 14: X(5,0), 16: X(5,1), 17: X(6,0), 18: X(6,1), 21: X(7,0), 22: X(7,1)}
    qx = {9: (2, 1), 10: (3, 0), 20: (4, 2), 22: (5, 1), 24: (6, 1), 28: (7, 0)}
    if RO: del qx[28]; qx[26] = (7, 0)
    sl[1]["wk"] = 1
    for q in range(8): sl[q]["nt"] = NT
    sl[2]["postbar"] = w0only([f"s_and_b32 s{sZ0}, s2, 1", f"s_lshl_b32 s{sZ0}, s{sZ0}, 7", f"v_mov_b32 v{vFL}, 1", "s_mov_b64 exec, 1",
                               f"buffer_atomic_add v{vFL}, off, {sr(sDBG,4)}, s{sZ0} sc1", "s_mov_b64 exec, -1"], f"P1_CL{o}")
    XQ = [int(x) for x in os.environ.get("XQ", "32,33,34,36,37,38").split(",")]
    for k, qq in enumerate(XQ): qd[qq] = X(k // 2, k & 1)
    B = Block(f"a{o}", sl, 0, qx, qd)
    TQ = [int(x) for x in os.environ.get("TQ", "24,26").split(",")]
    B.S.fill(touch_w2(), TQ[0] * 16, TQ[0] * 16 + 16)
    B.S.fill(touch_q(), TQ[1] * 16, TQ[1] * 16 + 16)
    sw = [f"s_mov_b64 {sr(sX,2)}, {sr(sXP,2)}",
          f"s_lshl_b32 s{sXA}, s{sI}, 2", f"s_add_u32 s{sXA}, s{sXA}, s{sWAVE}", f"s_sub_u32 s{sXB}, 63, s{sXA}",
          f"s_lshl_b32 s{sXA}, s{sXA}, 15", f"s_lshl_b32 s{sXB}, s{sXB}, 15"]
    B.S.pack(sw, 25 * 16, 26 * 16)
    e1, e2, e3 = epilogue(1, mul), epilogue(2, mul), epilogue(0, mul)
    stores = lambda e: [i for i, x in enumerate(e) if x.startswith("buffer_store")]
    if RO:
        E0, N1 = [int(x) for x in os.environ.get("E0", "8,4").split(",")]
        c1 = len(e1) if N1 == 8 else stores(e1)[N1 - 1] + 2
        B.S.fill(epilogue(0, mul), E0 * 64 + 3, 10 * 64 + 40); B.S.fill(e1[:c1], 10 * 64 + 40, 12 * 64 - 2); e1 = e1[c1:]
    else: B.S.fill(epilogue(0, mul), 10 * 64 + 3, 12 * 64 - 2)
    for q in range(1, 12): B.S.before(q * 64, MK[0](f"s{q}"))
    pair = B.emit()
    NC = int(os.environ.get("NC", "6"))
    cut = len(e2) if NC == 8 else stores(e2)[NC - 1] + 2
    B = Block(f"c{o}", unit_slots(0, o), 0)
    B.S.fill(e1 + e2[:cut], 3, 254)
    for q in range(1, 4): B.S.before(q * 64, MK[0](f'c{q}'))
    u3 = B.emit()
    sl = unit_slots(1, o)
    sl[0]["wstep"] = None; sl[1]["wstep"] = "128"; sl[2]["wstep"] = K128M; sl[3]["wstep"] = "128"
    sl[2].update(xr=0, xk=2, xd=3, nat=True); sl[3].update(xr=1, xk=2, xd=4, nat=True)
    B = Block(f"d{o}", sl, 0)
    sw2 = [f"s_mov_b64 {sr(sW,2)}, {sr(sWQ,2)}", f"s_mov_b32 s{sW+2}, {4*MB}", f"s_mov_b32 s{T_STR}, 8192"] + w_lane_setup(f"s{T_STR}", sZ1) + \
          [f"s_lshl_b32 s{sWOFF}, s{sWAVE}, 18", f"s_lshl_b32 s{sZ1}, s{sH}, 8", f"s_add_u32 s{sWOFF}, s{sWOFF}, s{sZ1}"]
    B.S.pack(sw2, 0, 40)
    B.S.fill(e2[cut:] + [f"s_mov_b32 s{sE+2}, s{sEN}"] + e3 + [f"s_mov_b32 s{sE+2}, {WS_END}"], 3, int(os.environ.get("E3", "176")))
    for q in range(0, 4): B.S.before(q * 64, MK[0](f'd{q}'))
    u4 = B.emit()
    skip = [f"P1_SK{o}:", "s_nop 7"] + (gate_load() if o == 0 else []) + flat(e1) + (gate() if o == 0 else []) + flat(e2[:cut]) + \
           [f"s_mov_b32 s{sEN}, 0", f"s_sub_u32 s{sTE}, s{sTE}, 1", f"s_branch P1_U4{o}"]
    br = [f"s_bitcmp1_b32 s{T_FL}, 0", f"s_cbranch_scc1 P1_SK{o}"]
    return dict(head=code, pair=pair, br=br, u2=u3, u3=[], u4=[f"P1_U4{o}:"] + u4, skip=skip)

sGW = 72
def gate_load():
    c = [f"s_bitcmp1_b32 s{T_FL}, 1", "s_cbranch_scc0 P1_NG0"]; A = c.append
    G = ACC[0]
    A(f"v_lshrrev_b32 v27, 4, v{vLN}"); A("v_lshlrev_b32 v28, 4, v27")
    for ks in range(16): A(f"buffer_load_dwordx4 {vr(G+4*ks,4)}, v28, {sr(sGW,4)}, 0 offen offset:{ks*64}" + (" ; grpend:gw" if ks == 15 else ""))
    A("P1_NG0:")
    return c
def gate():
    c = [f"s_bitcmp1_b32 s{T_FL}, 1", "s_cbranch_scc0 P1_NG"]; A = c.append
    G = ACC[0]; D = WR[1]
    A("s_waitcnt vmcnt(@gw:0:gw)")
    for rt in range(4):
        for ks in range(16):
            A(f"v_mfma_f32_16x16x32_bf16 {vr(D+4*rt,4)}, {vr(G+4*ks,4)}, {ar(xa(rt,ks),4)}, " + ("0" if ks == 0 else vr(D+4*rt,4)))
    A("s_nop 7")
    for g in range(1, 4):
        A(f"v_cmp_eq_u32 vcc, {g}, v27"); A("s_nop 1"); A(f"v_cndmask_b32 v{D}, v{D}, v{D+4*g}, vcc")
    A(f"v_mul_f32 v{D}, {hex(fbits(-LOG2E))}, v{D}"); A(f"v_exp_f32 v{D}, v{D}"); A("s_nop 0")
    A(f"v_add_f32 v{D}, 1.0, v{D}"); A(f"v_rcp_f32 v{D}, v{D}")
    A(f"v_lshrrev_b32 v28, 2, v{vJQ}"); A("v_lshl_add_u32 v28, v27, 6, v28")
    A(f"s_lshl_b32 s{sT0}, s{sRT}, 7"); A(f"s_add_u32 s{sT0}, s{sT0}, {WS_GATE}")
    A(f"buffer_store_dword v{D}, v28, {sr(sWS,4)}, s{sT0} offen{SC}")
    A("s_nop 1")
    A("P1_NG:")
    return c

def prologue(mk=lambda n: []):
    c = []; A = c.append
    A(f"s_load_dwordx4 s[72:75], s[0:1], {KA_X}")
    A(f"s_load_dwordx4 s[76:79], s[0:1], {KA_WUK}")
    A(f"s_load_dwordx2 {sr(sWQ,2)}, s[0:1], {KA_WQ}")
    A(f"s_load_dwordx2 s[6:7], s[0:1], {KA_WQKV}")
    A(f"s_load_dwordx2 {sr(sWS,2)}, s[0:1], {KA_WS}")
    A(f"s_load_dwordx2 {sr(sDBG,2)}, s[0:1], {KA_DBG}")
    A(f"s_load_dwordx2 s[32:33], s[0:1], {KA_GATE}")
    A("s_getpc_b64 s[4:5]"); A("P1_PC:")
    A("s_mov_b64 s[96:97], s[4:5]"); A("s_mov_b32 s98, P1_TAB-P1_PC"); A("s_mov_b32 s99, 0x20000")
    A("s_lshr_b32 s3, s2, 3"); A("s_mul_i32 s3, s3, 5120")
    A(f"v_mul_u32_u24 v{vCT}, 20, v0"); A(f"v_add_u32 v{vCT}, s3, v{vCT}")
    A(f"buffer_load_dword v{vTCH}, v{vCT}, s[96:99], 0 offen")
    A("s_add_u32 s4, s4, P1_TAB-P1_PC"); A("s_addc_u32 s5, s5, 0")
    A("s_and_b32 s3, s2, 7"); A(f"s_lshr_b32 s{sH}, s2, 3"); A(f"s_and_b32 s{sI}, s{sH}, 7")
    A(f"s_lshr_b32 s{sH}, s{sH}, 3"); A("s_lshl_b32 s3, s3, 2"); A(f"s_add_u32 s{sH}, s{sH}, s3")
    A(f"s_lshl_b32 s3, s{sH}, 6")
    A(f"s_load_dwordx16 {sr(sTB,16)}, s[4:5], s3")
    A("v_lshrrev_b32 v27, 6, v0"); A(f"v_and_b32 v{vLN}, 63, v0")
    A(f"v_readfirstlane_b32 s{sWAVE}, v27")
    A(f"v_lshrrev_b32 v27, 4, v{vLN}")
    A(f"v_and_b32 v28, 15, v{vLN}")
    A("v_and_b32 v24, 1, v27"); A("v_lshrrev_b32 v25, 1, v27"); A("v_lshlrev_b32 v26, 4, v28")
    A("v_and_b32 v29, 3, v28"); A("v_bfe_u32 v30, v28, 2, 1"); A("v_bfe_u32 v31, v28, 3, 1")
    A("v_lshl_add_u32 v29, v30, 3, v29"); A("v_lshl_add_u32 v29, v31, 2, v29")
    A(f"v_lshlrev_b32 v{vJQ}, 4, v29")
    A(f"s_lshl_b32 s{sLW}, s{sWAVE}, 12")
    A(f"s_mul_i32 s{sLX}, s{sWAVE}, 24576"); A(f"s_add_u32 s{sLX}, s{sLX}, {XB}")
    for src, dst in ((29, vXR), (28, vXN)):
        A(f"v_lshrrev_b32 v30, 1, v{src}"); A("v_xor_b32 v30, v30, v27"); A("v_lshlrev_b32 v30, 4, v30"); A(f"v_lshl_add_u32 v30, v{src}, 7, v30")
        A(f"v_add_u32 v{dst[0]}, s{sLX}, v30"); A(f"v_xor_b32 v{dst[1]}, 64, v{dst[0]}")
    A(f"v_lshrrev_b32 v{vL3}, 3, v{vLN}"); A(f"v_and_b32 v31, 7, v{vLN}")
    A("v_xor_b32 v30, v31, v27"); A("v_lshlrev_b32 v30, 4, v30"); A(f"v_lshl_add_u32 v{vXD[0]}, v{vL3}, 10, v30")
    A(f"v_xor_b32 v{vXD[1]}, 64, v{vXD[0]}"); A(f"v_add_u32 v{vXD[1]}, 7168, v{vXD[1]}")
    A(f"v_add_u32 v{vXD[2]}, 14336, v{vXD[0]}"); A(f"v_add_u32 v{vXD[3]}, 14336, v{vXD[1]}")
    A("v_lshlrev_b32 v30, 1, v24"); A("v_xor_b32 v30, v30, v31"); A(f"v_lshlrev_b32 v{vWC}, 4, v30")
    A("v_lshrrev_b32 v30, 2, v28"); A("v_lshl_add_u32 v29, v27, 3, v30"); A("v_lshlrev_b32 v29, 7, v29")
    A("v_and_b32 v31, 3, v28"); A("v_lshl_add_u32 v29, v31, 3, v29")
    A("v_lshrrev_b32 v30, 1, v30"); A("v_lshl_add_u32 v30, v24, 1, v30"); A("v_lshlrev_b32 v30, 5, v30")
    A(f"v_add_u32 v{vW[0]}, v29, v30")
    for ct in range(1, 4): A(f"v_xor_b32 v{vW[ct]}, {32*ct}, v{vW[0]}")
    A(f"s_lshl_b32 s{sRT}, s{sI}, 2"); A(f"s_add_u32 s{sRT}, s{sRT}, s{sWAVE}"); A(f"s_lshl_b32 s{sXA}, s{sRT}, 16"); A(f"s_add_u32 s{sXB}, s{sXA}, 32768")
    A(f"s_lshl_b32 s{sRT}, s{sRT}, 1")
    for s, n in ((sWS, WS_END), (sE, WS_END), (sX, 2*MB), (sDBG, 256), (sW, 4*MB)):
        A(f"s_mov_b32 s{s+2}, {n}"); A(f"s_mov_b32 s{s+3}, 0x20000")
    A("s_waitcnt lgkmcnt(0)")
    c += mk("ka")
    A(f"s_lshr_b32 s{sCG}, s{T_FL}, 16")
    A(f"s_cmp_eq_u32 s{T_XSEL}, 0"); A(f"s_cselect_b64 {sr(sX,2)}, s[72:73], s[74:75]")
    c += x_dma(0)
    A(f"s_mov_b64 {sr(sXP,2)}, s[72:73]"); A(f"s_mov_b64 {sr(sE,2)}, {sr(sWS,2)}")
    A(f"s_cmp_eq_u32 s{T_WSEL}, 0"); A(f"s_cselect_b64 {sr(sW,2)}, s[76:77], s[78:79]")
    A(f"s_cmp_eq_u32 s{T_WSEL}, 2"); A(f"s_cselect_b64 {sr(sW,2)}, s[6:7], {sr(sW,2)}"); A(f"s_cselect_b32 s{sW+2}, {512*3072}, s{sW+2}")
    A("s_mov_b64 s[6:7], s[96:97]")
    c += w_lane_setup(f"s{T_STR}", sT1)
    A(f"s_sub_u32 s{sK128t}, s{sK128}, 256"); A(f"s_mov_b32 s{sEN}, {WS_END}")
    A(f"s_mul_i32 s{sWOFF}, s{T_STR}, s{sWAVE}"); A(f"s_lshl_b32 s{sWOFF}, s{sWOFF}, 5"); A(f"s_add_u32 s{sWOFF}, s{sWOFF}, s{T_WCOL}")
    A(f"s_mov_b32 s{sTE}, s{T_T0}")
    c += touch_setup()
    if TPOS == "a": c += lin_touch() + touch_w3()
    c += mk("i0")
    c += w_dma(0, None, NT) + x_dma(1)
    c += mk("i1")
    if TPOS == "b": c += lin_touch() + touch_w3()
    vFL = 27
    z = F1OFF + [f"v_mov_b32 v{vFL}, 0", "s_mov_b64 exec, 1", f"buffer_store_dword v{vFL}, off, {sr(sWS,4)}, s{sZ0}{SC}",
                 f"s_lshl_b32 s{sZ0}, s{sI}, 7", f"s_lshl_b32 s{sZ1}, s{sH}, 2", f"s_add_u32 s{sZ0}, s{sZ0}, s{sZ1}", f"s_add_u32 s{sZ0}, s{sZ0}, {WS_F3}",
                 f"buffer_store_dword v{vFL}, off, {sr(sWS,4)}, s{sZ0}{SC}", f"buffer_store_dword v{vFL}, off, {sr(sWS,4)}, s{sZ0} offset:{WS_F4 - WS_F3}{SC}", "s_mov_b64 exec, -1"]
    c += w_dma(1, "128", NT) + w_dma(2, "128", NT)
    if TPOS == "c": c += lin_touch() + touch_w3()
    A(f"s_mov_b64 {sr(sGW,2)}, s[32:33]"); A(f"s_mov_b32 s{sGW+2}, 1024"); A(f"s_mov_b32 s{sGW+3}, 0x20000")
    z = [f"buffer_load_dword v{vTCH}, v31, {sr(sGW,4)}, 0 offen"] + z
    c += w0only(z, "P1_Z")
    c += mk("i2")
    A("s_waitcnt vmcnt(@Px0:1:x)"); c += mk("l0"); c += x_reads(0, False)
    A("s_waitcnt vmcnt(@Px1:0:x)"); c += mk("l1"); A("s_barrier"); c += tr_reads(0, 0) + x_reads(1, False)
    A(f"s_cmp_eq_u32 s{T_OR}, 0"); A("s_cbranch_scc0 P1_V1")
    return c

def p2(kv_setup, kv_dma0, kv_dma1, kv_dma2, mask_setup, wo_ptrs, wo_touch, out_ptr):
    sl = pair_slots(2, 0, 0, True, False)
    SG = int(os.environ.get("SG", "2"))
    sl[SG]["need"] = ["2:w", "0:st"]
    sl[SG]["postbar"] = w0only(flag_store(F1OFF, 1), "P2_S")
    def spin(lbl, load, cmp):
        return [f"s_mov_b32 s{sZ1}, 0x100000", f"{lbl}L:", "s_waitcnt vmcnt(0)", cmp, "s_nop 0", f"s_cbranch_vccz {lbl}",
                "s_sleep 8", load, f"s_sub_u32 s{sZ1}, s{sZ1}, 1", f"s_cmp_lg_u32 s{sZ1}, 0", f"s_cbranch_scc1 {lbl}L", "s_waitcnt vmcnt(0)"]
    ld0 = f"buffer_load_dword v31, v29, {sr(sDBG,4)}, 0 offen sc1"
    ld1 = f"buffer_load_dword v31, v{vPF}, {sr(sWS,4)}, 0 offen sc1"
    sl[4]["prebar"] = w0only(spin("P2_C", ld0, "v_cmp_gt_u32 vcc, v30, v31"), "P2_C")
    sl[3]["postbar"] = sl[3].get("postbar", []) + w0only([ld0], "P2_L0")
    sl[5]["postbar"] = w0only([ld1], "P2_L1")
    sl[6]["prebar"] = w0only(spin("P2_D", ld1, "v_cmp_ne_u32 vcc, 1, v31"), "P2_D")
    sl[7]["nobar"] = True
    qx = qd = None
    if os.environ.get("P2J", "1") == "1":
        for d in sl:
            for k in ("xr", "xk", "xd"): d.pop(k, None)
        X = lambda sc, h: x_dma(sc)[6*h:6*h+6]
        qd = {9: X(5,0), 10: X(5,1), 12: X(6,0), 13: X(6,1), 16: X(7,0), 17: X(7,1)}
        qx = {0: (2, 2), 4: (3, 1), 8: (4, 0), 14: (5, 1), 20: (6, 1), 22: (7, 0)}
    B = Block("q", sl, None, qx, qd)
    B.S.fill(epilogue(1, True), 3, int(os.environ.get("EE", "120")))
    B.S.fill(paddr(), 3 * 64, 3 * 64 + 46)
    if '3' in RT: B.S.fill(code_touch(48), 3 * 64 + 50, 4 * 64)
    B.S.fill(wo_ptrs, 3 * 64 + 50, 3 * 64 + 62)
    WQ = int(os.environ.get("WQ", "19"))
    if os.environ.get("WOT", "p2") == "p2": B.S.fill(wo_touch, WQ * 16, WQ * 16 + 16)
    B.S.fill(out_ptr, 18 * 16, 18 * 16 + 8)
    B.S.fill(mask_setup, 4 * 64, 5 * 64 + 46)
    B.S.fill(kv_setup, 5 * 64 + 46, 6 * 64 + 30)
    B.S.fill(kv_dma0, 6 * 64 + 48, 7 * 64 + 16)
    B.S.fill(kv_dma1, 7 * 64 + 16, 7 * 64 + 56)
    B.S.fill(q_epilogue(2, 0, 0), 6 * 64 + 34, 7 * 64 + 2)
    B.S.fill(q_epilogue(2, 0, 1), 7 * 64 + 3, 7 * 64 + 34)
    B.S.fill(q_epilogue(0, 1, 0), 7 * 64 + 35, 8 * 64)
    for q in range(1, 8): B.S.before(q * 64, MK[0](f'q{q}'))
    if os.environ.get("QOV"): print([ (g, B.S.load(g) - 16) for g in range(B.S.n) if B.S.load(g) > 16])
    qe = flat(q_epilogue(0, 1, 1)); tail = []
    k2 = list(kv_dma2)
    for i, x in enumerate(qe):
        if i % 3 == 0 and k2 and not (i and qe[i-1].startswith("s_nop")): tail.append(k2.pop(0))
        tail.append(x)
    return ["P2:"] + B.emit() + ["s_nop 1"] + tail + k2
def paddr():
    m5 = (1 << 32) // 5 + 1
    o = [f"s_lshl_b32 s{sT1}, s{sH}, 1", f"s_mul_hi_u32 s72, s{sT1}, {m5}", f"s_add_u32 s{sT1}, s{sT1}, 1", f"s_mul_hi_u32 s73, s{sT1}, {m5}",
         "s_add_u32 s74, s72, 13", "s_add_u32 s75, s73, 13", f"s_lshr_b32 s{sT1}, s{sH}, 4", f"s_add_u32 s76, s{sT1}, 26", f"s_add_u32 s77, s{sT1}, 28", f"s_add_u32 s78, s{sT1}, 30",
         f"v_mov_b32 v{vPF}, {GATE_CG}"]
    for k in range(7):
        o += [f"v_cmp_eq_u32 vcc, {k}, v{vL3}", f"v_mov_b32 v29, s{72+k}", "s_nop 0", f"v_cndmask_b32 v{vPF}, v{vPF}, v29, vcc"]
    o += [f"v_and_b32 v29, 7, v{vLN}", "v_lshlrev_b32 v29, 2, v29", f"v_lshl_add_u32 v{vPF}, v{vPF}, 7, v29", f"v_add_u32 v{vPF}, {WS_F1}, v{vPF}",
          f"v_and_b32 v29, 1, v{vLN}", "v_lshlrev_b32 v29, 7, v29", "v_mov_b32 v30, 128"]
    return o
def tabdata():
    return [".p2align 6", ".type P1_TAB,@object", "P1_TAB:"] + [".long " + ", ".join(hex(x) for x in e) for e in table()]
```

```python
from asmlib import *
from layout import *
import os

O_ = {'L': 32, 'H': 160}
S_ = [224, 144]; P_ = [128, 136]; CM = 112; TRI = 96
vK, vV, vL16, vDMA, vLO, vHI, vG = 1, 2, 3, 24, 25, 28, {'L': [29, 8], 'H': [9, 10]}
SC = ' sc1'
SUM_ = {'L': 208, 'H': 216}
ONE = 4
vT = 13
Q_ = {'L': 0, 'H': 32}; K_ = 64; V_ = 96
sWS = 8
sKV = 12
sWAVE, sH, sI = 16, 17, 18
sCNT, sSEQ, sRD, sRK, sRV, sLW, sT0, sT1, sNST, sQL, sQH, sDT, sOFF, s2I = range(56, 70)
sBS = [72, 73, 74]
sM3 = 75
BIG = fbits(-1.0e30)
RING = 5

MF = "v_mfma_f32_16x16x32_bf16"
def qk(j, sb, masked):
    o = []
    for s in range(2):
        for qs in range(2):
            x = (qs * 2 + s) * 4; d = vr(S_[sb] + x, 4)
            for ks in range(4):
                c = (vr((CM if masked == "cm" else TRI) + x, 4) if masked else "0") if ks == 0 else d
                o.append(f"{MF} {d}, {ar(K_+4*(s*4+ks),4)}, {ar(Q_[j]+4*(qs*4+ks),4)}, {c}")
    return o
def pv(j, pb, first=False):
    o = []
    for dt in range(8):
        for qs in range(2):
            d = vr(O_[j] + (dt*2+qs)*4, 4)
            o.append(f"{MF} {d}, {ar(V_+4*dt,4)}, {vr(P_[pb]+4*qs,4)}, {'0' if first else d}")
    for qs in range(2):
        d = ar(SUM_[j] + 4*qs, 4)
        o.append(f"{MF} {d}, {vr(ONE,4)}, {vr(P_[pb]+4*qs,4)}, {'0' if first else d}")
    return o
def kread(t, i): return f"ds_read_b128 {ar(K_+4*i,4)}, v{vK} offset:{t*16384 + i*1024}"
def vread(t, i): return f"ds_read_b128 {ar(V_+4*i,4)}, v{vV} offset:{t*16384 + 8192 + i*1024}"
def sm(sb, pb):
    S = S_[sb]
    e = lambda r: f"v_exp_f32 v{S+r}, v{S+r}"
    c = lambda k: f"v_cvt_pk_bf16_f32 v{P_[pb]+k}, v{S+2*k}, v{S+2*k+1}"
    seq = [e(0)]
    for r in range(1, 16):
        seq.append(e(r))
        if r % 2 == 0 and r < 14: seq.append(c(r // 2 - 1))
    return seq + [c(6), c(7)]
def cm_ops():
    o = [[f"s_cmp_lt_i32 s{sDT}, 0", f"s_cselect_b32 s{sT0}, 0, {hex(BIG)}"], f"v_mov_b32 v{vLO}, s{sT0}",
         [f"s_cmp_le_i32 s{sDT}, 0", f"s_cselect_b32 s{sT0}, 0, {hex(BIG)}"], f"v_mov_b32 v{vHI}, s{sT0}", f"s_add_u32 s{sDT}, s{sDT}, 1"]
    o += [f"v_med3_f32 v{CM+r}, v{TRI+r}, v{vLO}, v{vHI}" for r in range(16)]
    return o
def ring3(s, src=None, zero="0"):
    return [f"s_add_u32 s{s}, s{src if src else s}, 32768", [f"s_cmp_ge_u32 s{s}, {RING*32768}", f"s_cselect_b32 s{s}, {zero}, s{s}"]]
def ring_adv(s, v): return ring3(s) + [f"v_add_u32 v{v}, s{s}, v{vL16}"]
def dma_ops(dual=True):
    if dual: o = [f"s_sub_u32 s{sOFF}, 32, s{sSEQ}", [f"s_cmp_le_u32 s{sSEQ}, s{s2I}", f"s_cselect_b32 s{sOFF}, s{sSEQ}, s{sOFF}"], f"s_lshl_b32 s{sOFF}, s{sOFF}, 15"]
    else: o = [None, [None, None], f"s_lshl_b32 s{sOFF}, s{sSEQ}, 15"]
    o += [f"s_mov_b32 m0, s{sRD}", f"s_add_u32 s{sSEQ}, s{sSEQ}, 1"]
    for i in range(8):
        if i == 4: o += [f"s_add_u32 m0, s{sRD}, 4096", f"s_add_u32 s{sOFF}, s{sOFF}, 4096"]
        o.append(f"buffer_load_dwordx4 v{vDMA}, {sr(sKV,4)}, s{sOFF} offen offset:{(i%4)*1024}{SC} lds" + (" ; grpend:kv" if i == 7 else ""))
    return o + ring3(sRD, zero=f"s{sLW}")
def d_items(w):
    ld = lambda t: (0 if t < 2 else 3, t & 1); hd = lambda t: (2 if t < 2 else 1, t & 1)
    it = [('L', "cm") + ld(0), ('H', False) + ld(0), ('H', False) + ld(1)]
    it += [('L', k + 1 == w) + ld(k + 1) if k < w else ('H', k == w) + hd(3 - k) for k in range(4)]
    return it + [('H', False) + ld(2), ('H', False) + ld(3)]

cnt = [0]
EG = [0, 2, 3, 5, 7, 9, 11, 13, 16, 18, 20, 22, 24, 26, 28, 30]
CG = [4, 6, 10, 14, 19, 23, 27, 31]
KG = [4, 6, 8, 10, 12, 14, 15, 17]; VG = [19, 21, 23, 25, 27, 29, 31, 32]
def slot(qi, si, pi, n, kre, vre, bar=False, kadv=False, vadv=False, dma=None, bark=1, extra=None, prek=False, nextk=False, loop=None,
         rid=(), kset=None, vset=None, dual=False, sal=(), spill=None):
    m = []
    if qi: m += qk(qi[0], (n + 1) & 1, qi[1])
    nq = len(m)
    if pi: m += pv(pi, (n + 1) & 1)
    S = Sched(m, 16); N = len(m)
    cnt[0] += 1; tag = f"A{cnt[0]}"
    full = (N == 34)
    if qi and not prek: S.before(0, "LGK")
    if bar:
        if bark is not None: S.add(0, f"s_waitcnt vmcnt(@{tag}:{bark}:kv)")
        S.add(1, "s_barrier")
    if pi:
        if full: S.add(13, "LGV")
        else: S.before(nq, "LGV")
    if nextk: S.add(28, "LGK")
    if loop: S.add(30, f"s_sub_u32 s{sCNT}, s{sCNT}, 1"); S.add(33, f"s_cbranch_scc0 {loop}")
    S.tail = [] if nextk else ["s_nop 0"]
    d = []
    for x in dma_ops(dual): d += x if isinstance(x, list) else [x]
    def put(gs, xs):
        for g, x in zip(gs, xs):
            if x: S.add(g, x)
    if full:
        e, cv = [x for x in sm(n & 1, n & 1) if "exp" in x], [x for x in sm(n & 1, n & 1) if "cvt" in x]
        if kre is not None: put(KG, [kread(kre, i) for i in range(8)])
        if vre is not None: put(VG, [vread(vre, i) for i in range(8)])
        if dma == 1:
            if dual: put([2, 3, 5, 7, 9, 16], d[0:6]); put([12, 17, 25, 29] if loop else [12, 17, 25, 33], d[6:10])
            else: put([5, 7, 16], d[3:6]); put([8, 17, 25, 29] if loop else [8, 17, 25, 33], d[6:10])
        if dma in (2, 21):
            S.add(0, d[10]); S.add(1, [d[11], d[12]])
            S.add(12 if dma == 2 else 17, d[13])
        if dma in (2, 22):
            put([25, 33] if dma == 2 else [1, 33], d[14:16]); put([22, 24, 26], d[16:19])
        if dma == 23:
            S.add(0, d[10]); S.add(1, [d[11], d[12]]); put([6, 8, 12], d[13:16]); put([2, 3, 5], d[16:19])
            put([16, 18, 20, 22, 24], [f"s_sub_u32 s{sSEQ}, s{sSEQ}, 2", d[3], d[4], d[5], f"s_sub_u32 s{sKV+2}, s{sKV+2}, 65536"])
            put([21, 25, 29, 33], d[6:10])
        if vadv: put([9, 11, 12, 15], flat(ring_adv(sRV, vV)))
        if kadv: put([16, 18, 20, 21], flat(ring_adv(sRK, vK)))
        if kset is not None: S.add(21, f"v_add_u32 v{vK}, s{kset}, v{vL16}")
        if vset is not None: S.add(15, f"v_add_u32 v{vV}, s{vset}, v{vL16}")
        for g, x in sal: S.add(g, x)
        if rid:
            gs = [8, 12, 17, 21, 25, 29, 32, 33]
            step = len(gs) / len(rid)
            for i, x in enumerate(rid): S.add(gs[int(i * step)], x)
        put(EG, e); put(CG, cv)
    else:
        if vre is not None: put([1, 3, 5, 7, 9, 11, 13, 15], [vread(vre, i) for i in range(8)])
        if si: S.fill(sm(n & 1, n & 1), 0, N)
    if extra: S.fill(extra, 0, N)
    return S.emit(), None, S.over()

def flat(l):
    o = []
    for x in l: o += [x] if isinstance(x, str) else x
    return o

def resolve_lg(traces):
    res = {}
    for tr in traces:
        q = []
        for ins in tr:
            if ins.startswith("LG"):
                lo = K_ if ins[2] == "K" else V_
                need = [i for i, b in enumerate(q) if b is not None and lo <= b < lo + 32]
                n = len(q) - 1 - need[-1] if need else 15
                n = min(n, 15)
                res[ins] = min(res.get(ins, 15), n)
                continue
            mm = re.match(r"ds_read_b128 a\[(\d+):", ins)
            if mm: q.append(int(mm.group(1)))
            elif ins.startswith("ds_"): q.append(None)
    return res

def uniq_lg(code, pfx):
    o = []
    for i, ins in enumerate(code):
        o.append(f"{ins}#{pfx}{i}" if ins in ("LGK", "LGV") else ins)
    return o

def section(slots, name, spill_in):
    code = []; sp = spill_in; ov = 0
    for kw in slots:
        c, sp, o = slot(spill=sp, **kw); code += c; ov += o
    print("K2", name, "over", ov)
    return uniq_lg(code, name), sp

def kv_setup(vLN):
    c = []; A = c.append
    A(f"s_lshl_b32 s{s2I}, s{sI}, 1")
    A(f"s_lshl_b32 s{sLW}, s{sWAVE}, 13")
    A(f"v_lshlrev_b32 v{vDMA}, 4, v{vLN}"); A(f"v_add_u32 v{vDMA}, s{sLW}, v{vDMA}")
    A(f"s_lshl_b32 s{sQL}, s{sI}, 2"); A(f"s_add_u32 s{sQL}, s{sQL}, s{sWAVE}"); A(f"s_sub_u32 s{sQH}, 63, s{sQL}")
    A(f"s_sub_u32 s{sNST}, 32, s{s2I}")
    A(f"s_lshl_b32 s{sT0}, s{sH}, 20"); A(f"s_add_u32 s{sT0}, s{sT0}, {WS_KV}")
    A(f"s_lshl_b32 s{sKV+2}, s{sNST}, 15")
    A([f"s_add_u32 s{sKV}, s{sWS}, s{sT0}", f"s_addc_u32 s{sKV+1}, s{sWS+1}, 0"])
    A(f"s_add_u32 s{sRD}, s{sLW}, 65536"); A(f"s_mov_b32 s{sSEQ}, 0")
    A(f"s_mov_b32 s{sRK}, 65536"); A(f"s_mov_b32 s{sRV}, 32768")
    return c
def kv_dma0(): return dma_ops()
def kv_dma1(): return dma_ops()
def kv_dma2(): return []
def mask_setup(vLN):
    c = []; A = c.append
    t0, t1 = P_[1], P_[1] + 1
    A(f"v_lshrrev_b32 v{t0}, 5, v{vLN}"); A(f"v_lshlrev_b32 v{t0}, 4, v{t0}"); A(f"v_and_b32 v{t1}, 15, v{vLN}"); A(f"v_sub_u32 v{t0}, v{t1}, v{t0}")
    A(f"v_bfe_u32 v{t1}, v{vLN}, 4, 1"); A(f"v_lshlrev_b32 v{t1}, 2, v{t1}"); A(f"v_sub_u32 v{t0}, v{t0}, v{t1}")
    A(f"v_mov_b32 v{t1}, {hex(BIG)}")
    pr = ["s[72:73]", "s[74:75]", "s[76:77]", "s[70:71]"]
    for r0 in range(0, 16, 4):
        for r in range(r0, r0 + 4): A(f"v_cmp_gt_i32 {pr[r&3]}, {8*((r>>2)&1) + (r&3) - 16*(r>>3)}, v{t0}")
        for r in range(r0, r0 + 4): A(f"v_cndmask_b32 v{TRI+r}, 0, v{t1}, {pr[r&3]}")
    A(f"s_sub_u32 s{sDT}, 0, s{sWAVE}")
    c += cm_ops()
    for r in range(8): A(f"v_mov_b32 v{P_[0]+r}, 0")
    for r in range(16): A(f"v_mov_b32 v{S_[1]+r}, v{t1}")
    return c
def wo_ptrs():
    return [f"s_load_dwordx2 s[96:97], s[0:1], {KA_WO}", f"s_load_dwordx2 s[48:49], s[0:1], {KA_BWO}",
            f"s_mov_b32 s98, {4*MB}", "s_mov_b32 s99, 0x20000", f"s_mov_b32 s50, {MB//2}"]
def out_ptr(): return [f"s_load_dwordx2 s[44:45], s[0:1], {KA_OUT}"]
def wo_touch(vLN):
    t = 19
    return [f"v_and_b32 v{t}, 31, v{vLN}", f"v_lshlrev_b32 v{t}, 7, v{t}", "s_lshl_b32 s100, s2, 2", f"s_add_u32 s100, s100, s{sWAVE}", "s_lshl_b32 s100, s100, 12",
            f"buffer_load_dword v23, v{t}, s[96:99], s100 offen", f"buffer_load_dword v23, v{t}, s[48:51], s100 offen"]
def prologue(vLN):
    c = []; A = c.append
    A(f"v_lshlrev_b32 v{vL16}, 4, v{vLN}")
    A(f"v_add_u32 v{vK}, s{sRK}, v{vL16}")
    for r in range(0, 64, 2): A(f"v_mov_b64 {vr(O_['H']+r,2)}, 0")
    c += ones(vLN)
    A("s_waitcnt vmcnt(@P30:1:kv)"); A("s_barrier")
    c += [kread(0, ks) for ks in range(8)]
    c += flat(dma_ops()[:9])
    for r in range(0, 64, 2): A(f"v_mov_b64 {vr(O_['L']+r,2)}, 0")
    for r in range(16): A(f"v_accvgpr_write_b32 a{SUM_['L']+r}, 0")
    return c
def ones(vLN):
    return [f"v_and_b32 v21, 3, v{vLN}", "v_cmp_eq_u32 vcc, 0, v21", "v_mov_b32 v21, 0x3f803f80", "s_nop 0"] + [f"v_cndmask_b32 v{ONE+r}, 0, v21, vcc" for r in range(4)]
def gate_parts(vLN):
    v = [f"v_and_b32 v21, 15, v{vLN}", "v_lshlrev_b32 v18, 2, v21"]
    sc = [f"s_lshl_b32 s78, s{sQL}, 7", f"s_add_u32 s78, s78, {WS_GATE}", f"s_lshl_b32 s79, s{sQH}, 7", f"s_add_u32 s79, s79, {WS_GATE}"]
    ld = [f"buffer_load_dword v{vG[j][qs]}, v18, {sr(sWS,4)}, s{b} offen offset:{64*qs}{SC}" + (" ; grpend:ga" if j == 'H' and qs else "") for j, b in (('L', 78), ('H', 79)) for qs in range(2)]
    return v, sc, ld

sBAD = 70
sCA = 76
HP = 32
vLS = [11, 12]
def rowsum(j): return [f"v_accvgpr_read_b32 v{vLS[qs]}, a{SUM_[j]+4*qs}" for qs in range(2)]
def check(j):
    c = []
    for qs in range(2):
        c += [f"v_cmp_nle_f32 vcc, {hex(fbits(2.0**-64))}, v{vLS[qs]}"]
        c += [f"s_mov_b64 {sr(sBAD,2)}, vcc"] if (j == 'L' and qs == 0) else [f"s_or_b64 {sr(sBAD,2)}, {sr(sBAD,2)}, vcc"]
        c += [f"v_cmp_nge_f32 vcc, {hex(fbits(2.0**64))}, v{vLS[qs]}", f"s_or_b64 {sr(sBAD,2)}, {sr(sBAD,2)}, vcc"]
    return c
def ctx_off(sq, a):
    return [f"s_mul_i32 s{a}, s{sq}, {288*1024}", f"s_lshl_b32 s{a+1}, s{sH}, 13", f"s_add_u32 s{a}, s{a}, s{a+1}",
            f"s_add_u32 s{a}, s{a}, {WS_CTX}", f"s_add_u32 s{a+1}, s{a}, 4096"]
def scale_pack(j, store, inplace=False):
    c = []; A = c.append
    sc = [vT + 1, vT + 2]
    for qs in range(2): A(f"v_rcp_f32 v{sc[qs]}, v{vLS[qs]}")
    c += ctx_off(sQL if j == 'L' else sQH, sCA)
    for qs in range(2): A(f"v_mul_f32 v{sc[qs]}, v{sc[qs]}, v{vG[j][qs]}")
    prev = []
    for fr in range(8):
        b = O_[j] + 8 * fr; t = b if (store or inplace) else HP + 4 * fr
        for r in range(0, 8, 2):
            q = r >> 2
            A(f"v_pk_mul_f32 {vr(b+r,2)}, {vr(b+r,2)}, {vr(sc[0],2)} op_sel:[0,{q}] op_sel_hi:[1,{q}]")
        c += prev
        for r in range(4): A(f"v_cvt_pk_bf16_f32 v{t+r}, v{b+2*r}, v{b+2*r+1}")
        prev = [f"v_permlane16_swap_b32 v{t}, v{t+2}", f"v_permlane16_swap_b32 v{t+1}, v{t+3}"]
        if store: prev.append(f"buffer_store_dwordx4 {vr(t,4)}, v{vL16}, {sr(sWS,4)}, s{sCA + fr//4} offen offset:{(fr%4)*1024}{SC}")
    return c + ["s_nop 1"] + prev
def h_stores():
    return [f"buffer_store_dwordx4 {vr(HP+4*fr,4)}, v{vL16}, {sr(sWS,4)}, s{sCA + fr//4} offen offset:{(fr%4)*1024}{SC}" + (" ; grpend:ca" if fr == 7 else "") for fr in range(8)]
def l_epilogue(): return rowsum('L') + check('L') + scale_pack('L', False, True)
def l_stores(): return [f"buffer_store_dwordx4 {vr(O_['L']+8*fr,4)}, v{vL16}, {sr(sWS,4)}, s{sCA + fr//4} offen offset:{(fr%4)*1024}{SC}" for fr in range(8)]
def epilogue(early):
    c = ['s_nop 7'] + rowsum('H') + check('H')
    c.append("s_cbranch_scc1 K2_SLOW" if not os.environ.get("K2X") else "s_cbranch_execz K2_SLOW")
    c.append("K2_STORE:")
    return c + scale_pack('H', False)

def slow():
    c = ["K2_SLOW:", "s_waitcnt vmcnt(0)", f"s_lshl_b32 s{sKV+2}, s{sNST}, 15"]; A = c.append
    S = S_[0]; P = P_[0]; vM = [16, 17]; vX = 18
    def loads(base, extra):
        o = [f"s_lshl_b32 s{sT0}, s{sCNT}, 14", f"s_add_u32 s{sT0}, s{sT0}, {extra}", f"s_add_u32 s{sT1}, s{sT0}, 4096"]
        o += [f"buffer_load_dwordx4 {ar(base+4*i,4)}, v{vL16}, {sr(sKV,4)}, s{sT0 if i < 4 else sT1} offen offset:{(i%4)*1024}{SC}" for i in range(8)]
        return o
    def mask(sq):
        return [f"s_sub_u32 s{sDT}, s{sCNT}, s{sq}"] + flat(cm_ops()) + ["s_nop 1"]
    for j, sq in (('L', sQL), ('H', sQH)):
        for qs in range(2): A(f"v_mov_b32 v{vM[qs]}, {hex(BIG)}")
        A(f"s_mov_b32 s{sCNT}, 0")
        A(f"K2_SM{j}:")
        c += loads(K_, 0) + mask(sq); A("s_waitcnt vmcnt(0)")
        c += qk(j, 0, "cm"); A("s_nop 15")
        for r in range(16): A(f"v_max_f32 v{vM[r>>3]}, v{vM[r>>3]}, v{S+r}")
        A(f"s_add_u32 s{sCNT}, s{sCNT}, 1"); A(f"s_cmp_le_u32 s{sCNT}, s{sq}"); A(f"s_cbranch_scc1 K2_SM{j}")
        for qs in range(2):
            for op in ("v_permlane16_swap_b32", "v_permlane32_swap_b32"):
                A(f"v_mov_b32 v{vX}, v{vM[qs]}"); A("s_nop 1"); A(f"{op} v{vM[qs]}, v{vX}"); A(f"v_max_f32 v{vM[qs]}, v{vM[qs]}, v{vX}")
        for r in range(64): A(f"v_mov_b32 v{O_[j]+r}, 0")
        for r in range(8): A(f"v_accvgpr_write_b32 a{SUM_[j]+r}, 0")
        A(f"s_mov_b32 s{sCNT}, 0")
        A(f"K2_SP{j}:")
        c += loads(K_, 0) + loads(V_, 8192) + mask(sq); A("s_waitcnt vmcnt(0)")
        c += qk(j, 0, "cm"); A("s_nop 15")
        for r in range(16): A(f"v_sub_f32 v{S+r}, v{S+r}, v{vM[r>>3]}")
        for r in range(16): A(f"v_exp_f32 v{S+r}, v{S+r}")
        A("s_nop 0")
        for r in range(8): A(f"v_cvt_pk_bf16_f32 v{P+r}, v{S+2*r}, v{S+2*r+1}")
        A("s_nop 1")
        c += pv(j, 0)
        A(f"s_add_u32 s{sCNT}, s{sCNT}, 1"); A(f"s_cmp_le_u32 s{sCNT}, s{sq}"); A(f"s_cbranch_scc1 K2_SP{j}")
        A("s_nop 15")
        c += rowsum(j)
        if j == 'L': c += scale_pack('L', True)
    A("s_branch K2_STORE")
    return c

def gen(vLN, early, mark, mk=lambda n: []):
    cnt[0] = 0
    P = prologue(vLN)
    L, H = 'L', 'H'
    K = dict(prek=True, nextk=True)
    gv, gs_, gl = gate_parts(vLN)
    ld = early["ld"]; ev = gv + early["valu"]; s1 = gs_ + early["s1"]; s2 = early["s2"]
    WOT = os.environ.get("WOT", "p2")
    wt = wo_touch(vLN)
    EC = [int(x) for x in os.environ.get("EC", "18,24,36,44,48,52,56,60").split(",")]
    base = lambda st: sRK if st == 0 else sBS[st - 1]
    def dslot(j, w):
        it = d_items(w); prev = [('L',), ('H',)] + it
        d = dict(qi=it[j][:2], si=prev[j+1][0], pi=prev[j][0], n=j + 1, kre=None, vre=None, **K)
        if 1 <= j < 8: d["kre"] = it[j+1][3]
        if j == 2: d["kre"] = 0
        if j == 8: d["kre"] = 0
        if j == 1: d["kset"] = sM3
        if 2 <= j < 7: d["kset"] = base(it[j+2][2])
        if j == 2: d["kset"] = sT0
        if j == 1 or j >= 3: d["vre"] = it[j-1][3]; d["vset"] = base(it[j-1][2])
        d["extra"] = ev[(EC[j-1] if j else 0):(EC[j] if j < 8 else len(ev))]
        if j == 0: d.update(dma=23, sal=list(zip([7, 9, 11, 26, 30, 32], flat(ring3(sBS[0], sRK) + ring3(sBS[1], sBS[0])))))
        if j == 1: d.update(dma=2, sal=list(zip([2, 3, 5, 7, 9, 11, 16, 18], flat(ring3(sBS[2], sBS[1])) +
                        [f"s_cmp_eq_u32 s{sWAVE}, 0", f"s_cselect_b32 s{sM3}, s{sBS[0]}, s{sRK}", f"s_add_u32 s{sM3}, s{sM3}, 16384",
                         f"s_cmp_lt_u32 s{sWAVE}, 2", f"s_cselect_b32 s{sT0}, s{sBS[0]}, s{sBS[2]}"])))
        if j == 2: d.update(bar=True, bark=2, sal=list(zip([2, 3, 5, 7, 9, 11, 16, 18, 20, 22, 24, 26, 30], s1[:13])), rid=[[], []] + gl + [[], []])
        if j == 3: d.update(bar=True, bark=0, dma=1, sal=list(zip([2, 3, 9, 11, 18, 20, 22], s1[13:])))
        if j == 4: d.update(dma=2, rid=ld[0:4])
        if j == 5: d.update(rid=ld[4:12], sal=list(zip([0, 2, 3, 5, 7, 9, 11, 16, 18, 20, 22, 24, 26], s2)))
        if j == 6: d.update(bar=True, bark=None, dma=1, rid=ld[12:15])
        if j == 7: d.update(dma=2, rid=ld[15:], kadv=True, sal=[(2, f"s_mov_b32 s{sRV}, s{sBS[2]}"), (15, f"s_mov_b32 s{sRK}, s{sBS[2]}")])
        if j == 8:
            d.update(bar=True, dma=1)
            if WOT == "d8": d.update(sal=[(1, wt[0]), (12, wt[1]), (18, wt[2]), (20, wt[3]), (22, wt[4]), (29, wt[5]), (32, wt[6])])
        return d
    D0, _ = section([dslot(j, 0) for j in range(3)], "d0", None)
    DV = [section([dslot(j, w) for j in range(3, 8)], f"dv{w}", None)[0] for w in range(4)]
    D8, _ = section([dslot(8, 0)], "d8", None)
    def dual(loop): return [
        dict(qi=(L, False), si=H, pi=L, n=3, kre=None, vre=None, dma=21, **K),
        dict(qi=(H, False), si=L, pi=H, n=0, kre=1, vre=0, vadv=True, **K),
        dict(qi=(L, False), si=H, pi=L, n=1, kre=None, vre=None, kadv=True, dma=22, **K),
        dict(qi=(H, False), si=L, pi=H, n=2, kre=0, vre=1, bar=True, dma=1, dual=True, loop=loop, **K)]
    D_, _ = section(dual(None) + dual("K2_DL"), "dual", None)
    def single(loop=None): return [
        dict(qi=(H, False), si=H, pi=H, n=0, kre=1, vre=1, kadv=True, dma=2, **K),
        dict(qi=(H, False), si=H, pi=H, n=1, kre=0, vre=0, bar=True, vadv=True, dma=1, loop=loop, **K)]
    S_1, _ = section(single() + single() + single() + single(loop="K2_SL"), "single", None)
    E3, _ = section([dict(qi=None, si=H, pi=H, n=0, kre=None, vre=1), dict(qi=None, si=None, pi=H, n=1, kre=None, vre=None)], "drain", None)
    EP = epilogue(early); SL = slow()
    P = P + ["s_waitcnt lgkmcnt(0)"] + mk('a0')
    sel = [f"s_cmp_eq_u32 s{sWAVE}, 1", "s_cbranch_scc1 K2_V1", f"s_cmp_eq_u32 s{sWAVE}, 2", "s_cbranch_scc1 K2_V2", f"s_cmp_eq_u32 s{sWAVE}, 3", "s_cbranch_scc1 K2_V3"]
    lD = [f"s_sub_u32 s{sCNT}, s{sI}, 1", "s_cbranch_scc1 K2_B", ".p2align 4", "K2_DL:"]
    lB = ["K2_B:"] + mk('a1')
    LE = mk('a2') + ["s_waitcnt vmcnt(@gate:0:ga)", "s_nop 4"] + rowsum('L') + check('L') + scale_pack('L', True) + mk('a3')
    lS = mk('a4') + [f"s_sub_u32 s{sCNT}, 6, s{sI}", "s_cbranch_scc1 K2_E", ".p2align 4", "K2_SL:"]
    lE = ["K2_E:"] + mk('a5')
    traces = []
    for i in range(8):
        for w in ([0, 1, 2, 3] if i in (0, 7) else [i & 3]):
            tr = P + lD
            for _ in range(i): tr = tr + D_
            tr = tr + lB + D0 + sel + DV[w] + LE + D8 + lS
            for _ in range(7 - i): tr = tr + S_1
            traces.append(tr + lE + E3 + mark + EP)
    lg = resolve_lg(traces)
    fix = lambda code: [f"s_waitcnt lgkmcnt({lg[x]})" if x.startswith("LG") else x for x in code]
    traces = [fix(t) for t in traces]
    k = [i for i, x in enumerate(EP) if x == "K2_STORE:"][0]
    slowtraces = [t[:len(t) - len(EP)] + EP[:k] + SL + EP[k:] for t in (traces[5], traces[-1])]
    code = P + lD + D_ + lB + D0 + sel + DV[0] + ["K2_J:"] + LE + D8 + lS + S_1 + lE + E3 + mark + EP
    out = []
    for w in range(1, 4): out += [f"K2_V{w}:"] + DV[w] + ["s_branch K2_J"]
    return fix(code), fix(out) + SL, traces + slowtraces
```

```python
from asmlib import *
from layout import *
import os
BIG = fbits(-1.0e30)
def flat(l):
    o = []
    for x in l: o += [x] if isinstance(x, str) else x
    return o
SC = " sc1"
O_ = 64; S_ = [192, 208]; P_ = [224, 232]; WF = [16, 24]
vL16 = 3
vVA, vG, vL16b, vTR, vWD, vLN = 240, [241, 242], 243, [244, 245], [246, 247, 248, 249], 250
T0_, T1_, T2_, T3_, T4_ = 251, 252, 253, 254, 255
ACC = 0; CX = 64; Q_ = 128; KB = [160 + 4*b for b in range(4)]; VB = [176 + 8*b for b in range(4)]
sWS, sW, sDBG, sOUT = 8, 12, 40, 44
sWAVE, sH, sQB = 16, 17, 18
sRT, sCT = 17, 18
sCNT, sKK, sKV, sT0, sT1, sC0, sWO, sLW, sCB, sWC = range(19, 29)
sM, sWB, sWA = 30, 32, 34
sZ0, sZ1 = 36, 37
RED = 65536
PD = int(os.environ.get("PD", "4"))
PE = int(os.environ.get("PE", "8"))

def b_qk(j, kb, sb): return f"v_mfma_f32_32x32x16_bf16 {vr(S_[sb],16)}, {ar(KB[kb],4)}, {ar(Q_+4*j,4)}, 0"
def b_pv(j, vb, pb, f, first=False):
    d = vr(O_ + 16*j, 16)
    return f"v_mfma_f32_32x32x16_bf16 {d}, {ar(VB[vb]+4*f,4)}, {vr(P_[pb]+4*f,4)}, {'0' if first and f == 0 else d}"
def b_kload(b): return [f"buffer_load_dwordx4 {ar(KB[b],4)}, v{vL16}, {sr(sWS,4)}, s{sKK} offen{SC} ; grpend:k{b}", f"s_add_u32 s{sKK}, s{sKK}, 2048"]
def b_vload(b):
    return [f"s_mov_b64 exec, {sr(sM,2)}"] + [f"buffer_load_dwordx4 {ar(VB[b]+4*f,4)}, v{vVA}, {sr(sWS,4)}, s{sKV} offen offset:{1024 + 512*f}{SC}" + (f" ; grpend:v{b}" if f else "") for f in range(2)] + \
           ["s_mov_b64 exec, -1", f"s_add_u32 s{sKV}, s{sKV}, 2048"]
def o_mf(s, i):
    qt, mt = i >> 1, i & 1
    d = ar(ACC + (mt*2+qt)*16, 16)
    return f"v_mfma_f32_32x32x16_bf16 {d}, {vr(WF[s&1]+4*mt,4)}, {ar(CX+8*s+4*qt,4)}, {d}"
def o_ctx(s, qt): return f"buffer_load_dwordx4 {ar(CX+8*s+4*qt,4)}, v{vL16b if qt else vL16}, {sr(sWS,4)}, s{sC0} offen offset:{(s%4)*1024}{SC}" + (" ; grpend:o" if qt else "")
def o_dma(s, i, tag=""):
    k = (s & 1) * 2 + i
    return f"buffer_load_dwordx4 v{vWD[k]}, {sr(sW,4)}, s{sWO} offen offset:{k*1024} lds" + tag
def o_pre(s): return [f"s_add_u32 m0, s{sLW}, {s*2048}", f"s_add_u32 s{sWO}, s{sWO}, 32768"] if s % 2 == 0 else []
def o_post(s): return [f"s_add_u32 s{sC0}, s{sC0}, 4096"] if s % 4 == 3 else []
def o_trs(s): return [f"ds_read_b64_tr_b16 {vr(WF[s&1]+4*mt+2*e,2)}, v{vTR[mt]} offset:{s*2048 + e*512}" for mt in range(2) for e in range(2)]
def w0only(code, lbl): return [f"s_cmp_lg_u32 s{sWAVE}, 0", f"s_cbranch_scc1 {lbl}"] + code + [f"{lbl}:"]
def flag_store(base):
    return [f"s_lshl_b32 s{sZ0}, s{sQB}, 7", f"s_lshl_b32 s{sZ1}, s{sH}, 2", f"s_add_u32 s{sZ0}, s{sZ0}, s{sZ1}", f"s_add_u32 s{sZ0}, s{sZ0}, {base}",
            f"v_mov_b32 v{T0_}, 1", "s_mov_b64 exec, 1", f"buffer_store_dword v{T0_}, off, {sr(sWS,4)}, s{sZ0}{SC}", "s_mov_b64 exec, -1"]
def flag_load(): return f"buffer_load_dword v{T1_}, v{T2_}, {sr(sWS,4)}, s{sZ0} offen{SC}"
def flag_lane(): return [f"v_and_b32 v{T2_}, 31, v{vLN}", f"v_lshlrev_b32 v{T2_}, 2, v{T2_}"]
def spin(lbl):
    return [f"s_mov_b32 s{sZ1}, 0x100000", f"{lbl}L:", "s_waitcnt vmcnt(0)", f"v_cmp_ne_u32 vcc, 1, v{T1_}", "s_nop 0", f"s_cbranch_vccz {lbl}",
            "s_sleep 4", flag_load(), f"s_sub_u32 s{sZ1}, s{sZ1}, 1", f"s_cmp_lg_u32 s{sZ1}, 0", f"s_cbranch_scc1 {lbl}L", "s_waitcnt vmcnt(0)"]

def smseq(n):
    S = S_[n & 1]; P = P_[n & 1]
    e = lambda r: f"v_exp_f32 v{S+r}, v{S+r}"
    c = lambda k: f"v_cvt_pk_bf16_f32 v{P+k}, v{S+2*k}, v{S+2*k+1}"
    return [e(0), e(1), e(2), c(0), e(3), e(4), c(1), e(5), e(6), c(2), e(7), e(8), c(3), e(9), e(10), c(4), e(11), e(12), c(5), e(13), e(14), e(15), c(6), c(7)]

def red_writes(j):
    return [f"ds_write_b128 v{T0_}, {vr(O_+16*j+4*k,4)} offset:{j*3072 + k*1024}" for k in range(2)] + [f"ds_write_b32 v{T0_}, v{O_+16*j+8} offset:{j*3072 + 2048}"]
def body(fused, tag, extra=None, first=False, last=False):
    o = []
    for n in range(32):
        qn = (n + 1) % 32; pn = (n - 1) % 32
        QK = [b_qk(qn % 8, qn // 8, (n + 1) & 1)]; PV = [[b_pv(pn % 8, pn // 8, (n + 1) & 1, f, first and pn < 8)] for f in range(2)]
        if first and n == 0: PV = [[], []]
        if last and n == 31: QK = []
        xq = []; xp = []
        if n % 8 == 6 and not last: xq = b_kload(n // 8)
        if n % 8 == 0 and not (first and n == 0) and not (last and n > 0): xp = b_vload((n // 8 - 1) % 4)
        if n % 8 == 6 and not (last and n == 30): xp = xp + [f"s_waitcnt vmcnt(@{tag}{n}:0:k{(n // 8 + 1) % 4})"]
        if n % 8 == 1: xq = xq + [f"s_waitcnt vmcnt(@{tag}{n}:0:v{n // 8})"]
        q = smseq(n)
        if not fused:
            ex = (extra or {}).get(n, [[], [], []])
            o += QK + xq + ex[0] + q[:8] + PV[0] + ex[1] + q[8:16] + PV[1] + xp + ex[2] + q[16:]
        else:
            s = (n // 2) % 8; t = o_trs((s + 1) % 8); k = n // 2
            xs = [int(16 * (i + 0.5) / (PE - PD)) - 1 for i in range(PE - PD)] if last else []
            l0 = PD + sum(1 for x in xs if x < k); ext = k in xs; p = (s + l0 + ext) % 8
            if n % 2 == 0:
                sh = [[f"s_waitcnt vmcnt(@{tag}o{n}:{l0-2}:o) lgkmcnt({3 if last and n >= 28 else 0})"], [t[0]], [t[1]], [t[2]], [t[3]]]
                M = [QK, [o_mf(s, 0)], PV[0], [o_mf(s, 1)], PV[1]]
                if ext:
                    e = (s + l0) % 8
                    sh[0] += o_pre(e); sh[1] += [o_dma(e, 0)]; sh[2] += [o_dma(e, 1)]; sh[3] += [o_ctx(e, 0)]; sh[4] += [o_ctx(e, 1)] + o_post(e)
                sh[4] = sh[4] + o_pre(p)
            else:
                sh = [[o_dma(p, 0)], [o_dma(p, 1)], [o_ctx(p, 0)], [o_ctx(p, 1)], o_post(p)]
                M = [QK, [o_mf(s, 2)], PV[0], [o_mf(s, 3)], PV[1]]
            sh[0] = xq + sh[0] if n % 2 == 0 else sh[0] + xq
            sh[4] = sh[4] + xp
            if last and n >= 26:
                w = red_writes(n - 26)
                if n % 2 == 0: sh[1] = [w[0]] + sh[1]; sh[2] = [w[1]] + sh[2]; sh[3] = [w[2]] + sh[3]
                else: sh[2] = sh[2] + [w[0]]; sh[3] = sh[3] + [w[1]]; sh[4] = [w[2]] + sh[4]
            cuts = [0, 5, 10, 14, 19, 24]
            for g in range(5): o += M[g] + sh[g] + q[cuts[g]:cuts[g+1]]
    return o

NS = int(os.environ.get("NS", "56"))
def fused_all():
    o = []; NSL = 96
    oms = [(k, i) for k in range(NS) for i in range(4)]
    q_mem = []
    issued = PD
    done = (-1, 3); om = 0
    totg = min(NS + PE, 64)
    nlds = 0
    for n in range(NSL):
        it = 32 + n; nn = it % 32; last = it >= 96
        qn = (nn + 1) % 32; pn = (nn - 1) % 32
        QK = b_qk(qn % 8, qn // 8, (nn + 1) & 1) if n < NSL - 1 else None
        PV = [b_pv(pn % 8, pn // 8, (nn + 1) & 1, f) for f in range(2)]
        xq = []; xp = []
        if nn % 8 == 6 and not last: xq = b_kload(nn // 8)
        if nn % 8 == 0 and not (last and nn > 0): xp = b_vload((nn // 8 - 1) % 4)
        if nn % 8 == 6 and not (last and nn == 30): xp = xp + [f"s_waitcnt vmcnt(@u{n}:0:k{(nn // 8 + 1) % 4})"]
        if nn % 8 == 1: xq = xq + [f"s_waitcnt vmcnt(@u{n}:0:v{nn // 8})"]
        cnt = (len(oms) * (n + 1)) // NSL - om
        mine = oms[om:om + cnt]; om += cnt
        M = [("q", QK)] + [("o", x) for x in mine[:1]] + [("p", PV[0])] + [("o", x) for x in mine[1:2]] + [("P", PV[1])] + [("o", x) for x in mine[2:]]
        q = smseq(nn); G = len(M)
        cum = []; t = 0
        for x in q: t += vcost(x); cum.append(t)
        cuts = [0] + [min(range(len(q) + 1), key=lambda j: abs((cum[j-1] if j else 0) - t * (g + 1) / G)) for g in range(G - 1)] + [len(q)]
        rw = red_writes(nn - 26) if last and nn >= 26 else []
        for g, (kind, x) in enumerate(M):
            sh = []
            if kind == "o":
                k, i = x; o.append(o_mf(k % 8, i)); done = x
                if i == 0:
                    if k + 1 < 64: q_mem = [([y], None) for y in o_trs((k + 1) % 8)] + q_mem
                    want = min(totg, PD + ((totg - PD) * (k + 1) + NS - 1) // NS)
                    while issued < want:
                        p = issued % 8; w = issued - 8
                        q_mem += [(o_pre(p) + [o_dma(p, 0)], (w, 0)), ([o_dma(p, 1)], (w, 0)), ([o_ctx(p, 0)], (w, 1)), ([o_ctx(p, 1)] + o_post(p), (w, 3))]
                        issued += 1
            elif x: o.append(x)
            if kind == "q": sh += xq
            nm = 2 if len(q_mem) > 9 else 1
            if kind == "q" and xq: nm -= 1
            if kind == "P" and any("buffer" in y for y in xp): nm = 0
            while nm > 0 and q_mem and (q_mem[0][1] is None or q_mem[0][1] <= done):
                y = q_mem.pop(0)[0]; sh += y; nm -= 1
                if y[0].startswith("ds_read"): nlds = 0
            if rw and g >= 2: sh.append(rw.pop(0)); nlds += 1
            if kind == "P": sh += xp
            nxt = M[g + 1] if g + 1 < G else None
            if nxt and nxt[0] == "o" and nxt[1][1] == 0:
                k = nxt[1][0]
                assert not any(y[0][0].startswith("ds_read") for y in q_mem)
                ended = issued - sum(1 for y in q_mem if "grpend:o" in y[0][0])
                sh.append(f"s_waitcnt vmcnt(@uo{k}:{ended - (k + 2)}:o) lgkmcnt({nlds})")
            o += sh + q[cuts[g]:cuts[g+1]]
        assert not rw
    for y in q_mem: o += y[0]
    return o
HB = int(os.environ.get('HB', '0'))
def o_steps(tag, first, count, mid=None):
    c = []; held = []
    sw = [f"s_mov_b64 {sr(sW,2)}, {sr(sWB,2)}", f"s_mov_b32 s{sW+2}, {MB//2}", f"s_lshl_b32 s{sT0}, s{sWAVE}, 17", f"s_add_u32 s{sWO}, s{sWC}, s{sT0}"]
    for k in range(first, first + count):
        s = k % 8; p = (k + PE) % 8; m = [o_mf(s, i) for i in range(4)]
        if mid and k in mid: c += mid[k]
        t = o_trs((s + 1) % 8) if k not in (63, 71) else []
        if False:
            c += [f"s_waitcnt vmcnt(@{tag}{k}:{PE-2-(k-48)}:o) lgkmcnt(0)", m[0]] + t[:2] + [m[1]] + t[2:] + [m[2], m[3]]
            held += o_pre(p) + [o_dma(p, 0), o_dma(p, 1), o_ctx(p, 0), o_ctx(p, 1)] + o_post(p)
            continue
        c += held; held = []
        if k + PE < 64:
            c += [f"s_waitcnt vmcnt(@{tag}{k}:{PE-2}:o) lgkmcnt(0)", m[0]] + t[:2] + o_pre(p) + [m[1]] + t[2:] + [o_dma(p, 0), m[2], o_dma(p, 1), o_ctx(p, 0), m[3], o_ctx(p, 1)] + o_post(p)
        elif k < 64:
            if k + PE == 64: c += sw
            c += [f"s_waitcnt vmcnt(@{tag}{k}:{max(0, 62 - k)}:o) lgkmcnt(0)", m[0]] + t[:2] + o_pre(p) + [m[1]] + t[2:] + [o_dma(p, 0), m[2], o_dma(p, 1, " ; grpend:wb"), m[3]]
        else:
            c += [f"s_waitcnt vmcnt(@{tag}{k}:{71 - k}:o) lgkmcnt(0)", m[0]] + t[:2] + [m[1]] + t[2:] + [m[2], m[3]]
    return c

def early():
    c = []; A = c.append
    A(f"v_and_b32 v{vLN}, 63, v0")
    A(f"v_and_b32 v{T0_}, 15, v{vLN}"); A(f"v_lshrrev_b32 v{T1_}, 5, v{vLN}"); A(f"v_lshl_add_u32 v{T0_}, v{T1_}, 4, v{T0_}"); A(f"v_lshlrev_b32 v{vVA}, 4, v{T0_}")
    A(f"v_and_b32 v{T2_}, 31, v{vLN}"); A(f"v_cmp_eq_u32 vcc, 16, v{T2_}"); A(f"v_mov_b32 v{T1_}, 0x3f803f80")
    A(f"v_lshlrev_b32 v{T2_}, 2, v{T2_}"); A(f"v_cndmask_b32 v{T1_}, 0, v{T1_}, vcc")
    for r in range(32): A(f"v_accvgpr_write_b32 a{VB[0]+r}, v{T1_}")
    A(f"v_add_u32 v{vL16b}, {288*1024}, v{vL16}")
    A(f"v_lshrrev_b32 v{T3_}, 3, v{vLN}"); A(f"v_and_b32 v{T4_}, 7, v{vLN}"); A(f"v_bfe_u32 v{vWD[1]}, v{vLN}, 4, 1"); A(f"v_lshlrev_b32 v{vWD[1]}, 2, v{vWD[1]}"); A(f"v_xor_b32 v{T4_}, v{T4_}, v{vWD[1]}")
    A(f"v_lshlrev_b32 v{T4_}, 4, v{T4_}"); A(f"v_lshl_add_u32 v{vWD[0]}, v{T3_}, 10, v{T4_}")
    for k in range(1, 4): A(f"v_add_u32 v{vWD[k]}, {k*7168}, v{vWD[0]}")
    A(f"v_lshrrev_b32 v{T3_}, 5, v{vLN}"); A(f"v_bfe_u32 v{T4_}, v{vLN}, 2, 2"); A(f"v_lshl_add_u32 v{T3_}, v{T3_}, 3, v{T4_}"); A(f"v_lshlrev_b32 v{T3_}, 7, v{T3_}")
    A(f"v_bfe_u32 v{T4_}, v{vLN}, 3, 1"); A(f"v_lshl_add_u32 v{T3_}, v{T4_}, 6, v{T3_}")
    A(f"v_bfe_u32 v{T4_}, v{vLN}, 4, 1"); A(f"v_lshl_add_u32 v{T3_}, v{T4_}, 5, v{T3_}")
    A(f"v_and_b32 v{T4_}, 3, v{vLN}"); A(f"v_lshl_add_u32 v{T3_}, v{T4_}, 3, v{T3_}")
    A(f"v_lshrrev_b32 v{T4_}, 6, v0"); A(f"v_lshl_add_u32 v{vTR[0]}, v{T4_}, 14, v{T3_}"); A(f"v_xor_b32 v{vTR[1]}, 64, v{vTR[0]}")
    cuts = [int(x) for x in os.environ.get("ECUT", "12,18,24,30").split(",")]
    parts = [c[:cuts[0]], c[cuts[0]:cuts[1]], c[cuts[1]:cuts[2]], c[cuts[2]:cuts[3]]]
    valu = c
    c = []; A = c.append
    A(f"s_mov_b64 {sr(sWA,2)}, s[96:97]"); A(f"s_mov_b64 {sr(sWB,2)}, s[48:49]")
    A(f"s_lshl_b32 s{sLW}, s{sWAVE}, 14")
    A(f"s_mul_i32 s{sCB}, s{sRT}, {2*288*1024}"); A(f"s_add_u32 s{sCB}, s{sCB}, {WS_CTX}")
    A(f"s_lshl_b32 s{sC0}, s{sWAVE}, 16"); A(f"s_add_u32 s{sC0}, s{sCB}, s{sC0}")
    A(f"s_lshl_b32 s{sWC}, s{sCT}, 7"); A(f"s_sub_u32 s{sWC}, s{sWC}, 32768")
    A(f"s_lshl_b32 s{sWO}, s{sWAVE}, 20"); A(f"s_add_u32 s{sWO}, s{sWC}, s{sWO}")
    A(f"s_add_u32 s{sKK}, s{sZ0}, 8192"); A(f"s_mov_b32 s{sKV}, s{sKK}")
    scal2 = c
    c = []; A = c.append
    A(f"s_mov_b32 s{sM}, 0xffff"); A(f"s_mov_b32 s{sM+1}, 0xffff")
    A(f"s_lshl_b32 s{sZ0}, s{sH}, 17")
    A(f"s_lshl_b32 s{sT0}, s{sWAVE}, 15"); A(f"s_add_u32 s{sZ0}, s{sZ0}, s{sT0}"); A(f"s_add_u32 s{sZ0}, s{sZ0}, {WS_KVB}"); A(f"s_add_u32 s{sZ1}, s{sZ0}, 4096")
    A(f"s_lshl_b32 s{sT0}, s{sQB}, 10"); A(f"s_lshl_b32 s{sT1}, s{sWAVE}, 8"); A(f"s_add_u32 s{sT0}, s{sT0}, s{sT1}"); A(f"s_add_u32 s{sCNT}, s{sT0}, {WS_GATE}")
    A(f"s_lshl_b32 s{sT0}, s{sH}, 16"); A(f"s_lshl_b32 s{sT1}, s{sQB}, 13"); A(f"s_add_u32 s{sT0}, s{sT0}, s{sT1}"); A(f"s_add_u32 s{sT0}, s{sT0}, {WS_QB}")
    A(f"s_add_u32 s{sT1}, s{sT0}, 4096")
    scal = c
    ld = [f"buffer_load_dwordx4 {ar(Q_+4*j,4)}, v{vL16}, {sr(sWS,4)}, s{sT0 if j < 4 else sT1} offen offset:{(j%4)*1024}{SC}" for j in range(8)]
    kl = lambda b: f"buffer_load_dwordx4 {ar(KB[b],4)}, v{vL16}, {sr(sWS,4)}, s{sZ0 if b < 2 else sZ1} offen offset:{(b&1)*2048}{SC} ; grpend:k{b}"
    vl = lambda b: [f"s_mov_b64 exec, {sr(sM,2)}"] + [f"buffer_load_dwordx4 {ar(VB[b]+4*f,4)}, v{vVA}, {sr(sWS,4)}, s{sZ0 if b < 2 else sZ1} offen offset:{(b&1)*2048 + 1024 + 512*f}{SC}" + (f" ; grpend:v{b}" if f else "") for f in range(2)] + ["s_mov_b64 exec, -1"]
    for b in range(4): ld += [kl(b), vl(b)]
    ld += [f"buffer_load_dword v{vG[k]}, v{T2_}, {sr(sWS,4)}, s{sCNT} offen offset:{128*k}{SC}" for k in range(2)]
    return dict(valu=valu, s1=scal, s2=scal2, ld=ld)
def o_setup():
    return [f"s_mov_b64 {sr(sW,2)}, {sr(sWA,2)}", f"s_mov_b32 s{sW+2}, {4*MB}"]
R = 64
def red_addr():
    return [f"s_mul_i32 s{sT0}, s{sWAVE}, 24576", f"s_add_u32 s{sT0}, s{sT0}, {RED}", f"v_add_u32 v{T0_}, s{sT0}, v{vL16}",
            f"s_mul_i32 s{sT0}, s{sWAVE}, 6144", f"s_add_u32 s{sT0}, s{sT0}, {RED}", f"v_add_u32 v{T1_}, s{sT0}, v{vL16}", f"v_add_u32 v{T2_}, 49152, v{T1_}"]
def b_finish():
    c = []; A = c.append
    A("s_nop 0"); A(b_pv(7, 3, 1, 0)); A(b_pv(7, 3, 1, 1))
    A("s_nop 3")
    c += red_writes(6)
    A("s_nop 4")
    c += red_writes(7)
    A("s_waitcnt lgkmcnt(0)"); A("s_barrier")
    for k in range(2):
        for w in range(4):
            b = R + (k * 4 + w) * 12; va = T1_ if w < 2 else T2_; off = (w & 1) * 24576 + k * 3072
            A(f"ds_read_b128 {vr(b,4)}, v{va} offset:{off}"); A(f"ds_read_b128 {vr(b+4,4)}, v{va} offset:{off+1024}"); A(f"ds_read_b32 v{b+8}, v{va} offset:{off+2048}")
    for k in range(2):
        A(f"s_waitcnt lgkmcnt({12 if k == 0 else 0})")
        b = R + k * 48
        for r in range(9):
            A(f"v_add_f32 v{b+r}, v{b+r}, v{b+12+r}"); A(f"v_add_f32 v{b+24+r}, v{b+24+r}, v{b+36+r}")
        for r in range(8, -1, -1): A(f"v_add_f32 v{b+r}, v{b+r}, v{b+24+r}")
        A(f"v_mov_b32 v{b+9}, v{b+8}"); A("s_nop 1"); A(f"v_permlane32_swap_b32 v{b+8}, v{b+9}"); A(f"v_add_f32 v{b+8}, v{b+8}, v{b+9}")
    l0, l1 = R + 8, R + 48 + 8
    A(f"v_min_f32 v{T0_}, v{l0}, v{l1}"); A(f"v_max_f32 v{T1_}, v{l0}, v{l1}"); A(f"v_add_f32 v{T2_}, v{l0}, v{l1}")
    A(f"v_cmp_gt_f32 vcc, {hex(fbits(2.0**-64))}, v{T0_}"); A(f"v_cmp_nge_f32 s[70:71], v{T2_}, v{T2_}"); A("s_or_b64 s[70:71], s[70:71], vcc")
    A(f"v_cmp_lt_f32 vcc, {hex(fbits(2.0**64))}, v{T1_}"); A("s_or_b64 s[70:71], s[70:71], vcc")
    A("s_cbranch_scc1 P4_SLOW")
    return c
def b_store():
    c = ["P4_STORE:"]; A = c.append
    A(f"s_lshl_b32 s{sT0}, s{sQB}, 2"); A(f"s_add_u32 s{sT0}, s{sT0}, s{sWAVE}"); A(f"s_mul_i32 s{sT0}, s{sT0}, {2*288*1024}")
    A(f"s_lshl_b32 s{sT1}, s{sH}, 10"); A(f"s_add_u32 s{sT0}, s{sT0}, s{sT1}"); A(f"s_add_u32 s{sT0}, s{sT0}, {WS_CTX + 256*1024}")
    for k in range(2):
        b = R + k * 48
        A(f"v_rcp_f32 v{b+8}, v{b+8}"); A(f"v_sub_f32 v{vG[k]}, 1.0, v{vG[k]}"); A(f"v_mul_f32 v{b+8}, v{b+8}, v{vG[k]}")
        for r in range(8): A(f"v_mul_f32 v{b+r}, v{b+r}, v{b+8}")
        for r in range(4): A(f"v_cvt_pk_bf16_f32 v{b+12+r}, v{b+2*r}, v{b+2*r+1}")
        A("s_nop 1"); A(f"v_permlane32_swap_b32 v{b+12}, v{b+14}"); A(f"v_permlane32_swap_b32 v{b+13}, v{b+15}")
        A(f"buffer_store_dwordx4 {vr(b+12,4)}, v{vL16b if k else vL16}, {sr(sWS,4)}, s{sT0} offen{SC}" + (" ; grpend:cb" if k else ""))
    return c
def final():
    c = []; A = c.append
    A(f"v_add_u32 v{T0_}, s{sLW}, v{vL16}")
    A(f"s_lshl_b32 s{sT0}, s{sWAVE}, 12"); A(f"v_add_u32 v{T1_}, s{sT0}, v{vL16}")
    A(f"v_and_b32 v{T2_}, 31, v{vLN}"); A(f"v_lshlrev_b32 v{T2_}, 10, v{T2_}"); A(f"v_lshrrev_b32 v{T3_}, 5, v{vLN}"); A(f"v_lshl_add_u32 v{T2_}, v{T3_}, 4, v{T2_}")
    A(f"s_lshl_b32 s{sT0}, s{sRT}, 16"); A(f"s_and_b32 s{sT1}, s{sWAVE}, 1"); A(f"s_lshl_b32 s{sT1}, s{sT1}, 15"); A(f"s_add_u32 s{sT0}, s{sT0}, s{sT1}")
    A(f"s_lshl_b32 s{sT1}, s{sCT}, 7"); A(f"s_add_u32 s{sT0}, s{sT0}, s{sT1}")
    A(f"s_lshr_b32 s{sT1}, s{sWAVE}, 1"); A(f"s_lshl_b32 s{sT1}, s{sT1}, 6"); A(f"s_add_u32 s{sT0}, s{sT0}, s{sT1}")
    for k in range(16): A(f"ds_write_b128 v{T0_}, {ar(ACC+4*k,4)} offset:{k*1024}")
    A("s_waitcnt lgkmcnt(0)"); A("s_barrier")
    for w in range(4):
        for k in range(4): A(f"ds_read_b128 {vr(128+w*16+4*k,4)}, v{T1_} offset:{w*16384 + k*1024}")
    A("s_waitcnt lgkmcnt(0)")
    for r in range(16):
        A(f"v_add_f32 v{128+r}, v{128+r}, v{144+r}"); A(f"v_add_f32 v{160+r}, v{160+r}, v{176+r}")
    for r in range(16): A(f"v_add_f32 v{128+r}, v{128+r}, v{160+r}")
    for r in range(8): A(f"v_cvt_pk_bf16_f32 v{64+r}, v{128+2*r}, v{128+2*r+1}")
    A("s_nop 1")
    for pr in range(2):
        b = 64 + 4 * pr
        A(f"v_permlane32_swap_b32 v{b}, v{b+2}"); A(f"v_permlane32_swap_b32 v{b+1}, v{b+3}")
        A(f"buffer_store_dwordx4 {vr(b,4)}, v{T2_}, {sr(sOUT,4)}, s{sT0} offen offset:{32*pr}" + os.environ.get("OSC", ""))
    return c
def b_slow():
    c = ["P4_SLOW:"]; A = c.append
    S = S_[0]; P = P_[0]; vM = T0_; QS = 4; OA = 160
    strip = lambda x: x.split(" ;")[0]
    for k in range(2):
        b = R + k * 48
        A(f"s_lshl_b32 s{sT0}, s{sH}, 16"); A(f"s_lshl_b32 s{sT1}, s{sQB}, 13"); A(f"s_add_u32 s{sT0}, s{sT0}, s{sT1}")
        A(f"s_lshl_b32 s{sT1}, s{sWAVE}, 11"); A(f"s_add_u32 s{sT0}, s{sT0}, s{sT1}"); A(f"s_add_u32 s{sT0}, s{sT0}, {WS_QB + 1024*k}")
        A("s_waitcnt vmcnt(0)")
        A(f"buffer_load_dwordx4 {vr(QS,4)}, v{vL16}, {sr(sWS,4)}, s{sT0} offen{SC}")
        A(f"v_mov_b32 v{vM}, {hex(BIG)}")
        for ps in range(2):
            A(f"s_lshl_b32 s{sKK}, s{sH}, 17"); A(f"s_add_u32 s{sKK}, s{sKK}, {WS_KVB}"); A(f"s_mov_b32 s{sKV}, s{sKK}"); A(f"s_mov_b32 s{sCNT}, 64")
            if ps == 1:
                for r in range(16): A(f"v_mov_b32 v{OA+r}, 0")
            A(f"P4_S{k}{ps}:")
            c += [strip(x) for x in b_kload(0)]
            if ps == 1: c += [strip(x) for x in b_vload(0)]
            A("s_waitcnt vmcnt(0)")
            A(f"v_mfma_f32_32x32x16_bf16 {vr(S,16)}, {ar(KB[0],4)}, {vr(QS,4)}, 0"); A("s_nop 15")
            if ps == 0:
                for r in range(16): A(f"v_max_f32 v{vM}, v{vM}, v{S+r}")
            else:
                for r in range(16): A(f"v_sub_f32 v{S+r}, v{S+r}, v{vM}")
                for r in range(16): A(f"v_exp_f32 v{S+r}, v{S+r}")
                A("s_nop 0")
                for r in range(8): A(f"v_cvt_pk_bf16_f32 v{P+r}, v{S+2*r}, v{S+2*r+1}")
                A("s_nop 1")
                for f in range(2): A(f"v_mfma_f32_32x32x16_bf16 {vr(OA,16)}, {ar(VB[0]+4*f,4)}, {vr(P+4*f,4)}, {vr(OA,16)}")
                A("s_nop 7")
            A(f"s_sub_u32 s{sCNT}, s{sCNT}, 1"); A(f"s_cmp_lg_u32 s{sCNT}, 0"); A(f"s_cbranch_scc1 P4_S{k}{ps}")
            if ps == 0:
                A(f"v_mov_b32 v{vM+1}, v{vM}"); A("s_nop 1"); A(f"v_permlane32_swap_b32 v{vM}, v{vM+1}"); A(f"v_max_f32 v{vM}, v{vM}, v{vM+1}")
        A("s_nop 7")
        for r in range(9): A(f"v_mov_b32 v{b+r}, v{OA+r}")
        A(f"v_mov_b32 v{b+9}, v{b+8}"); A("s_nop 1"); A(f"v_permlane32_swap_b32 v{b+8}, v{b+9}"); A(f"v_add_f32 v{b+8}, v{b+8}, v{b+9}")
    A("s_branch P4_STORE")
    return c

def gen(hst, mark_a, mark_b, mark_c, mark_d):
    SIG, PL, CHK = [int(x) for x in os.environ.get("P4T", "10,17,21").split(",")]
    c = []; A = c.append
    A("s_waitcnt vmcnt(@p4q:0:k0)")
    A(b_qk(0, 0, 0))
    c += hst[:2]
    c += [f"v_mov_b32 v{P_[1]+r}, 0" for r in range(4)]
    c += o_setup() + ["s_nop 1"]
    pro = c
    ex = {n: [[], [], []] for n in range(32)}
    z = vr(P_[1], 4)
    zm = [f"v_mfma_f32_32x32x16_bf16 {ar(ACC+16*k,16)}, {z}, {z}, 0" for k in range(4)]
    pro += [zm[0], hst[2]]
    ex[0][1] += [zm[1], hst[3]]; ex[0][2] += [zm[2]]
    k = 4
    for n in range(1, 4):
        ex[n][0] += hst[k:k+1]; k += 1
        if n != 2: ex[n][2] += hst[k:k+1]; k += 1
    assert k >= 8
    ex[SIG][1] = ["s_waitcnt vmcnt(@p4s:0:ca)", "s_barrier"] + w0only(flag_store(WS_F3), "P4_S3")
    f3 = [f"s_lshr_b32 s{sZ0}, s{sRT}, 1", f"s_sub_u32 s{sZ1}, 15, s{sZ0}", f"s_min_u32 s{sZ0}, s{sZ0}, s{sZ1}", f"s_lshl_b32 s{sZ0}, s{sZ0}, 7", f"s_add_u32 s{sZ0}, s{sZ0}, {WS_F3}"]
    ex[PL][2] = ex[PL][2] + w0only(f3 + flag_lane() + [flag_load()], "P4_L3")
    ex[CHK][1] = ex[CHK][1] + w0only(spin("P4_C3"), "P4_C3") + ["s_barrier"]
    fl = []
    for s in range(PD): fl += [o_pre(s) + [o_dma(s, 0)], [o_dma(s, 1)], [o_ctx(s, 0)], [o_ctx(s, 1)] + o_post(s)]
    slots_ = [(CHK, 2)] + [(n, k) for n in range(CHK + 1, 32) for k in range(3)]
    FS = float(os.environ.get("FS", "1.8"))
    for i, it in enumerate(fl):
        n, k = slots_[min(len(slots_) - 4, int(i * FS))]; ex[n][k] += it
    t = o_trs(0)
    ex[31][0] += [f"s_waitcnt vmcnt(@p4t:{PD-1}:o)"] + t[:1]; ex[31][1] += t[1:3]; ex[31][2] += t[3:]
    b0 = body(False, "b", ex, first=True)
    i = b0.index(zm[2]); b0 = b0[:i+5] + [zm[3]] + b0[i+5:]
    b0 += mark_a
    loop = []
    lastb = red_addr() + fused_all()
    fin = lastb + mark_b + b_finish()
    st = b_store() + mark_c
    sig4 = ["s_waitcnt vmcnt(@p4u:0:cb)", "s_barrier"] + w0only(flag_store(WS_F4), "P4_S4")
    f4 = [f"s_lshr_b32 s{sZ0}, s{sRT}, 2", f"s_lshl_b32 s{sZ0}, s{sZ0}, 7", f"s_add_u32 s{sZ0}, s{sZ0}, {WS_F4}"]
    SG4, PL4 = [int(x) for x in os.environ.get("P5T", "3,7").split(",")]
    tail = o_steps("g", NS, 64 - NS, {NS + SG4: sig4, min(63, NS + PL4): w0only(f4 + flag_lane() + [flag_load()], "P4_L4")})
    for p in range(PE, 8): tail += o_pre(p) + [o_dma(p, 0), o_dma(p, 1, " ; grpend:wb")]
    tail += w0only(spin("P4_C4"), "P4_C4") + ["s_barrier"] + mark_d
    tail += [f"s_lshl_b32 s{sT0}, s{sWAVE}, 13", f"s_add_u32 s{sC0}, s{sCB}, s{sT0}", f"s_add_u32 s{sC0}, s{sC0}, {256*1024}"]
    for s in range(8): tail += [o_ctx(s, 0), o_ctx(s, 1)] + o_post(s)
    tail += ["s_waitcnt vmcnt(@p4w:0:wb)"] + o_trs(0)
    tail += o_steps("i", 64, 8) + final()
    slow = b_slow()
    return pro + b0 + loop + fin + st + tail, slow, [pro + b0 + loop * 2 + fin + st + tail, pro + b0 + loop * 2 + fin + slow + st + tail]
```

```python
from asmlib import *
from layout import *
import p1, p3, p4
def strip_w0(tr):
    out = []; i = 0
    while i < len(tr):
        if tr[i] == "s_cmp_lg_u32 s16, 0" and tr[i+1].startswith("s_cbranch_scc1 "):
            lbl = tr[i+1].split()[1] + ":"
            out += tr[i:i+2]
            while tr[i] != lbl: i += 1
        if tr[i].startswith("s_cbranch_scc0 P1_N") and not tr[i].startswith("s_cbranch_scc0 P1_NG"):
            lbl = tr[i].split()[1] + ":"
            out.append(tr[i])
            while tr[i] != lbl: i += 1
        out.append(tr[i]); i += 1
    return out
def gen():
    M = [prof_mark(i) for i in range(11)]
    sel = os.environ.get("MARKS", "pro,pair,p2,p3,ep,p4,b0,bf,st,pl").split(",")
    mk = lambda name: M[1 + sel.index(name)] if name in sel else []
    head = ["s_cmp_ge_u32 s2, 256", "s_cbranch_scc1 F_END"] + prof_start()
    P = p1.prologue(mk)
    P = P[:-2] + mk("pro") + P[-2:]
    p1.MK[0] = mk; p4.MK[0] = mk
    V = [p1.version(0), p1.version(1)]
    Q = p1.p2(p3.kv_setup(p1.vLN), p3.kv_dma0(), p3.kv_dma1(), p3.kv_dma2(), p3.mask_setup(p1.vLN), p3.wo_ptrs(), p3.wo_touch(p1.vLN), p3.out_ptr())
    Q = Q[:1] + mk("p2") + Q[1:] + mk("p3")
    A, Aslow, Atr = p3.gen(p1.vLN, p4.early(), mk("ep"), mk)
    B, Bslow, Btr = p4.gen(p3.h_stores(), mk("b0"), mk("bf"), mk("st"), mk("pl"))
    B = mk("p4") + B; Btr = [mk("p4") + t for t in Btr]
    end = prof_end(0, 8, 16) + ["F_END:", "s_endpgm"]
    pm = mk("pair")
    fronts = []
    for v in V:
        fronts.append(head + P + v["head"] + v["pair"] + pm + v["br"] + v["u2"] + v["u3"] + v["u4"])
        fronts.append(head + P + v["head"] + v["pair"] + pm + v["br"] + v["skip"] + v["u3"] + v["u4"])
    sk = V[0]["skip"]
    for l in ("P1_NG0", "P1_NG"):
        a = sk.index("s_cbranch_scc0 " + l); b = sk.index(l + ":"); sk = sk[:a+1] + sk[b:]
    fronts.append(head + P + V[0]["head"] + V[0]["pair"] + pm + V[0]["br"] + sk + V[0]["u3"] + V[0]["u4"])
    traces = [f + Q + Atr[3] + Btr[0] + end for f in fronts] + [fronts[0] + Q + t + Btr[0] + end for t in Atr] + [fronts[0] + Q + Atr[0] + Btr[1] + end]
    def noretry(tr):
        out = []; i = 0
        while i < len(tr):
            out.append(tr[i])
            if tr[i].startswith("s_cbranch_vccz "):
                lbl = tr[i].split()[1] + ":"
                while tr[i] != lbl: i += 1
                out.append(tr[i])
            i += 1
        return out
    traces += [strip_w0(t) for t in traces] + [noretry(t) for t in traces[:6]]
    res = resolve_vm(traces)
    errs = []
    for i, t in enumerate(traces): errs += check_trace(apply_vm(t, res), f"tr{i}")
    if errs and not os.environ.get('K2X'):
        print("\n".join(errs[:40])); raise Exception("hazards")
    print("vm", res)
    v0, v1 = V
    code = head + P + v0["head"] + v0["pair"] + pm + v0["br"] + v0["u2"] + v0["u3"] + v0["u4"] + Q + A + B + end
    code += v1["head"] + v1["pair"] + pm + v1["br"] + v1["u2"] + v1["u3"] + v1["u4"] + ["s_branch P2"]
    code += v0["skip"] + v1["skip"] + Aslow + Bslow + p1.tabdata()
    return apply_vm(code, res)
if __name__ == "__main__":
    print(len(gen()))
```

```python
from asmlib import *
from layout import *
import os
def flat(l):
    o = []
    for x in l: o += [x] if isinstance(x, str) else x
    return o
SC = " sc1"
NT = os.environ.get("NT", " nt")
SCE = os.environ.get("SCE", " sc1")
def table():
    rows = []; one = fbits(1.0)
    for cg in range(32):
        if cg < 13:
            t0 = 5 * cg; n = min(5, 64 - t0)
            e = [1, 0, 8192, 0, t0, 0, t0 * 128, 256, 512, 1024, 16384, 128, fbits(LOG2E * 128 ** -0.5), WS_KV, MB, 2048]
        elif cg < 26:
            t0 = 5 * (cg - 13); n = min(5, 64 - t0)
            e = [1, 1, 8192, 1, t0, 0, t0 * 128, 512, 256, 16384, 2048, 1024, one, WS_KV + 8192, MB, 4096]
        elif cg < 28:
            t0 = 4 * (cg - 26); n = 4
            e = [0, 2, 3072, 0, t0, 0, t0 * 128, 65536, 512, 131072, 1024, 256, fbits(LOG2E * 0.25), WS_QB, 8 * 65536, 4 * 65536]
        elif cg < 30:
            t0 = 4 * (cg - 28); n = 4
            e = [0, 2, 3072, 0, t0, 0, 1024 + t0 * 128, 131072, 512, 262144, 2048, 256, one, WS_KVB, 8 * 131072, 4 * 131072]
        else:
            t0 = 4 * (cg - 30); n = 4
            e = [0, 2, 3072, 1, t0, 0, 2048 + t0 * 128, 512, 256, 2048, 262144, 131072, one, WS_KVB + 1024, 8 * 131072, 4 * 131072]
        e[5] = (1 if n == 4 else 0) | (2 if cg == GATE_CG else 0)
        if n == 4: e[5] |= [12, 25, 26, 27, 28, 29, 30, 31].index(cg) << 8
        e[5] |= cg << 16
        rows.append(e)
    slack = [12, 25, 26, 27, 28, 29, 30, 31]; reg = [g for g in range(32) if g not in slack]
    order = []
    sl_order = [12, 26, 27, 28, 25, 29, 30, 31]
    for j in range(8): order += reg[3*j:3*j+3] + [sl_order[j]]
    return [rows[g] for g in order] if os.environ.get('SPREAD') else rows
GATE_CG = 28
TOUCH = os.environ.get("TOUCH", "cjwqo")
RT = os.environ.get("RT", "3")
TPOS = os.environ.get("TPOS", "c")
vTCH = 23
vCT = 22
ACC = [32, 96, 160]; WR = [224, 240]
vW = [1, 2, 3, 4]; vWD = [5, 6, 7, 8]; vXD = [9, 10, 11, 12]; vXR = [13, 14]; vXN = [15, 16]
vEP, vL3, vWC, vLN, vJQ, vFL, vPF = 17, 18, 19, 20, 21, 26, 27
sWS, sW, sWAVE, sH, sI, sDBG, sX, sE = 8, 12, 16, 17, 18, 40, 44, 48
sLW, sLX, sWOFF, sK128, sK128m, sUSW, sXA, sXB, sTE, sT0, sT1, sRT = 19, 20, 21, 22, 23, 24, 25, 26, 27, 28, 29, 30
sO0 = 32
sB0 = 36
sZ0, sZ1 = 37, 31
sK128t, sEN = 38, 39
sKC = [22, 23, 24, 38]
sR = 3
ROT1, ROT2 = [int(x) for x in os.environ.get('ROT', '0,3').split(',')]
sR2 = 5
sPW, sCG = 5, 4
sWQ, sXP = 52, 54
sTB = 56
T_XSEL, T_WSEL, T_STR, T_OR, T_T0, T_FL, T_WCOL, T_A1, T_A2, T_SP, T_SJ1, T_SJ0, T_SC, T_B0, T_TS1, T_TS0 = [sTB + i for i in range(16)]
XB = 65536
QA_ = 0

def xa(rt, ks): return (ks * 4 + rt) * 4
def acc(p, I, J): return ACC[p] + (I * 4 + J) * 4
def slot_mfmas(p, o, kc):
    out = []
    for c in range(4):
        wb = WR[c & 1]
        for r in range(4):
            for ks in range(4):
                d = acc(p, c, r) if o == 0 else acc(p, r, c)
                w = vr(wb + 4 * ks, 4); x = ar(xa(r, 4 * kc + ks), 4)
                a, b = (w, x) if o == 0 else (x, w)
                cin = "0" if (kc == 0 and ks == 0) else vr(d, 4)
                out.append(f"v_mfma_f32_16x16x32_bf16 {vr(d,4)}, {a}, {b}, {cin}")
    return out
def tr_reads(pos, c):
    wb = WR[c & 1]
    return [f"ds_read_b64_tr_b16 {vr(wb + 4*ks + 2*e, 2)}, v{vW[c]} offset:{pos*16384 + ks*4096 + e*512}" for ks in range(4) for e in range(2)]
def w_dma(pos, el, nt=''):
    out = [f"s_add_u32 m0, s{sLW}, {pos*16384}", f"s_add_u32 s{sWOFF}, s{sKC[el[1]]}, {128*el[0]}"]
    for i in range(4):
        out.append(f"buffer_load_dwordx4 v{vWD[i]}, {sr(sW,4)}, s{sWOFF} offen offset:{i*1024}{nt} lds" + (" ; grpend:w" if i == 3 else ""))
    return out
def x_dma(sc):
    out = []
    for hf in range(2):
        out += [f"s_add_u32 m0, s{sLX}, {(sc % 3)*8192 + hf*4096}", f"s_xor_b32 s{sT0}, s{sXB if hf else sXA}, {sc*128}"]
        for i in range(4):
            out.append(f"buffer_load_dwordx4 v{vXD[i]}, {sr(sX,4)}, s{sT0} offen offset:{i*1024} lds" + (" ; grpend:x" if hf == 1 and i == 3 else ""))
    return out
def x_reads(sc, nat):
    v = vXN if nat else vXR
    return [f"ds_read_b128 {ar(xa(rt, 2*sc + k2), 4)}, v{v[k2]} offset:{(sc % 3)*8192 + rt*2048}" for rt in range(4) for k2 in range(2)]
def w_lane_setup(stride, t, col):
    o = [f"v_mad_u32_u24 v{vWD[0]}, v{vL3}, {stride}, v{vWC}", f"s_lshl_b32 s{t}, {stride}, 3", f"s_sub_u32 s{t}, s{t}, 1024",
         f"v_xor_b32 v{vWD[1]}, 64, v{vWD[0]}", f"v_add_u32 v{vWD[1]}, s{t}, v{vWD[1]}", f"s_lshl_b32 s{t}, s{t}, 1",
         f"v_add_u32 v{vWD[2]}, s{t}, v{vWD[0]}", f"v_add_u32 v{vWD[3]}, s{t}, v{vWD[1]}",
         f"s_mul_i32 s{sWOFF}, {stride}, s{sWAVE}", f"s_lshl_b32 s{sWOFF}, s{sWOFF}, 5", f"s_add_u32 s{sWOFF}, s{sWOFF}, {col}"]
    for kc in range(4):
        o += [f"s_xor_b32 s{t}, s{sR}, {256*kc}", f"s_lshr_b32 s{t}, s{t}, 1", f"s_mul_i32 s{t}, s{t}, {stride}", f"s_add_u32 s{sKC[kc]}, s{sWOFF}, s{t}"]
    return o
def e_addr():
    return [f"s_lshr_b32 s{sT1}, s{sTE}, 1", f"s_mul_i32 s{sO0}, s{sT1}, s{T_TS1}", f"s_and_b32 s{sT1}, s{sTE}, 1", f"s_mul_i32 s{sT1}, s{sT1}, s{T_TS0}",
            f"s_add_u32 s{sO0}, s{sO0}, s{sT1}", f"s_add_u32 s{sO0}, s{sO0}, s{sB0}", f"s_add_u32 s{sTE}, s{sTE}, 1",
            f"s_add_u32 s{sO0+1}, s{sO0}, s{T_SJ0}", f"s_add_u32 s{sO0+2}, s{sO0}, s{T_SJ1}", f"s_add_u32 s{sO0+3}, s{sO0+2}, s{T_SJ0}"]
def pipeline(units):
    out = []; prev = None
    for pre, cv, post in units:
        out += pre + cv[:2]
        if prev: out += prev[:2]
        out += cv[2:]
        if prev: out += prev[2:]
        prev = post
    return out + ["s_nop 1"] + prev
def cvt4(T0, T1):
    return [f"v_cvt_pk_bf16_f32 v{T0}, v{T0}, v{T0+1}", f"v_cvt_pk_bf16_f32 v{T0+1}, v{T0+2}, v{T0+3}",
            f"v_cvt_pk_bf16_f32 v{T0+2}, v{T1}, v{T1+1}", f"v_cvt_pk_bf16_f32 v{T0+3}, v{T1+2}, v{T1+3}"]
def swaps(T0): return [f"v_permlane16_swap_b32 v{T0}, v{T0+2}", f"v_permlane16_swap_b32 v{T0+1}, v{T0+3}"]
def epilogue(p, mul):
    u = []
    for pp in range(2):
        for J in range(4):
            T0, T1 = acc(p, 2*pp, J), acc(p, 2*pp+1, J)
            pre = [f"v_mul_f32 v{T+r}, s{T_SC}, v{T+r}" for T in (T0, T1) for r in range(4)] if mul else []
            post = swaps(T0) + [f"buffer_store_dwordx4 {vr(T0,4)}, v{vEP}, {sr(sE,4)}, s{sO0+J} offen{SCE}" + (" ; grpend:st" if pp == 1 and J == 3 else "")]
            if pp == 0: post.append(f"s_add_u32 s{sO0+J}, s{sO0+J}, s{T_SP}")
            u.append((pre, cvt4(T0, T1), post))
    return e_addr() + pipeline(u)
def q_epilogue(p, u, a):
    un = []
    if True:
        for rt in range(4):
            T0, T1 = acc(p, 2*a, rt), acc(p, 2*a+1, rt); q = QA_ + 16*rt + 4*(2*u + a)
            un.append(([], cvt4(T0, T1), swaps(T0) + [f"v_accvgpr_write_b32 a{q+r}, v{T0+r}" for r in range(4)]))
    return pipeline(un)

TRG = [0, 1, 2, 4, 5, 6, 8, 9]; DMAG = [3, 7, 11, 15]; XRG = [3, 7, 10, 11, 12, 13, 14, 15]
def place_dma(S, g0, grp):
    S.add(g0 + 0, grp[0]); S.add(g0 + 1, grp[1])
    for i in range(4): S.add(g0 + DMAG[i], grp[2 + i])
class Block:
    def __init__(self, name, slots, nextpos, qx=None, qd=None):
        self.name = name
        qx = dict(qx or {}); qd = dict(qd or {})
        m = []
        for q, s in enumerate(slots):
            m += slot_mfmas(s["p"], s["o"], s["kc"])
            if s.get("xr") is not None: qx[4*q] = (s["xr"], s["xk"])
            if s.get("xd") is not None: qd[4*q+1] = x_dma(s["xd"])[:6]; qd[4*q+2] = x_dma(s["xd"])[6:]
            if "wstep" in s: qd[4*q+3] = w_dma(s["pos"], s["wstep"], s.get("nt", ""))
        S = self.S = Sched(m, 16)
        for q, s in enumerate(slots):
            for c in range(4):
                Q = 4 * q + c; g0 = Q * 16
                lg = "lgkmcnt(4)" if (Q - 1) in qx else "lgkmcnt(0)"
                pre = []
                if Q in qx: pre.append(f"s_waitcnt vmcnt(@{name}{Q}x:{qx[Q][1]}:x)")
                if c == 3 and not s.get("nobar"):
                    need = s.get("need", [f"{s.get('wk', 2)}:w"])
                    for k, nd in enumerate(need): pre.append(f"s_waitcnt vmcnt(@{name}{q}w{k}:{nd})")
                    pre[-1] += " " + lg
                    pre += s.get("prebar", []) + ["s_barrier"] + s.get("postbar", [])
                elif pre: pre[-1] += " " + lg
                else: pre.append("s_waitcnt " + lg)
                S.before(g0, pre)
                if c < 3: rd = tr_reads(s["pos"], c + 1)
                else:
                    np_ = slots[q+1]["pos"] if q + 1 < len(slots) else nextpos
                    rd = tr_reads(np_, 0) if np_ is not None else []
                for i, r in enumerate(rd): S.add(g0 + TRG[i], r)
                if Q in qx:
                    for i, r in enumerate(x_reads(qx[Q][0], s.get("nat", False))): S.add(g0 + XRG[i], r)
                if Q in qd: place_dma(S, g0, qd[Q])
    def emit(self):
        print("P1 block", self.name, "over", self.S.over())
        return self.S.emit()


def pair_slots(pa, pb, o, nat, tailw):
    sl = []
    for q in range(8):
        d = dict(p=pb if q & 1 else pa, o=o, kc=q >> 1, pos=q & 3, nat=nat)
        if q < 4: d["wstep"] = (q & 1, (q + 4) >> 1)
        if q < 6: d["xr"] = q + 2; d["xk"] = min(2, 5 - q)
        if q < 3: d["xd"] = q + 5
        if not tailw and q >= 4: d["wk"] = max(0, 6 - q)
        sl.append(d)
    return sl
def unit_slots(p, o): return [dict(p=p, o=o, kc=s, pos=s, wstep=(4, s)) for s in range(4)]

def flag_store(off_code, val):
    return off_code + [f"v_mov_b32 v{vFL}, {val}", "s_mov_b64 exec, 1", f"buffer_store_dword v{vFL}, off, {sr(sWS,4)}, s{sZ0}{SC}", "s_mov_b64 exec, -1"]
def w0only(code, lbl): return [f"s_cmp_lg_u32 s{sWAVE}, 0", f"s_cbranch_scc1 {lbl}"] + code + [f"{lbl}:"]
F1OFF = [f"s_lshl_b32 s{sZ0}, s{sCG}, 7", f"s_lshl_b32 s{sZ1}, s{sI}, 2", f"s_add_u32 s{sZ0}, s{sZ0}, s{sZ1}", f"s_add_u32 s{sZ0}, s{sZ0}, {WS_F1}"]

NT = os.environ.get("NT", " nt")
def lin_touch():
    c = []; A = c.append
    A(f"v_and_b32 v31, 31, v{vLN}"); A("v_lshlrev_b32 v31, 7, v31")
    A("s_mov_b32 s99, 0x20000"); A(f"s_mov_b32 s98, {2*MB}"); A("s_lshl_b32 s100, s2, 1"); A(f"s_and_b32 s101, s{sWAVE}, 1"); A("s_add_u32 s100, s100, s101"); A("s_lshl_b32 s100, s100, 12")
    A(f"s_cmp_lt_u32 s{sWAVE}, 2"); A("s_cselect_b64 s[96:97], s[74:75], s[72:73]")
    A(f"buffer_load_dword v{vTCH}, v31, s[96:99], s100 offen")
    return c
def touch_setup():
    return [f"v_and_b32 v30, 15, v{vLN}", f"s_lshl_b32 s101, s{sRT}, 3", "v_add_u32 v30, s101, v30", f"v_mul_u32_u24 v28, s{T_STR}, v30", "v_lshlrev_b32 v29, 13, v30",
            "v_lshl_add_u32 v29, v24, 7, v29", "v_lshl_add_u32 v30, v24, 7, v28", f"v_lshrrev_b32 v31, 4, v{vLN}", "v_min_u32 v31, 2, v31", "v_lshl_add_u32 v28, v31, 7, v28"]
def touch_w3(): return [f"buffer_load_dword v{vTCH}, v28, {sr(sW,4)}, s{T_WCOL} offen{NT}"]
def touch_w2(): return [f"buffer_load_dword v{vTCH}, v30, {sr(sW,4)}, s{T_WCOL} offen offset:384"]
def touch_q():
    return [f"s_mov_b64 s[96:97], {sr(sWQ,2)}", f"s_mov_b32 s98, {4*MB}", "s_mov_b32 s99, 0x20000", f"s_lshl_b32 s101, s{sH}, 8",
            f"buffer_load_dword v{vTCH}, v29, s[96:99], s101 offen"]
def touch_x(k):
    c = []
    if k == 0:
        c = [f"s_mov_b64 s[96:97], {sr(sXP,2)}", f"s_mov_b32 s98, {2*MB}", "s_lshr_b32 s100, s2, 3", "s_lshl_b32 s100, s100, 2", f"s_add_u32 s100, s100, s{sWAVE}",
             "s_lshl_b32 s100, s100, 14", f"v_and_b32 v31, 15, v{vLN}", "v_lshlrev_b32 v31, 10, v31", "v_lshl_add_u32 v31, v24, 7, v31"]
    return c + [f"buffer_load_dword v{vTCH}, v31, s[96:99], s100 offen offset:{256*k}"]
def code_touch(srd):
    return [f"s_mov_b64 {sr(srd,2)}, s[6:7]", f"s_mov_b32 s{srd+2}, P1_TAB-P1_PC", f"s_mov_b32 s{srd+3}, 0x20000", f"buffer_load_dword v{vTCH}, v{vCT}, {sr(srd,4)}, 0 offen"]
MK = [lambda n: []]
def version(o):
    mul = (o == 0)
    code = [f"P1_V{o}:"]
    code += [f"v_mad_u32_u24 v{vEP}, v24, s{T_A1}, v{vJQ if o == 0 else 26}", f"v_mad_u32_u24 v{vEP}, v25, s{T_A2}, v{vEP}"]
    if o == 0:
        code += [f"s_mul_i32 s{sT1}, s{T_XSEL}, {4096 - 128}", f"v_bfe_u32 v27, v{vLN}, 2, 1", f"v_mad_u32_u24 v{vEP}, v27, s{sT1}, v{vEP}"]
    code += [
             f"s_mul_i32 s{sT1}, s{T_SJ1 if o == 0 else T_SP}, s{sRT}", f"s_add_u32 s{sB0}, s{T_B0}, s{sT1}"]
    RO = os.environ.get("RO", "0") == "1"
    seq = [(q % 3, q // 3) for q in range(12)]
    if RO: seq = seq[:6] + [(0, 2), (0, 3), (1, 2), (1, 3), (2, 2), (2, 3)]
    seq += [(3, k) for k in range(4)]
    step = lambda e: seq[e]
    sl = [dict(p=seq[q][0], o=o, kc=seq[q][1], pos=q & 3, wstep=step(q + 4)) for q in range(12)]
    del sl[0]["wstep"]; del sl[1]["wstep"]
    X = lambda sc, h: x_dma(sc)[6*h:6*h+6]
    qd = {2: w_dma(3, step(3), NT), 3: X(2,0), 4: X(2,1), 5: X(3,0), 6: X(3,1), 7: w_dma(0, step(4), NT), 8: w_dma(1, step(5), NT),
          12: X(4,0), 13: X(4,1), 14: X(5,0), 16: X(5,1), 17: X(6,0), 18: X(6,1), 21: X(7,0), 22: X(7,1)}
    qx = {9: (2, 1), 10: (3, 0), 20: (4, 2), 22: (5, 1), 24: (6, 1), 28: (7, 0)}
    if TPOS == "q":
        for k in (12, 13, 14, 16, 17, 18, 21, 22): del qd[k]
        XL = [int(x) for x in os.environ.get("XL", "14,16,17,18,20,21,24,25").split(",")]
        for k, qq in enumerate(XL): qd[qq] = X(4 + k // 2, k & 1)
        qx = {9: (2, 1), 10: (3, 0), 21: (4, 1), 22: (5, 1), 28: (6, 1), 30: (7, 0)}
    if RO: del qx[28]; qx[26] = (7, 0)
    sl[1]["wk"] = 1
    for q in range(8): sl[q]["nt"] = NT
    sl[2]["postbar"] = w0only([f"s_and_b32 s{sZ0}, s2, 1", f"s_lshl_b32 s{sZ0}, s{sZ0}, 7", f"v_mov_b32 v{vFL}, 1", "s_mov_b64 exec, 1",
                               f"buffer_atomic_add v{vFL}, off, {sr(sDBG,4)}, s{sZ0} sc1", "s_mov_b64 exec, -1"], f"P1_CL{o}")
    XQ = [int(x) for x in os.environ.get("XQ", "32,33,34,36,37,38").split(",")]
    for k, qq in enumerate(XQ): qd[qq] = X(k // 2, k & 1)
    B = Block(f"a{o}", sl, 0, qx, qd)
    TQ = [int(x) for x in os.environ.get("TQ", "24,26").split(",")]
    if TPOS == "q": B.S.before(9 * 16, [lin_touch()[-1]] + touch_w3())
    B.S.fill(touch_w2(), TQ[0] * 16, TQ[0] * 16 + 16)
    B.S.fill(touch_q(), TQ[1] * 16, TQ[1] * 16 + 16)
    sw = [f"s_mov_b64 {sr(sX,2)}, {sr(sXP,2)}",
          f"s_lshl_b32 s{sXA}, s{sI}, 2", f"s_add_u32 s{sXA}, s{sXA}, s{sWAVE}", f"s_sub_u32 s{sXB}, 63, s{sXA}",
          f"s_lshl_b32 s{sXA}, s{sXA}, 15", f"s_lshl_b32 s{sXB}, s{sXB}, 15", f"s_add_u32 s{sR2}, s{sH}, s{sI}", f"s_and_b32 s{sR2}, s{sR2}, {ROT2}", f"s_lshl_b32 s{sR2}, s{sR2}, 8",
          f"s_add_u32 s{sXA}, s{sXA}, s{sR2}", f"s_add_u32 s{sXB}, s{sXB}, s{sR2}"]
    B.S.pack(sw, 29 * 16, 30 * 16)
    if "1" in RT: B.S.fill(code_touch(96), 29 * 16, 30 * 16)
    e1, e2, e3 = epilogue(1, mul), epilogue(2, mul), epilogue(0, mul)
    stores = lambda e: [i for i, x in enumerate(e) if x.startswith("buffer_store")]
    if RO:
        E0, N1 = [int(x) for x in os.environ.get("E0", "8,4").split(",")]
        c1 = len(e1) if N1 == 8 else stores(e1)[N1 - 1] + 2
        B.S.fill(epilogue(0, mul), E0 * 64 + 3, 10 * 64 + 40); B.S.fill(e1[:c1], 10 * 64 + 40, 12 * 64 - 2); e1 = e1[c1:]
    else: B.S.fill(epilogue(0, mul), 10 * 64 + 3, 12 * 64 - 2)
    for q in range(1, 12): B.S.before(q * 64, MK[0](f"s{q}"))
    pair = B.emit()
    NC = int(os.environ.get("NC", "6"))
    cut = len(e2) if NC == 8 else stores(e2)[NC - 1] + 2
    B = Block(f"c{o}", unit_slots(0, o), 0)
    if "2" in RT: B.S.fill(code_touch(96), 128, 144)
    B.S.fill(e1 + e2[:cut], 3, 254)
    for q in range(1, 4): B.S.before(q * 64, MK[0](f'c{q}'))
    u3 = B.emit()
    sl = unit_slots(1, o)
    for q in range(4): sl[q]["wstep"] = (q & 1, q >> 1)
    sl[2].update(xr=0, xk=2, xd=3, nat=True); sl[3].update(xr=1, xk=2, xd=4, nat=True)
    B = Block(f"d{o}", sl, 0)
    sw2 = [f"s_mov_b64 {sr(sW,2)}, {sr(sWQ,2)}", f"s_mov_b32 s{sW+2}, {4*MB}", f"s_mov_b32 s{T_STR}, 8192", f"s_lshl_b32 s{T_WCOL}, s{sH}, 8", f"s_mov_b32 s{sR}, s{sR2}"] + w_lane_setup(f"s{T_STR}", sZ1, f"s{T_WCOL}")
    B.S.pack(sw2, 0, 46)
    B.S.fill(e2[cut:] + [f"s_mov_b32 s{sE+2}, s{sEN}"] + e3 + [f"s_mov_b32 s{sE+2}, {WS_END}"], 3, int(os.environ.get("E3", "176")))
    for q in range(0, 4): B.S.before(q * 64, MK[0](f'd{q}'))
    u4 = B.emit()
    skip = [f"P1_SK{o}:", "s_nop 7"] + (gate_load() if o == 0 else []) + flat(e1) + (gate() if o == 0 else []) + flat(e2[:cut]) + \
           [f"s_mov_b32 s{sEN}, 0", f"s_sub_u32 s{sTE}, s{sTE}, 1", f"s_branch P1_U4{o}"]
    br = [f"s_bitcmp1_b32 s{T_FL}, 0", f"s_cbranch_scc1 P1_SK{o}"]
    return dict(head=code, pair=pair, br=br, u2=u3, u3=[], u4=[f"P1_U4{o}:"] + u4, skip=skip)

sGW = 72
def gate_load():
    c = [f"s_bitcmp1_b32 s{T_FL}, 1", "s_cbranch_scc0 P1_NG0"]; A = c.append
    G = ACC[0]
    A(f"v_lshrrev_b32 v27, 4, v{vLN}"); A("v_lshlrev_b32 v28, 4, v27")
    for ks in range(16):
        if ks % 4 == 0: A(f"s_xor_b32 s{sT0}, s{sR}, {64*ks}")
        A(f"buffer_load_dwordx4 {vr(G+4*ks,4)}, v28, {sr(sGW,4)}, s{sT0} offen offset:{(ks%4)*64}" + (" ; grpend:gw" if ks == 15 else ""))
    A("P1_NG0:")
    return c
def gate():
    c = [f"s_bitcmp1_b32 s{T_FL}, 1", "s_cbranch_scc0 P1_NG"]; A = c.append
    G = ACC[0]; D = WR[1]
    A("s_waitcnt vmcnt(@gw:0:gw)")
    for rt in range(4):
        for ks in range(16):
            A(f"v_mfma_f32_16x16x32_bf16 {vr(D+4*rt,4)}, {vr(G+4*ks,4)}, {ar(xa(rt,ks),4)}, " + ("0" if ks == 0 else vr(D+4*rt,4)))
    A("s_nop 7")
    for g in range(1, 4):
        A(f"v_cmp_eq_u32 vcc, {g}, v27"); A("s_nop 1"); A(f"v_cndmask_b32 v{D}, v{D}, v{D+4*g}, vcc")
    A(f"v_mul_f32 v{D}, {hex(fbits(-LOG2E))}, v{D}"); A(f"v_exp_f32 v{D}, v{D}"); A("s_nop 0")
    A(f"v_add_f32 v{D}, 1.0, v{D}"); A(f"v_rcp_f32 v{D}, v{D}")
    A(f"v_lshrrev_b32 v28, 2, v{vJQ}"); A("v_lshl_add_u32 v28, v27, 6, v28")
    A(f"s_lshl_b32 s{sT0}, s{sRT}, 7"); A(f"s_add_u32 s{sT0}, s{sT0}, {WS_GATE}")
    A(f"buffer_store_dword v{D}, v28, {sr(sWS,4)}, s{sT0} offen{SC}")
    A("s_nop 1")
    A("P1_NG:")
    return c

def prologue(mk=lambda n: []):
    c = []; A = c.append
    A(f"s_load_dwordx4 s[72:75], s[0:1], {KA_X}")
    A(f"s_load_dwordx4 s[76:79], s[0:1], {KA_WUK}")
    A(f"s_load_dwordx2 {sr(sWQ,2)}, s[0:1], {KA_WQ}")
    A(f"s_load_dwordx2 s[6:7], s[0:1], {KA_WQKV}")
    A(f"s_load_dwordx2 {sr(sWS,2)}, s[0:1], {KA_WS}")
    A(f"s_load_dwordx2 {sr(sDBG,2)}, s[0:1], {KA_DBG}")
    A(f"s_load_dwordx2 s[32:33], s[0:1], {KA_GATE}")
    A("s_getpc_b64 s[4:5]"); A("P1_PC:")
    A("s_mov_b64 s[96:97], s[4:5]"); A("s_mov_b32 s98, P1_TAB-P1_PC"); A("s_mov_b32 s99, 0x20000")
    A("s_lshr_b32 s3, s2, 3"); A("s_mul_i32 s3, s3, 5120")
    A(f"v_mul_u32_u24 v{vCT}, 20, v0"); A(f"v_add_u32 v{vCT}, s3, v{vCT}")
    A(f"buffer_load_dword v{vTCH}, v{vCT}, s[96:99], 0 offen")
    A("s_add_u32 s4, s4, P1_TAB-P1_PC"); A("s_addc_u32 s5, s5, 0")
    A("s_and_b32 s3, s2, 7"); A(f"s_lshr_b32 s{sH}, s2, 3"); A(f"s_and_b32 s{sI}, s{sH}, 7")
    A(f"s_lshr_b32 s{sH}, s{sH}, 3"); A("s_lshl_b32 s3, s3, 2"); A(f"s_add_u32 s{sH}, s{sH}, s3")
    A(f"s_lshl_b32 s3, s{sH}, 6")
    A(f"s_load_dwordx16 {sr(sTB,16)}, s[4:5], s3")
    A("v_lshrrev_b32 v27, 6, v0"); A(f"v_and_b32 v{vLN}, 63, v0")
    A(f"v_readfirstlane_b32 s{sWAVE}, v27")
    A(f"v_lshrrev_b32 v27, 4, v{vLN}")
    A(f"v_and_b32 v28, 15, v{vLN}")
    A("v_and_b32 v24, 1, v27"); A("v_lshrrev_b32 v25, 1, v27"); A("v_lshlrev_b32 v26, 4, v28")
    A("v_and_b32 v29, 3, v28"); A("v_bfe_u32 v30, v28, 2, 1"); A("v_bfe_u32 v31, v28, 3, 1")
    A("v_lshl_add_u32 v29, v30, 3, v29"); A("v_lshl_add_u32 v29, v31, 2, v29")
    A(f"v_lshlrev_b32 v{vJQ}, 4, v29")
    A(f"s_lshl_b32 s{sLW}, s{sWAVE}, 12")
    A(f"s_mul_i32 s{sLX}, s{sWAVE}, 24576"); A(f"s_add_u32 s{sLX}, s{sLX}, {XB}")
    for src, dst in ((29, vXR), (28, vXN)):
        A(f"v_lshrrev_b32 v30, 1, v{src}"); A("v_xor_b32 v30, v30, v27"); A("v_lshlrev_b32 v30, 4, v30"); A(f"v_lshl_add_u32 v30, v{src}, 7, v30")
        A(f"v_add_u32 v{dst[0]}, s{sLX}, v30"); A(f"v_xor_b32 v{dst[1]}, 64, v{dst[0]}")
    A(f"v_lshrrev_b32 v{vL3}, 3, v{vLN}"); A(f"v_and_b32 v31, 7, v{vLN}")
    A("v_xor_b32 v30, v31, v27"); A("v_lshlrev_b32 v30, 4, v30"); A(f"v_lshl_add_u32 v{vXD[0]}, v{vL3}, 10, v30")
    A(f"v_xor_b32 v{vXD[1]}, 64, v{vXD[0]}"); A(f"v_add_u32 v{vXD[1]}, 7168, v{vXD[1]}")
    A(f"v_add_u32 v{vXD[2]}, 14336, v{vXD[0]}"); A(f"v_add_u32 v{vXD[3]}, 14336, v{vXD[1]}")
    A("v_lshlrev_b32 v30, 1, v24"); A("v_xor_b32 v30, v30, v31"); A(f"v_lshlrev_b32 v{vWC}, 4, v30")
    A("v_lshrrev_b32 v30, 2, v28"); A("v_lshl_add_u32 v29, v27, 3, v30"); A("v_lshlrev_b32 v29, 7, v29")
    A("v_and_b32 v31, 3, v28"); A("v_lshl_add_u32 v29, v31, 3, v29")
    A("v_lshrrev_b32 v30, 1, v30"); A("v_lshl_add_u32 v30, v24, 1, v30"); A("v_lshlrev_b32 v30, 5, v30")
    A(f"v_add_u32 v{vW[0]}, v29, v30")
    for ct in range(1, 4): A(f"v_xor_b32 v{vW[ct]}, {32*ct}, v{vW[0]}")
    A(f"s_lshl_b32 s{sRT}, s{sI}, 2"); A(f"s_add_u32 s{sRT}, s{sRT}, s{sWAVE}"); A(f"s_lshl_b32 s{sXA}, s{sRT}, 16")
    A(f"s_add_u32 s{sZ1}, s{sH}, s{sI}"); A(f"s_and_b32 s{sZ1}, s{sZ1}, {ROT1}"); A(f"s_lshl_b32 s{sZ1}, s{sZ1}, 8")
    A(f"s_add_u32 s{sXA}, s{sXA}, s{sZ1}"); A(f"s_add_u32 s{sXB}, s{sXA}, 32768")
    A(f"s_lshl_b32 s{sRT}, s{sRT}, 1")
    for s, n in ((sWS, WS_END), (sE, WS_END), (sX, 2*MB), (sDBG, 256), (sW, 4*MB)):
        A(f"s_mov_b32 s{s+2}, {n}"); A(f"s_mov_b32 s{s+3}, 0x20000")
    A("s_waitcnt lgkmcnt(0)")
    c += mk("ka")
    A(f"s_mov_b32 s{sR}, s{sZ1}")
    A(f"s_lshr_b32 s{sCG}, s{T_FL}, 16")
    A(f"s_cmp_eq_u32 s{T_XSEL}, 0"); A(f"s_cselect_b64 {sr(sX,2)}, s[72:73], s[74:75]")
    c += x_dma(0)
    A(f"s_mov_b64 {sr(sXP,2)}, s[72:73]"); A(f"s_mov_b64 {sr(sE,2)}, {sr(sWS,2)}")
    A(f"s_cmp_eq_u32 s{T_WSEL}, 0"); A(f"s_cselect_b64 {sr(sW,2)}, s[76:77], s[78:79]")
    A(f"s_cmp_eq_u32 s{T_WSEL}, 2"); A(f"s_cselect_b64 {sr(sW,2)}, s[6:7], {sr(sW,2)}"); A(f"s_cselect_b32 s{sW+2}, {512*3072}, s{sW+2}")
    A("s_mov_b64 s[6:7], s[96:97]")
    c += w_lane_setup(f"s{T_STR}", sT1, f"s{T_WCOL}")
    A(f"s_mov_b32 s{sEN}, {WS_END}")
    A(f"s_mov_b32 s{sTE}, s{T_T0}")
    c += touch_setup()
    if TPOS == "a": c += lin_touch() + touch_w3()
    c += mk("i0")
    c += w_dma(0, (0, 0), NT) + x_dma(1)
    c += mk("i1")
    if TPOS == "b": c += lin_touch() + touch_w3()
    vFL = 27
    z = F1OFF + [f"v_mov_b32 v{vFL}, 0", "s_mov_b64 exec, 1", f"buffer_store_dword v{vFL}, off, {sr(sWS,4)}, s{sZ0}{SC}",
                 f"s_lshl_b32 s{sZ0}, s{sI}, 7", f"s_lshl_b32 s{sZ1}, s{sH}, 2", f"s_add_u32 s{sZ0}, s{sZ0}, s{sZ1}", f"s_add_u32 s{sZ0}, s{sZ0}, {WS_F3}",
                 f"buffer_store_dword v{vFL}, off, {sr(sWS,4)}, s{sZ0}{SC}", f"buffer_store_dword v{vFL}, off, {sr(sWS,4)}, s{sZ0} offset:{WS_F4 - WS_F3}{SC}", "s_mov_b64 exec, -1"]
    c += w_dma(1, (1, 0), NT) + w_dma(2, (2, 0), NT)
    if TPOS == "c": c += lin_touch() + touch_w3()
    else: c += lin_touch()[:-1]
    A(f"s_mov_b64 {sr(sGW,2)}, s[32:33]"); A(f"s_mov_b32 s{sGW+2}, 1024"); A(f"s_mov_b32 s{sGW+3}, 0x20000")
    z = [f"buffer_load_dword v{vTCH}, v31, {sr(sGW,4)}, 0 offen"] + z
    c += w0only(z, "P1_Z")
    c += mk("i2")
    A("s_waitcnt vmcnt(@Px0:1:x)"); c += mk("l0"); c += x_reads(0, False)
    A("s_waitcnt vmcnt(@Px1:0:x)"); c += mk("l1"); A("s_barrier"); c += tr_reads(0, 0) + x_reads(1, False)
    A(f"s_cmp_eq_u32 s{T_OR}, 0"); A("s_cbranch_scc0 P1_V1")
    return c

def p2(kv_setup, kv_dma0, kv_dma1, kv_dma2, mask_setup, wo_ptrs, wo_touch, out_ptr):
    sl = pair_slots(2, 0, 0, True, False)
    SG = int(os.environ.get("SG", "2"))
    sl[SG]["need"] = ["2:w", "0:st"]
    sl[SG]["postbar"] = w0only(flag_store(F1OFF, 1), "P2_S")
    def spin(lbl, load, cmp):
        return [f"s_mov_b32 s{sZ1}, 0x100000", f"s_waitcnt vmcnt(@{lbl}:0:fl)", f"{lbl}L:", cmp, "s_nop 0", f"s_cbranch_vccz {lbl}",
                "s_sleep 8", load, "s_waitcnt vmcnt(0)", f"s_sub_u32 s{sZ1}, s{sZ1}, 1", f"s_cmp_lg_u32 s{sZ1}, 0", f"s_cbranch_scc1 {lbl}L"]
    ld0 = f"buffer_load_dword v31, v29, {sr(sDBG,4)}, 0 offen sc1 ; grpend:fl"
    ld1 = f"buffer_load_dword v31, v{vPF}, {sr(sWS,4)}, 0 offen sc1 ; grpend:fl"
    sl[4]["prebar"] = w0only(spin("P2_C", ld0, "v_cmp_gt_u32 vcc, v30, v31"), "P2_C")
    sl[3]["postbar"] = sl[3].get("postbar", []) + w0only([ld0], "P2_L0")
    sl[5]["postbar"] = w0only([ld1], "P2_L1")
    sl[6]["prebar"] = w0only(spin("P2_D", ld1, "v_cmp_ne_u32 vcc, 1, v31"), "P2_D")
    sl[7]["nobar"] = True
    qx = qd = None
    if os.environ.get("P2J", "1") == "1":
        for d in sl:
            for k in ("xr", "xk", "xd"): d.pop(k, None)
        X = lambda sc, h: x_dma(sc)[6*h:6*h+6]
        qd = {9: X(5,0), 10: X(5,1), 12: X(6,0), 13: X(6,1), 16: X(7,0), 17: X(7,1)}
        qx = {0: (2, 2), 4: (3, 1), 8: (4, 0), 14: (5, 1), 20: (6, 1), 22: (7, 0)}
    B = Block("q", sl, None, qx, qd)
    B.S.fill(epilogue(1, True), 3, int(os.environ.get("EE", "120")))
    B.S.fill(paddr(), 3 * 64, 3 * 64 + 46)
    B.S.fill(code_touch(52)[:3] + (code_touch(52)[3:] if '3' in RT else []), 3 * 64 + 50, 4 * 64)
    B.S.fill(wo_ptrs, 3 * 64 + 50, 3 * 64 + 62)
    WQ = int(os.environ.get("WQ", "19"))
    k = max(i for i, x in enumerate(wo_touch) if x.startswith("s_lshl_b32 s7") ) + 1
    B.S.fill(wo_touch[:k], 18 * 16, 19 * 16); B.S.fill(wo_touch[k:], WQ * 16, WQ * 16 + 48)
    B.S.fill(out_ptr, 18 * 16, 18 * 16 + 8)
    B.S.fill(mask_setup, 4 * 64, 5 * 64 + 46)
    B.S.fill(kv_setup, 5 * 64 + 46, 6 * 64 + 30)
    B.S.fill(kv_dma0, 6 * 64 + 48, 7 * 64 + 16)
    B.S.fill(kv_dma1, 7 * 64 + 16, 7 * 64 + 56)
    B.S.fill(q_epilogue(2, 0, 0), 6 * 64 + 34, 7 * 64 + 2)
    B.S.fill(q_epilogue(2, 0, 1), 7 * 64 + 3, 7 * 64 + 34)
    B.S.fill(q_epilogue(0, 1, 0), 7 * 64 + 35, 8 * 64)
    for q in range(1, 8): B.S.before(q * 64, MK[0](f'q{q}'))
    if os.environ.get("QOV"): print([ (g, B.S.load(g) - 16) for g in range(B.S.n) if B.S.load(g) > 16])
    qe = flat(q_epilogue(0, 1, 1)); tail = []
    k2 = list(kv_dma2)
    for i, x in enumerate(qe):
        if i % 3 == 0 and k2 and not (i and qe[i-1].startswith("s_nop")): tail.append(k2.pop(0))
        tail.append(x)
    return ["P2:"] + B.emit() + ["s_nop 1"] + tail + k2
def paddr():
    m5 = (1 << 32) // 5 + 1
    o = [f"s_lshl_b32 s{sT1}, s{sH}, 1", f"s_mul_hi_u32 s72, s{sT1}, {m5}", f"s_add_u32 s{sT1}, s{sT1}, 1", f"s_mul_hi_u32 s73, s{sT1}, {m5}",
         "s_add_u32 s74, s72, 13", "s_add_u32 s75, s73, 13", f"s_lshr_b32 s{sT1}, s{sH}, 4", f"s_add_u32 s76, s{sT1}, 26", f"s_add_u32 s77, s{sT1}, 28", f"s_add_u32 s78, s{sT1}, 30",
         f"v_mov_b32 v{vPF}, {GATE_CG}"]
    for k in range(7):
        o += [f"v_cmp_eq_u32 vcc, {k}, v{vL3}", f"v_mov_b32 v29, s{72+k}", "s_nop 0", f"v_cndmask_b32 v{vPF}, v{vPF}, v29, vcc"]
    o += [f"v_and_b32 v29, 7, v{vLN}", "v_lshlrev_b32 v29, 2, v29", f"v_lshl_add_u32 v{vPF}, v{vPF}, 7, v29", f"v_add_u32 v{vPF}, {WS_F1}, v{vPF}",
          f"v_and_b32 v29, 1, v{vLN}", "v_lshlrev_b32 v29, 7, v29", "v_mov_b32 v30, 128"]
    return o
def tabdata():
    return [".p2align 6", ".type P1_TAB,@object", "P1_TAB:"] + [".long " + ", ".join(hex(x) for x in e) for e in table()]
```

```python
from asmlib import *
from layout import *
import os

O_ = {'L': 32, 'H': 160}
S_ = [224, 144]; P_ = [128, 136]; CM = 112; TRI = 96
vK, vV, vL16, vDMA, vLO, vHI, vG = 1, 2, 3, 24, 25, 28, {'L': [29, 8], 'H': [9, 10]}
SC = ' sc1'
SUM_ = {'L': 208, 'H': 216}
ONE = 4
vT = 13
Q_ = {'L': 0, 'H': 32}; K_ = 64; V_ = 96
sWS = 8
sKV = 12
sWAVE, sH, sI = 16, 17, 18
sCNT, sSEQ, sRD, sRK, sRV, sLW, sT0, sT1, sNST, sQL, sQH, sDT, sOFF, s2I = range(56, 70)
sBS = [72, 73, 74]
sM3 = 75
BIG = fbits(-1.0e30)
RING = 5

MF = "v_mfma_f32_16x16x32_bf16"
def qk(j, sb, masked):
    o = []
    for s in range(2):
        for qs in range(2):
            x = (qs * 2 + s) * 4; d = vr(S_[sb] + x, 4)
            for ks in range(4):
                c = (vr((CM if masked == "cm" else TRI) + x, 4) if masked else "0") if ks == 0 else d
                o.append(f"{MF} {d}, {ar(K_+4*(s*4+ks),4)}, {ar(Q_[j]+4*(qs*4+ks),4)}, {c}")
    return o
def pv(j, pb, first=False):
    o = []
    for dt in range(8):
        for qs in range(2):
            d = vr(O_[j] + (dt*2+qs)*4, 4)
            o.append(f"{MF} {d}, {ar(V_+4*dt,4)}, {vr(P_[pb]+4*qs,4)}, {'0' if first else d}")
    for qs in range(2):
        d = ar(SUM_[j] + 4*qs, 4)
        o.append(f"{MF} {d}, {vr(ONE,4)}, {vr(P_[pb]+4*qs,4)}, {'0' if first else d}")
    return o
def kread(t, i): return f"ds_read_b128 {ar(K_+4*i,4)}, v{vK} offset:{t*16384 + i*1024}"
def vread(t, i): return f"ds_read_b128 {ar(V_+4*i,4)}, v{vV} offset:{t*16384 + 8192 + i*1024}"
def sm(sb, pb):
    S = S_[sb]
    e = lambda r: f"v_exp_f32 v{S+r}, v{S+r}"
    c = lambda k: f"v_cvt_pk_bf16_f32 v{P_[pb]+k}, v{S+2*k}, v{S+2*k+1}"
    seq = [e(0)]
    for r in range(1, 16):
        seq.append(e(r))
        if r % 2 == 0 and r < 14: seq.append(c(r // 2 - 1))
    return seq + [c(6), c(7)]
def cm_ops():
    o = [[f"s_cmp_lt_i32 s{sDT}, 0", f"s_cselect_b32 s{sT0}, 0, {hex(BIG)}"], f"v_mov_b32 v{vLO}, s{sT0}",
         [f"s_cmp_le_i32 s{sDT}, 0", f"s_cselect_b32 s{sT0}, 0, {hex(BIG)}"], f"v_mov_b32 v{vHI}, s{sT0}", f"s_add_u32 s{sDT}, s{sDT}, 1"]
    o += [f"v_med3_f32 v{CM+r}, v{TRI+r}, v{vLO}, v{vHI}" for r in range(16)]
    return o
def ring3(s, src=None, zero="0"):
    return [f"s_add_u32 s{s}, s{src if src else s}, 32768", [f"s_cmp_ge_u32 s{s}, {RING*32768}", f"s_cselect_b32 s{s}, {zero}, s{s}"]]
def ring_adv(s, v): return ring3(s) + [f"v_add_u32 v{v}, s{s}, v{vL16}"]
def dma_ops(dual=True):
    if dual: o = [f"s_sub_u32 s{sOFF}, 32, s{sSEQ}", [f"s_cmp_le_u32 s{sSEQ}, s{s2I}", f"s_cselect_b32 s{sOFF}, s{sSEQ}, s{sOFF}"], f"s_lshl_b32 s{sOFF}, s{sOFF}, 15"]
    else: o = [None, [None, None], f"s_lshl_b32 s{sOFF}, s{sSEQ}, 15"]
    o += [f"s_mov_b32 m0, s{sRD}", f"s_add_u32 s{sSEQ}, s{sSEQ}, 1"]
    for i in range(8):
        if i == 4: o += [f"s_add_u32 m0, s{sRD}, 4096", f"s_add_u32 s{sOFF}, s{sOFF}, 4096"]
        o.append(f"buffer_load_dwordx4 v{vDMA}, {sr(sKV,4)}, s{sOFF} offen offset:{(i%4)*1024}{SC} lds" + (" ; grpend:kv" if i == 7 else ""))
    return o + ring3(sRD, zero=f"s{sLW}")
def d_items(w):
    ld = lambda t: (0 if t < 2 else 3, t & 1); hd = lambda t: (2 if t < 2 else 1, t & 1)
    it = [('L', "cm") + ld(0), ('H', False) + ld(0), ('H', False) + ld(1)]
    it += [('L', k + 1 == w) + ld(k + 1) if k < w else ('H', k == w) + hd(3 - k) for k in range(4)]
    return it + [('H', False) + ld(2), ('H', False) + ld(3)]

cnt = [0]
EG = [0, 2, 3, 5, 7, 9, 11, 13, 16, 18, 20, 22, 24, 26, 28, 30]
CG = [4, 6, 10, 14, 19, 23, 27, 31]
KG = [4, 6, 8, 10, 12, 14, 15, 17]; VG = [19, 21, 23, 25, 27, 29, 31, 32]
def slot(qi, si, pi, n, kre, vre, bar=False, kadv=False, vadv=False, dma=None, bark=1, extra=None, prek=False, nextk=False, loop=None,
         rid=(), kset=None, vset=None, dual=False, sal=(), spill=None):
    m = []
    if qi: m += qk(qi[0], (n + 1) & 1, qi[1])
    nq = len(m)
    if pi: m += pv(pi, (n + 1) & 1)
    S = Sched(m, 16); N = len(m)
    cnt[0] += 1; tag = f"A{cnt[0]}"
    full = (N == 34)
    if qi and not prek: S.before(0, "LGK")
    if bar:
        if bark is not None: S.add(0, f"s_waitcnt vmcnt(@{tag}:{bark}:kv)")
        S.add(1, "s_barrier")
    if pi:
        if full: S.add(13, "LGV")
        else: S.before(nq, "LGV")
    if nextk: S.add(28, "LGK")
    if loop: S.add(30, f"s_sub_u32 s{sCNT}, s{sCNT}, 1"); S.add(33, f"s_cbranch_scc0 {loop}")
    S.tail = [] if nextk else ["s_nop 0"]
    d = []
    for x in dma_ops(dual): d += x if isinstance(x, list) else [x]
    def put(gs, xs):
        for g, x in zip(gs, xs):
            if x: S.add(g, x)
    if full:
        e, cv = [x for x in sm(n & 1, n & 1) if "exp" in x], [x for x in sm(n & 1, n & 1) if "cvt" in x]
        if kre is not None: put(KG, [kread(kre, i) for i in range(8)])
        if vre is not None: put(VG, [vread(vre, i) for i in range(8)])
        if dma == 1:
            if dual: put([2, 3, 5, 7, 9, 16], d[0:6]); put([12, 17, 25, 29] if loop else [12, 17, 25, 33], d[6:10])
            else: put([5, 7, 16], d[3:6]); put([8, 17, 25, 29] if loop else [8, 17, 25, 33], d[6:10])
        if dma in (2, 21):
            S.add(0, d[10]); S.add(1, [d[11], d[12]])
            S.add(12 if dma == 2 else 17, d[13])
        if dma in (2, 22):
            put([25, 33] if dma == 2 else [1, 33], d[14:16]); put([22, 24, 26], d[16:19])
        if dma == 23:
            S.add(0, d[10]); S.add(1, [d[11], d[12]]); put([6, 8, 12], d[13:16]); put([2, 3, 5], d[16:19])
            put([16, 18, 20, 22, 24], [f"s_sub_u32 s{sSEQ}, s{sSEQ}, 2", d[3], d[4], d[5], f"s_sub_u32 s{sKV+2}, s{sKV+2}, 65536"])
            put([21, 25, 29, 33], d[6:10])
        if vadv: put([9, 11, 12, 15], flat(ring_adv(sRV, vV)))
        if kadv: put([16, 18, 20, 21], flat(ring_adv(sRK, vK)))
        if kset is not None: S.add(21, f"v_add_u32 v{vK}, s{kset}, v{vL16}")
        if vset is not None: S.add(15, f"v_add_u32 v{vV}, s{vset}, v{vL16}")
        for g, x in sal: S.add(g, x)
        if rid:
            gs = [8, 12, 17, 21, 25, 29, 32, 33]
            step = len(gs) / len(rid)
            for i, x in enumerate(rid): S.add(gs[int(i * step)], x)
        put(EG, e); put(CG, cv)
    else:
        if vre is not None: put([1, 3, 5, 7, 9, 11, 13, 15], [vread(vre, i) for i in range(8)])
        if si: S.fill(sm(n & 1, n & 1), 0, N)
    if extra: S.fill(extra, 0, N)
    return S.emit(), None, S.over()

def flat(l):
    o = []
    for x in l: o += [x] if isinstance(x, str) else x
    return o

def resolve_lg(traces):
    res = {}
    for tr in traces:
        q = []
        for ins in tr:
            if ins.startswith("LG"):
                lo = K_ if ins[2] == "K" else V_
                need = [i for i, b in enumerate(q) if b is not None and lo <= b < lo + 32]
                n = len(q) - 1 - need[-1] if need else 15
                n = min(n, 15)
                res[ins] = min(res.get(ins, 15), n)
                continue
            mm = re.match(r"ds_read_b128 a\[(\d+):", ins)
            if mm: q.append(int(mm.group(1)))
            elif ins.startswith("ds_"): q.append(None)
    return res

def uniq_lg(code, pfx):
    o = []
    for i, ins in enumerate(code):
        o.append(f"{ins}#{pfx}{i}" if ins in ("LGK", "LGV") else ins)
    return o

def section(slots, name, spill_in):
    code = []; sp = spill_in; ov = 0
    for kw in slots:
        c, sp, o = slot(spill=sp, **kw); code += c; ov += o
    print("K2", name, "over", ov)
    return uniq_lg(code, name), sp

def kv_setup(vLN):
    c = []; A = c.append
    A(f"s_lshl_b32 s{s2I}, s{sI}, 1")
    A(f"s_lshl_b32 s{sLW}, s{sWAVE}, 13")
    A(f"v_lshlrev_b32 v{vDMA}, 4, v{vLN}"); A(f"v_add_u32 v{vDMA}, s{sLW}, v{vDMA}")
    A(f"s_lshl_b32 s{sQL}, s{sI}, 2"); A(f"s_add_u32 s{sQL}, s{sQL}, s{sWAVE}"); A(f"s_sub_u32 s{sQH}, 63, s{sQL}")
    A(f"s_sub_u32 s{sNST}, 32, s{s2I}")
    A(f"s_lshl_b32 s{sT0}, s{sH}, 20"); A(f"s_add_u32 s{sT0}, s{sT0}, {WS_KV}")
    A(f"s_lshl_b32 s{sKV+2}, s{sNST}, 15")
    A([f"s_add_u32 s{sKV}, s{sWS}, s{sT0}", f"s_addc_u32 s{sKV+1}, s{sWS+1}, 0"])
    A(f"s_add_u32 s{sRD}, s{sLW}, 65536"); A(f"s_mov_b32 s{sSEQ}, 0")
    A(f"s_mov_b32 s{sRK}, 65536"); A(f"s_mov_b32 s{sRV}, 32768")
    return c
def kv_dma0(): return dma_ops()
def kv_dma1(): return dma_ops()
E2 = os.environ.get('E2', '1') == '1'
def kv_dma2(): return flat(dma_ops()[:9]) if E2 else []
def mask_setup(vLN):
    c = []; A = c.append
    t0, t1 = P_[1], P_[1] + 1
    A(f"v_lshrrev_b32 v{t0}, 5, v{vLN}"); A(f"v_lshlrev_b32 v{t0}, 4, v{t0}"); A(f"v_and_b32 v{t1}, 15, v{vLN}"); A(f"v_sub_u32 v{t0}, v{t1}, v{t0}")
    A(f"v_bfe_u32 v{t1}, v{vLN}, 4, 1"); A(f"v_lshlrev_b32 v{t1}, 2, v{t1}"); A(f"v_sub_u32 v{t0}, v{t0}, v{t1}")
    A(f"v_mov_b32 v{t1}, {hex(BIG)}")
    pr = ["s[72:73]", "s[74:75]", "s[76:77]", "s[70:71]"]
    for r0 in range(0, 16, 4):
        for r in range(r0, r0 + 4): A(f"v_cmp_gt_i32 {pr[r&3]}, {8*((r>>2)&1) + (r&3) - 16*(r>>3)}, v{t0}")
        for r in range(r0, r0 + 4): A(f"v_cndmask_b32 v{TRI+r}, 0, v{t1}, {pr[r&3]}")
    A(f"s_sub_u32 s{sDT}, 0, s{sWAVE}")
    c += cm_ops()
    for r in range(8): A(f"v_mov_b32 v{P_[0]+r}, 0")
    for r in range(16): A(f"v_mov_b32 v{S_[1]+r}, v{t1}")
    return c
def wo_ptrs():
    return [f"s_load_dwordx2 s[96:97], s[0:1], {KA_WO}", f"s_load_dwordx2 s[48:49], s[0:1], {KA_BWO}",
            f"s_mov_b32 s98, {4*MB}", "s_mov_b32 s99, 0x20000", f"s_mov_b32 s50, {MB//2}"]
def out_ptr(): return [f"s_load_dwordx2 s[44:45], s[0:1], {KA_OUT}"]
def wo_touch(vLN):
    c = []; A = c.append
    A(f"v_lshrrev_b32 v9, 3, v{vLN}"); A(f"v_and_b32 v10, 7, v{vLN}"); A(f"v_bfe_u32 v11, v{vLN}, 4, 1"); A("v_lshlrev_b32 v11, 2, v11"); A("v_xor_b32 v10, v10, v11")
    A("v_lshlrev_b32 v10, 4, v10"); A("v_lshl_add_u32 v9, v9, 10, v10")
    A(f"s_lshl_b32 s100, s{sH}, 2"); A(f"s_add_u32 s100, s100, s{sWAVE}"); A("s_lshl_b32 s101, s100, 15"); A(f"s_lshl_b32 s7, s{sI}, 7"); A("s_add_u32 s101, s101, s7")
    A(f"s_lshl_b32 s7, s{sWAVE}, 12")
    for i in range(4):
        A(f"s_add_u32 m0, s7, {i*1024}"); A(f"s_add_u32 s6, s101, {i*8192}")
        A("buffer_load_dwordx4 v9, s[96:99], s6 offen" + os.environ.get("WNT", " nt") + " lds" + (" ; grpend:wt" if i == 3 else ""))
    A(f"v_and_b32 v10, 3, v{vLN}"); A("v_lshlrev_b32 v10, 7, v10"); A("s_lshl_b32 s6, s2, 2"); A(f"s_add_u32 s6, s6, s{sWAVE}"); A("s_lshl_b32 s6, s6, 9")
    A("buffer_load_dword v23, v10, s[48:51], s6 offen")
    A(f"v_lshrrev_b32 v9, 5, v{vLN}"); A(f"v_bfe_u32 v10, v{vLN}, 2, 2"); A("v_lshl_add_u32 v9, v9, 3, v10"); A("v_lshlrev_b32 v9, 7, v9")
    A(f"v_bfe_u32 v10, v{vLN}, 3, 1"); A("v_lshl_add_u32 v9, v10, 6, v9")
    A(f"v_bfe_u32 v10, v{vLN}, 4, 1"); A("v_lshl_add_u32 v9, v10, 5, v9")
    A(f"v_and_b32 v10, 3, v{vLN}"); A("v_lshl_add_u32 v9, v10, 3, v9"); A("v_add_u32 v9, s7, v9"); A("v_xor_b32 v10, 64, v9")
    A("s_lshl_b32 s100, s100, 12"); A(f"s_lshl_b32 s101, s{sI}, 19"); A("s_add_u32 s100, s100, s101")
    return c
def wt_read(): return ["s_waitcnt vmcnt(@wt:0:wt)"] + [f"ds_read_b64_tr_b16 {ar(224+8*j+4*mt+2*e,2)}, v{9+mt} offset:{j*2048 + e*512}" for j in range(2) for mt in range(2) for e in range(2)]
def wt_store(): return [f"buffer_store_dwordx4 {ar(224+4*k,4)}, v{vL16}, {sr(sWS,4)}, s100 offen offset:{k*1024}{SC}" for k in range(4)]
def prologue(vLN):
    c = []; A = c.append
    A(f"v_lshlrev_b32 v{vL16}, 4, v{vLN}")
    A(f"v_add_u32 v{vK}, s{sRK}, v{vL16}")
    c += wt_read()
    for r in range(0, 64, 2): A(f"v_mov_b64 {vr(O_['H']+r,2)}, 0")
    c += ones(vLN)
    A("s_waitcnt vmcnt(@P30:1:kv) lgkmcnt(0)"); A("s_barrier")
    c += [kread(0, ks) for ks in range(8)]
    if not E2: c += flat(dma_ops()[:9])
    for r in range(0, 64, 2): A(f"v_mov_b64 {vr(O_['L']+r,2)}, 0")
    for r in range(16): A(f"v_accvgpr_write_b32 a{SUM_['L']+r}, 0")
    return c
def ones(vLN):
    return [f"v_and_b32 v21, 3, v{vLN}", "v_cmp_eq_u32 vcc, 0, v21", "v_mov_b32 v21, 0x3f803f80", "s_nop 0"] + [f"v_cndmask_b32 v{ONE+r}, 0, v21, vcc" for r in range(4)]
def gate_parts(vLN):
    v = [f"v_and_b32 v21, 15, v{vLN}", "v_lshlrev_b32 v18, 2, v21"]
    sc = [f"s_lshl_b32 s78, s{sQL}, 7", f"s_add_u32 s78, s78, {WS_GATE}", f"s_lshl_b32 s79, s{sQH}, 7", f"s_add_u32 s79, s79, {WS_GATE}"]
    ld = [f"buffer_load_dword v{vG[j][qs]}, v18, {sr(sWS,4)}, s{b} offen offset:{64*qs}{SC}" + (" ; grpend:ga" if j == 'H' and qs else "") for j, b in (('L', 78), ('H', 79)) for qs in range(2)]
    return v, sc, ld

sBAD = 70
sCA = 76
HP = 32
vLS = [11, 12]
def rowsum(j): return [f"v_accvgpr_read_b32 v{vLS[qs]}, a{SUM_[j]+4*qs}" for qs in range(2)]
def check(j):
    c = []
    for qs in range(2):
        c += [f"v_cmp_nle_f32 vcc, {hex(fbits(2.0**-64))}, v{vLS[qs]}"]
        c += [f"s_mov_b64 {sr(sBAD,2)}, vcc"] if (j == 'L' and qs == 0) else [f"s_or_b64 {sr(sBAD,2)}, {sr(sBAD,2)}, vcc"]
        c += [f"v_cmp_nge_f32 vcc, {hex(fbits(2.0**64))}, v{vLS[qs]}", f"s_or_b64 {sr(sBAD,2)}, {sr(sBAD,2)}, vcc"]
    return c
def ctx_off(sq, a):
    return [f"s_mul_i32 s{a}, s{sq}, {288*1024}", f"s_lshl_b32 s{a+1}, s{sH}, 13", f"s_add_u32 s{a}, s{a}, s{a+1}",
            f"s_add_u32 s{a}, s{a}, {WS_CTX}", f"s_add_u32 s{a+1}, s{a}, 4096"]
def scale_pack(j, store, inplace=False):
    c = []; A = c.append
    sc = [vT + 1, vT + 2]
    for qs in range(2): A(f"v_rcp_f32 v{sc[qs]}, v{vLS[qs]}")
    c += ctx_off(sQL if j == 'L' else sQH, sCA)
    for qs in range(2): A(f"v_mul_f32 v{sc[qs]}, v{sc[qs]}, v{vG[j][qs]}")
    prev = []
    for fr in range(8):
        b = O_[j] + 8 * fr; t = b if (store or inplace) else HP + 4 * fr
        for r in range(0, 8, 2):
            q = r >> 2
            A(f"v_pk_mul_f32 {vr(b+r,2)}, {vr(b+r,2)}, {vr(sc[0],2)} op_sel:[0,{q}] op_sel_hi:[1,{q}]")
        c += prev
        for r in range(4): A(f"v_cvt_pk_bf16_f32 v{t+r}, v{b+2*r}, v{b+2*r+1}")
        prev = [f"v_permlane16_swap_b32 v{t}, v{t+2}", f"v_permlane16_swap_b32 v{t+1}, v{t+3}"]
        if store: prev.append(f"buffer_store_dwordx4 {vr(t,4)}, v{vL16}, {sr(sWS,4)}, s{sCA + fr//4} offen offset:{(fr%4)*1024}{SC}")
    return c + ["s_nop 1"] + prev
def h_stores():
    return [f"buffer_store_dwordx4 {vr(HP+4*fr,4)}, v{vL16}, {sr(sWS,4)}, s{sCA + fr//4} offen offset:{(fr%4)*1024}{SC}" + (" ; grpend:ca" if fr == 7 else "") for fr in range(8)]
def l_epilogue(): return rowsum('L') + check('L') + scale_pack('L', False, True)
def l_stores(): return [f"buffer_store_dwordx4 {vr(O_['L']+8*fr,4)}, v{vL16}, {sr(sWS,4)}, s{sCA + fr//4} offen offset:{(fr%4)*1024}{SC}" for fr in range(8)]
def epilogue(early):
    c = ['s_nop 7'] + rowsum('H') + check('H')
    c.append("s_cbranch_scc1 K2_SLOW" if not os.environ.get("K2X") else "s_cbranch_execz K2_SLOW")
    c.append("K2_STORE:")
    return c + scale_pack('H', False)

def slow():
    c = ["K2_SLOW:", "s_waitcnt vmcnt(0)", f"s_lshl_b32 s{sKV+2}, s{sNST}, 15"]; A = c.append
    S = S_[0]; P = P_[0]; vM = [16, 17]; vX = 18
    def loads(base, extra):
        o = [f"s_lshl_b32 s{sT0}, s{sCNT}, 14", f"s_add_u32 s{sT0}, s{sT0}, {extra}", f"s_add_u32 s{sT1}, s{sT0}, 4096"]
        o += [f"buffer_load_dwordx4 {ar(base+4*i,4)}, v{vL16}, {sr(sKV,4)}, s{sT0 if i < 4 else sT1} offen offset:{(i%4)*1024}{SC}" for i in range(8)]
        return o
    def mask(sq):
        return [f"s_sub_u32 s{sDT}, s{sCNT}, s{sq}"] + flat(cm_ops()) + ["s_nop 1"]
    for j, sq in (('L', sQL), ('H', sQH)):
        for qs in range(2): A(f"v_mov_b32 v{vM[qs]}, {hex(BIG)}")
        A(f"s_mov_b32 s{sCNT}, 0")
        A(f"K2_SM{j}:")
        c += loads(K_, 0) + mask(sq); A("s_waitcnt vmcnt(0)")
        c += qk(j, 0, "cm"); A("s_nop 15")
        for r in range(16): A(f"v_max_f32 v{vM[r>>3]}, v{vM[r>>3]}, v{S+r}")
        A(f"s_add_u32 s{sCNT}, s{sCNT}, 1"); A(f"s_cmp_le_u32 s{sCNT}, s{sq}"); A(f"s_cbranch_scc1 K2_SM{j}")
        for qs in range(2):
            for op in ("v_permlane16_swap_b32", "v_permlane32_swap_b32"):
                A(f"v_mov_b32 v{vX}, v{vM[qs]}"); A("s_nop 1"); A(f"{op} v{vM[qs]}, v{vX}"); A(f"v_max_f32 v{vM[qs]}, v{vM[qs]}, v{vX}")
        for r in range(64): A(f"v_mov_b32 v{O_[j]+r}, 0")
        for r in range(8): A(f"v_accvgpr_write_b32 a{SUM_[j]+r}, 0")
        A(f"s_mov_b32 s{sCNT}, 0")
        A(f"K2_SP{j}:")
        c += loads(K_, 0) + loads(V_, 8192) + mask(sq); A("s_waitcnt vmcnt(0)")
        c += qk(j, 0, "cm"); A("s_nop 15")
        for r in range(16): A(f"v_sub_f32 v{S+r}, v{S+r}, v{vM[r>>3]}")
        for r in range(16): A(f"v_exp_f32 v{S+r}, v{S+r}")
        A("s_nop 0")
        for r in range(8): A(f"v_cvt_pk_bf16_f32 v{P+r}, v{S+2*r}, v{S+2*r+1}")
        A("s_nop 1")
        c += pv(j, 0)
        A(f"s_add_u32 s{sCNT}, s{sCNT}, 1"); A(f"s_cmp_le_u32 s{sCNT}, s{sq}"); A(f"s_cbranch_scc1 K2_SP{j}")
        A("s_nop 15")
        c += rowsum(j)
        if j == 'L': c += scale_pack('L', True)
    A("s_branch K2_STORE")
    return c

def gen(vLN, early, mark, mk=lambda n: []):
    cnt[0] = 0
    P = prologue(vLN)
    L, H = 'L', 'H'
    K = dict(prek=True, nextk=True)
    gv, gs_, gl = gate_parts(vLN)
    ld = early["ld"]; ev = gv + early["valu"]; s1 = gs_ + early["s1"]; s2 = early["s2"]
    assert len(s2) <= 17 and len(s1) <= 20
    WTS = int(os.environ.get('WTS', '3'))
    WOT = os.environ.get("WOT", "p2")
    EC = [int(x) for x in os.environ.get("EC", "18,24,36,44,48,52,56,60").split(",")]
    base = lambda st: sRK if st == 0 else sBS[st - 1]
    def dslot(j, w):
        it = d_items(w); prev = [('L',), ('H',)] + it
        d = dict(qi=it[j][:2], si=prev[j+1][0], pi=prev[j][0], n=j + 1, kre=None, vre=None, **K)
        if 1 <= j < 8: d["kre"] = it[j+1][3]
        if j == 2: d["kre"] = 0
        if j == 8: d["kre"] = 0
        if j == 1: d["kset"] = sM3
        if 2 <= j < 7: d["kset"] = base(it[j+2][2])
        if j == 2: d["kset"] = sT0
        if j == 1 or j >= 3: d["vre"] = it[j-1][3]; d["vset"] = base(it[j-1][2])
        d["extra"] = ev[(EC[j-1] if j else 0):(EC[j] if j < 8 else len(ev))]
        if j == 0: d.update(dma=23, sal=list(zip([7, 9, 11, 26, 30, 32], flat(ring3(sBS[0], sRK) + ring3(sBS[1], sBS[0])))))
        if j == 1: d.update(dma=2, sal=list(zip([2, 3, 5, 7, 9, 11, 16, 18], flat(ring3(sBS[2], sBS[1])) +
                        [f"s_cmp_eq_u32 s{sWAVE}, 0", f"s_cselect_b32 s{sM3}, s{sBS[0]}, s{sRK}", f"s_add_u32 s{sM3}, s{sM3}, 16384",
                         f"s_cmp_lt_u32 s{sWAVE}, 2", f"s_cselect_b32 s{sT0}, s{sBS[0]}, s{sBS[2]}"])))
        if j == 2: d.update(bar=True, bark=2, sal=list(zip([2, 3, 5, 7, 9, 11, 16, 18, 20, 22, 24, 26, 30], s1[:13])), rid=[[], []] + gl + [[], []])
        if j == 3: d.update(bar=True, bark=0, dma=1, sal=list(zip([2, 3, 9, 11, 18, 20, 22], s1[13:])))
        if j == 4: d.update(dma=2, rid=ld[0:4])
        if j == 3 and WTS == 3: d['sal'] += list(zip([12, 21, 29, 32], wt_store()))
        if j == 5: d.update(rid=ld[4:12], sal=list(zip([0, 1, 1, 1, 2, 3, 5, 7, 9, 11, 16, 18, 20, 22, 24, 26, 30], s2)))
        if j == 6: d.update(bar=True, bark=None, dma=1, rid=ld[12:15])
        if j == 7: d.update(dma=2, rid=ld[15:], kadv=True, sal=[(2, f"s_mov_b32 s{sRV}, s{sBS[2]}"), (15, f"s_mov_b32 s{sRK}, s{sBS[2]}")])
        if j == 8:
            d.update(bar=True, dma=1)
            if WTS == 8: d.update(sal=list(zip([12, 21, 29, 32], wt_store())))
            if WOT == "d8": d.update(sal=[(1, wt[0]), (12, wt[1]), (18, wt[2]), (20, wt[3]), (22, wt[4]), (29, wt[5]), (32, wt[6])])
        return d
    D0, _ = section([dslot(j, 0) for j in range(3)], "d0", None)
    DV = [section([dslot(j, w) for j in range(3, 8)], f"dv{w}", None)[0] for w in range(4)]
    D8, _ = section([dslot(8, 0)], "d8", None)
    def dual(loop): return [
        dict(qi=(L, False), si=H, pi=L, n=3, kre=None, vre=None, dma=21, **K),
        dict(qi=(H, False), si=L, pi=H, n=0, kre=1, vre=0, vadv=True, **K),
        dict(qi=(L, False), si=H, pi=L, n=1, kre=None, vre=None, kadv=True, dma=22, **K),
        dict(qi=(H, False), si=L, pi=H, n=2, kre=0, vre=1, bar=True, dma=1, dual=True, loop=loop, **K)]
    ct = [(8, "buffer_load_dword v23, v22, s[52:55], 0 offen")] if "4" in os.environ.get("RT", "") else []
    dd = dual(None) + dual("K2_DL"); dd[0]["sal"] = ct
    D_, _ = section(dd, "dual", None)
    def single(loop=None): return [
        dict(qi=(H, False), si=H, pi=H, n=0, kre=1, vre=1, kadv=True, dma=2, **K),
        dict(qi=(H, False), si=H, pi=H, n=1, kre=0, vre=0, bar=True, vadv=True, dma=1, loop=loop, **K)]
    ss = single() + single() + single() + single(loop="K2_SL"); ss[0]["sal"] = ct
    S_1, _ = section(ss, "single", None)
    E3, _ = section([dict(qi=None, si=H, pi=H, n=0, kre=None, vre=1), dict(qi=None, si=None, pi=H, n=1, kre=None, vre=None)], "drain", None)
    EP = epilogue(early); SL = slow()
    P = P + ["s_waitcnt lgkmcnt(0)"] + mk('a0')
    sel = [f"s_cmp_eq_u32 s{sWAVE}, 1", "s_cbranch_scc1 K2_V1", f"s_cmp_eq_u32 s{sWAVE}, 2", "s_cbranch_scc1 K2_V2", f"s_cmp_eq_u32 s{sWAVE}, 3", "s_cbranch_scc1 K2_V3"]
    lD = [f"s_sub_u32 s{sCNT}, s{sI}, 1", "s_cbranch_scc1 K2_B", ".p2align 4", "K2_DL:"]
    lB = ["K2_B:"] + mk('a1')
    LE = mk('a2') + ["s_waitcnt vmcnt(@gate:0:ga)", "s_nop 4"] + rowsum('L') + check('L') + scale_pack('L', True) + mk('a3')
    lS = mk('a4') + [f"s_sub_u32 s{sCNT}, 6, s{sI}", "s_cbranch_scc1 K2_E", ".p2align 4", "K2_SL:"]
    lE = ["K2_E:"] + mk('a5')
    traces = []
    for i in range(8):
        for w in ([0, 1, 2, 3] if i in (0, 7) else [i & 3]):
            tr = P + lD
            for _ in range(i): tr = tr + D_
            tr = tr + lB + D0 + sel + DV[w] + LE + D8 + lS
            for _ in range(7 - i): tr = tr + S_1
            traces.append(tr + lE + E3 + mark + EP)
    lg = resolve_lg(traces)
    fix = lambda code: [f"s_waitcnt lgkmcnt({lg[x]})" if x.startswith("LG") else x for x in code]
    traces = [fix(t) for t in traces]
    k = [i for i, x in enumerate(EP) if x == "K2_STORE:"][0]
    slowtraces = [t[:len(t) - len(EP)] + EP[:k] + SL + EP[k:] for t in (traces[5], traces[-1])]
    code = P + lD + D_ + lB + D0 + sel + DV[0] + ["K2_J:"] + LE + D8 + lS + S_1 + lE + E3 + mark + EP
    out = []
    for w in range(1, 4): out += [f"K2_V{w}:"] + DV[w] + ["s_branch K2_J"]
    return fix(code), fix(out) + SL, traces + slowtraces
```

```python
from asmlib import *
from layout import *
import os
BIG = fbits(-1.0e30)
def flat(l):
    o = []
    for x in l: o += [x] if isinstance(x, str) else x
    return o
SC = " sc1"
O_ = 64; S_ = [192, 208]; P_ = [224, 232]; WF = [16, 24]
vL16 = 3
vVA, vG, vL16b, vTR, vWD, vLN = 240, [241, 242], 243, [244, 245], [246, 247, 248, 249], 250
T0_, T1_, T2_, T3_, T4_ = 251, 252, 253, 254, 255
ACC = 0; CX = 64; Q_ = 128; KB = [160 + 4*b for b in range(4)]; VB = [176 + 8*b for b in range(4)]
sWS, sW, sDBG, sOUT = 8, 12, 40, 44
sWAVE, sH, sQB = 16, 17, 18
sRT, sCT = 17, 18
sCNT, sKK, sKV, sT0, sT1, sC0, sWO, sLW, sCB, sWC = range(19, 29)
sM, sWB, sWA = 30, 32, 34
sZ0, sZ1 = 36, 37
sC1, sW1 = 38, 39
STG = int(os.environ.get('STG', '0'))
CT4 = [int(x) for x in os.environ.get('CT4', '').split(',') if x]
CTOUCH = 'buffer_load_dword v13, v30, s[52:55], 0 offen'
RED = 65536
PD = int(os.environ.get("PD", "4"))
PE = int(os.environ.get("PE", "8"))

def b_qk(j, kb, sb): return f"v_mfma_f32_32x32x16_bf16 {vr(S_[sb],16)}, {ar(KB[kb],4)}, {ar(Q_+4*j,4)}, 0"
def b_pv(j, vb, pb, f, first=False):
    d = vr(O_ + 16*j, 16)
    return f"v_mfma_f32_32x32x16_bf16 {d}, {ar(VB[vb]+4*f,4)}, {vr(P_[pb]+4*f,4)}, {'0' if first and f == 0 else d}"
def b_kload(b): return [f"buffer_load_dwordx4 {ar(KB[b],4)}, v{vL16}, {sr(sWS,4)}, s{sKK} offen{SC} ; grpend:k{b}", f"s_add_u32 s{sKK}, s{sKK}, 2048"]
def b_vload(b):
    return [f"s_mov_b64 exec, {sr(sM,2)}"] + [f"buffer_load_dwordx4 {ar(VB[b]+4*f,4)}, v{vVA}, {sr(sWS,4)}, s{sKV} offen offset:{1024 + 512*f}{SC}" + (f" ; grpend:v{b}" if f else "") for f in range(2)] + \
           ["s_mov_b64 exec, -1", f"s_add_u32 s{sKV}, s{sKV}, 2048"]
def wreg(s, mt): return ar(208 + 8*s + 4*mt, 4) if s < 6 else vr(16 + 8*(s - 6) + 4*mt, 4)
def o_mf(s, i):
    qt, mt = i >> 1, i & 1
    d = ar(ACC + (mt*2+qt)*16, 16)
    return f"v_mfma_f32_32x32x16_bf16 {d}, {wreg(s, mt)}, {ar(CX+8*s+4*qt,4)}, {d}"
def o_ctx(s, qt): return f"buffer_load_dwordx4 {ar(CX+8*s+4*qt,4)}, v{vL16b if qt else vL16}, {sr(sWS,4)}, s{sC0} offen offset:{(s%4)*1024}{SC}" + (" ; grpend:o" if qt else "")
def o_w(s, mt): return f"buffer_load_dwordx4 {wreg(s, mt)}, v{vL16}, {sr(sWS,4)}, s{sW1} offen offset:{(s&1)*2048 + mt*1024}{SC}"
def o_post(s): return ([f"s_add_u32 s{sW1}, s{sW1}, 4096"] if s & 1 else []) + ([f"s_add_u32 s{sC0}, s{sC0}, 4096"] if s % 4 == 3 else [])
def wb_dma():
    o = []
    for s in range(8):
        for i in range(2):
            k = (s & 1) * 2 + i
            pre = [f"s_add_u32 m0, s{sLW}, {s*2048}", f"s_add_u32 s{sWO}, s{sWO}, 32768"] if k == 0 else []
            o.append(pre + [f"buffer_load_dwordx4 v{vWD[k]}, {sr(sW,4)}, s{sWO} offen offset:{k*1024} lds" + (" ; grpend:wb" if s == 7 and i else "")])
    return o
def w0only(code, lbl): return [f"s_cmp_lg_u32 s{sWAVE}, 0", f"s_cbranch_scc1 {lbl}"] + code + [f"{lbl}:"]
def flag_store(base):
    return [f"s_lshl_b32 s{sZ0}, s{sQB}, 7", f"s_lshl_b32 s{sZ1}, s{sH}, 2", f"s_add_u32 s{sZ0}, s{sZ0}, s{sZ1}", f"s_add_u32 s{sZ0}, s{sZ0}, {base}",
            f"v_mov_b32 v{T1_}, 1", "s_mov_b64 exec, 1", f"buffer_store_dword v{T1_}, off, {sr(sWS,4)}, s{sZ0}{SC}", "s_mov_b64 exec, -1"]
def flag_load(): return f"buffer_load_dword v{T1_}, v{T2_}, {sr(sWS,4)}, s{sZ0} offen{SC} ; grpend:fl"
def flag_lane(): return [f"v_and_b32 v{T2_}, 31, v{vLN}", f"v_lshlrev_b32 v{T2_}, 2, v{T2_}"]
def spin(lbl):
    return [f"s_mov_b32 s{sZ1}, 0x100000", f"s_waitcnt vmcnt(@{lbl}:0:fl)", f"{lbl}L:", f"v_cmp_ne_u32 vcc, 1, v{T1_}", "s_nop 0", f"s_cbranch_vccz {lbl}",
            "s_sleep 4", flag_load(), "s_waitcnt vmcnt(0)", f"s_sub_u32 s{sZ1}, s{sZ1}, 1", f"s_cmp_lg_u32 s{sZ1}, 0", f"s_cbranch_scc1 {lbl}L"]

def smseq(n):
    S = S_[n & 1]; P = P_[n & 1]
    e = lambda r: f"v_exp_f32 v{S+r}, v{S+r}"
    c = lambda k: f"v_cvt_pk_bf16_f32 v{P+k}, v{S+2*k}, v{S+2*k+1}"
    return [e(0), e(1), e(2), c(0), e(3), e(4), c(1), e(5), e(6), c(2), e(7), e(8), c(3), e(9), e(10), c(4), e(11), e(12), c(5), e(13), e(14), e(15), c(6), c(7)]

def red_writes(j):
    return [f"ds_write_b128 v{T0_}, {vr(O_+16*j+4*k,4)} offset:{j*3072 + k*1024}" for k in range(2)] + [f"ds_write_b32 v{T0_}, v{O_+16*j+8} offset:{j*3072 + 2048}"]
def body(fused, tag, extra=None, first=False, last=False):
    o = []
    for n in range(32):
        qn = (n + 1) % 32; pn = (n - 1) % 32
        QK = [b_qk(qn % 8, qn // 8, (n + 1) & 1)]; PV = [[b_pv(pn % 8, pn // 8, (n + 1) & 1, f, first and pn < 8)] for f in range(2)]
        if first and n == 0: PV = [[], []]
        if last and n == 31: QK = []
        xq = []; xp = []
        if n % 8 == 6 and not last: xq = b_kload(n // 8)
        if n % 8 == 0 and not (first and n == 0) and not (last and n > 0): xp = b_vload((n // 8 - 1) % 4)
        if n % 8 == 6 and not (last and n == 30): xp = xp + [f"s_waitcnt vmcnt(@{tag}{n}:0:k{(n // 8 + 1) % 4})"]
        if n % 8 == 1: xq = xq + [f"s_waitcnt vmcnt(@{tag}{n}:0:v{n // 8})"]
        q = smseq(n)
        ex = (extra or {}).get(n, [[], [], []])
        o += QK + xq + ex[0] + q[:8] + PV[0] + ex[1] + q[8:16] + PV[1] + xp + ex[2] + q[16:]
    return o

NS = int(os.environ.get("NS", "56"))
def fused_all(wb):
    o = []; NSL = 96
    oms = [(k, i) for k in range(NS) for i in range(4)]
    q_mem = []
    issued = PD
    done = (-1, 3); om = 0
    totg = min(NS + PE, 64)
    lastmem = False
    for n in range(NSL):
        it = 32 + n; nn = it % 32; last = it >= 96
        qn = (nn + 1) % 32; pn = (nn - 1) % 32
        QK = b_qk(qn % 8, qn // 8, (nn + 1) & 1) if n < NSL - 1 else None
        PV = [b_pv(pn % 8, pn // 8, (nn + 1) & 1, f) for f in range(2)]
        xq = []; xp = []
        if nn % 8 == 6 and not last: xq = b_kload(nn // 8)
        if nn % 8 == 0 and not (last and nn > 0): xp = b_vload((nn // 8 - 1) % 4)
        if nn % 8 == 6 and not (last and nn == 30): xp = xp + [f"s_waitcnt vmcnt(@u{n}:0:k{(nn // 8 + 1) % 4})"]
        if nn % 8 == 1: xq = xq + [f"s_waitcnt vmcnt(@u{n}:0:v{nn // 8})"]
        if wb and n % 4 == 3: xq = wb.pop(0) + xq
        if n in CT4: xq = [CTOUCH.replace('v30', 'v12')] + xq
        cnt = (len(oms) * (n + 1)) // NSL - om
        mine = oms[om:om + cnt]; om += cnt
        M = [("q", QK)] + [("o", x) for x in mine[:1]] + [("p", PV[0])] + [("o", x) for x in mine[1:2]] + [("P", PV[1])] + [("o", x) for x in mine[2:]]
        q = smseq(nn); G = len(M)
        cum = []; t = 0
        for x in q: t += vcost(x); cum.append(t)
        cuts = [0] + [min(range(len(q) + 1), key=lambda j: abs((cum[j-1] if j else 0) - t * (g + 1) / G)) for g in range(G - 1)] + [len(q)]
        rw = red_writes(nn - 26) if last and nn >= 26 else []
        for g, (kind, x) in enumerate(M):
            sh = []
            if kind == "o":
                k, i = x; o.append(o_mf(k % 8, i)); done = x
                if i == 0:
                    want = min(totg, PD + ((totg - PD) * (k + 1) + NS - 1) // NS)
                    while issued < want:
                        p = issued % 8; w = issued - 8
                        q_mem += [([o_ctx(p, 0)], (w, 1)), ([o_w(p, 0)], (w, 2)), ([o_w(p, 1)], (w, 3)), ([o_ctx(p, 1)], (w, 3))] + [([y], None) for y in o_post(p)]
                        issued += 1
            elif x: o.append(x)
            if kind == "q": sh += xq
            if rw and g >= 2: sh.append(rw.pop(0))
            if kind == "P": sh += xp
            nxt = M[g + 1] if g + 1 < G else None
            if nxt and nxt[0] == "o" and nxt[1][1] == 0:
                k = nxt[1][0]
                ended = issued - sum(1 for y in q_mem if "grpend:o" in y[0][0])
                sh.append(f"s_waitcnt vmcnt(@uo{k}:{ended - (k + 1)}:o)")
            elif not sh and q_mem and (q_mem[0][1] is None or q_mem[0][1] <= done):
                ismem = q_mem[0][0][0].startswith("buffer")
                if not (ismem and lastmem and len(q_mem) < 5): sh += q_mem.pop(0)[0]
            lastmem = any(y.startswith("buffer") for y in sh)
            o += sh + q[cuts[g]:cuts[g+1]]
        assert not rw
    for y in q_mem: o += y[0]
    return o
def early():
    c = []; A = c.append
    A(f"v_and_b32 v{vLN}, 63, v0")
    A(f"v_and_b32 v{T0_}, 15, v{vLN}"); A(f"v_lshrrev_b32 v{T1_}, 5, v{vLN}"); A(f"v_lshl_add_u32 v{T0_}, v{T1_}, 4, v{T0_}"); A(f"v_lshlrev_b32 v{vVA}, 4, v{T0_}")
    A(f"v_and_b32 v{T2_}, 31, v{vLN}"); A(f"v_cmp_eq_u32 vcc, 16, v{T2_}"); A(f"v_mov_b32 v{T1_}, 0x3f803f80")
    A(f"v_lshlrev_b32 v{T2_}, 2, v{T2_}"); A(f"v_cndmask_b32 v{T1_}, 0, v{T1_}, vcc")
    for r in range(32): A(f"v_accvgpr_write_b32 a{VB[0]+r}, v{T1_}")
    A(f"v_add_u32 v{vL16b}, {288*1024}, v{vL16}")
    A(f"v_lshrrev_b32 v{T3_}, 3, v{vLN}"); A(f"v_and_b32 v{T4_}, 7, v{vLN}"); A(f"v_bfe_u32 v{vWD[1]}, v{vLN}, 4, 1"); A(f"v_lshlrev_b32 v{vWD[1]}, 2, v{vWD[1]}"); A(f"v_xor_b32 v{T4_}, v{T4_}, v{vWD[1]}")
    A(f"v_lshlrev_b32 v{T4_}, 4, v{T4_}"); A(f"v_lshl_add_u32 v{vWD[0]}, v{T3_}, 10, v{T4_}")
    for k in range(1, 4): A(f"v_add_u32 v{vWD[k]}, {k*7168}, v{vWD[0]}")
    A(f"v_lshrrev_b32 v{T3_}, 5, v{vLN}"); A(f"v_bfe_u32 v{T4_}, v{vLN}, 2, 2"); A(f"v_lshl_add_u32 v{T3_}, v{T3_}, 3, v{T4_}"); A(f"v_lshlrev_b32 v{T3_}, 7, v{T3_}")
    A(f"v_bfe_u32 v{T4_}, v{vLN}, 3, 1"); A(f"v_lshl_add_u32 v{T3_}, v{T4_}, 6, v{T3_}")
    A(f"v_bfe_u32 v{T4_}, v{vLN}, 4, 1"); A(f"v_lshl_add_u32 v{T3_}, v{T4_}, 5, v{T3_}")
    A(f"v_and_b32 v{T4_}, 3, v{vLN}"); A(f"v_lshl_add_u32 v{T3_}, v{T4_}, 3, v{T3_}")
    A(f"v_lshrrev_b32 v{T4_}, 6, v0"); A(f"v_lshl_add_u32 v{vTR[0]}, v{T4_}, 14, v{T3_}"); A(f"v_xor_b32 v{vTR[1]}, 64, v{vTR[0]}")
    cuts = [int(x) for x in os.environ.get("ECUT", "12,18,24,30").split(",")]
    parts = [c[:cuts[0]], c[cuts[0]:cuts[1]], c[cuts[1]:cuts[2]], c[cuts[2]:cuts[3]]]
    valu = c
    c = []; A = c.append
    A(f"s_mov_b64 {sr(sWB,2)}, s[48:49]")
    A(f"s_lshl_b32 s{sLW}, s{sWAVE}, 14")
    A(f"s_mul_i32 s{sCB}, s{sRT}, {2*288*1024}"); A(f"s_add_u32 s{sCB}, s{sCB}, {WS_CTX}")
    A(f"s_lshl_b32 s{sC0}, s{sWAVE}, 16"); A(f"s_add_u32 s{sC0}, s{sC0}, s{sCB}")
    A(f"s_lshl_b32 s{sW1}, s{sCT}, 19"); A(f"s_lshl_b32 s{sWO}, s{sWAVE}, 17"); A(f"s_add_u32 s{sW1}, s{sW1}, s{sWO}")
    A(f"s_lshl_b32 s{sWC}, s{sCT}, 7"); A(f"s_sub_u32 s{sWC}, s{sWC}, 32768"); A(f"s_add_u32 s{sWO}, s{sWO}, s{sWC}")
    assert WS_WT == 0
    A(f"s_add_u32 s{sKK}, s{sZ0}, 8192"); A(f"s_mov_b32 s{sKV}, s{sKK}")
    scal2 = c
    c = []; A = c.append
    A(f"s_mov_b32 s{sM}, 0xffff"); A(f"s_mov_b32 s{sM+1}, 0xffff")
    A(f"s_lshl_b32 s{sZ0}, s{sH}, 17")
    A(f"s_lshl_b32 s{sT0}, s{sWAVE}, 15"); A(f"s_add_u32 s{sZ0}, s{sZ0}, s{sT0}"); A(f"s_add_u32 s{sZ0}, s{sZ0}, {WS_KVB}"); A(f"s_add_u32 s{sZ1}, s{sZ0}, 4096")
    A(f"s_lshl_b32 s{sT0}, s{sQB}, 10"); A(f"s_lshl_b32 s{sT1}, s{sWAVE}, 8"); A(f"s_add_u32 s{sT0}, s{sT0}, s{sT1}"); A(f"s_add_u32 s{sCNT}, s{sT0}, {WS_GATE}")
    A(f"s_lshl_b32 s{sT0}, s{sH}, 16"); A(f"s_lshl_b32 s{sT1}, s{sQB}, 13"); A(f"s_add_u32 s{sT0}, s{sT0}, s{sT1}"); A(f"s_add_u32 s{sT0}, s{sT0}, {WS_QB}")
    A(f"s_add_u32 s{sT1}, s{sT0}, 4096")
    scal = c
    ld = [f"buffer_load_dwordx4 {ar(Q_+4*j,4)}, v{vL16}, {sr(sWS,4)}, s{sT0 if j < 4 else sT1} offen offset:{(j%4)*1024}{SC}" for j in range(8)]
    kl = lambda b: f"buffer_load_dwordx4 {ar(KB[b],4)}, v{vL16}, {sr(sWS,4)}, s{sZ0 if b < 2 else sZ1} offen offset:{(b&1)*2048}{SC} ; grpend:k{b}"
    vl = lambda b: [f"s_mov_b64 exec, {sr(sM,2)}"] + [f"buffer_load_dwordx4 {ar(VB[b]+4*f,4)}, v{vVA}, {sr(sWS,4)}, s{sZ0 if b < 2 else sZ1} offen offset:{(b&1)*2048 + 1024 + 512*f}{SC}" + (f" ; grpend:v{b}" if f else "") for f in range(2)] + ["s_mov_b64 exec, -1"]
    for b in range(4): ld += [kl(b), vl(b)]
    ld += [f"buffer_load_dword v{vG[k]}, v{T2_}, {sr(sWS,4)}, s{sCNT} offen offset:{128*k}{SC}" for k in range(2)]
    return dict(valu=valu, s1=scal, s2=scal2, ld=ld)
def o_setup():
    return [f"s_mov_b64 {sr(sW,2)}, {sr(sWB,2)}", f"s_mov_b32 s{sW+2}, {MB//2}"]
R = 64
def red_addr():
    return [f"s_mul_i32 s{sT0}, s{sWAVE}, 24576", f"s_add_u32 s{sT0}, s{sT0}, {RED}", f"v_add_u32 v{T0_}, s{sT0}, v{vL16}",
            f"s_mul_i32 s{sT0}, s{sWAVE}, 6144", f"s_add_u32 s{sT0}, s{sT0}, {RED}", f"v_add_u32 v{T1_}, s{sT0}, v{vL16}", f"v_add_u32 v{T2_}, 49152, v{T1_}"]
def b_finish():
    c = []; A = c.append
    A("s_nop 0"); A(b_pv(7, 3, 1, 0)); A(b_pv(7, 3, 1, 1))
    A("s_nop 3")
    c += red_writes(6)
    A("s_nop 4")
    c += red_writes(7)
    A("s_waitcnt lgkmcnt(0)"); A("s_barrier")
    for k in range(2):
        for w in range(4):
            b = R + (k * 4 + w) * 12; va = T1_ if w < 2 else T2_; off = (w & 1) * 24576 + k * 3072
            A(f"ds_read_b128 {vr(b,4)}, v{va} offset:{off}"); A(f"ds_read_b128 {vr(b+4,4)}, v{va} offset:{off+1024}"); A(f"ds_read_b32 v{b+8}, v{va} offset:{off+2048}")
    for k in range(2):
        A(f"s_waitcnt lgkmcnt({12 if k == 0 else 0})")
        b = R + k * 48
        A(f"v_add_f32 v{b+8}, v{b+8}, v{b+20}"); A(f"v_add_f32 v{b+32}, v{b+32}, v{b+44}"); A(f"v_add_f32 v{b+8}, v{b+8}, v{b+32}")
        for r in range(0, 8, 2):
            A(f"v_pk_add_f32 {vr(b+r,2)}, {vr(b+r,2)}, {vr(b+12+r,2)}"); A(f"v_pk_add_f32 {vr(b+24+r,2)}, {vr(b+24+r,2)}, {vr(b+36+r,2)}")
        for r in range(0, 8, 2): A(f"v_pk_add_f32 {vr(b+r,2)}, {vr(b+r,2)}, {vr(b+24+r,2)}")
        A(f"v_mov_b32 v{b+9}, v{b+8}"); A("s_nop 1"); A(f"v_permlane32_swap_b32 v{b+8}, v{b+9}"); A(f"v_add_f32 v{b+8}, v{b+8}, v{b+9}")
    l0, l1 = R + 8, R + 48 + 8
    A(f"v_min_f32 v{T0_}, v{l0}, v{l1}"); A(f"v_max_f32 v{T1_}, v{l0}, v{l1}"); A(f"v_add_f32 v{T2_}, v{l0}, v{l1}")
    A(f"v_cmp_gt_f32 vcc, {hex(fbits(2.0**-64))}, v{T0_}"); A(f"v_cmp_nge_f32 s[70:71], v{T2_}, v{T2_}"); A("s_or_b64 s[70:71], s[70:71], vcc")
    A(f"v_cmp_lt_f32 vcc, {hex(fbits(2.0**64))}, v{T1_}"); A("s_or_b64 s[70:71], s[70:71], vcc")
    A("s_cbranch_scc1 P4_SLOW")
    return c
def b_store():
    c = ["P4_STORE:"]; A = c.append
    A(f"s_lshl_b32 s{sT0}, s{sQB}, 2"); A(f"s_add_u32 s{sT0}, s{sT0}, s{sWAVE}"); A(f"s_mul_i32 s{sT0}, s{sT0}, {2*288*1024}")
    A(f"s_lshl_b32 s{sT1}, s{sH}, 10"); A(f"s_add_u32 s{sT0}, s{sT0}, s{sT1}"); A(f"s_add_u32 s{sT0}, s{sT0}, {WS_CTX + 256*1024}")
    for k in range(2):
        b = R + k * 48
        A(f"v_rcp_f32 v{b+8}, v{b+8}"); A(f"v_sub_f32 v{vG[k]}, 1.0, v{vG[k]}"); A(f"v_mul_f32 v{b+8}, v{b+8}, v{vG[k]}")
        for r in range(0, 8, 2): A(f"v_pk_mul_f32 {vr(b+r,2)}, {vr(b+r,2)}, {vr(b+8,2)} op_sel_hi:[1,0]")
        for r in range(4): A(f"v_cvt_pk_bf16_f32 v{b+12+r}, v{b+2*r}, v{b+2*r+1}")
        A("s_nop 1"); A(f"v_permlane32_swap_b32 v{b+12}, v{b+14}"); A(f"v_permlane32_swap_b32 v{b+13}, v{b+15}")
        A(f"buffer_store_dwordx4 {vr(b+12,4)}, v{vL16b if k else vL16}, {sr(sWS,4)}, s{sT0} offen{SC}" + (" ; grpend:cb" if k else ""))
    return c
def last8(sig, pl, SG, PL):
    c = []; A = c.append
    fp = final_pre(); wr = [x for x in fp if x.startswith("ds_write")]; sa = [x for x in fp[:-1] if not x.startswith("ds_write")]
    c += ["s_waitcnt vmcnt(@l8:0:o)"]
    n = 0
    for t in range(4):
        mt, qt = t >> 1, t & 1; d = ar(ACC + t*16, 16)
        for s in range(8):
            if n == SG: c += sig
            if n == PL: c += pl
            A(f"v_mfma_f32_32x32x16_bf16 {d}, {wreg(s, mt)}, {ar(CX+8*s+4*qt,4)}, {d}")
            if t == 0: c += sa[3*s:3*s+3]
            if t and s >= 4: A(wr[(t-1)*4 + s - 4])
            elif t and s < 4: A("s_nop 2")
            n += 1
    assert len(sa) <= 24
    c += ["s_nop 11"] + wr[12:] + fp[-1:]
    return c
def final_pre():
    c = []; A = c.append
    A(f"s_add_u32 s{sT0}, s{sLW}, {RED}"); A(f"v_add_u32 v{T0_}, s{sT0}, v{vL16}")
    A(f"s_lshl_b32 s{sT0}, s{sWAVE}, 12"); A(f"s_add_u32 s{sT0}, s{sT0}, {RED}"); A(f"v_add_u32 v{T3_}, s{sT0}, v{vL16}")
    A(f"v_subrev_u32 v{vTR[0]}, s{sLW}, v{vTR[0]}"); A(f"s_lshr_b32 s{sT0}, s{sWAVE}, 1"); A(f"s_lshl_b32 s{sT0}, s{sT0}, 6"); A(f"v_xor_b32 v{vTR[0]}, s{sT0}, v{vTR[0]}")
    A(f"s_and_b32 s{sT0}, s{sWAVE}, 1"); A(f"s_lshl_b32 s{sT0}, s{sT0}, 14"); A(f"s_add_u32 s{sT0}, s{sT0}, {RED}"); A(f"v_add_u32 v{vTR[1]}, s{sT0}, v{vL16}")
    A(f"v_add_u32 v{T4_}, 65536, v{vTR[1]}")
    A(f"s_lshr_b32 s{sT0}, s{sWAVE}, 1"); A(f"s_mul_i32 s{sT0}, s{sT0}, {288*1024}"); A(f"s_add_u32 s{sC0}, s{sCB}, s{sT0}")
    A(f"s_and_b32 s{sT0}, s{sWAVE}, 1"); A(f"s_lshl_b32 s{sT0}, s{sT0}, 13"); A(f"s_add_u32 s{sC0}, s{sC0}, s{sT0}"); A(f"s_add_u32 s{sC0}, s{sC0}, {256*1024}")
    A(f"s_lshr_b32 s{sLW}, s{sLW}, 1")
    for k in range(16): A(f"ds_write_b128 v{T0_}, {ar(ACC+4*k,4)} offset:{k*1024}")
    A("s_waitcnt vmcnt(@p4w:0:wb) lgkmcnt(0)")
    return c
def final():
    c = []; A = c.append
    WB_, RD_, CF = 64, 192, 16
    def dma(hf):
        o = []
        for i in range(8):
            if i % 4 == 0: o += [f"s_add_u32 m0, s{sLW}, {(131072 if hf == 0 else RED) + i*1024}", f"s_add_u32 s{sT1}, s{sC0}, {hf*16384 + i*1024}"]
            o.append(f"buffer_load_dwordx4 v{vL16}, {sr(sWS,4)}, s{sT1} offen offset:{(i%4)*1024}{SC} lds" + (" ; grpend:cf" if i == 7 else ""))
        return o
    rb = [192, 208, 224, 32]
    c += dma(0)
    for w in range(4):
        for k in range(4): A(f"ds_read_b128 {vr(rb[w]+4*k,4)}, v{T3_} offset:{w*16384 + k*1024}")
    trs = [f"ds_read_b64_tr_b16 {vr(WB_+4*k+2*e,2)}, v{vTR[0]} offset:{(k>>3)*16384 + (k&7)*2048 + e*512}" for k in range(32) for e in range(2)]
    c += trs[:8]
    A("s_waitcnt lgkmcnt(8)"); A("s_barrier")
    c += dma(1) + trs[8:]
    for r in range(0, 16, 2):
        A(f"v_pk_add_f32 {vr(rb[0]+r,2)}, {vr(rb[0]+r,2)}, {vr(rb[1]+r,2)}"); A(f"v_pk_add_f32 {vr(rb[2]+r,2)}, {vr(rb[2]+r,2)}, {vr(rb[3]+r,2)}")
    for r in range(0, 16, 2): A(f"v_pk_add_f32 {vr(rb[0]+r,2)}, {vr(rb[0]+r,2)}, {vr(rb[2]+r,2)}")
    A(f"v_and_b32 v{T2_}, 31, v{vLN}"); A(f"v_lshlrev_b32 v{T2_}, 10, v{T2_}"); A(f"v_lshrrev_b32 v{T0_}, 5, v{vLN}"); A(f"v_lshl_add_u32 v{T2_}, v{T0_}, 4, v{T2_}")
    A(f"s_lshl_b32 s{sT0}, s{sRT}, 16"); A(f"s_and_b32 s{sT1}, s{sWAVE}, 1"); A(f"s_lshl_b32 s{sT1}, s{sT1}, 15"); A(f"s_add_u32 s{sT0}, s{sT0}, s{sT1}")
    A(f"s_lshl_b32 s{sT1}, s{sCT}, 7"); A(f"s_add_u32 s{sT0}, s{sT0}, s{sT1}")
    A(f"s_lshr_b32 s{sT1}, s{sWAVE}, 1"); A(f"s_lshl_b32 s{sT1}, s{sT1}, 6"); A(f"s_add_u32 s{sT0}, s{sT0}, s{sT1}")
    d = vr(rb[0], 16)
    rd = lambda k: f"ds_read_b128 {ar(64+4*k,4)}, v{T4_ if k < 16 else vTR[1]} offset:{(k&15)*1024}"
    mf = lambda k: f"v_mfma_f32_32x32x16_bf16 {d}, {vr(WB_+4*k,4)}, {ar(64+4*k,4)}, {d}"
    A("s_waitcnt vmcnt(@p5a:1:cf) lgkmcnt(0)"); A("s_barrier")
    c += [rd(k) for k in range(16)]
    HB2 = 10
    for k in range(16):
        if k == HB2:
            A("s_waitcnt vmcnt(@p5b:0:cf)"); A("s_barrier"); c += [rd(j) for j in range(16, 24)]
        if k < HB2 and k % 2 == 0: A(f"s_waitcnt lgkmcnt({max(0, 14 - k) if k < 8 else 0})")
        A(mf(k))
        if k >= HB2 + 2: c += [rd(24 + 2*(k - HB2 - 2)), rd(25 + 2*(k - HB2 - 2))]
    A("s_waitcnt lgkmcnt(8)")
    for k in range(16, 32):
        if k == 24: A("s_waitcnt lgkmcnt(0)")
        A(mf(k))
    A("s_nop 11")
    for r in range(8): A(f"v_cvt_pk_bf16_f32 v{32+r}, v{rb[0]+2*r}, v{rb[0]+2*r+1}")
    A("s_nop 0")
    for pr in range(2):
        b = 32 + 4 * pr
        A(f"v_permlane32_swap_b32 v{b}, v{b+2}"); A(f"v_permlane32_swap_b32 v{b+1}, v{b+3}")
        A(f"buffer_store_dwordx4 {vr(b,4)}, v{T2_}, {sr(sOUT,4)}, s{sT0} offen offset:{32*pr}")
    return c
def b_slow():
    c = ["P4_SLOW:"]; A = c.append
    S = S_[0]; P = P_[0]; vM = T0_; QS = 4; OA = 160
    strip = lambda x: x.split(" ;")[0]
    for k in range(2):
        b = R + k * 48
        A(f"s_lshl_b32 s{sT0}, s{sH}, 16"); A(f"s_lshl_b32 s{sT1}, s{sQB}, 13"); A(f"s_add_u32 s{sT0}, s{sT0}, s{sT1}")
        A(f"s_lshl_b32 s{sT1}, s{sWAVE}, 11"); A(f"s_add_u32 s{sT0}, s{sT0}, s{sT1}"); A(f"s_add_u32 s{sT0}, s{sT0}, {WS_QB + 1024*k}")
        A("s_waitcnt vmcnt(0)")
        A(f"buffer_load_dwordx4 {vr(QS,4)}, v{vL16}, {sr(sWS,4)}, s{sT0} offen{SC}")
        A(f"v_mov_b32 v{vM}, {hex(BIG)}")
        for ps in range(2):
            A(f"s_lshl_b32 s{sKK}, s{sH}, 17"); A(f"s_add_u32 s{sKK}, s{sKK}, {WS_KVB}"); A(f"s_mov_b32 s{sKV}, s{sKK}"); A(f"s_mov_b32 s{sCNT}, 64")
            if ps == 1:
                for r in range(16): A(f"v_mov_b32 v{OA+r}, 0")
            A(f"P4_S{k}{ps}:")
            c += [strip(x) for x in b_kload(0)]
            if ps == 1: c += [strip(x) for x in b_vload(0)]
            A("s_waitcnt vmcnt(0)")
            A(f"v_mfma_f32_32x32x16_bf16 {vr(S,16)}, {ar(KB[0],4)}, {vr(QS,4)}, 0"); A("s_nop 15")
            if ps == 0:
                for r in range(16): A(f"v_max_f32 v{vM}, v{vM}, v{S+r}")
            else:
                for r in range(16): A(f"v_sub_f32 v{S+r}, v{S+r}, v{vM}")
                for r in range(16): A(f"v_exp_f32 v{S+r}, v{S+r}")
                A("s_nop 0")
                for r in range(8): A(f"v_cvt_pk_bf16_f32 v{P+r}, v{S+2*r}, v{S+2*r+1}")
                A("s_nop 1")
                for f in range(2): A(f"v_mfma_f32_32x32x16_bf16 {vr(OA,16)}, {ar(VB[0]+4*f,4)}, {vr(P+4*f,4)}, {vr(OA,16)}")
                A("s_nop 7")
            A(f"s_sub_u32 s{sCNT}, s{sCNT}, 1"); A(f"s_cmp_lg_u32 s{sCNT}, 0"); A(f"s_cbranch_scc1 P4_S{k}{ps}")
            if ps == 0:
                A(f"v_mov_b32 v{vM+1}, v{vM}"); A("s_nop 1"); A(f"v_permlane32_swap_b32 v{vM}, v{vM+1}"); A(f"v_max_f32 v{vM}, v{vM}, v{vM+1}")
        A("s_nop 7")
        for r in range(9): A(f"v_mov_b32 v{b+r}, v{OA+r}")
        A(f"v_mov_b32 v{b+9}, v{b+8}"); A("s_nop 1"); A(f"v_permlane32_swap_b32 v{b+8}, v{b+9}"); A(f"v_add_f32 v{b+8}, v{b+8}, v{b+9}")
    A("s_branch P4_STORE")
    return c

def gen(hst, mark_a, mark_b, mark_c, mark_d):
    SIG, PL, CHK = [int(x) for x in os.environ.get("P4T", "10,17,21").split(",")]
    c = []; A = c.append
    A("s_waitcnt vmcnt(@p4q:0:k0)")
    A(b_qk(0, 0, 0))
    c += hst[:2]
    c += [f"v_mov_b32 v{P_[1]+r}, 0" for r in range(4)]
    c += o_setup() + ["v_mov_b32 v12, v22", "s_nop 0"]
    pro = c
    ex = {n: [[], [], []] for n in range(32)}
    z = vr(P_[1], 4)
    zm = [f"v_mfma_f32_32x32x16_bf16 {ar(ACC+16*k,16)}, {z}, {z}, 0" for k in range(4)]
    pro += [zm[0], hst[2]]
    ex[0][1] += [zm[1], hst[3]]; ex[0][2] += [zm[2]]
    k = 4
    for n in range(1, 4):
        ex[n][0] += hst[k:k+1]; k += 1
        if n != 2: ex[n][2] += hst[k:k+1]; k += 1
    assert k >= 8
    if 'b' in os.environ.get('RT', ''): ex[5][1] += [CTOUCH.replace('v30', 'v12')]
    ex[SIG][1] = ["s_waitcnt vmcnt(@p4s:0:ca)", "s_barrier"] + w0only(flag_store(WS_F3), "P4_S3")
    f3 = [f"s_lshr_b32 s{sZ0}, s{sRT}, 1", f"s_sub_u32 s{sZ1}, 15, s{sZ0}", f"s_min_u32 s{sZ0}, s{sZ0}, s{sZ1}", f"v_mov_b32 v{T3_}, s{sZ0}", f"v_mov_b32 v{T4_}, s{sCT}",
          f"v_cmp_gt_u32 vcc, 32, v{vLN}", f"s_mov_b32 s{sZ0}, {WS_F3}"] + flag_lane() + [f"v_cndmask_b32 v{T3_}, v{T4_}, v{T3_}, vcc", f"v_lshl_add_u32 v{T2_}, v{T3_}, 7, v{T2_}"]
    ex[PL][2] = ex[PL][2] + w0only(f3 + [flag_load()], "P4_L3")
    ex[CHK][1] = ex[CHK][1] + w0only(spin("P4_C3"), "P4_C3") + ["s_barrier"]
    fl = []
    for s in range(PD): fl += [[o_ctx(s, 0)], [o_w(s, 0)], [o_w(s, 1)], [o_ctx(s, 1)] + o_post(s)]
    slots_ = [(CHK, 2)] + [(n, k) for n in range(CHK + 1, 32) for k in range(3)]
    FS = float(os.environ.get("FS", "1.8"))
    for i, it in enumerate(fl):
        n, k = slots_[min(len(slots_) - 1, int(i * FS))]; ex[n][k] += it
    wb = wb_dma()
    WBP = os.environ.get("WBP", "b0")
    if WBP == "b0":
        sl2 = [(n, k) for n in range(SIG + 1, PL + 1) for k in range(3)][:-1]
        for i, it in enumerate(wb):
            n, k = sl2[i * len(sl2) // len(wb)]; ex[n][k] += it
    b0 = body(False, "b", ex, first=True)
    i = b0.index(zm[2]); b0 = b0[:i+5] + [zm[3]] + b0[i+5:]
    b0 += mark_a
    loop = []
    lastb = red_addr() + fused_all(wb if WBP != 'b0' else [])
    fin = lastb + mark_b + b_finish()
    st = b_store() + mark_c
    sig4 = ["s_waitcnt vmcnt(@p4u:0:cb)", "s_barrier"] + w0only(flag_store(WS_F4), "P4_S4")
    f4 = [f"s_lshr_b32 s{sZ0}, s{sRT}, 2", f"s_lshl_b32 s{sZ0}, s{sZ0}, 7", f"s_add_u32 s{sZ0}, s{sZ0}, {WS_F4}"]
    SG4, PL4 = [int(x) for x in os.environ.get("P5T", "8,26").split(",")]
    assert NS == 56 and PE == 8 and SG4 <= 12
    tail = last8(sig4, w0only(f4 + flag_lane() + [flag_load()], "P4_L4"), SG4, PL4)
    tail += w0only(spin("P4_C4"), "P4_C4") + ["s_barrier"] + mark_d
    tail += final()
    slow = b_slow()
    return pro + b0 + loop + fin + st + tail, slow, [pro + b0 + loop * 2 + fin + st + tail, pro + b0 + loop * 2 + fin + slow + st + tail]
```

```python
import re

def vr(b, n=1, k='v'):
    return f"{k}{b}" if n == 1 else f"{k}[{b}:{b+n-1}]"
def ar(b, n=1): return vr(b, n, 'a')
def sr(b, n=1): return vr(b, n, 's')

TRANS = ("v_exp_f32", "v_log_f32", "v_rcp_f32", "v_rsq_f32", "v_sqrt_f32")

def cost(ins):
    m = ins.split()[0]
    if m in TRANS: return 8
    if m.startswith("v_mfma"): return 8
    if m == "s_nop": return 4 * (int(ins.split()[1]) + 1)
    if m.endswith(":") or m.startswith(";") or m.startswith("."): return 0
    return 4

def klass(ins):
    m = ins.split()[0]
    if m.startswith("LG"): return "s"
    if m.startswith("v_"): return "v"
    if m.startswith("ds_") or m.startswith("buffer_") or m.startswith("global_"): return "m"
    return "s"
def vcost(ins):
    m = ins.split()[0]
    if m in TRANS or m.startswith("v_permlane"): return 8
    if m == "s_nop": return 4 * (int(ins.split()[1]) + 1)
    return 4
def conflict(a, b):
    if a.startswith("LG") or b.startswith("LG"): return True
    ma, da, ua, ka = parse(a); mb_, db, ub, kb = parse(b)
    if ka == "ctl" or kb == "ctl": return True
    if "exec" in da or "exec" in db: return True
    return bool(set(da) & set(ub) or set(ua) & set(db) or set(da) & set(db))
def order(lst):
    out = []
    for ins in lst:
        p = len(out)
        if klass(ins) != "v":
            while p > 0 and klass(out[p-1]) == "v" and not conflict(out[p-1], ins): p -= 1
            if klass(ins) == "m":
                q = p
                while q > 0 and klass(out[q-1]) == "s" and not conflict(out[q-1], ins) and not out[q-1].startswith("s_"): q -= 1
        out.insert(p, ins)
    return out
import os
MMP = int(os.environ.get('MMP', '0'))
def gapcost(lst):
    t = 4; prev = None; nm = 0
    for ins in lst:
        k = klass(ins)
        if k == "v": t = max(t, 8) + vcost(ins)
        elif k == "s": t += vcost(ins)
        else:
            if prev == "v": t += 12
            elif prev == "m": t += 6
            else: t += 8
        prev = k
    if MMP and t == 16 and len([x for x in lst if klass(x) == "v"]) == 2: t += MMP
    return max(t, 8)

class Sched:
    def __init__(self, mfmas, budget):
        self.m = mfmas
        self.n = len(mfmas)
        self.gap = [[] for _ in mfmas]
        self.pre = [[] for _ in mfmas]
        self.budget = budget
        self.tail = []
    def load(self, g, extra=()):
        l = order(self.gap[g] + list(extra))
        l = l + (self.pre[g + 1] if g + 1 < self.n else self.tail)
        return gapcost(l)
    def add(self, g, ins):
        if isinstance(ins, str): ins = [ins]
        self.gap[g].extend(ins)
    def before(self, g, ins):
        if isinstance(ins, str): ins = [ins]
        self.pre[g].extend(ins)
    def _try(self, items, g0, g1, pace, bud):
        added = []; g = g0; n = len(items); ok = True
        for i, it in enumerate(items):
            grp = [it] if isinstance(it, str) else list(it)
            g = max(g, g0 + int(pace * i * (g1 - g0) / n))
            while g < g1 and self.load(g, grp) > max(bud(g), self.load(g)): g += 1
            if g >= g1: ok = False; break
            self.gap[g].extend(grp); added.append((g, len(grp)))
        if not ok:
            for g, k in reversed(added): del self.gap[g][-k:]
        return ok
    def fill(self, items, g0, g1):
        if not items: return
        B = self.budget
        for pace in (1.0, 0.9, 0.8, 0.6, 0.4, 0.2, 0.0):
            if self._try(items, g0, g1, pace, lambda g: B): return
        its = [[it] if isinstance(it, str) else list(it) for it in items]
        n = len(its); INF = 10 ** 9
        best = [0] + [INF] * n; back = []
        for g in range(g0, g1):
            base = max(self.load(g), B); nb = [INF] * (n + 1); bk = [0] * (n + 1)
            lo = max(0, n - (g1 - g) * 6 - 6);
            for i in range(lo, n + 1):
                if best[i] >= INF: continue
                ex = []
                for k in range(0, min(6, n - i) + 1):
                    if k: ex = ex + its[i + k - 1]
                    cst = best[i] + (max(self.load(g, ex), B) - base if k else 0)
                    if cst < nb[i + k]: nb[i + k] = cst; bk[i + k] = k
            best = nb; back.append(bk)
        if best[n] < INF:
            i = n; plan = []
            for g in range(g1 - 1, g0 - 1, -1):
                k = back[g - g0][i]; plan.append((g, i - k, i)); i -= k
            for g, a, b in reversed(plan):
                for x in its[a:b]: self.gap[g].extend(x)
            return
        raise Exception("fill failed")
    def pack(self, items, g0, g1):
        g = g0; pos = []
        for it in items:
            grp = [it] if isinstance(it, str) else list(it)
            while g < g1 - 1 and self.load(g, grp) > self.budget: g += 1
            self.gap[g].extend(grp); pos.append(g)
        return pos
    def emit(self):
        out = []
        for g in range(self.n):
            out += self.pre[g]; out.append(self.m[g]); out += order(self.gap[g])
        return out
    def over(self):
        return sum(max(0, self.load(g) - self.budget) for g in range(self.n))

_R = re.compile(r"^-?(?:abs\()?([vas])(?:\[(\d+):(\d+)\]|(\d+))\)?$")
def regs(op):
    op = op.strip()
    if op in ("vcc",): return ["vcc"]
    if op in ("exec",): return ["exec"]
    if op == "m0": return ["m0"]
    m = _R.match(op)
    if not m: return []
    if m.group(4) is not None: return [m.group(1) + m.group(4)]
    return [m.group(1) + str(i) for i in range(int(m.group(2)), int(m.group(3)) + 1)]

import functools
@functools.lru_cache(maxsize=None)
def parse(ins):
    ins = ins.split(";")[0].strip()
    p = ins.split(None, 1)
    m = p[0]
    ops = []
    if len(p) > 1:
        ops = [o.strip() for o in p[1].split(",")]
        last = ops[-1].split()
        ops[-1] = last[0] if last else ""
        mods = last[1:]
    else: mods = []
    R = [regs(o) for o in ops]
    flat = lambda l: [x for y in l for x in y]
    if m.startswith("v_mfma"): return m, R[0], flat(R[1:]), "mfma"
    if m.startswith("ds_read"): return m, R[0], flat(R[1:]), "ldsld"
    if m.startswith("ds_write") or m.startswith("ds_add"): return m, [], flat(R), "ldsst"
    if m.startswith("ds_bpermute") or m.startswith("ds_swizzle"): return m, R[0], flat(R[1:]), "ldsld"
    if m.startswith("buffer_load"):
        if "lds" in mods: return m, [], flat(R) + ["m0"], "dma"
        return m, R[0], flat(R[1:]), "vmld"
    if m.startswith("global_load"): return m, R[0], flat(R[1:]), "vmld"
    if m.startswith("buffer_store") or m.startswith("global_store") or m.startswith("buffer_atomic"): return m, [], flat(R), "vmst"
    if m.startswith("buffer_inv") or m.startswith("buffer_wbl2"): return m, [], [], "vmst"
    if m.startswith("s_load") : return m, R[0], flat(R[1:]), "smem"
    if m.startswith("s_memtime") or m.startswith("s_memrealtime"): return m, R[0], [], "smem"
    if m.startswith("v_permlane"): return m, R[0] + R[1], R[0] + R[1], "valu"
    if m.startswith("v_cmp"): return m, R[0], flat(R[1:]), "valu"
    if m.startswith("v_readfirstlane") or m.startswith("v_readlane"): return m, R[0], flat(R[1:]), "valu"
    if m.startswith("v_fmac") : return m, R[0], flat(R), "valu"
    if m.startswith("v_cndmask"):
        u = flat(R[1:])
        if len(ops) == 3: u.append("vcc")
        return m, R[0], u, "valu"
    if m.startswith("v_"): return m, R[0] if R else [], flat(R[1:]), "valu"
    if m in ("s_waitcnt", "s_barrier", "s_nop", "s_endpgm", "s_setprio", "s_sleep") or m.startswith("s_cbranch") or m == "s_branch": return m, [], [], "ctl"
    if m.startswith("s_cmp") or m.startswith("s_bitcmp"): return m, ["scc"], flat(R), "salu"
    if m.startswith("s_"):
        d = list(R[0]) if R else []; u = flat(R[1:])
        if m.startswith("s_cselect") or m.startswith("s_addc") or m.startswith("s_subb"): u = u + ["scc"]
        if not (m.startswith("s_mov") or m.startswith("s_cselect") or m.startswith("s_mul") or m.startswith("s_getpc") or m.startswith("s_getreg")): d = d + ["scc"]
        return m, d, u, "salu"
    raise Exception("unparsed " + ins)

def check_trace(trace, name=""):
    errs = []
    lg = []
    vm = []
    pend = {}
    last = {}
    lastC = {}
    laststore = {}
    st = 0
    for idx, ins in enumerate(trace):
        s = ins.split(";")[0].strip()
        if not s or s.endswith(":") or s.startswith("."): continue
        m, d, u, k = parse(s)
        def err(msg): errs.append(f"{name}[{idx}] {s}: {msg}")
        if m == "s_waitcnt":
            mm = re.search(r"vmcnt\((\d+)\)", s)
            if mm:
                n = int(mm.group(1))
                while len(vm) > n:
                    for r in vm.pop(0): pend.pop(r, None)
            mm = re.search(r"lgkmcnt\((\d+)\)", s)
            if mm:
                n = int(mm.group(1))
                if n > 0 and any(x[0] == "smem" for x in lg): err("counted lgkmcnt with smem outstanding")
                while len(lg) > n:
                    for r in lg.pop(0)[1]: pend.pop(r, None)
            st += 1; continue
        if m == "s_nop":
            st += int(s.split()[1]) + 1; continue
        if "scc" in u or m.startswith("s_cbranch_scc"):
            w = last.get("scc", (0, 0, 0, ""))[3]
            ok = w.startswith("s_cmp") or w.startswith("s_bitcmp")
            if m.startswith("s_addc"): ok = w == "s_add_u32"
            if m.startswith("s_cbranch"): ok = ok or w in ("s_or_b64", "s_sub_u32")
            if not ok: err(f"scc comes from {w}")
        for r in u + d:
            if r in pend and not (k == "vmld" and m == "buffer_load_dword" and r in d and r in ("v23", "v27", "v13")): err(f"{r} has outstanding {pend[r]} load")
        for r in u:
            if r in last:
                ws, wk, wp, wm = last[r]; dist = st - ws - 1
                if wk == "valu" and k == "mfma" and dist < 2: err(f"valu->mfma {r} dist {dist}")
                if wk == "valu" and m.startswith("v_permlane") and dist < 2: err(f"valu->permlane {r} dist {dist}")
                if wk == "valu" and (m.startswith("v_readfirstlane") or m.startswith("v_readlane")) and r[0] == 'v' and r != 'vcc' and dist < 1: err(f"valu->readlane {r}")
                if wk == "valu" and wm in TRANS and k == "valu" and m not in TRANS and dist < 1: err(f"trans->valu {r}")
                if wk == "valu" and (r[0] == 's' or r == 'vcc') and k == "valu" and dist < 2: err(f"valu sgpr->valu {r} dist {dist}")
                if wk == "valu" and r[0] == 's' and k in ("vmld", "vmst", "dma") and dist < 5: err(f"valu sgpr->vmem {r}")
                if wk == "salu" and r == "m0" and k == "dma" and dist < 1: err("m0->dma")
                if wk == "mfma":
                    need = {4: 8, 8: 12}[wp]
                    if k == "mfma":
                        ops = [o.strip() for o in s.split(None, 1)[1].split(",")]
                        inC = r in regs(ops[3]); inAB = r in regs(ops[1]) + regs(ops[2])
                        if inAB and dist < need: err(f"mfma D->mfma A/B {r} dist {dist}")
                        if inC and not inAB:
                            exact = (last[r][3] == (m, ops[3]))
                            if not exact and dist < need - 2: err(f"mfma D->mfma C overlap {r} dist {dist}")
                    elif dist < need: err(f"mfma D->{k} read {r} dist {dist} need {need}")
        for r in d:
            if r in last and last[r][1] == "mfma" and k in ("valu", "ldsld", "vmld"):
                need = {4: 8, 8: 12}[last[r][2]]; dist = st - last[r][0] - 1
                if dist < need: err(f"mfma D->{k} write {r} dist {dist}")
            if r in last and last[r][1] == "mfma" and k == "mfma":
                ops = [o.strip() for o in s.split(None, 1)[1].split(",")]
                if last[r][3] != (m, ops[0]):
                    need = {4: 8, 8: 12}[last[r][2]]; dist = st - last[r][0] - 1
                    if dist < need: err(f"mfma D->mfma D (waw, different shape) {r}")
            if r in lastC and k == "valu":
                need = {4: 3, 8: 7}[lastC[r][1]]; dist = st - lastC[r][0] - 1
                if dist < need: err(f"mfma srcC read -> valu write {r} dist {dist}")
            if r in laststore and k == "valu" and st - laststore[r] - 1 < 2: err(f"store data WAR {r}")
        if k == "mfma":
            passes = 8 if "32x32" in m else 4
            ops = [o.strip() for o in s.split(None, 1)[1].split(",")]
            for r in d: last[r] = (st, "mfma", passes, (m, ops[0]))
            for r in regs(ops[3]): lastC[r] = (st, passes)
        else:
            for r in d: last[r] = (st, k, 0, m)
        if k == "ldsld": lg.append(("lds", d)); [pend.__setitem__(r, "lds") for r in d]
        elif k == "ldsst": lg.append(("lds", []))
        elif k == "smem": lg.append(("smem", d)); [pend.__setitem__(r, "smem") for r in d]
        elif k == "vmld": vm.append(d); [pend.__setitem__(r, "vm") for r in d]
        elif k in ("vmst", "dma"):
            vm.append([])
            if k == "vmst" and ("x4" in m or "x3" in m):
                ops = [o.strip() for o in s.split(None, 1)[1].split(",")]
                for r in regs(ops[0] if m.startswith("buffer") else ops[1]): laststore[r] = st
        if len(vm) > 63: err("vmcnt overflow >63")
        st += 1
    return errs

def resolve_vm(traces):
    res = {}
    for tr in traces:
        ops = []
        for ins in tr:
            s = ins.split(";")[0].strip()
            if not s or s.endswith(":") or s.startswith("."): continue
            mm = re.search(r"vmcnt\(@(\w+):(\d+):(\w+)\)", s)
            if mm:
                wid, k, cls = mm.group(1), int(mm.group(2)), mm.group(3)
                ends = [i for i, o in enumerate(ops) if o == cls]
                if len(ends) > k:
                    n = len(ops) - 1 - ends[len(ends) - 1 - k]
                    res[wid] = min(res.get(wid, 63), n)
                else:
                    raise Exception(f"wait {wid}: no group to wait for")
                continue
            m = s.split()[0]
            if m.startswith("buffer_") or m.startswith("global_"):
                g = re.search(r"grpend:(\w+)", ins)
                ops.append(g.group(1) if g else None)
    return res

def apply_vm(code, res):
    def f(ins):
        return re.sub(r"vmcnt\(@(\w+):(\d+):(\w+)\)", lambda m: f"vmcnt({res[m.group(1)]})", ins)
    return [f(i) for i in code]

def kernel_desc(name, nvgpr, accum, nsgpr=102):
    return f""".amdhsa_kernel {name}
  .amdhsa_next_free_vgpr {nvgpr}
  .amdhsa_next_free_sgpr {nsgpr}
  .amdhsa_accum_offset {accum}
  .amdhsa_group_segment_fixed_size 0
  .amdhsa_kernarg_size 104
  .amdhsa_user_sgpr_count 2
  .amdhsa_user_sgpr_kernarg_segment_ptr 1
  .amdhsa_system_sgpr_workgroup_id_x 1
.end_amdhsa_kernel
"""
def fbits(x):
    import struct
    return struct.unpack("<I", struct.pack("<f", x))[0]

import os
PROF = int(os.environ.get("PROF", "0"))
WS_PROF = 79 * (1 << 20)
NMARK = 11
def prof_mark(i):
    if not PROF: return []
    op = "s_memtime" if (os.environ.get("PROFC") and i >= 1) else "s_memrealtime"
    return [f"{op} s[94:95]", "s_waitcnt lgkmcnt(0)", f"s_mov_b32 s{83+i}, s94"]
def prof_start():
    if not PROF: return []
    return ["s_memtime s[80:81]"] + [f"s_mov_b32 s{i}, 0" for i in range(83, 94)] + prof_mark(0)
def prof_end(kidx, sO, wave_sgpr):
    if not PROF: return []
    if os.environ.get("ECHO"):
        c = ["s_waitcnt vmcnt(0)", "s_memrealtime s[94:95]", "s_waitcnt lgkmcnt(0)"]
        c += ["s_sub_u32 s96, s94, s83"] if os.environ["ECHO"] == "end" else ["s_sub_u32 s96, s84, s83"]
        c += ["s_add_u32 s96, s96, s94", "ECHO_L:", "s_sleep 2", "s_memrealtime s[94:95]", "s_waitcnt lgkmcnt(0)", "s_sub_u32 s97, s94, s96", "s_cmp_lt_i32 s97, 0", "s_cbranch_scc1 ECHO_L"]
        return c
    c = ["s_waitcnt vmcnt(0)", "s_memtime s[96:97]", "s_memrealtime s[94:95]", "s_waitcnt lgkmcnt(0)", "s_mov_b32 s82, s96"]
    c += [f"s_lshl_b32 s96, s2, 2", f"s_add_u32 s96, s96, s{wave_sgpr}", "s_lshl_b32 s96, s96, 6", f"s_add_u32 s96, s96, {WS_PROF}",
          "s_mov_b64 exec, 1", "v_mov_b32 v20, 0"]
    for j, s in enumerate(list(range(83, 94)) + [94, 80, 82]):
        c += [f"v_mov_b32 v21, s{s}", f"buffer_store_dword v21, v20, s[{sO}:{sO+3}], s96 offen offset:{4*j}"]
    c += ["s_getreg_b32 s97, hwreg(HW_REG_XCC_ID)", "v_mov_b32 v21, s97", f"buffer_store_dword v21, v20, s[{sO}:{sO+3}], s96 offen offset:60"]
    return c
```

```python
from asmlib import *
from layout import *
import os
def flat(l):
    o = []
    for x in l: o += [x] if isinstance(x, str) else x
    return o
SC = " sc1"
NT = os.environ.get("NT", " nt")
SCE = os.environ.get("SCE", " sc1")
def table():
    rows = []; one = fbits(1.0)
    for cg in range(32):
        if cg < 13:
            t0 = 5 * cg; n = min(5, 64 - t0)
            e = [1, 0, 8192, 0, t0, 0, t0 * 128, 256, 512, 1024, 16384, 128, fbits(LOG2E * 128 ** -0.5), WS_KV, MB, 2048]
        elif cg < 26:
            t0 = 5 * (cg - 13); n = min(5, 64 - t0)
            e = [1, 1, 8192, 1, t0, 0, t0 * 128, 512, 256, 16384, 2048, 1024, one, WS_KV + 8192, MB, 4096]
        elif cg < 28:
            t0 = 4 * (cg - 26); n = 4
            e = [0, 2, 3072, 0, t0, 0, t0 * 128, 65536, 512, 131072, 1024, 256, fbits(LOG2E * 0.25), WS_QB, 8 * 65536, 4 * 65536]
        elif cg < 30:
            t0 = 4 * (cg - 28); n = 4
            e = [0, 2, 3072, 0, t0, 0, 1024 + t0 * 128, 131072, 512, 262144, 2048, 256, one, WS_KVB, 8 * 131072, 4 * 131072]
        else:
            t0 = 4 * (cg - 30); n = 4
            e = [0, 2, 3072, 1, t0, 0, 2048 + t0 * 128, 512, 256, 2048, 262144, 131072, one, WS_KVB + 1024, 8 * 131072, 4 * 131072]
        e[5] = (1 if n == 4 else 0) | (2 if cg == GATE_CG else 0)
        if n == 4: e[5] |= [12, 25, 26, 27, 28, 29, 30, 31].index(cg) << 8
        e[5] |= cg << 16
        rows.append(e)
    slack = [12, 25, 26, 27, 28, 29, 30, 31]; reg = [g for g in range(32) if g not in slack]
    order = []
    sl_order = [12, 26, 27, 28, 25, 29, 30, 31]
    for j in range(8): order += reg[3*j:3*j+3] + [sl_order[j]]
    return [rows[g] for g in order] if os.environ.get('SPREAD') else rows
GATE_CG = 28
TOUCH = os.environ.get("TOUCH", "cjwqo")
RT = os.environ.get("RT", "3")
TPOS = os.environ.get("TPOS", "c")
vTCH = 23
vCT = 22
ACC = [32, 96, 160]; WR = [224, 240]
vW = [1, 2, 3, 4]; vWD = [5, 6, 7, 8]; vXD = [9, 10, 11, 12]; vXR = [13, 14]; vXN = [15, 16]
vEP, vL3, vWC, vLN, vJQ, vFL, vPF = 17, 18, 19, 20, 21, 26, 27
sWS, sW, sWAVE, sH, sI, sDBG, sX, sE = 8, 12, 16, 17, 18, 40, 44, 48
sLW, sLX, sWOFF, sK128, sK128m, sUSW, sXA, sXB, sTE, sT0, sT1, sRT = 19, 20, 21, 22, 23, 24, 25, 26, 27, 28, 29, 30
sO0 = 32
sB0 = 36
sZ0, sZ1 = 37, 31
sK128t, sEN = 38, 39
sKC = [22, 23, 24, 38]
sR = 3
ROT1, ROT2 = [int(x) for x in os.environ.get('ROT', '0,3').split(',')]
sR2 = 5
sXC = [76, 77, 78, 79]
ROT3 = os.environ.get('ROT3', '0') == '1'
sPW, sCG = 5, 4
sWQ, sXP = 52, 54
sTB = 56
T_XSEL, T_WSEL, T_STR, T_OR, T_T0, T_FL, T_WCOL, T_A1, T_A2, T_SP, T_SJ1, T_SJ0, T_SC, T_B0, T_TS1, T_TS0 = [sTB + i for i in range(16)]
XB = 65536
QA_ = 0

def xa(rt, ks): return (ks * 4 + rt) * 4
def acc(p, I, J): return ACC[p] + (I * 4 + J) * 4
def slot_mfmas(p, o, kc):
    out = []
    for c in range(4):
        wb = WR[c & 1]
        for r in range(4):
            for ks in range(4):
                d = acc(p, c, r) if o == 0 else acc(p, r, c)
                w = vr(wb + 4 * ks, 4); x = ar(xa(r, 4 * kc + ks), 4)
                a, b = (w, x) if o == 0 else (x, w)
                cin = "0" if (kc == 0 and ks == 0) else vr(d, 4)
                out.append(f"v_mfma_f32_16x16x32_bf16 {vr(d,4)}, {a}, {b}, {cin}")
    return out
def tr_reads(pos, c):
    wb = WR[c & 1]
    return [f"ds_read_b64_tr_b16 {vr(wb + 4*ks + 2*e, 2)}, v{vW[c]} offset:{pos*16384 + ks*4096 + e*512}" for ks in range(4) for e in range(2)]
def w_dma(pos, el, nt=''):
    out = [f"s_add_u32 m0, s{sLW}, {pos*16384}", f"s_add_u32 s{sWOFF}, s{sKC[el[1]]}, {128*el[0]}"]
    for i in range(4):
        out.append(f"buffer_load_dwordx4 v{vWD[i]}, {sr(sW,4)}, s{sWOFF} offen offset:{i*1024}{nt} lds" + (" ; grpend:w" if i == 3 else ""))
    return out
def x_dma(sc):
    out = []; o = 128 * (sc & 1)
    for hf in range(2):
        out += [f"s_add_u32 m0, s{sLX}, {(sc % 3)*8192 + hf*4096 - o}", f"s_add_u32 s{sT0}, s{sXB if hf else sXA}, s{sXC[sc >> 1]}"]
        for i in range(4):
            out.append(f"buffer_load_dwordx4 v{vXD[i]}, {sr(sX,4)}, s{sT0} offen offset:{i*1024 + o} lds" + (" ; grpend:x" if hf == 1 and i == 3 else ""))
    return out
def x_reads(sc, nat):
    v = vXN if nat else vXR
    return [f"ds_read_b128 {ar(xa(rt, 2*sc + k2), 4)}, v{v[k2]} offset:{(sc % 3)*8192 + rt*2048}" for rt in range(4) for k2 in range(2)]
def w_lane_setup(stride, t, col, xc=sXC):
    o = [f"v_mad_u32_u24 v{vWD[0]}, v{vL3}, {stride}, v{vWC}", f"s_lshl_b32 s{t}, {stride}, 3", f"s_sub_u32 s{t}, s{t}, 1024",
         f"v_xor_b32 v{vWD[1]}, 64, v{vWD[0]}", f"v_add_u32 v{vWD[1]}, s{t}, v{vWD[1]}", f"s_lshl_b32 s{t}, s{t}, 1",
         f"v_add_u32 v{vWD[2]}, s{t}, v{vWD[0]}", f"v_add_u32 v{vWD[3]}, s{t}, v{vWD[1]}",
         f"s_mul_i32 s{sWOFF}, {stride}, s{sWAVE}", f"s_lshl_b32 s{sWOFF}, s{sWOFF}, 5", f"s_add_u32 s{sWOFF}, s{sWOFF}, {col}"]
    for kc in range(4):
        o += [f"s_lshr_b32 s{t}, s{xc[kc]}, 1", f"s_mul_i32 s{t}, s{t}, {stride}", f"s_add_u32 s{sKC[kc]}, s{sWOFF}, s{t}"]
    return o
def e_addr():
    return [f"s_lshr_b32 s{sT1}, s{sTE}, 1", f"s_mul_i32 s{sO0}, s{sT1}, s{T_TS1}", f"s_and_b32 s{sT1}, s{sTE}, 1", f"s_mul_i32 s{sT1}, s{sT1}, s{T_TS0}",
            f"s_add_u32 s{sO0}, s{sO0}, s{sT1}", f"s_add_u32 s{sO0}, s{sO0}, s{sB0}", f"s_add_u32 s{sTE}, s{sTE}, 1",
            f"s_add_u32 s{sO0+1}, s{sO0}, s{T_SJ0}", f"s_add_u32 s{sO0+2}, s{sO0}, s{T_SJ1}", f"s_add_u32 s{sO0+3}, s{sO0+2}, s{T_SJ0}"]
def pipeline(units):
    out = []; prev = None
    for pre, cv, post in units:
        out += pre + cv[:2]
        if prev: out += prev[:2]
        out += cv[2:]
        if prev: out += prev[2:]
        prev = post
    return out + ["s_nop 1"] + prev
def cvt4(T0, T1):
    return [f"v_cvt_pk_bf16_f32 v{T0}, v{T0}, v{T0+1}", f"v_cvt_pk_bf16_f32 v{T0+1}, v{T0+2}, v{T0+3}",
            f"v_cvt_pk_bf16_f32 v{T0+2}, v{T1}, v{T1+1}", f"v_cvt_pk_bf16_f32 v{T0+3}, v{T1+2}, v{T1+3}"]
def swaps(T0): return [f"v_permlane16_swap_b32 v{T0}, v{T0+2}", f"v_permlane16_swap_b32 v{T0+1}, v{T0+3}"]
def epilogue(p, mul):
    u = []
    for pp in range(2):
        for J in range(4):
            T0, T1 = acc(p, 2*pp, J), acc(p, 2*pp+1, J)
            pre = [f"v_mul_f32 v{T+r}, s{T_SC}, v{T+r}" for T in (T0, T1) for r in range(4)] if mul else []
            post = swaps(T0) + [f"buffer_store_dwordx4 {vr(T0,4)}, v{vEP}, {sr(sE,4)}, s{sO0+J} offen{SCE}" + (" ; grpend:st" if pp == 1 and J == 3 else "")]
            if pp == 0: post.append(f"s_add_u32 s{sO0+J}, s{sO0+J}, s{T_SP}")
            u.append((pre, cvt4(T0, T1), post))
    return e_addr() + pipeline(u)
def q_epilogue(p, u, a):
    un = []
    if True:
        for rt in range(4):
            T0, T1 = acc(p, 2*a, rt), acc(p, 2*a+1, rt); q = QA_ + 16*rt + 4*(2*u + a)
            un.append(([], cvt4(T0, T1), swaps(T0) + [f"v_accvgpr_write_b32 a{q+r}, v{T0+r}" for r in range(4)]))
    return pipeline(un)

TRG = [0, 1, 2, 4, 5, 6, 8, 9]; DMAG = [3, 7, 11, 15]; XRG = [3, 7, 10, 11, 12, 13, 14, 15]
def place_dma(S, g0, grp):
    S.add(g0 + 0, grp[0]); S.add(g0 + 1, grp[1])
    for i in range(4): S.add(g0 + DMAG[i], grp[2 + i])
class Block:
    def __init__(self, name, slots, nextpos, qx=None, qd=None):
        self.name = name
        qx = dict(qx or {}); qd = dict(qd or {})
        m = []
        for q, s in enumerate(slots):
            m += slot_mfmas(s["p"], s["o"], s["kc"])
            if s.get("xr") is not None: qx[4*q] = (s["xr"], s["xk"])
            if s.get("xd") is not None: qd[4*q+1] = x_dma(s["xd"])[:6]; qd[4*q+2] = x_dma(s["xd"])[6:]
            if "wstep" in s: qd[4*q+3] = w_dma(s["pos"], s["wstep"], s.get("nt", ""))
        S = self.S = Sched(m, 16)
        for q, s in enumerate(slots):
            for c in range(4):
                Q = 4 * q + c; g0 = Q * 16
                lg = "lgkmcnt(4)" if (Q - 1) in qx else "lgkmcnt(0)"
                pre = []
                if Q in qx: pre.append(f"s_waitcnt vmcnt(@{name}{Q}x:{qx[Q][1]}:x)")
                if c == 3 and not s.get("nobar"):
                    need = s.get("need", [f"{s.get('wk', 2)}:w"])
                    for k, nd in enumerate(need): pre.append(f"s_waitcnt vmcnt(@{name}{q}w{k}:{nd})")
                    pre[-1] += " " + lg
                    pre += s.get("prebar", []) + ["s_barrier"] + s.get("postbar", [])
                elif pre: pre[-1] += " " + lg
                else: pre.append("s_waitcnt " + lg)
                S.before(g0, pre)
                if c < 3: rd = tr_reads(s["pos"], c + 1)
                else:
                    np_ = slots[q+1]["pos"] if q + 1 < len(slots) else nextpos
                    rd = tr_reads(np_, 0) if np_ is not None else []
                for i, r in enumerate(rd): S.add(g0 + TRG[i], r)
                if Q in qx:
                    for i, r in enumerate(x_reads(qx[Q][0], s.get("nat", False))): S.add(g0 + XRG[i], r)
                if Q in qd: place_dma(S, g0, qd[Q])
    def emit(self):
        print("P1 block", self.name, "over", self.S.over())
        return self.S.emit()


def pair_slots(pa, pb, o, nat, tailw):
    sl = []
    for q in range(8):
        d = dict(p=pb if q & 1 else pa, o=o, kc=q >> 1, pos=q & 3, nat=nat)
        if q < 4: d["wstep"] = (q & 1, (q + 4) >> 1)
        if q < 6: d["xr"] = q + 2; d["xk"] = min(2, 5 - q)
        if q < 3: d["xd"] = q + 5
        if not tailw and q >= 4: d["wk"] = max(0, 6 - q)
        sl.append(d)
    return sl
def unit_slots(p, o): return [dict(p=p, o=o, kc=s, pos=s, wstep=(4, s)) for s in range(4)]

def flag_store(off_code, val):
    return off_code + [f"v_mov_b32 v{vFL}, {val}", "s_mov_b64 exec, 1", f"buffer_store_dword v{vFL}, off, {sr(sWS,4)}, s{sZ0}{SC}", "s_mov_b64 exec, -1"]
def w0only(code, lbl): return [f"s_cmp_lg_u32 s{sWAVE}, 0", f"s_cbranch_scc1 {lbl}"] + code + [f"{lbl}:"]
F1OFF = [f"s_lshl_b32 s{sZ0}, s{sCG}, 7", f"s_lshl_b32 s{sZ1}, s{sI}, 2", f"s_add_u32 s{sZ0}, s{sZ0}, s{sZ1}", f"s_add_u32 s{sZ0}, s{sZ0}, {WS_F1}"]

NT = os.environ.get("NT", " nt")
def lin_touch():
    c = []; A = c.append
    A(f"v_and_b32 v31, 31, v{vLN}"); A("v_lshlrev_b32 v31, 7, v31")
    A("s_mov_b32 s99, 0x20000"); A(f"s_mov_b32 s98, {2*MB}"); A("s_lshl_b32 s100, s2, 1"); A(f"s_and_b32 s101, s{sWAVE}, 1"); A("s_add_u32 s100, s100, s101"); A("s_lshl_b32 s100, s100, 12")
    A(f"s_cmp_lt_u32 s{sWAVE}, 2"); A("s_cselect_b64 s[96:97], s[74:75], s[72:73]")
    A(f"buffer_load_dword v{vTCH}, v31, s[96:99], s100 offen")
    return c
def touch_setup():
    return [f"v_and_b32 v30, 15, v{vLN}", f"s_lshl_b32 s101, s{sRT}, 3", "v_add_u32 v30, s101, v30", f"v_mul_u32_u24 v28, s{T_STR}, v30", "v_lshlrev_b32 v29, 13, v30",
            "v_lshl_add_u32 v29, v24, 7, v29", "v_lshl_add_u32 v30, v24, 7, v28", f"v_lshrrev_b32 v31, 4, v{vLN}", "v_min_u32 v31, 2, v31", "v_lshl_add_u32 v28, v31, 7, v28"]
def touch_w3(): return [f"buffer_load_dword v{vTCH}, v28, {sr(sW,4)}, s{T_WCOL} offen{NT}"]
def touch_w2(): return [f"buffer_load_dword v{vTCH}, v30, {sr(sW,4)}, s{T_WCOL} offen offset:384" + os.environ.get("NT2", "")]
def touch_q():
    return [f"s_mov_b64 s[96:97], {sr(sWQ,2)}", f"s_mov_b32 s98, {4*MB}", "s_mov_b32 s99, 0x20000", f"s_lshl_b32 s101, s{sH}, 8",
            f"buffer_load_dword v{vTCH}, v29, s[96:99], s101 offen" + os.environ.get("NT3", "")]
def touch_x(k):
    c = []
    if k == 0:
        c = [f"s_mov_b64 s[96:97], {sr(sXP,2)}", f"s_mov_b32 s98, {2*MB}", "s_lshr_b32 s100, s2, 3", "s_lshl_b32 s100, s100, 2", f"s_add_u32 s100, s100, s{sWAVE}",
             "s_lshl_b32 s100, s100, 14", f"v_and_b32 v31, 15, v{vLN}", "v_lshlrev_b32 v31, 10, v31", "v_lshl_add_u32 v31, v24, 7, v31"]
    return c + [f"buffer_load_dword v{vTCH}, v31, s[96:99], s100 offen offset:{256*k}"]
def code_touch(srd):
    return [f"s_mov_b64 {sr(srd,2)}, s[6:7]", f"s_mov_b32 s{srd+2}, P1_TAB-P1_PC", f"s_mov_b32 s{srd+3}, 0x20000", f"buffer_load_dword v{vTCH}, v{vCT}, {sr(srd,4)}, 0 offen"]
MK = [lambda n: []]
def version(o):
    mul = (o == 0)
    code = [f"P1_V{o}:"]
    code += [f"v_mad_u32_u24 v{vEP}, v24, s{T_A1}, v{vJQ if o == 0 else 26}", f"v_mad_u32_u24 v{vEP}, v25, s{T_A2}, v{vEP}"]
    if o == 0:
        code += [f"s_mul_i32 s{sT1}, s{T_XSEL}, {4096 - 128}", f"v_bfe_u32 v27, v{vLN}, 2, 1", f"v_mad_u32_u24 v{vEP}, v27, s{sT1}, v{vEP}"]
    code += [
             f"s_mul_i32 s{sT1}, s{T_SJ1 if o == 0 else T_SP}, s{sRT}", f"s_add_u32 s{sB0}, s{T_B0}, s{sT1}"]
    RO = os.environ.get("RO", "0") == "1"
    seq = [(q % 3, q // 3) for q in range(12)]
    if RO: seq = seq[:6] + [(0, 2), (0, 3), (1, 2), (1, 3), (2, 2), (2, 3)]
    seq += [(3, k) for k in range(4)]
    step = lambda e: seq[e]
    sl = [dict(p=seq[q][0], o=o, kc=seq[q][1], pos=q & 3, wstep=step(q + 4)) for q in range(12)]
    del sl[0]["wstep"]; del sl[1]["wstep"]
    X = lambda sc, h: x_dma(sc)[6*h:6*h+6]
    qd = {2: w_dma(3, step(3), NT), 3: X(2,0), 4: X(2,1), 5: X(3,0), 6: X(3,1), 7: w_dma(0, step(4), NT), 8: w_dma(1, step(5), NT),
          12: X(4,0), 13: X(4,1), 14: X(5,0), 16: X(5,1), 17: X(6,0), 18: X(6,1), 21: X(7,0), 22: X(7,1)}
    qx = {9: (2, 1), 10: (3, 0), 20: (4, 2), 22: (5, 1), 24: (6, 1), 28: (7, 0)}
    if True:
        for k in (12, 13, 14, 16, 17, 18, 21, 22): del qd[k]
        XL = [int(x) for x in os.environ.get("XL", "14,16,17,18,20,21,24,25").split(",")]
        for k, qq in enumerate(XL): qd[qq] = X(4 + k // 2, k & 1)
        XR = [int(x) for x in os.environ.get("XR", "21,22,28,30").split(",")]
        qx = {9: (2, 1), 10: (3, 0)}
        for k, qq in enumerate(XR):
            ended = sum(1 for j in range(4) if XL[2*j+1] < qq)
            assert ended > k and XL[2*k+1] < qq
            qx[qq] = (4 + k, ended - 1 - k)
        assert XR[1] <= 22 and XL[6] >= XR[0] + 3 - (XR[1] != XR[0] + 1)
    if RO: del qx[28]; qx[26] = (7, 0)
    sl[1]["wk"] = 1
    for q in range(8): sl[q]["nt"] = NT
    sl[2]["postbar"] = w0only([f"s_and_b32 s{sZ0}, s2, 1", f"s_lshl_b32 s{sZ0}, s{sZ0}, 7", f"v_mov_b32 v{vFL}, 1", "s_mov_b64 exec, 1",
                               f"buffer_atomic_add v{vFL}, off, {sr(sDBG,4)}, s{sZ0} sc1", "s_mov_b64 exec, -1"], f"P1_CL{o}")
    XQ = [int(x) for x in os.environ.get("XQ", "32,33,34,36,37,38").split(",")]
    for k, qq in enumerate(XQ): qd[qq] = X(k // 2, k & 1)
    B = Block(f"a{o}", sl, 0, qx, qd)
    TQ = [int(x) for x in os.environ.get("TQ", "12,26").split(",")]
    if TPOS == "q": B.S.before(9 * 16, [lin_touch()[-1]] + touch_w3())
    B.S.fill(touch_w2(), TQ[0] * 16, TQ[0] * 16 + 16)
    B.S.fill(touch_q(), TQ[1] * 16, TQ[1] * 16 + 16)
    sw = [f"s_mov_b64 {sr(sX,2)}, {sr(sXP,2)}",
          f"s_lshl_b32 s{sXA}, s{sI}, 2", f"s_add_u32 s{sXA}, s{sXA}, s{sWAVE}", f"s_sub_u32 s{sXB}, 63, s{sXA}",
          f"s_lshl_b32 s{sXA}, s{sXA}, 15", f"s_lshl_b32 s{sXB}, s{sXB}, 15", f"s_add_u32 s{sR2}, s{sH}, s{sI}", f"s_and_b32 s{sR2}, s{sR2}, {ROT2}", f"s_lshl_b32 s{sR2}, s{sR2}, 8",
          f"s_mov_b32 s{sR}, s{sXC[1]}"] + [f"s_xor_b32 s{sXC[kc]}, s{sR2}, {256*kc}" for kc in range(4)]
    B.S.pack(sw, 29 * 16, 30 * 16)
    if "1" in RT: B.S.fill(code_touch(96), 29 * 16, 30 * 16)
    e1, e2, e3 = epilogue(1, mul), epilogue(2, mul), epilogue(0, mul)
    stores = lambda e: [i for i, x in enumerate(e) if x.startswith("buffer_store")]
    if RO:
        E0, N1 = [int(x) for x in os.environ.get("E0", "8,4").split(",")]
        c1 = len(e1) if N1 == 8 else stores(e1)[N1 - 1] + 2
        B.S.fill(epilogue(0, mul), E0 * 64 + 3, 10 * 64 + 40); B.S.fill(e1[:c1], 10 * 64 + 40, 12 * 64 - 2); e1 = e1[c1:]
    else: B.S.fill(epilogue(0, mul), 10 * 64 + 3, 12 * 64 - 2)
    for q in range(1, 12): B.S.before(q * 64, MK[0](f"s{q}"))
    pair = B.emit()
    NC = int(os.environ.get("NC", "6"))
    cut = len(e2) if NC == 8 else stores(e2)[NC - 1] + 2
    B = Block(f"c{o}", unit_slots(0, o), 0)
    if "2" in RT: B.S.fill(code_touch(96), 128, 144)
    B.S.fill(e1 + e2[:cut], 3, 254)
    for q in range(1, 4): B.S.before(q * 64, MK[0](f'c{q}'))
    u3 = B.emit()
    sl = unit_slots(1, o)
    for q in range(4): sl[q]["wstep"] = (q & 1, q >> 1)
    sl[2].update(xr=0, xk=2, xd=3, nat=True); sl[3].update(xr=1, xk=2, xd=4, nat=True)
    B = Block(f"d{o}", sl, 0)
    sw2 = [f"s_mov_b64 {sr(sW,2)}, {sr(sWQ,2)}", f"s_mov_b32 s{sW+2}, {4*MB}", f"s_mov_b32 s{T_STR}, 8192", f"s_lshl_b32 s{T_WCOL}, s{sH}, 8"] + w_lane_setup(f"s{T_STR}", sZ1, f"s{T_WCOL}")
    B.S.pack(sw2, 0, 46)
    B.S.fill(e2[cut:] + [f"s_mov_b32 s{sE+2}, s{sEN}"] + e3 + [f"s_mov_b32 s{sE+2}, {WS_END}"], 3, int(os.environ.get("E3", "176")))
    for q in range(0, 4): B.S.before(q * 64, MK[0](f'd{q}'))
    u4 = B.emit()
    skip = [f"P1_SK{o}:", "s_nop 7"] + (gate_load() if o == 0 else []) + flat(e1) + (gate() if o == 0 else []) + flat(e2[:cut]) + \
           [f"s_mov_b32 s{sEN}, 0", f"s_sub_u32 s{sTE}, s{sTE}, 1", f"s_branch P1_U4{o}"]
    br = [f"s_bitcmp1_b32 s{T_FL}, 0", f"s_cbranch_scc1 P1_SK{o}"]
    return dict(head=code, pair=pair, br=br, u2=u3, u3=[], u4=[f"P1_U4{o}:"] + u4, skip=skip)

sGW = 72
def gate_load():
    c = [f"s_bitcmp1_b32 s{T_FL}, 1", "s_cbranch_scc0 P1_NG0"]; A = c.append
    G = ACC[0]
    A(f"v_lshrrev_b32 v27, 4, v{vLN}"); A("v_lshlrev_b32 v28, 4, v27")
    gx = [None, sR, 100, 101]
    c += chunk_next(gx)
    for ks in range(16):
        A(f"buffer_load_dwordx4 {vr(G+4*ks,4)}, v28, {sr(sGW,4)}, {'s%d' % gx[ks//4] if ks >= 4 else 0} offen offset:{(ks%4)*64}" + (" ; grpend:gw" if ks == 15 else ""))
    A("P1_NG0:")
    return c
def gate():
    c = [f"s_bitcmp1_b32 s{T_FL}, 1", "s_cbranch_scc0 P1_NG"]; A = c.append
    G = ACC[0]; D = WR[1]
    A("s_waitcnt vmcnt(@gw:0:gw)")
    for rt in range(4):
        for ks in range(16):
            A(f"v_mfma_f32_16x16x32_bf16 {vr(D+4*rt,4)}, {vr(G+4*ks,4)}, {ar(xa(rt,ks),4)}, " + ("0" if ks == 0 else vr(D+4*rt,4)))
    A("s_nop 7")
    for g in range(1, 4):
        A(f"v_cmp_eq_u32 vcc, {g}, v27"); A("s_nop 1"); A(f"v_cndmask_b32 v{D}, v{D}, v{D+4*g}, vcc")
    A(f"v_mul_f32 v{D}, {hex(fbits(-LOG2E))}, v{D}"); A(f"v_exp_f32 v{D}, v{D}"); A("s_nop 0")
    A(f"v_add_f32 v{D}, 1.0, v{D}"); A(f"v_rcp_f32 v{D}, v{D}")
    A(f"v_lshrrev_b32 v28, 2, v{vJQ}"); A("v_lshl_add_u32 v28, v27, 6, v28")
    A(f"s_lshl_b32 s{sT0}, s{sRT}, 7"); A(f"s_add_u32 s{sT0}, s{sT0}, {WS_GATE}")
    A(f"buffer_store_dword v{D}, v28, {sr(sWS,4)}, s{sT0} offen{SC}")
    A("s_nop 1")
    A("P1_NG:")
    return c

def chunk_order(r, xc):
    o = [f"s_lshl_b32 s{xc[1]}, s{r}, 8", f"s_add_u32 s{xc[1]}, s{xc[1]}, 256"]
    return o + chunk_next(xc)
def chunk_next(xc):
    o = []
    for k in (2, 3): o += [f"s_add_u32 s{xc[k]}, s{xc[k-1]}, 256", f"s_cmp_eq_u32 s{xc[k]}, 1024", f"s_cselect_b32 s{xc[k]}, 256, s{xc[k]}"]
    return o
def prologue(mk=lambda n: []):
    c = []; A = c.append
    A(f"s_load_dwordx4 s[72:75], s[0:1], {KA_X}")
    A(f"s_load_dwordx4 s[76:79], s[0:1], {KA_WUK}")
    A(f"s_load_dwordx2 {sr(sWQ,2)}, s[0:1], {KA_WQ}")
    A(f"s_load_dwordx2 s[6:7], s[0:1], {KA_WQKV}")
    A(f"s_load_dwordx2 {sr(sWS,2)}, s[0:1], {KA_WS}")
    A(f"s_load_dwordx2 {sr(sDBG,2)}, s[0:1], {KA_DBG}")
    A(f"s_load_dwordx2 s[32:33], s[0:1], {KA_GATE}")
    A("s_getpc_b64 s[4:5]"); A("P1_PC:")
    A("s_mov_b64 s[96:97], s[4:5]"); A("s_mov_b32 s98, P1_TAB-P1_PC"); A("s_mov_b32 s99, 0x20000")
    A("s_lshr_b32 s3, s2, 3"); A("s_mul_i32 s3, s3, 5120")
    A(f"v_mul_u32_u24 v{vCT}, 20, v0"); A(f"v_add_u32 v{vCT}, s3, v{vCT}")
    A(f"buffer_load_dword v{vTCH}, v{vCT}, s[96:99], 0 offen")
    A("s_add_u32 s4, s4, P1_TAB-P1_PC"); A("s_addc_u32 s5, s5, 0")
    A("s_and_b32 s3, s2, 7"); A(f"s_lshr_b32 s{sH}, s2, 3"); A(f"s_and_b32 s{sI}, s{sH}, 7")
    A(f"s_lshr_b32 s{sH}, s{sH}, 3"); A("s_lshl_b32 s3, s3, 2"); A(f"s_add_u32 s{sH}, s{sH}, s3")
    A(f"s_lshl_b32 s3, s{sH}, 6")
    A(f"s_load_dwordx16 {sr(sTB,16)}, s[4:5], s3")
    A("v_lshrrev_b32 v27, 6, v0"); A(f"v_and_b32 v{vLN}, 63, v0")
    A(f"v_readfirstlane_b32 s{sWAVE}, v27")
    A(f"v_lshrrev_b32 v27, 4, v{vLN}")
    A(f"v_and_b32 v28, 15, v{vLN}")
    A("v_and_b32 v24, 1, v27"); A("v_lshrrev_b32 v25, 1, v27"); A("v_lshlrev_b32 v26, 4, v28")
    A("v_and_b32 v29, 3, v28"); A("v_bfe_u32 v30, v28, 2, 1"); A("v_bfe_u32 v31, v28, 3, 1")
    A("v_lshl_add_u32 v29, v30, 3, v29"); A("v_lshl_add_u32 v29, v31, 2, v29")
    A(f"v_lshlrev_b32 v{vJQ}, 4, v29")
    A(f"s_lshl_b32 s{sLW}, s{sWAVE}, 12")
    A(f"s_mul_i32 s{sLX}, s{sWAVE}, 24576"); A(f"s_add_u32 s{sLX}, s{sLX}, {XB}")
    for src, dst in ((29, vXR), (28, vXN)):
        A(f"v_lshrrev_b32 v30, 1, v{src}"); A("v_xor_b32 v30, v30, v27"); A("v_lshlrev_b32 v30, 4, v30"); A(f"v_lshl_add_u32 v30, v{src}, 7, v30")
        A(f"v_add_u32 v{dst[0]}, s{sLX}, v30"); A(f"v_xor_b32 v{dst[1]}, 64, v{dst[0]}")
    A(f"v_lshrrev_b32 v{vL3}, 3, v{vLN}"); A(f"v_and_b32 v31, 7, v{vLN}")
    A("v_xor_b32 v30, v31, v27"); A("v_lshlrev_b32 v30, 4, v30"); A(f"v_lshl_add_u32 v{vXD[0]}, v{vL3}, 10, v30")
    A(f"v_xor_b32 v{vXD[1]}, 64, v{vXD[0]}"); A(f"v_add_u32 v{vXD[1]}, 7168, v{vXD[1]}")
    A(f"v_add_u32 v{vXD[2]}, 14336, v{vXD[0]}"); A(f"v_add_u32 v{vXD[3]}, 14336, v{vXD[1]}")
    A("v_lshlrev_b32 v30, 1, v24"); A("v_xor_b32 v30, v30, v31"); A(f"v_lshlrev_b32 v{vWC}, 4, v30")
    A("v_lshrrev_b32 v30, 2, v28"); A("v_lshl_add_u32 v29, v27, 3, v30"); A("v_lshlrev_b32 v29, 7, v29")
    A("v_and_b32 v31, 3, v28"); A("v_lshl_add_u32 v29, v31, 3, v29")
    A("v_lshrrev_b32 v30, 1, v30"); A("v_lshl_add_u32 v30, v24, 1, v30"); A("v_lshlrev_b32 v30, 5, v30")
    A(f"v_add_u32 v{vW[0]}, v29, v30")
    for ct in range(1, 4): A(f"v_xor_b32 v{vW[ct]}, {32*ct}, v{vW[0]}")
    A(f"s_lshl_b32 s{sRT}, s{sI}, 2"); A(f"s_add_u32 s{sRT}, s{sRT}, s{sWAVE}"); A(f"s_lshl_b32 s{sXA}, s{sRT}, 16")
    A(f"s_add_u32 s{sXB}, s{sXA}, 32768")
    A(f"s_and_b32 s{sZ1}, s{sH}, 3"); A(f"s_add_u32 s{sZ1}, s{sZ1}, s{sI}"); A(f"s_mul_i32 s{sZ0}, s{sZ1}, 11"); A(f"s_lshr_b32 s{sZ0}, s{sZ0}, 5"); A(f"s_mul_i32 s{sZ0}, s{sZ0}, 3")
    A(f"s_sub_u32 s{sZ1}, s{sZ1}, s{sZ0}" if ROT3 else f"s_mov_b32 s{sZ1}, 0")
    A(f"s_lshl_b32 s{sRT}, s{sRT}, 1")
    for s, n in ((sWS, WS_END), (sE, WS_END), (sX, 2*MB), (sDBG, 256), (sW, 4*MB)):
        A(f"s_mov_b32 s{s+2}, {n}"); A(f"s_mov_b32 s{s+3}, 0x20000")
    A("s_waitcnt lgkmcnt(0)")
    c += mk("ka")
    WSO = int(os.environ.get("WSO", "0")) * MB
    if WSO: A(f"s_add_u32 s{sWS}, s{sWS}, {WSO}"); A(f"s_addc_u32 s{sWS+1}, s{sWS+1}, 0")
    A(f"s_lshr_b32 s{sCG}, s{T_FL}, 16")
    A(f"s_cmp_eq_u32 s{T_XSEL}, 0"); A(f"s_cselect_b64 {sr(sX,2)}, s[72:73], s[74:75]")
    A(f"s_cmp_eq_u32 s{T_WSEL}, 0"); A(f"s_cselect_b64 {sr(sW,2)}, s[76:77], s[78:79]")
    A(f"s_mov_b32 s{sXC[0]}, 0")
    c += x_dma(0)
    c += chunk_order(sZ1, sXC)
    A(f"s_mov_b64 {sr(sXP,2)}, s[72:73]"); A(f"s_mov_b64 {sr(sE,2)}, {sr(sWS,2)}")
    A(f"s_cmp_eq_u32 s{T_WSEL}, 2"); A(f"s_cselect_b64 {sr(sW,2)}, s[6:7], {sr(sW,2)}"); A(f"s_cselect_b32 s{sW+2}, {512*3072}, s{sW+2}")
    A("s_mov_b64 s[6:7], s[96:97]")
    c += w_lane_setup(f"s{T_STR}", sT1, f"s{T_WCOL}")
    A(f"s_mov_b32 s{sEN}, {WS_END}")
    A(f"s_mov_b32 s{sTE}, s{T_T0}")
    c += touch_setup()
    if TPOS == "a": c += lin_touch() + touch_w3()
    c += mk("i0")
    c += w_dma(0, (0, 0), NT) + x_dma(1)
    c += mk("i1")
    if TPOS == "b": c += lin_touch() + touch_w3()
    vFL = 27
    z = F1OFF + [f"v_mov_b32 v{vFL}, 0", "s_mov_b64 exec, 1", f"buffer_store_dword v{vFL}, off, {sr(sWS,4)}, s{sZ0}{SC}",
                 f"s_lshl_b32 s{sZ0}, s{sI}, 7", f"s_lshl_b32 s{sZ1}, s{sH}, 2", f"s_add_u32 s{sZ0}, s{sZ0}, s{sZ1}", f"s_add_u32 s{sZ0}, s{sZ0}, {WS_F3}",
                 f"buffer_store_dword v{vFL}, off, {sr(sWS,4)}, s{sZ0}{SC}", f"buffer_store_dword v{vFL}, off, {sr(sWS,4)}, s{sZ0} offset:{WS_F4 - WS_F3}{SC}", "s_mov_b64 exec, -1"]
    c += w_dma(1, (1, 0), NT) + w_dma(2, (2, 0), NT)
    if TPOS == "c": c += lin_touch() + touch_w3()
    else: c += lin_touch()[:-1]
    A(f"s_mov_b64 {sr(sGW,2)}, s[32:33]"); A(f"s_mov_b32 s{sGW+2}, 1024"); A(f"s_mov_b32 s{sGW+3}, 0x20000")
    z = [f"buffer_load_dword v{vTCH}, v31, {sr(sGW,4)}, 0 offen"] + z
    c += w0only(z, "P1_Z")
    c += mk("i2")
    A("s_waitcnt vmcnt(@Px0:1:x)"); c += mk("l0"); c += x_reads(0, False)
    A("s_waitcnt vmcnt(@Px1:0:x)"); c += mk("l1"); A("s_barrier"); c += tr_reads(0, 0) + x_reads(1, False)
    A(f"s_cmp_eq_u32 s{T_OR}, 0"); A("s_cbranch_scc0 P1_V1")
    return c

def p2(kv_setup, kv_dma0, kv_dma1, kv_dma2, mask_setup, wo_ptrs, wo_touch, out_ptr):
    sl = pair_slots(2, 0, 0, True, False)
    SG = int(os.environ.get("SG", "2"))
    sl[SG]["need"] = ["2:w", "0:st"]
    sl[SG]["postbar"] = w0only(flag_store(F1OFF, 1), "P2_S")
    def spin(lbl, load, cmp):
        return [f"s_mov_b32 s{sZ1}, 0x100000", f"s_waitcnt vmcnt(@{lbl}:0:fl)", f"{lbl}L:", cmp, "s_nop 0", f"s_cbranch_vccz {lbl}",
                "s_sleep 8", load, "s_waitcnt vmcnt(0)", f"s_sub_u32 s{sZ1}, s{sZ1}, 1", f"s_cmp_lg_u32 s{sZ1}, 0", f"s_cbranch_scc1 {lbl}L"]
    ld0 = f"buffer_load_dword v31, v29, {sr(sDBG,4)}, 0 offen sc1 ; grpend:fl"
    ld1 = f"buffer_load_dword v31, v{vPF}, {sr(sWS,4)}, 0 offen sc1 ; grpend:fl"
    sl[4]["prebar"] = w0only(spin("P2_C", ld0, "v_cmp_gt_u32 vcc, v30, v31"), "P2_C")
    sl[3]["postbar"] = sl[3].get("postbar", []) + w0only([ld0], "P2_L0")
    sl[5]["postbar"] = w0only([ld1], "P2_L1")
    sl[6]["prebar"] = w0only(spin("P2_D", ld1, "v_cmp_ne_u32 vcc, 1, v31"), "P2_D")
    sl[7]["nobar"] = True
    qx = qd = None
    if os.environ.get("P2J", "1") == "1":
        for d in sl:
            for k in ("xr", "xk", "xd"): d.pop(k, None)
        X = lambda sc, h: x_dma(sc)[6*h:6*h+6]
        qd = {9: X(5,0), 10: X(5,1), 12: X(6,0), 13: X(6,1), 16: X(7,0), 17: X(7,1)}
        qx = {0: (2, 2), 4: (3, 1), 8: (4, 0), 14: (5, 1), 20: (6, 1), 22: (7, 0)}
    B = Block("q", sl, None, qx, qd)
    B.S.fill(epilogue(1, True), 3, int(os.environ.get("EE", "120")))
    B.S.fill(paddr(), 3 * 64, 3 * 64 + 46)
    B.S.fill(code_touch(52)[:3] + (code_touch(52)[3:] if '3' in RT else []), 3 * 64 + 50, 4 * 64)
    B.S.fill(wo_ptrs, 3 * 64 + 50, 3 * 64 + 62)
    WQ = int(os.environ.get("WQ", "19"))
    k = max(i for i, x in enumerate(wo_touch) if x.startswith("s_lshl_b32 s7") ) + 1
    B.S.fill(wo_touch[:k], 18 * 16, 19 * 16); B.S.fill(wo_touch[k:], WQ * 16, WQ * 16 + 48)
    B.S.fill(out_ptr, 18 * 16, 18 * 16 + 8)
    B.S.fill(mask_setup, 4 * 64, 5 * 64 + 46)
    B.S.fill(kv_setup, 5 * 64 + 46, 6 * 64 + 30)
    B.S.fill(kv_dma0, 6 * 64 + 48, 7 * 64 + 16)
    B.S.fill(kv_dma1, 7 * 64 + 16, 7 * 64 + 56)
    B.S.fill(q_epilogue(2, 0, 0), 6 * 64 + 34, 7 * 64 + 2)
    B.S.fill(q_epilogue(2, 0, 1), 7 * 64 + 3, 7 * 64 + 34)
    B.S.fill(q_epilogue(0, 1, 0), 7 * 64 + 35, 8 * 64)
    for q in range(1, 8): B.S.before(q * 64, MK[0](f'q{q}'))
    if os.environ.get("QOV"): print([ (g, B.S.load(g) - 16) for g in range(B.S.n) if B.S.load(g) > 16])
    qe = flat(q_epilogue(0, 1, 1)); tail = []
    k2 = list(kv_dma2)
    for i, x in enumerate(qe):
        if i % 3 == 0 and k2 and not (i and qe[i-1].startswith("s_nop")): tail.append(k2.pop(0))
        tail.append(x)
    return ["P2:"] + B.emit() + ["s_nop 1"] + tail + k2
def paddr():
    m5 = (1 << 32) // 5 + 1
    o = [f"s_lshl_b32 s{sT1}, s{sH}, 1", f"s_mul_hi_u32 s72, s{sT1}, {m5}", f"s_add_u32 s{sT1}, s{sT1}, 1", f"s_mul_hi_u32 s73, s{sT1}, {m5}",
         "s_add_u32 s74, s72, 13", "s_add_u32 s75, s73, 13", f"s_lshr_b32 s{sT1}, s{sH}, 4", f"s_add_u32 s32, s{sT1}, 26", f"s_add_u32 s33, s{sT1}, 28", f"s_add_u32 s34, s{sT1}, 30",
         f"v_mov_b32 v{vPF}, {GATE_CG}"]
    for k in range(7):
        o += [f"v_cmp_eq_u32 vcc, {k}, v{vL3}", f"v_mov_b32 v29, s{72+k if k < 4 else 28+k}", "s_nop 0", f"v_cndmask_b32 v{vPF}, v{vPF}, v29, vcc"]
    o += [f"v_and_b32 v29, 7, v{vLN}", "v_lshlrev_b32 v29, 2, v29", f"v_lshl_add_u32 v{vPF}, v{vPF}, 7, v29", f"v_add_u32 v{vPF}, {WS_F1}, v{vPF}",
          f"v_and_b32 v29, 1, v{vLN}", "v_lshlrev_b32 v29, 7, v29", "v_mov_b32 v30, 128"]
    return o
def tabdata():
    return [".p2align 6", ".type P1_TAB,@object", "P1_TAB:"] + [".long " + ", ".join(hex(x) for x in e) for e in table()]
```

```python
from asmlib import *
from layout import *
import os

O_ = {'L': 32, 'H': 160}
S_ = [224, 144]; P_ = [128, 136]; CM = 112; TRI = 96
vK, vV, vL16, vDMA, vLO, vHI, vG = 1, 2, 3, 24, 25, 28, {'L': [29, 8], 'H': [9, 10]}
SC = ' sc1'
SUM_ = {'L': 208, 'H': 216}
ONE = 4
vT = 13
Q_ = {'L': 0, 'H': 32}; K_ = 64; V_ = 96
sWS = 8
sKV = 12
sWAVE, sH, sI = 16, 17, 18
sCNT, sSEQ, sRD, sRK, sRV, sLW, sT0, sT1, sNST, sQL, sQH, sDT, sOFF, s2I = range(56, 70)
sBS = [72, 73, 74]
sM3 = 75
BIG = fbits(-1.0e30)
RING = 5

MF = "v_mfma_f32_16x16x32_bf16"
def qk(j, sb, masked):
    o = []
    for s in range(2):
        for qs in range(2):
            x = (qs * 2 + s) * 4; d = vr(S_[sb] + x, 4)
            for ks in range(4):
                c = (vr((CM if masked == "cm" else TRI) + x, 4) if masked else "0") if ks == 0 else d
                o.append(f"{MF} {d}, {ar(K_+4*(s*4+ks),4)}, {ar(Q_[j]+4*(qs*4+ks),4)}, {c}")
    return o
def pv(j, pb, first=False):
    o = []
    for dt in range(8):
        for qs in range(2):
            d = vr(O_[j] + (dt*2+qs)*4, 4)
            o.append(f"{MF} {d}, {ar(V_+4*dt,4)}, {vr(P_[pb]+4*qs,4)}, {'0' if first else d}")
    for qs in range(2):
        d = ar(SUM_[j] + 4*qs, 4)
        o.append(f"{MF} {d}, {vr(ONE,4)}, {vr(P_[pb]+4*qs,4)}, {'0' if first else d}")
    return o
def kread(t, i): return f"ds_read_b128 {ar(K_+4*i,4)}, v{vK} offset:{t*16384 + i*1024}"
def vread(t, i): return f"ds_read_b128 {ar(V_+4*i,4)}, v{vV} offset:{t*16384 + 8192 + i*1024}"
def sm(sb, pb):
    S = S_[sb]
    e = lambda r: f"v_exp_f32 v{S+r}, v{S+r}"
    c = lambda k: f"v_cvt_pk_bf16_f32 v{P_[pb]+k}, v{S+2*k}, v{S+2*k+1}"
    seq = [e(0)]
    for r in range(1, 16):
        seq.append(e(r))
        if r % 2 == 0 and r < 14: seq.append(c(r // 2 - 1))
    return seq + [c(6), c(7)]
def cm_ops():
    o = [[f"s_cmp_lt_i32 s{sDT}, 0", f"s_cselect_b32 s{sT0}, 0, {hex(BIG)}"], f"v_mov_b32 v{vLO}, s{sT0}",
         [f"s_cmp_le_i32 s{sDT}, 0", f"s_cselect_b32 s{sT0}, 0, {hex(BIG)}"], f"v_mov_b32 v{vHI}, s{sT0}", f"s_add_u32 s{sDT}, s{sDT}, 1"]
    o += [f"v_med3_f32 v{CM+r}, v{TRI+r}, v{vLO}, v{vHI}" for r in range(16)]
    return o
def ring3(s, src=None, zero="0"):
    return [f"s_add_u32 s{s}, s{src if src else s}, 32768", [f"s_cmp_ge_u32 s{s}, {RING*32768}", f"s_cselect_b32 s{s}, {zero}, s{s}"]]
def ring_adv(s, v): return ring3(s) + [f"v_add_u32 v{v}, s{s}, v{vL16}"]
def dma_ops(dual=True):
    if dual: o = [f"s_sub_u32 s{sOFF}, 32, s{sSEQ}", [f"s_cmp_le_u32 s{sSEQ}, s{s2I}", f"s_cselect_b32 s{sOFF}, s{sSEQ}, s{sOFF}"], f"s_lshl_b32 s{sOFF}, s{sOFF}, 15"]
    else: o = [None, [None, None], f"s_lshl_b32 s{sOFF}, s{sSEQ}, 15"]
    o += [f"s_mov_b32 m0, s{sRD}", f"s_add_u32 s{sSEQ}, s{sSEQ}, 1"]
    for i in range(8):
        if i == 4: o += [f"s_add_u32 m0, s{sRD}, 4096", f"s_add_u32 s{sOFF}, s{sOFF}, 4096"]
        o.append(f"buffer_load_dwordx4 v{vDMA}, {sr(sKV,4)}, s{sOFF} offen offset:{(i%4)*1024}{SC} lds" + (" ; grpend:kv" if i == 7 else ""))
    return o + ring3(sRD, zero=f"s{sLW}")
def d_items(w):
    ld = lambda t: (0 if t < 2 else 3, t & 1); hd = lambda t: (2 if t < 2 else 1, t & 1)
    it = [('L', "cm") + ld(0), ('H', False) + ld(0), ('H', False) + ld(1)]
    it += [('L', k + 1 == w) + ld(k + 1) if k < w else ('H', k == w) + hd(3 - k) for k in range(4)]
    return it + [('H', False) + ld(2), ('H', False) + ld(3)]

DP = os.environ.get('DP', 'a')
cnt = [0]
EG = [0, 2, 3, 5, 7, 9, 11, 13, 16, 18, 20, 22, 24, 26, 28, 30]
CG = [4, 6, 10, 14, 19, 23, 27, 31]
KG = [4, 6, 8, 10, 12, 14, 15, 17]; VG = [19, 21, 23, 25, 27, 29, 31, 32]
def slot(qi, si, pi, n, kre, vre, bar=False, kadv=False, vadv=False, dma=None, bark=1, extra=None, prek=False, nextk=False, loop=None,
         rid=(), kset=None, vset=None, dual=False, sal=(), spill=None):
    m = []
    if qi: m += qk(qi[0], (n + 1) & 1, qi[1])
    nq = len(m)
    if pi: m += pv(pi, (n + 1) & 1)
    S = Sched(m, 16); N = len(m)
    cnt[0] += 1; tag = f"A{cnt[0]}"
    full = (N == 34)
    if qi and not prek: S.before(0, "LGK")
    if bar:
        if bark is not None: S.add(0, f"s_waitcnt vmcnt(@{tag}:{bark}:kv)")
        S.add(1, "s_barrier")
    if pi:
        if full: S.add(13, "LGV")
        else: S.before(nq, "LGV")
    if nextk: S.add(28, "LGK")
    if loop: S.add(30, f"s_sub_u32 s{sCNT}, s{sCNT}, 1"); S.add(33, f"s_cbranch_scc0 {loop}")
    S.tail = [] if nextk else ["s_nop 0"]
    d = []
    for x in dma_ops(dual): d += x if isinstance(x, list) else [x]
    def put(gs, xs):
        for g, x in zip(gs, xs):
            if x: S.add(g, x)
    if full:
        e, cv = [x for x in sm(n & 1, n & 1) if "exp" in x], [x for x in sm(n & 1, n & 1) if "cvt" in x]
        if kre is not None: put(KG, [kread(kre, i) for i in range(8)])
        if vre is not None: put(VG, [vread(vre, i) for i in range(8)])
        if dma == 1:
            if dual: put([2, 3, 5, 7, 9, 16], d[0:6]); put([12, 17, 25, 29] if loop else [12, 17, 25, 33], d[6:10])
            else:
                put([2, 3, 16], d[3:6])
                put({"a": [8, 17, 25, 29 if loop else 33], "b": [5, 18, 24, 29 if loop else 33], "c": [7, 20, 26, 29 if loop else 33]}[DP], d[6:10])
        if dma in (2, 21):
            S.add(0, d[10]); S.add(1, [d[11], d[12]])
            S.add({"a": 12, "b": 9, "c": 11}[DP] if dma == 2 else 17, d[13])
        if dma in (2, 22):
            put([{"a": 25, "b": 30, "c": 25}[DP], 33] if dma == 2 else [1, 33], d[14:16]); put([22, 24, 26], d[16:19])
        if dma == 23:
            S.add(0, d[10]); S.add(1, [d[11], d[12]]); put([6, 8, 12], d[13:16]); put([2, 3, 5], d[16:19])
            put([16, 18, 20, 22, 24], [f"s_sub_u32 s{sSEQ}, s{sSEQ}, 2", d[3], d[4], d[5], f"s_sub_u32 s{sKV+2}, s{sKV+2}, 65536"])
            put([21, 25, 29, 33], d[6:10])
        if vadv: put([9, 11, 12, 15], flat(ring_adv(sRV, vV)))
        if kadv: put([16, 18, 20, 21], flat(ring_adv(sRK, vK)))
        if kset is not None: S.add(21, f"v_add_u32 v{vK}, s{kset}, v{vL16}")
        if vset is not None: S.add(15, f"v_add_u32 v{vV}, s{vset}, v{vL16}")
        for g, x in sal: S.add(g, x)
        if rid:
            gs = [8, 12, 17, 21, 25, 29, 32, 33]
            step = len(gs) / len(rid)
            for i, x in enumerate(rid): S.add(gs[int(i * step)], x)
        put(EG, e); put(CG, cv)
    else:
        if vre is not None: put([1, 3, 5, 7, 9, 11, 13, 15], [vread(vre, i) for i in range(8)])
        if si: S.fill(sm(n & 1, n & 1), 0, N)
    if extra: S.fill(extra, 0, N)
    return S.emit(), None, S.over()

def flat(l):
    o = []
    for x in l: o += [x] if isinstance(x, str) else x
    return o

def resolve_lg(traces):
    res = {}
    for tr in traces:
        q = []
        for ins in tr:
            if ins.startswith("LG"):
                lo = K_ if ins[2] == "K" else V_
                need = [i for i, b in enumerate(q) if b is not None and lo <= b < lo + 32]
                n = len(q) - 1 - need[-1] if need else 15
                n = min(n, 15)
                res[ins] = min(res.get(ins, 15), n)
                continue
            mm = re.match(r"ds_read_b128 a\[(\d+):", ins)
            if mm: q.append(int(mm.group(1)))
            elif ins.startswith("ds_"): q.append(None)
    return res

def uniq_lg(code, pfx):
    o = []
    for i, ins in enumerate(code):
        o.append(f"{ins}#{pfx}{i}" if ins in ("LGK", "LGV") else ins)
    return o

def section(slots, name, spill_in):
    code = []; sp = spill_in; ov = 0
    for kw in slots:
        c, sp, o = slot(spill=sp, **kw); code += c; ov += o
    print("K2", name, "over", ov)
    return uniq_lg(code, name), sp

def kv_setup(vLN):
    c = []; A = c.append
    A(f"s_lshl_b32 s{s2I}, s{sI}, 1")
    A(f"s_lshl_b32 s{sLW}, s{sWAVE}, 13")
    A(f"v_lshlrev_b32 v{vDMA}, 4, v{vLN}"); A(f"v_add_u32 v{vDMA}, s{sLW}, v{vDMA}")
    A(f"s_lshl_b32 s{sQL}, s{sI}, 2"); A(f"s_add_u32 s{sQL}, s{sQL}, s{sWAVE}"); A(f"s_sub_u32 s{sQH}, 63, s{sQL}")
    A(f"s_sub_u32 s{sNST}, 32, s{s2I}")
    A(f"s_lshl_b32 s{sT0}, s{sH}, 20"); A(f"s_add_u32 s{sT0}, s{sT0}, {WS_KV}")
    A(f"s_lshl_b32 s{sKV+2}, s{sNST}, 15")
    A([f"s_add_u32 s{sKV}, s{sWS}, s{sT0}", f"s_addc_u32 s{sKV+1}, s{sWS+1}, 0"])
    A(f"s_add_u32 s{sRD}, s{sLW}, 65536"); A(f"s_mov_b32 s{sSEQ}, 0")
    A(f"s_mov_b32 s{sRK}, 65536"); A(f"s_mov_b32 s{sRV}, 32768")
    return c
def kv_dma0(): return dma_ops()
def kv_dma1(): return dma_ops()
E2 = os.environ.get('E2', '1') == '1'
def kv_dma2(): return flat(dma_ops()[:9]) if E2 else []
def mask_setup(vLN):
    c = []; A = c.append
    t0, t1 = P_[1], P_[1] + 1
    A(f"v_lshrrev_b32 v{t0}, 5, v{vLN}"); A(f"v_lshlrev_b32 v{t0}, 4, v{t0}"); A(f"v_and_b32 v{t1}, 15, v{vLN}"); A(f"v_sub_u32 v{t0}, v{t1}, v{t0}")
    A(f"v_bfe_u32 v{t1}, v{vLN}, 4, 1"); A(f"v_lshlrev_b32 v{t1}, 2, v{t1}"); A(f"v_sub_u32 v{t0}, v{t0}, v{t1}")
    A(f"v_mov_b32 v{t1}, {hex(BIG)}")
    pr = ["s[72:73]", "s[74:75]", "s[32:33]", "s[70:71]"]
    for r0 in range(0, 16, 4):
        for r in range(r0, r0 + 4): A(f"v_cmp_gt_i32 {pr[r&3]}, {8*((r>>2)&1) + (r&3) - 16*(r>>3)}, v{t0}")
        for r in range(r0, r0 + 4): A(f"v_cndmask_b32 v{TRI+r}, 0, v{t1}, {pr[r&3]}")
    A(f"s_sub_u32 s{sDT}, 0, s{sWAVE}")
    c += cm_ops()
    for r in range(8): A(f"v_mov_b32 v{P_[0]+r}, 0")
    for r in range(16): A(f"v_mov_b32 v{S_[1]+r}, v{t1}")
    return c
def wo_ptrs():
    return [f"s_load_dwordx2 s[96:97], s[0:1], {KA_WO}", f"s_load_dwordx2 s[48:49], s[0:1], {KA_BWO}",
            f"s_mov_b32 s98, {4*MB}", "s_mov_b32 s99, 0x20000", f"s_mov_b32 s50, {MB//2}"]
def out_ptr(): return [f"s_load_dwordx2 s[44:45], s[0:1], {KA_OUT}"]
def wo_touch(vLN):
    c = []; A = c.append
    A(f"v_lshrrev_b32 v9, 3, v{vLN}"); A(f"v_and_b32 v10, 7, v{vLN}"); A(f"v_bfe_u32 v11, v{vLN}, 4, 1"); A("v_lshlrev_b32 v11, 2, v11"); A("v_xor_b32 v10, v10, v11")
    A("v_lshlrev_b32 v10, 4, v10"); A("v_lshl_add_u32 v9, v9, 10, v10")
    A(f"s_lshl_b32 s100, s{sH}, 2"); A(f"s_add_u32 s100, s100, s{sWAVE}"); A("s_lshl_b32 s101, s100, 15"); A(f"s_lshl_b32 s7, s{sI}, 7"); A("s_add_u32 s101, s101, s7")
    A(f"s_lshl_b32 s7, s{sWAVE}, 12")
    for i in range(4):
        A(f"s_add_u32 m0, s7, {i*1024}"); A(f"s_add_u32 s6, s101, {i*8192}")
        A("buffer_load_dwordx4 v9, s[96:99], s6 offen" + os.environ.get("WNT", " nt") + " lds" + (" ; grpend:wt" if i == 3 else ""))
    A(f"v_and_b32 v10, 3, v{vLN}"); A("v_lshlrev_b32 v10, 7, v10"); A("s_lshl_b32 s6, s2, 2"); A(f"s_add_u32 s6, s6, s{sWAVE}"); A("s_lshl_b32 s6, s6, 9")
    A("buffer_load_dword v23, v10, s[48:51], s6 offen")
    A(f"v_lshrrev_b32 v9, 5, v{vLN}"); A(f"v_bfe_u32 v10, v{vLN}, 2, 2"); A("v_lshl_add_u32 v9, v9, 2, v10"); A("v_lshlrev_b32 v9, 7, v9")
    A(f"v_bfe_u32 v10, v{vLN}, 3, 1"); A("v_lshl_add_u32 v9, v10, 6, v9")
    A(f"v_bfe_u32 v10, v{vLN}, 4, 1"); A("v_lshl_add_u32 v9, v10, 5, v9")
    A(f"v_and_b32 v10, 3, v{vLN}"); A("v_lshl_add_u32 v9, v10, 3, v9"); A("v_add_u32 v9, s7, v9"); A("v_xor_b32 v10, 64, v9")
    A("s_lshl_b32 s100, s100, 12"); A(f"s_lshl_b32 s101, s{sI}, 19"); A("s_add_u32 s100, s100, s101")
    return c
def wt_read(): return ["s_waitcnt vmcnt(@wt:0:wt)"] + [f"ds_read_b64_tr_b16 {ar(224+8*j+4*mt+2*e,2)}, v{9+mt} offset:{j*1024 + e*2048}" for j in range(2) for mt in range(2) for e in range(2)]
def wt_store(): return [f"buffer_store_dwordx4 {ar(224+4*k,4)}, v{vL16}, {sr(sWS,4)}, s100 offen offset:{k*1024}{SC}" for k in range(4)]
def prologue(vLN):
    c = []; A = c.append
    A(f"v_lshlrev_b32 v{vL16}, 4, v{vLN}")
    A(f"v_add_u32 v{vK}, s{sRK}, v{vL16}")
    c += wt_read()
    for r in range(0, 64, 2): A(f"v_mov_b64 {vr(O_['H']+r,2)}, 0")
    c += ones(vLN)
    A("s_waitcnt vmcnt(@P30:1:kv) lgkmcnt(0)"); A("s_barrier")
    c += [kread(0, ks) for ks in range(8)]
    if not E2: c += flat(dma_ops()[:9])
    for r in range(0, 64, 2): A(f"v_mov_b64 {vr(O_['L']+r,2)}, 0")
    for r in range(16): A(f"v_accvgpr_write_b32 a{SUM_['L']+r}, 0")
    return c
def ones(vLN):
    return [f"v_and_b32 v21, 3, v{vLN}", "v_cmp_eq_u32 vcc, 0, v21", "v_mov_b32 v21, 0x3f803f80", "s_nop 0"] + [f"v_cndmask_b32 v{ONE+r}, 0, v21, vcc" for r in range(4)]
def gate_parts(vLN):
    v = [f"v_and_b32 v21, 15, v{vLN}", "v_lshlrev_b32 v18, 2, v21", f"v_lshrrev_b32 v{vCS}, 4, v{vLN}", f"v_lshlrev_b32 v{vCS}, 9, v{vCS}", f"v_lshl_add_u32 v{vCS}, v21, 4, v{vCS}"]
    sc = [f"s_lshl_b32 s78, s{sQL}, 7", f"s_add_u32 s78, s78, {WS_GATE}", f"s_lshl_b32 s79, s{sQH}, 7", f"s_add_u32 s79, s79, {WS_GATE}"]
    ld = [f"buffer_load_dword v{vG[j][qs]}, v18, {sr(sWS,4)}, s{b} offen offset:{64*qs}{SC}" + (" ; grpend:ga" if j == 'H' and qs else "") for j, b in (('L', 78), ('H', 79)) for qs in range(2)]
    return v, sc, ld

sBAD = 70
sCA = 76
HP = 32
vLS = [11, 12]
def rowsum(j): return [f"v_accvgpr_read_b32 v{vLS[qs]}, a{SUM_[j]+4*qs}" for qs in range(2)]
def check(j):
    c = []
    for qs in range(2):
        c += [f"v_cmp_nle_f32 vcc, {hex(fbits(2.0**-40))}, v{vLS[qs]}"]
        c += [f"s_mov_b64 {sr(sBAD,2)}, vcc"] if (j == 'L' and qs == 0) else [f"s_or_b64 {sr(sBAD,2)}, {sr(sBAD,2)}, vcc"]
        c += [f"v_cmp_nge_f32 vcc, {hex(fbits(2.0**64))}, v{vLS[qs]}", f"s_or_b64 {sr(sBAD,2)}, {sr(sBAD,2)}, vcc"]
    return c
def ctx_off(sq, a):
    return [f"s_mul_i32 s{a}, s{sq}, {288*1024}", f"s_lshl_b32 s{a+1}, s{sH}, 13", f"s_add_u32 s{a}, s{a}, s{a+1}",
            f"s_add_u32 s{a}, s{a}, {WS_CTX}", f"s_add_u32 s{a+1}, s{a}, 4096"]
def scale_pack(j, store, inplace=False):
    c = []; A = c.append
    sc = [vT + 1, vT + 2]
    for qs in range(2): A(f"v_rcp_f32 v{sc[qs]}, v{vLS[qs]}")
    c += ctx_off(sQL if j == 'L' else sQH, sCA)
    for qs in range(2): A(f"v_mul_f32 v{sc[qs]}, v{sc[qs]}, v{vG[j][qs]}")
    prev = []
    for fr in range(8):
        a, qs = fr >> 1, fr & 1
        T = [O_[j] + (4*a + qs)*4, O_[j] + (4*a + 2 + qs)*4]; t = T[0] if (store or inplace) else HP + 4 * fr
        for b in T:
            for r in (0, 2): A(f"v_pk_mul_f32 {vr(b+r,2)}, {vr(b+r,2)}, {vr(sc[0],2)} op_sel:[0,{qs}] op_sel_hi:[1,{qs}]")
        for r in range(4): A(f"v_cvt_pk_bf16_f32 v{t+r}, v{T[r>>1]+2*(r&1)}, v{T[r>>1]+2*(r&1)+1}")
        if store: A(cstore(t, fr))
    return c
vCS = 30
def cstore(t, fr): return f"buffer_store_dwordx4 {vr(t,4)}, v{vCS}, {sr(sWS,4)}, s{sCA + fr//4} offen offset:{((fr>>1)&1)*2048 + (fr&1)*256}{SC}"
def h_stores(): return [cstore(HP + 4*fr, fr) + (" ; grpend:ca" if fr == 7 else "") for fr in range(8)]
def epilogue(early):
    c = ['s_nop 7'] + rowsum('H') + check('H')
    c.append("s_cbranch_scc1 K2_SLOW" if not os.environ.get("K2X") else "s_cbranch_execz K2_SLOW")
    c.append("K2_STORE:")
    return c + scale_pack('H', False)

def slow():
    c = ["K2_SLOW:", "s_waitcnt vmcnt(0)", f"s_lshl_b32 s{sKV+2}, s{sNST}, 15"]; A = c.append
    S = S_[0]; P = P_[0]; vM = [16, 17]; vX = 18
    def loads(base, extra):
        o = [f"s_lshl_b32 s{sT0}, s{sCNT}, 14", f"s_add_u32 s{sT0}, s{sT0}, {extra}", f"s_add_u32 s{sT1}, s{sT0}, 4096"]
        o += [f"buffer_load_dwordx4 {ar(base+4*i,4)}, v{vL16}, {sr(sKV,4)}, s{sT0 if i < 4 else sT1} offen offset:{(i%4)*1024}{SC}" for i in range(8)]
        return o
    def mask(sq):
        return [f"s_sub_u32 s{sDT}, s{sCNT}, s{sq}"] + flat(cm_ops()) + ["s_nop 1"]
    for j, sq in (('L', sQL), ('H', sQH)):
        for qs in range(2): A(f"v_mov_b32 v{vM[qs]}, {hex(BIG)}")
        A(f"s_mov_b32 s{sCNT}, 0")
        A(f"K2_SM{j}:")
        c += loads(K_, 0) + mask(sq); A("s_waitcnt vmcnt(0)")
        c += qk(j, 0, "cm"); A("s_nop 15")
        for r in range(16): A(f"v_max_f32 v{vM[r>>3]}, v{vM[r>>3]}, v{S+r}")
        A(f"s_add_u32 s{sCNT}, s{sCNT}, 1"); A(f"s_cmp_le_u32 s{sCNT}, s{sq}"); A(f"s_cbranch_scc1 K2_SM{j}")
        for qs in range(2):
            for op in ("v_permlane16_swap_b32", "v_permlane32_swap_b32"):
                A(f"v_mov_b32 v{vX}, v{vM[qs]}"); A("s_nop 1"); A(f"{op} v{vM[qs]}, v{vX}"); A(f"v_max_f32 v{vM[qs]}, v{vM[qs]}, v{vX}")
        for r in range(64): A(f"v_mov_b32 v{O_[j]+r}, 0")
        for r in range(8): A(f"v_accvgpr_write_b32 a{SUM_[j]+r}, 0")
        A(f"s_mov_b32 s{sCNT}, 0")
        A(f"K2_SP{j}:")
        c += loads(K_, 0) + loads(V_, 8192) + mask(sq); A("s_waitcnt vmcnt(0)")
        c += qk(j, 0, "cm"); A("s_nop 15")
        for r in range(16): A(f"v_sub_f32 v{S+r}, v{S+r}, v{vM[r>>3]}")
        for r in range(16): A(f"v_exp_f32 v{S+r}, v{S+r}")
        A("s_nop 0")
        for r in range(8): A(f"v_cvt_pk_bf16_f32 v{P+r}, v{S+2*r}, v{S+2*r+1}")
        A("s_nop 1")
        c += pv(j, 0)
        A(f"s_add_u32 s{sCNT}, s{sCNT}, 1"); A(f"s_cmp_le_u32 s{sCNT}, s{sq}"); A(f"s_cbranch_scc1 K2_SP{j}")
        A("s_nop 15")
        c += rowsum(j)
        if j == 'L': c += scale_pack('L', True)
    A("s_branch K2_STORE")
    return c

def gen(vLN, early, mark, mk=lambda n: []):
    cnt[0] = 0
    P = prologue(vLN)
    L, H = 'L', 'H'
    K = dict(prek=True, nextk=True)
    gv, gs_, gl = gate_parts(vLN)
    ld = early["ld"]; ev = gv + early["valu"]; s1 = gs_ + early["s1"]; s2 = early["s2"]
    assert len(s2) <= 17 and len(s1) <= 20
    WTS = int(os.environ.get('WTS', '3'))
    WOT = os.environ.get("WOT", "p2")
    EC = [int(x) for x in os.environ.get("EC", "18,25,38,48,52,56,60,64").split(",")]
    base = lambda st: sRK if st == 0 else sBS[st - 1]
    def dslot(j, w):
        it = d_items(w); prev = [('L',), ('H',)] + it
        d = dict(qi=it[j][:2], si=prev[j+1][0], pi=prev[j][0], n=j + 1, kre=None, vre=None, **K)
        if 1 <= j < 8: d["kre"] = it[j+1][3]
        if j == 2: d["kre"] = 0
        if j == 8: d["kre"] = 0
        if j == 1: d["kset"] = sM3
        if 2 <= j < 7: d["kset"] = base(it[j+2][2])
        if j == 2: d["kset"] = sT0
        if j == 1 or j >= 3: d["vre"] = it[j-1][3]; d["vset"] = base(it[j-1][2])
        d["extra"] = ev[(EC[j-1] if j else 0):(EC[j] if j < 8 else len(ev))]
        if j == 0: d.update(dma=23, sal=list(zip([7, 9, 11, 26, 30, 32], flat(ring3(sBS[0], sRK) + ring3(sBS[1], sBS[0])))))
        if j == 1: d.update(dma=2, sal=list(zip([2, 3, 5, 7, 9, 11, 16, 18], flat(ring3(sBS[2], sBS[1])) +
                        [f"s_cmp_eq_u32 s{sWAVE}, 0", f"s_cselect_b32 s{sM3}, s{sBS[0]}, s{sRK}", f"s_add_u32 s{sM3}, s{sM3}, 16384",
                         f"s_cmp_lt_u32 s{sWAVE}, 2", f"s_cselect_b32 s{sT0}, s{sBS[0]}, s{sBS[2]}"])))
        if j == 2: d.update(bar=True, bark=2, sal=list(zip([2, 3, 5, 7, 9, 11, 16, 18, 20, 22, 24, 26, 30], s1[:13])), rid=[[], []] + gl + [[], []])
        if j == 3: d.update(bar=True, bark=0, dma=1, sal=list(zip([5, 7, 9, 11, 18, 20, 22], s1[13:])))
        if j == 4: d.update(dma=2, rid=ld[0:4])
        if j == 3 and WTS == 3: d['sal'] += list(zip([12, 21, 29, 32], wt_store()))
        if j == 5: d.update(rid=ld[4:12], sal=list(zip([0, 1, 1, 1, 2, 3, 5, 7, 9, 11, 16, 18, 20, 22, 24, 26, 30], s2)))
        if j == 6: d.update(bar=True, bark=None, dma=1, rid=ld[12:15])
        if j == 7: d.update(dma=2, rid=ld[15:], kadv=True, sal=[(2, f"s_mov_b32 s{sRV}, s{sBS[2]}"), (15, f"s_mov_b32 s{sRK}, s{sBS[2]}")])
        if j == 8:
            d.update(bar=True, dma=1)
            if WTS == 8: d.update(sal=list(zip([12, 21, 29, 32], wt_store())))
            if WOT == "d8": d.update(sal=[(1, wt[0]), (12, wt[1]), (18, wt[2]), (20, wt[3]), (22, wt[4]), (29, wt[5]), (32, wt[6])])
        return d
    D0, _ = section([dslot(j, 0) for j in range(3)], "d0", None)
    DV = [section([dslot(j, w) for j in range(3, 8)], f"dv{w}", None)[0] for w in range(4)]
    D8, _ = section([dslot(8, 0)], "d8", None)
    def dual(loop): return [
        dict(qi=(L, False), si=H, pi=L, n=3, kre=None, vre=None, dma=21, **K),
        dict(qi=(H, False), si=L, pi=H, n=0, kre=1, vre=0, vadv=True, **K),
        dict(qi=(L, False), si=H, pi=L, n=1, kre=None, vre=None, kadv=True, dma=22, **K),
        dict(qi=(H, False), si=L, pi=H, n=2, kre=0, vre=1, bar=True, dma=1, dual=True, loop=loop, **K)]
    ct = [(8, "buffer_load_dword v23, v22, s[52:55], 0 offen")] if "4" in os.environ.get("RT", "") else []
    dd = dual(None) + dual("K2_DL"); dd[0]["sal"] = ct
    D_, _ = section(dd, "dual", None)
    def single(loop=None): return [
        dict(qi=(H, False), si=H, pi=H, n=0, kre=1, vre=1, kadv=True, dma=2, **K),
        dict(qi=(H, False), si=H, pi=H, n=1, kre=0, vre=0, bar=True, vadv=True, dma=1, loop=loop, **K)]
    ss = single() + single() + single() + single(loop="K2_SL"); ss[0]["sal"] = ct
    S_1, _ = section(ss, "single", None)
    E3, _ = section([dict(qi=None, si=H, pi=H, n=0, kre=None, vre=1), dict(qi=None, si=None, pi=H, n=1, kre=None, vre=None)], "drain", None)
    EP = epilogue(early); SL = slow()
    P = P + ["s_waitcnt lgkmcnt(0)"] + mk('a0')
    sel = [f"s_cmp_eq_u32 s{sWAVE}, 1", "s_cbranch_scc1 K2_V1", f"s_cmp_eq_u32 s{sWAVE}, 2", "s_cbranch_scc1 K2_V2", f"s_cmp_eq_u32 s{sWAVE}, 3", "s_cbranch_scc1 K2_V3"]
    lD = [f"s_sub_u32 s{sCNT}, s{sI}, 1", "s_cbranch_scc1 K2_B", ".p2align 4", "K2_DL:"]
    lB = ["K2_B:"] + mk('a1')
    LE = mk('a2') + ["s_waitcnt vmcnt(@gate:0:ga)", "s_nop 4"] + rowsum('L') + check('L') + scale_pack('L', True) + mk('a3')
    lS = mk('a4') + [f"s_sub_u32 s{sCNT}, 6, s{sI}", "s_cbranch_scc1 K2_E", ".p2align 4", "K2_SL:"]
    lE = ["K2_E:"] + mk('a5')
    traces = []
    for i in range(8):
        for w in ([0, 1, 2, 3] if i in (0, 7) else [i & 3]):
            tr = P + lD
            for _ in range(i): tr = tr + D_
            tr = tr + lB + D0 + sel + DV[w] + LE + D8 + lS
            for _ in range(7 - i): tr = tr + S_1
            traces.append(tr + lE + E3 + mark + EP)
    lg = resolve_lg(traces)
    fix = lambda code: [f"s_waitcnt lgkmcnt({lg[x]})" if x.startswith("LG") else x for x in code]
    traces = [fix(t) for t in traces]
    k = [i for i, x in enumerate(EP) if x == "K2_STORE:"][0]
    slowtraces = [t[:len(t) - len(EP)] + EP[:k] + SL + EP[k:] for t in (traces[5], traces[-1])]
    code = P + lD + D_ + lB + D0 + sel + DV[0] + ["K2_J:"] + LE + D8 + lS + S_1 + lE + E3 + mark + EP
    out = []
    for w in range(1, 4): out += [f"K2_V{w}:"] + DV[w] + ["s_branch K2_J"]
    return fix(code), fix(out) + SL, traces + slowtraces
```

```python
from asmlib import *
from layout import *
import os
BIG = fbits(-1.0e30)
def flat(l):
    o = []
    for x in l: o += [x] if isinstance(x, str) else x
    return o
SC = " sc1"
O_ = 64; S_ = [192, 208]; P_ = [224, 232]; WF = [16, 24]
vL16 = 3
vVA, vG, vL16b, vTR, vWD, vLN = 240, [241, 242], 243, [244, 245], [246, 247, 248, 249], 250
T0_, T1_, T2_, T3_, T4_ = 251, 252, 253, 254, 255
ACC = 0; CX = 64; Q_ = 128; KB = [160 + 4*b for b in range(4)]; VB = [176 + 8*b for b in range(4)]
sWS, sW, sDBG, sOUT = 8, 12, 40, 44
sWAVE, sH, sQB = 16, 17, 18
sRT, sCT = 17, 18
sCNT, sKK, sKV, sT0, sT1, sC0, sWO, sLW, sCB, sWC = range(19, 29)
sM, sWB, sWA = 30, 32, 34
sZ0, sZ1 = 36, 37
sC1, sW1 = 38, 39
STG = int(os.environ.get('STG', '0'))
CT4 = [int(x) for x in os.environ.get('CT4', '').split(',') if x]
CTOUCH = 'buffer_load_dword v13, v30, s[52:55], 0 offen'
RED = 65536
PD = int(os.environ.get("PD", "4"))
PE = int(os.environ.get("PE", "8"))

def b_qk(j, kb, sb): return f"v_mfma_f32_32x32x16_bf16 {vr(S_[sb],16)}, {ar(KB[kb],4)}, {ar(Q_+4*j,4)}, 0"
def b_pv(j, vb, pb, f, first=False):
    d = vr(O_ + 16*j, 16)
    return f"v_mfma_f32_32x32x16_bf16 {d}, {ar(VB[vb]+4*f,4)}, {vr(P_[pb]+4*f,4)}, {'0' if first and f == 0 else d}"
def b_kload(b): return [f"buffer_load_dwordx4 {ar(KB[b],4)}, v{vL16}, {sr(sWS,4)}, s{sKK} offen{SC} ; grpend:k{b}", f"s_add_u32 s{sKK}, s{sKK}, 2048"]
def b_vload(b):
    return [f"s_mov_b64 exec, {sr(sM,2)}"] + [f"buffer_load_dwordx4 {ar(VB[b]+4*f,4)}, v{vVA}, {sr(sWS,4)}, s{sKV} offen offset:{1024 + 512*f}{SC}" + (f" ; grpend:v{b}" if f else "") for f in range(2)] + \
           ["s_mov_b64 exec, -1", f"s_add_u32 s{sKV}, s{sKV}, 2048"]
def wreg(s, mt): return ar(208 + 8*s + 4*mt, 4) if s < 6 else vr(16 + 8*(s - 6) + 4*mt, 4)
def o_mf(s, i):
    qt, mt = i >> 1, i & 1
    d = ar(ACC + (mt*2+qt)*16, 16)
    return f"v_mfma_f32_32x32x16_bf16 {d}, {wreg(s, mt)}, {ar(CX+8*s+4*qt,4)}, {d}"
def o_ctx(s, qt): return f"buffer_load_dwordx4 {ar(CX+8*s+4*qt,4)}, v{vL16b if qt else vL16}, {sr(sWS,4)}, s{sC0} offen offset:{(s%4)*1024}{SC}" + (" ; grpend:o" if qt else "")
def o_w(s, mt): return f"buffer_load_dwordx4 {wreg(s, mt)}, v{vL16}, {sr(sWS,4)}, s{sW1} offen offset:{(s&1)*2048 + mt*1024}{SC}"
def o_post(s): return ([f"s_add_u32 s{sW1}, s{sW1}, 4096"] if s & 1 else []) + ([f"s_add_u32 s{sC0}, s{sC0}, 4096"] if s % 4 == 3 else [])
def wb_dma():
    o = []
    for s in range(8):
        for i in range(2):
            k = (s & 1) * 2 + i
            pre = [f"s_add_u32 m0, s{sLW}, {s*2048}", f"s_add_u32 s{sWO}, s{sWO}, 32768"] if k == 0 else []
            o.append(pre + [f"buffer_load_dwordx4 v{vWD[k]}, {sr(sW,4)}, s{sWO} offen offset:{k*1024} lds" + (" ; grpend:wb" if s == 7 and i else "")])
    return o
def w0only(code, lbl): return [f"s_cmp_lg_u32 s{sWAVE}, 0", f"s_cbranch_scc1 {lbl}"] + code + [f"{lbl}:"]
def flag_store(base):
    return [f"s_lshl_b32 s{sZ0}, s{sQB}, 7", f"s_lshl_b32 s{sZ1}, s{sH}, 2", f"s_add_u32 s{sZ0}, s{sZ0}, s{sZ1}", f"s_add_u32 s{sZ0}, s{sZ0}, {base}",
            f"v_mov_b32 v{T1_}, 1", "s_mov_b64 exec, 1", f"buffer_store_dword v{T1_}, off, {sr(sWS,4)}, s{sZ0}{SC}", "s_mov_b64 exec, -1"]
def flag_load(): return f"buffer_load_dword v{T1_}, v{T2_}, {sr(sWS,4)}, s{sZ0} offen{SC} ; grpend:fl"
def flag_lane(): return [f"v_and_b32 v{T2_}, 31, v{vLN}", f"v_lshlrev_b32 v{T2_}, 2, v{T2_}"]
def spin(lbl):
    return [f"s_mov_b32 s{sZ1}, 0x100000", f"s_waitcnt vmcnt(@{lbl}:0:fl)", f"{lbl}L:", f"v_cmp_ne_u32 vcc, 1, v{T1_}", "s_nop 0", f"s_cbranch_vccz {lbl}",
            "s_sleep 4", flag_load(), "s_waitcnt vmcnt(0)", f"s_sub_u32 s{sZ1}, s{sZ1}, 1", f"s_cmp_lg_u32 s{sZ1}, 0", f"s_cbranch_scc1 {lbl}L"]

def smseq(n):
    S = S_[n & 1]; P = P_[n & 1]
    e = lambda r: f"v_exp_f32 v{S+r}, v{S+r}"
    c = lambda k: f"v_cvt_pk_bf16_f32 v{P+k}, v{S+2*k}, v{S+2*k+1}"
    return [e(0), e(1), e(2), c(0), e(3), e(4), c(1), e(5), e(6), c(2), e(7), e(8), c(3), e(9), e(10), c(4), e(11), e(12), c(5), e(13), e(14), e(15), c(6), c(7)]

def red_writes(j):
    return [f"ds_write_b128 v{T0_}, {vr(O_+16*j+4*k,4)} offset:{j*2048 + k*1024}" for k in range(2)] + [f"ds_write_b32 v{T3_}, v{O_+16*j+8} offset:{j*512}"]
def body(fused, tag, extra=None, first=False, last=False):
    o = []
    for n in range(32):
        qn = (n + 1) % 32; pn = (n - 1) % 32
        QK = [b_qk(qn % 8, qn // 8, (n + 1) & 1)]; PV = [[b_pv(pn % 8, pn // 8, (n + 1) & 1, f, first and pn < 8)] for f in range(2)]
        if first and n == 0: PV = [[], []]
        if last and n == 31: QK = []
        xq = []; xp = []
        if n % 8 == 6 and not last: xq = b_kload(n // 8)
        if n % 8 == 0 and not (first and n == 0) and not (last and n > 0): xp = b_vload((n // 8 - 1) % 4)
        if n % 8 == 6 and not (last and n == 30): xp = xp + [f"s_waitcnt vmcnt(@{tag}{n}:0:k{(n // 8 + 1) % 4})"]
        if n % 8 == 1: xq = xq + [f"s_waitcnt vmcnt(@{tag}{n}:0:v{n // 8})"]
        q = smseq(n)
        ex = (extra or {}).get(n, [[], [], []])
        o += QK + xq + ex[0] + q[:8] + PV[0] + ex[1] + q[8:16] + PV[1] + xp + ex[2] + q[16:]
    return o

NS = int(os.environ.get("NS", "56"))
def fused_all(wb):
    o = []; NSL = 96
    oms = [(k, i) for k in range(NS) for i in range(4)]
    q_mem = []
    issued = PD
    done = (-1, 3); om = 0
    totg = min(NS + PE, 64)
    lastmem = False
    for n in range(NSL):
        it = 32 + n; nn = it % 32; last = it >= 96
        qn = (nn + 1) % 32; pn = (nn - 1) % 32
        QK = b_qk(qn % 8, qn // 8, (nn + 1) & 1) if n < NSL - 1 else None
        PV = [b_pv(pn % 8, pn // 8, (nn + 1) & 1, f) for f in range(2)]
        xq = []; xp = []
        if nn % 8 == 6 and not last: xq = b_kload(nn // 8)
        if nn % 8 == 0 and not (last and nn > 0): xp = b_vload((nn // 8 - 1) % 4)
        if nn % 8 == 6 and not (last and nn == 30): xp = xp + [f"s_waitcnt vmcnt(@u{n}:0:k{(nn // 8 + 1) % 4})"]
        if nn % 8 == 1: xq = xq + [f"s_waitcnt vmcnt(@u{n}:0:v{nn // 8})"]
        if wb and n % 4 == 3: xq = wb.pop(0) + xq
        if n in CT4: xq = [CTOUCH.replace('v30', 'v12')] + xq
        cnt = (len(oms) * (n + 1)) // NSL - om
        mine = oms[om:om + cnt]; om += cnt
        M = [("q", QK)] + [("o", x) for x in mine[:1]] + [("p", PV[0])] + [("o", x) for x in mine[1:2]] + [("P", PV[1])] + [("o", x) for x in mine[2:]]
        q = smseq(nn); G = len(M)
        cum = []; t = 0
        for x in q: t += vcost(x); cum.append(t)
        cuts = [0] + [min(range(len(q) + 1), key=lambda j: abs((cum[j-1] if j else 0) - t * (g + 1) / G)) for g in range(G - 1)] + [len(q)]
        rw = red_writes(nn - 26) if last and nn >= 26 else []
        for g, (kind, x) in enumerate(M):
            sh = []
            if kind == "o":
                k, i = x; o.append(o_mf(k % 8, i)); done = x
                if i == 0:
                    want = min(totg, PD + ((totg - PD) * (k + 1) + NS - 1) // NS)
                    while issued < want:
                        p = issued % 8; w = issued - 8
                        q_mem += [([o_ctx(p, 0)], (w, 1)), ([o_w(p, 0)], (w, 2)), ([o_w(p, 1)], (w, 3)), ([o_ctx(p, 1)], (w, 3))] + [([y], None) for y in o_post(p)]
                        issued += 1
            elif x: o.append(x)
            if kind == "q": sh += xq
            if rw and g >= 2: sh.append(rw.pop(0))
            if kind == "P": sh += xp
            nxt = M[g + 1] if g + 1 < G else None
            if nxt and nxt[0] == "o" and nxt[1][1] == 0:
                k = nxt[1][0]
                ended = issued - sum(1 for y in q_mem if "grpend:o" in y[0][0])
                sh.append(f"s_waitcnt vmcnt(@uo{k}:{ended - (k + 1)}:o)")
            elif not sh and q_mem and (q_mem[0][1] is None or q_mem[0][1] <= done):
                ismem = q_mem[0][0][0].startswith("buffer")
                if not (ismem and lastmem and len(q_mem) < 5): sh += q_mem.pop(0)[0]
            lastmem = any(y.startswith("buffer") for y in sh)
            o += sh + q[cuts[g]:cuts[g+1]]
        assert not rw
    for y in q_mem: o += y[0]
    return o
def early():
    c = []; A = c.append
    A(f"v_and_b32 v{vLN}, 63, v0")
    A(f"v_and_b32 v{T0_}, 15, v{vLN}"); A(f"v_lshrrev_b32 v{T1_}, 5, v{vLN}"); A(f"v_lshl_add_u32 v{T0_}, v{T1_}, 4, v{T0_}"); A(f"v_lshlrev_b32 v{vVA}, 4, v{T0_}")
    A(f"v_and_b32 v{T2_}, 27, v{vLN}"); A(f"v_cmp_eq_u32 vcc, 16, v{T2_}"); A(f"v_and_b32 v{T2_}, 31, v{vLN}"); A(f"v_mov_b32 v{T1_}, 0x3f803f80")
    A(f"v_lshlrev_b32 v{T2_}, 2, v{T2_}"); A(f"v_cndmask_b32 v{T1_}, 0, v{T1_}, vcc")
    for r in range(32): A(f"v_accvgpr_write_b32 a{VB[0]+r}, v{T1_}")
    A(f"v_add_u32 v{vL16b}, {288*1024}, v{vL16}")
    A(f"v_lshrrev_b32 v{T3_}, 3, v{vLN}"); A(f"v_and_b32 v{T4_}, 7, v{vLN}"); A(f"v_bfe_u32 v{vWD[1]}, v{vLN}, 4, 1"); A(f"v_lshlrev_b32 v{vWD[1]}, 2, v{vWD[1]}"); A(f"v_xor_b32 v{T4_}, v{T4_}, v{vWD[1]}")
    A(f"v_lshlrev_b32 v{T4_}, 4, v{T4_}"); A(f"v_lshl_add_u32 v{vWD[0]}, v{T3_}, 10, v{T4_}")
    for k in range(1, 4): A(f"v_add_u32 v{vWD[k]}, {k*7168}, v{vWD[0]}")
    A(f"v_lshrrev_b32 v{T3_}, 5, v{vLN}"); A(f"v_bfe_u32 v{T4_}, v{vLN}, 2, 2"); A(f"v_lshl_add_u32 v{T3_}, v{T3_}, 3, v{T4_}"); A(f"v_lshlrev_b32 v{T3_}, 7, v{T3_}")
    A(f"v_bfe_u32 v{T4_}, v{vLN}, 3, 1"); A(f"v_lshl_add_u32 v{T3_}, v{T4_}, 6, v{T3_}")
    A(f"v_bfe_u32 v{T4_}, v{vLN}, 4, 1"); A(f"v_lshl_add_u32 v{T3_}, v{T4_}, 5, v{T3_}")
    A(f"v_and_b32 v{T4_}, 3, v{vLN}"); A(f"v_lshl_add_u32 v{T3_}, v{T4_}, 3, v{T3_}")
    A(f"v_lshrrev_b32 v{T4_}, 6, v0"); A(f"v_lshl_add_u32 v{vTR[0]}, v{T4_}, 14, v{T3_}"); A(f"v_xor_b32 v{vTR[1]}, 64, v{vTR[0]}")
    cuts = [int(x) for x in os.environ.get("ECUT", "12,18,24,30").split(",")]
    parts = [c[:cuts[0]], c[cuts[0]:cuts[1]], c[cuts[1]:cuts[2]], c[cuts[2]:cuts[3]]]
    valu = c
    c = []; A = c.append
    A(f"s_mov_b64 {sr(sWB,2)}, s[48:49]")
    A(f"s_lshl_b32 s{sLW}, s{sWAVE}, 14")
    A(f"s_mul_i32 s{sCB}, s{sRT}, {2*288*1024}"); A(f"s_add_u32 s{sCB}, s{sCB}, {WS_CTX}")
    A(f"s_lshl_b32 s{sC0}, s{sWAVE}, 16"); A(f"s_add_u32 s{sC0}, s{sC0}, s{sCB}")
    A(f"s_lshl_b32 s{sW1}, s{sCT}, 19"); A(f"s_lshl_b32 s{sWO}, s{sWAVE}, 17"); A(f"s_add_u32 s{sW1}, s{sW1}, s{sWO}")
    A(f"s_lshl_b32 s{sWC}, s{sCT}, 7"); A(f"s_sub_u32 s{sWC}, s{sWC}, 32768"); A(f"s_add_u32 s{sWO}, s{sWO}, s{sWC}")
    assert WS_WT == 0
    A(f"s_add_u32 s{sKK}, s{sZ0}, 8192"); A(f"s_mov_b32 s{sKV}, s{sKK}")
    scal2 = c
    c = []; A = c.append
    A(f"s_mov_b32 s{sM}, 0xffff"); A(f"s_mov_b32 s{sM+1}, 0xffff")
    A(f"s_lshl_b32 s{sZ0}, s{sH}, 17")
    A(f"s_lshl_b32 s{sT0}, s{sWAVE}, 15"); A(f"s_add_u32 s{sZ0}, s{sZ0}, s{sT0}"); A(f"s_add_u32 s{sZ0}, s{sZ0}, {WS_KVB}"); A(f"s_add_u32 s{sZ1}, s{sZ0}, 4096")
    A(f"s_lshl_b32 s{sT0}, s{sQB}, 10"); A(f"s_lshl_b32 s{sT1}, s{sWAVE}, 8"); A(f"s_add_u32 s{sT0}, s{sT0}, s{sT1}"); A(f"s_add_u32 s{sCNT}, s{sT0}, {WS_GATE}")
    A(f"s_lshl_b32 s{sT0}, s{sH}, 16"); A(f"s_lshl_b32 s{sT1}, s{sQB}, 13"); A(f"s_add_u32 s{sT0}, s{sT0}, s{sT1}"); A(f"s_add_u32 s{sT0}, s{sT0}, {WS_QB}")
    A(f"s_add_u32 s{sT1}, s{sT0}, 4096")
    scal = c
    ld = [f"buffer_load_dwordx4 {ar(Q_+4*j,4)}, v{vL16}, {sr(sWS,4)}, s{sT0 if j < 4 else sT1} offen offset:{(j%4)*1024}{SC}" for j in range(8)]
    kl = lambda b: f"buffer_load_dwordx4 {ar(KB[b],4)}, v{vL16}, {sr(sWS,4)}, s{sZ0 if b < 2 else sZ1} offen offset:{(b&1)*2048}{SC} ; grpend:k{b}"
    vl = lambda b: [f"s_mov_b64 exec, {sr(sM,2)}"] + [f"buffer_load_dwordx4 {ar(VB[b]+4*f,4)}, v{vVA}, {sr(sWS,4)}, s{sZ0 if b < 2 else sZ1} offen offset:{(b&1)*2048 + 1024 + 512*f}{SC}" + (f" ; grpend:v{b}" if f else "") for f in range(2)] + ["s_mov_b64 exec, -1"]
    for b in range(4): ld += [kl(b), vl(b)]
    ld += [f"buffer_load_dword v{vG[k]}, v{T2_}, {sr(sWS,4)}, s{sCNT} offen offset:{128*k}{SC}" for k in range(2)]
    return dict(valu=valu, s1=scal, s2=scal2, ld=ld)
def o_setup():
    return [f"s_mov_b64 {sr(sW,2)}, {sr(sWB,2)}", f"s_mov_b32 s{sW+2}, {MB//2}"]
R = 64
MK = [lambda n: []]
sCS = 29
def red_addr():
    return [f"s_add_u32 s{sT0}, s{sLW}, {RED}", f"v_add_u32 v{T0_}, s{sT0}, v{vL16}",
            f"v_and_b32 v{T4_}, 0x1f0, v{vL16}", f"v_lshrrev_b32 v{T1_}, 5, v{vLN}", f"v_lshl_add_u32 v{T1_}, v{T1_}, 10, v{T4_}",
            f"s_lshl_b32 s{sT0}, s{sWAVE}, 12", f"s_add_u32 s{sT0}, s{sT0}, {RED}", f"v_add_u32 v{T1_}, s{sT0}, v{T1_}",
            f"s_lshl_b32 s{sT0}, s{sWAVE}, 2", f"s_add_u32 s{sT0}, s{sT0}, 131072", f"v_add_u32 v{T3_}, s{sT0}, v{T4_}",
            f"s_lshl_b32 s{sT0}, s{sWAVE}, 10", f"s_add_u32 s{sT0}, s{sT0}, 131072", f"v_add_u32 v{T2_}, s{sT0}, v{T4_}",
            f"v_sub_f32 v{vG[0]}, 1.0, v{vG[0]}", f"v_sub_f32 v{vG[1]}, 1.0, v{vG[1]}",
            f"s_lshl_b32 s{sCS}, s{sQB}, 2", f"s_add_u32 s{sCS}, s{sCS}, s{sWAVE}", f"s_mul_i32 s{sCS}, s{sCS}, {2*288*1024}",
            f"s_lshl_b32 s{sT1}, s{sH}, 10", f"s_add_u32 s{sCS}, s{sCS}, s{sT1}", f"s_add_u32 s{sCS}, s{sCS}, {WS_CTX + 256*1024}"]
RB = [192, 32]
LB = 4
def b_scale_store(k, tag=""):
    b = RB[k]; l = LB + 4*k
    c = [f"v_pk_mul_f32 {vr(b+r,2)}, {vr(b+r,2)}, {vr(l+2,2)} op_sel_hi:[1,0]" for r in range(0, 8, 2)]
    c += [f"v_cvt_pk_bf16_f32 v{b+8+r}, v{b+2*r}, v{b+2*r+1}" for r in range(4)]
    return c + [f"buffer_store_dwordx4 {vr(b+8,4)}, v{vL16b if k else vL16}, {sr(sWS,4)}, s{sCS} offen{SC}" + tag]
def b_finish():
    c = []; A = c.append
    A("s_nop 0"); A(b_pv(7, 3, 1, 0)); A(b_pv(7, 3, 1, 1))
    A("s_nop 3")
    c += red_writes(6)
    A("s_nop 4")
    c += red_writes(7)
    A("s_waitcnt vmcnt(@p4w:0:wb) lgkmcnt(0)"); c += MK[0]("t1"); A("s_barrier"); c += MK[0]("t2")
    for k in range(2): A(f"ds_read_b128 {vr(LB+4*k,4)}, v{T2_} offset:{k*512}")
    for k in range(2):
        for w in range(4):
            for hh in range(2): A(f"ds_read_b128 {vr(RB[k]+8*w+4*hh,4)}, v{T1_} offset:{w*16384 + k*2048 + hh*512}")
    A("s_waitcnt lgkmcnt(15)")
    for k in range(2): A(f"v_pk_add_f32 {vr(LB+4*k,2)}, {vr(LB+4*k,2)}, {vr(LB+4*k+2,2)}")
    for k in range(2): A(f"v_add_f32 v{LB+4*k}, v{LB+4*k}, v{LB+4*k+1}")
    for k in range(2): A(f"v_rcp_f32 v{LB+4*k+2}, v{LB+4*k}")
    A("s_nop 0")
    for k in range(2): A(f"v_mul_f32 v{LB+4*k+2}, v{LB+4*k+2}, v{vG[k]}")
    for k in range(2):
        b = RB[k]
        A(f"s_waitcnt lgkmcnt({12 - 8*k})")
        for r in range(0, 8, 2): A(f"v_pk_add_f32 {vr(b+r,2)}, {vr(b+r,2)}, {vr(b+8+r,2)}")
        A(f"s_waitcnt lgkmcnt({8 - 8*k})")
        for r in range(0, 8, 2): A(f"v_pk_add_f32 {vr(b+16+r,2)}, {vr(b+16+r,2)}, {vr(b+24+r,2)}")
        for r in range(0, 8, 2): A(f"v_pk_add_f32 {vr(b+r,2)}, {vr(b+r,2)}, {vr(b+16+r,2)}")
        c += b_scale_store(k, " ; grpend:cb" if k else "")
    for k in range(2):
        A(f"v_cmp_nle_f32 vcc, {hex(fbits(2.0**-40))}, v{LB+4*k}"); A("s_mov_b64 s[70:71], vcc" if k == 0 else "s_or_b64 s[70:71], s[70:71], vcc")
        A(f"v_cmp_nge_f32 vcc, {hex(fbits(2.0**64))}, v{LB+4*k}"); A("s_or_b64 s[70:71], s[70:71], vcc")
    A("s_cbranch_scc1 P4_SLOW")
    return c
def b_store(): return ["P4_STORE:"]
def wb_trs(): return [f"ds_read_b64_tr_b16 {vr(64+4*k+2*e,2)}, v{vTR[0]} offset:{(k>>3)*16384 + (k&7)*2048 + e*512}" for k in range(32) for e in range(2)]
def last8(sig, pl, SG, PL):
    c = []; A = c.append
    fp = final_pre(); wr = [x for x in fp if x.startswith("ds_write")]; sa = [x for x in fp[:-1] if not x.startswith("ds_write")]
    c += ["s_waitcnt vmcnt(@l8:0:o)"]
    trs = wb_trs()
    n = 0
    for t in range(4):
        mt, qt = t >> 1, t & 1; d = ar(ACC + t*16, 16)
        for s in range(8):
            if n == SG: c += sig
            if n == PL: c += pl
            A(f"v_mfma_f32_32x32x16_bf16 {d}, {wreg(s, mt)}, {ar(CX+8*s+4*qt,4)}, {d}")
            if n >= 4: c += trs[:3]; trs = trs[3:]
            if t == 0: c += sa[3*s:3*s+3]
            if t and s >= 4: A(wr[(t-1)*4 + s - 4])
            elif t and s < 4 and not trs: A("s_nop 2")
            n += 1
    assert len(sa) <= 24 and not trs
    c += ["s_nop 11"] + wr[12:] + fp[-1:]
    return c
def final_pre():
    c = []; A = c.append
    A(f"s_add_u32 s{sT0}, s{sLW}, {RED}"); A(f"v_add_u32 v{T0_}, s{sT0}, v{vL16}")
    A(f"s_lshl_b32 s{sT0}, s{sWAVE}, 12"); A(f"s_add_u32 s{sT0}, s{sT0}, {RED}"); A(f"v_add_u32 v{T3_}, s{sT0}, v{vL16}")
    A(f"v_subrev_u32 v{vTR[0]}, s{sLW}, v{vTR[0]}"); A(f"s_lshr_b32 s{sT0}, s{sWAVE}, 1"); A(f"s_lshl_b32 s{sT0}, s{sT0}, 6"); A(f"v_xor_b32 v{vTR[0]}, s{sT0}, v{vTR[0]}")
    A(f"s_and_b32 s{sT0}, s{sWAVE}, 1"); A(f"s_lshl_b32 s{sT0}, s{sT0}, 13"); A(f"s_add_u32 s{sT0}, s{sT0}, {RED}"); A(f"v_add_u32 v{vTR[1]}, s{sT0}, v{vL16}")
    A(f"v_add_u32 v{T4_}, 65536, v{vTR[1]}")
    A(f"s_lshr_b32 s{sT0}, s{sWAVE}, 1"); A(f"s_mul_i32 s{sT0}, s{sT0}, {288*1024}"); A(f"s_add_u32 s{sC0}, s{sCB}, s{sT0}")
    A(f"s_and_b32 s{sT0}, s{sWAVE}, 1"); A(f"s_lshl_b32 s{sT0}, s{sT0}, 12"); A(f"s_add_u32 s{sC0}, s{sC0}, s{sT0}"); A(f"s_add_u32 s{sC0}, s{sC0}, {256*1024}")
    A(f"s_lshr_b32 s{sLW}, s{sLW}, 2")
    for k in range(16): A(f"ds_write_b128 v{T0_}, {ar(ACC+4*k,4)} offset:{k*1024}")
    A("s_waitcnt lgkmcnt(0)")
    return c
def final():
    c = []; A = c.append
    WB_ = 64
    def dma(st):
        o = [f"s_add_u32 m0, s{sLW}, {(131072 if st < 2 else RED) + (st & 1)*16384}", f"s_add_u32 s{sT1}, s{sC0}, {st*8192}"]
        return o + [f"buffer_load_dwordx4 v{vL16}, {sr(sWS,4)}, s{sT1} offen offset:{i*1024}{SC} lds" + (" ; grpend:cf" if i == 3 else "") for i in range(4)]
    rb = [192, 208, 224, 32]
    rds = [f"ds_read_b128 {vr(rb[w]+4*k,4)}, v{T3_} offset:{w*16384 + k*1024}" for w in range(4) for k in range(4)]
    for x in dma(0) + dma(1):
        A(x)
        if x.startswith("buffer"): c += rds[:3]; rds = rds[3:]
    A("s_waitcnt lgkmcnt(0)"); A("s_barrier"); c += MK[0]("f1")
    v = []
    for r in range(0, 16, 2):
        v += [f"v_pk_add_f32 {vr(rb[0]+r,2)}, {vr(rb[0]+r,2)}, {vr(rb[1]+r,2)}", f"v_pk_add_f32 {vr(rb[2]+r,2)}, {vr(rb[2]+r,2)}, {vr(rb[3]+r,2)}"]
    v += [f"v_pk_add_f32 {vr(rb[0]+r,2)}, {vr(rb[0]+r,2)}, {vr(rb[2]+r,2)}" for r in range(0, 16, 2)]
    for x in dma(2) + dma(3):
        A(x)
        if x.startswith("buffer"): c += v[:3]; v = v[3:]
    ad = [f"v_and_b32 v{T2_}, 31, v{vLN}", f"v_lshlrev_b32 v{T2_}, 10, v{T2_}", f"v_lshrrev_b32 v{T0_}, 5, v{vLN}", f"v_lshl_add_u32 v{T2_}, v{T0_}, 4, v{T2_}",
          f"s_lshl_b32 s{sT0}, s{sRT}, 16", f"s_and_b32 s{sT1}, s{sWAVE}, 1", f"s_lshl_b32 s{sT1}, s{sT1}, 15", f"s_add_u32 s{sT0}, s{sT0}, s{sT1}",
          f"s_lshl_b32 s{sT1}, s{sCT}, 7", f"s_add_u32 s{sT0}, s{sT0}, s{sT1}",
          f"s_lshr_b32 s{sT1}, s{sWAVE}, 1", f"s_lshl_b32 s{sT1}, s{sT1}, 6", f"s_add_u32 s{sT0}, s{sT0}, s{sT1}"]
    d = vr(rb[0], 16)
    rd = lambda k: f"ds_read_b128 {ar(64+4*k,4)}, v{T4_ if k < 16 else vTR[1]} offset:{((k>>3)&1)*16384 + (k&7)*1024}"
    mf = lambda k: f"v_mfma_f32_32x32x16_bf16 {d}, {vr(WB_+4*k,4)}, {ar(64+4*k,4)}, {d}"
    c += MK[0]("f2")
    A("s_waitcnt vmcnt(@p5a:2:cf)"); A("s_barrier"); c += MK[0]("f3")
    c += [rd(k) for k in range(12)]
    for k in range(32):
        if k in (10, 18):
            A(f"s_waitcnt vmcnt(@p5b{k}:{1 if k == 10 else 0}:cf)"); A("s_barrier")
            if k == 18: c += MK[0]("f4")
        if k in (0, 2): A(f"s_waitcnt lgkmcnt({10 if k == 0 else 8})")
        if k in (8, 16, 24): A("s_waitcnt lgkmcnt(0)")
        A(mf(k))
        if k < 2: c += [rd(12 + 2*k), rd(13 + 2*k)]
        if 10 <= k < 14: c += [rd(16 + 2*(k - 10)), rd(17 + 2*(k - 10))]
        if 18 <= k < 22: c += [rd(24 + 2*(k - 18)), rd(25 + 2*(k - 18))]
        if 24 <= k < 29: c += ad[3*(k-24):3*(k-24)+3]
    A("s_nop 11"); c += MK[0]("f5")
    for r in range(8): A(f"v_cvt_pk_bf16_f32 v{32+r}, v{rb[0]+2*r}, v{rb[0]+2*r+1}")
    A("s_nop 0")
    for pr in range(2):
        b = 32 + 4 * pr
        A(f"v_permlane32_swap_b32 v{b}, v{b+2}"); A(f"v_permlane32_swap_b32 v{b+1}, v{b+3}")
        A(f"buffer_store_dwordx4 {vr(b,4)}, v{T2_}, {sr(sOUT,4)}, s{sT0} offen offset:{32*pr}")
    return c
def b_slow():
    c = ["P4_SLOW:"]; A = c.append
    S = S_[1]; P = P_[0]; vM = T0_; QS = 176; OA = 160
    strip = lambda x: x.split(" ;")[0]
    for k in range(2):
        b = RB[k]
        A(f"s_lshl_b32 s{sT0}, s{sH}, 16"); A(f"s_lshl_b32 s{sT1}, s{sQB}, 13"); A(f"s_add_u32 s{sT0}, s{sT0}, s{sT1}")
        A(f"s_lshl_b32 s{sT1}, s{sWAVE}, 11"); A(f"s_add_u32 s{sT0}, s{sT0}, s{sT1}"); A(f"s_add_u32 s{sT0}, s{sT0}, {WS_QB + 1024*k}")
        A("s_waitcnt vmcnt(0)")
        A(f"buffer_load_dwordx4 {vr(QS,4)}, v{vL16}, {sr(sWS,4)}, s{sT0} offen{SC}")
        A(f"v_mov_b32 v{vM}, {hex(BIG)}")
        for ps in range(2):
            A(f"s_lshl_b32 s{sKK}, s{sH}, 17"); A(f"s_add_u32 s{sKK}, s{sKK}, {WS_KVB}"); A(f"s_mov_b32 s{sKV}, s{sKK}"); A(f"s_mov_b32 s{sCNT}, 64")
            if ps == 1:
                for r in range(16): A(f"v_mov_b32 v{OA+r}, 0")
            A(f"P4_S{k}{ps}:")
            c += [strip(x) for x in b_kload(0)]
            if ps == 1: c += [strip(x) for x in b_vload(0)]
            A("s_waitcnt vmcnt(0)")
            A(f"v_mfma_f32_32x32x16_bf16 {vr(S,16)}, {ar(KB[0],4)}, {vr(QS,4)}, 0"); A("s_nop 15")
            if ps == 0:
                for r in range(16): A(f"v_max_f32 v{vM}, v{vM}, v{S+r}")
            else:
                for r in range(16): A(f"v_sub_f32 v{S+r}, v{S+r}, v{vM}")
                for r in range(16): A(f"v_exp_f32 v{S+r}, v{S+r}")
                A("s_nop 0")
                for r in range(8): A(f"v_cvt_pk_bf16_f32 v{P+r}, v{S+2*r}, v{S+2*r+1}")
                A("s_nop 1")
                for f in range(2): A(f"v_mfma_f32_32x32x16_bf16 {vr(OA,16)}, {ar(VB[0]+4*f,4)}, {vr(P+4*f,4)}, {vr(OA,16)}")
                A("s_nop 7")
            A(f"s_sub_u32 s{sCNT}, s{sCNT}, 1"); A(f"s_cmp_lg_u32 s{sCNT}, 0"); A(f"s_cbranch_scc1 P4_S{k}{ps}")
            if ps == 0:
                A(f"v_mov_b32 v{vM+1}, v{vM}"); A("s_nop 1"); A(f"v_permlane32_swap_b32 v{vM}, v{vM+1}"); A(f"v_max_f32 v{vM}, v{vM}, v{vM+1}")
        A("s_nop 7")
        for r in range(8): A(f"v_mov_b32 v{b+r}, v{OA+r}")
        A(f"v_rcp_f32 v{LB+4*k+2}, v{OA+8}"); A("s_nop 0"); A(f"v_mul_f32 v{LB+4*k+2}, v{LB+4*k+2}, v{vG[k]}")
        for r in range(4): A(f"v_permlane32_swap_b32 v{b+r}, v{b+4+r}")
        c += b_scale_store(k, " ; grpend:cb" if k else "")
    A("s_branch P4_STORE")
    return c

def gen(hst, mark_a, mark_b, mark_c, mark_d):
    SIG, PL, CHK = [int(x) for x in os.environ.get("P4T", "10,17,21").split(",")]
    c = []; A = c.append
    A("s_waitcnt vmcnt(@p4q:0:k0)")
    A(b_qk(0, 0, 0))
    c += hst[:2]
    c += [f"v_mov_b32 v{P_[1]+r}, 0" for r in range(4)]
    c += o_setup() + ["v_mov_b32 v12, v22", "s_nop 0"]
    pro = c
    ex = {n: [[], [], []] for n in range(32)}
    z = vr(P_[1], 4)
    zm = [f"v_mfma_f32_32x32x16_bf16 {ar(ACC+16*k,16)}, {z}, {z}, 0" for k in range(4)]
    pro += [zm[0], hst[2]]
    ex[0][1] += [zm[1], hst[3]]; ex[0][2] += [zm[2]]
    k = 4
    for n in range(1, 4):
        ex[n][0] += hst[k:k+1]; k += 1
        if n != 2: ex[n][2] += hst[k:k+1]; k += 1
    assert k >= 8
    if 'b' in os.environ.get('RT', ''): ex[5][1] += [CTOUCH.replace('v30', 'v12')]
    ex[SIG][1] = ["s_waitcnt vmcnt(@p4s:0:ca)", "s_barrier"] + w0only(flag_store(WS_F3), "P4_S3")
    f3 = [f"s_lshr_b32 s{sZ0}, s{sRT}, 1", f"s_sub_u32 s{sZ1}, 15, s{sZ0}", f"s_min_u32 s{sZ0}, s{sZ0}, s{sZ1}", f"v_mov_b32 v{T3_}, s{sZ0}", f"v_mov_b32 v{T4_}, s{sCT}",
          f"v_cmp_gt_u32 vcc, 32, v{vLN}", f"s_mov_b32 s{sZ0}, {WS_F3}"] + flag_lane() + [f"v_cndmask_b32 v{T3_}, v{T4_}, v{T3_}, vcc", f"v_lshl_add_u32 v{T2_}, v{T3_}, 7, v{T2_}"]
    ex[PL][2] = ex[PL][2] + w0only(f3 + [flag_load()], "P4_L3")
    ex[CHK][1] = ex[CHK][1] + w0only(spin("P4_C3"), "P4_C3") + ["s_barrier"]
    fl = []
    for s in range(PD): fl += [[o_ctx(s, 0)], [o_w(s, 0)], [o_w(s, 1)], [o_ctx(s, 1)] + o_post(s)]
    slots_ = [(CHK, 2)] + [(n, k) for n in range(CHK + 1, 32) for k in range(3)]
    FS = float(os.environ.get("FS", "1.8"))
    for i, it in enumerate(fl):
        n, k = slots_[min(len(slots_) - 1, int(i * FS))]; ex[n][k] += it
    wb = wb_dma()
    WBP = os.environ.get("WBP", "b0")
    if WBP == "b0":
        sl2 = [(n, k) for n in range(SIG + 1, PL + 1) for k in range(3)][:-1]
        for i, it in enumerate(wb):
            n, k = sl2[i * len(sl2) // len(wb)]; ex[n][k] += it
    b0 = body(False, "b", ex, first=True)
    i = b0.index(zm[2]); b0 = b0[:i+5] + [zm[3]] + b0[i+5:]
    b0 += mark_a
    loop = []
    lastb = red_addr() + fused_all(wb if WBP != 'b0' else [])
    fin = lastb + mark_b + b_finish()
    st = b_store() + mark_c
    sig4 = ["s_waitcnt vmcnt(@p4u:0:cb)", "s_barrier"] + w0only(flag_store(WS_F4), "P4_S4")
    f4 = [f"s_lshr_b32 s{sZ0}, s{sRT}, 2", f"s_lshl_b32 s{sZ0}, s{sZ0}, 7", f"s_add_u32 s{sZ0}, s{sZ0}, {WS_F4}"]
    SG4, PL4 = [int(x) for x in os.environ.get("P5T", "8,26").split(",")]
    assert NS == 56 and PE == 8 and SG4 <= 12
    tail = last8(sig4, w0only(f4 + flag_lane() + [flag_load()], "P4_L4"), SG4, PL4)
    tail += w0only(spin("P4_C4"), "P4_C4") + ["s_barrier"] + mark_d
    tail += final()
    slow = b_slow()
    return pro + b0 + loop + fin + st + tail, slow, [pro + b0 + loop * 2 + fin + st + tail, pro + b0 + loop * 2 + fin + slow + st + tail]
```

```python
from asmlib import *
from layout import *
import os
def flat(l):
    o = []
    for x in l: o += [x] if isinstance(x, str) else x
    return o
SC = " sc1"
NT = os.environ.get("NT", " nt")
SCE = os.environ.get("SCE", " sc1")
def table():
    rows = []; one = fbits(1.0)
    for cg in range(32):
        if cg < 13:
            t0 = 5 * cg; n = min(5, 64 - t0)
            e = [1, 0, 8192, 0, t0, 0, t0 * 128, 256, 512, 1024, 16384, 128, fbits(LOG2E * 128 ** -0.5), WS_KV, MB, 2048]
        elif cg < 26:
            t0 = 5 * (cg - 13); n = min(5, 64 - t0)
            e = [1, 1, 8192, 1, t0, 0, t0 * 128, 512, 256, 16384, 2048, 1024, one, WS_KV + 8192, MB, 4096]
        elif cg < 28:
            t0 = 4 * (cg - 26); n = 4
            e = [0, 2, 3072, 0, t0, 0, t0 * 128, 65536, 512, 131072, 1024, 256, fbits(LOG2E * 0.25), WS_QB, 8 * 65536, 4 * 65536]
        elif cg < 30:
            t0 = 4 * (cg - 28); n = 4
            e = [0, 2, 3072, 0, t0, 0, 1024 + t0 * 128, 131072, 512, 262144, 2048, 256, one, WS_KVB, 8 * 131072, 4 * 131072]
        else:
            t0 = 4 * (cg - 30); n = 4
            e = [0, 2, 3072, 1, t0, 0, 2048 + t0 * 128, 512, 256, 2048, 262144, 131072, one, WS_KVB + 1024, 8 * 131072, 4 * 131072]
        e[5] = (1 if n == 4 else 0) | (2 if cg == GATE_CG else 0)
        if n == 4: e[5] |= [12, 25, 26, 27, 28, 29, 30, 31].index(cg) << 8
        e[5] |= cg << 16
        rows.append(e)
    slack = [12, 25, 26, 27, 28, 29, 30, 31]; reg = [g for g in range(32) if g not in slack]
    order = []
    sl_order = [12, 26, 27, 28, 25, 29, 30, 31]
    for j in range(8): order += reg[3*j:3*j+3] + [sl_order[j]]
    return [rows[g] for g in order] if os.environ.get('SPREAD') else rows
GATE_CG = 28
TOUCH = os.environ.get("TOUCH", "cjwqo")
RT = os.environ.get("RT", "3")
TPOS = os.environ.get("TPOS", "c")
vTCH = 23
vCT = 22
ACC = [32, 96, 160]; WR = [224, 240]
vW = [1, 2, 3, 4]; vWD = [5, 6, 7, 8]; vXD = [9, 10, 11, 12]; vXR = [13, 14]; vXN = [15, 16]
vEP, vL3, vWC, vLN, vJQ, vFL, vPF = 17, 18, 19, 20, 21, 26, 27
sWS, sW, sWAVE, sH, sI, sDBG, sX, sE = 8, 12, 16, 17, 18, 40, 44, 48
sLW, sLX, sWOFF, sK128, sK128m, sUSW, sXA, sXB, sTE, sT0, sT1, sRT = 19, 20, 21, 22, 23, 24, 25, 26, 27, 28, 29, 30
sO0 = 32
sB0 = 36
sZ0, sZ1 = 37, 31
sK128t, sEN = 38, 39
sKC = [22, 23, 24, 38]
sR = 3
ROT1, ROT2 = [int(x) for x in os.environ.get('ROT', '0,3').split(',')]
sR2 = 5
sXC = [76, 77, 78, 79]
ROT3 = os.environ.get('ROT3', '0') == '1'
sPW, sCG = 5, 4
sWQ, sXP = 52, 54
sTB = 56
T_XSEL, T_WSEL, T_STR, T_OR, T_T0, T_FL, T_WCOL, T_A1, T_A2, T_SP, T_SJ1, T_SJ0, T_SC, T_B0, T_TS1, T_TS0 = [sTB + i for i in range(16)]
XB = 65536
QA_ = 0

def xa(rt, ks): return (ks * 4 + rt) * 4
def acc(p, I, J): return ACC[p] + (I * 4 + J) * 4
def slot_mfmas(p, o, kc):
    out = []
    for c in range(4):
        wb = WR[c & 1]
        for r in range(4):
            for ks in range(4):
                d = acc(p, c, r) if o == 0 else acc(p, r, c)
                w = vr(wb + 4 * ks, 4); x = ar(xa(r, 4 * kc + ks), 4)
                a, b = (w, x) if o == 0 else (x, w)
                cin = "0" if (kc == 0 and ks == 0) else vr(d, 4)
                out.append(f"v_mfma_f32_16x16x32_bf16 {vr(d,4)}, {a}, {b}, {cin}")
    return out
def tr_reads(pos, c):
    wb = WR[c & 1]
    return [f"ds_read_b64_tr_b16 {vr(wb + 4*ks + 2*e, 2)}, v{vW[c]} offset:{pos*16384 + ks*4096 + e*512}" for ks in range(4) for e in range(2)]
def w_dma(pos, el, nt=''):
    out = [f"s_add_u32 m0, s{sLW}, {pos*16384}", f"s_add_u32 s{sWOFF}, s{sKC[el[1]]}, {128*el[0]}"]
    for i in range(4):
        out.append(f"buffer_load_dwordx4 v{vWD[i]}, {sr(sW,4)}, s{sWOFF} offen offset:{i*1024}{nt} lds" + (" ; grpend:w" if i == 3 else ""))
    return out
def x_dma(sc):
    out = []; o = 128 * (sc & 1)
    for hf in range(2):
        out += [f"s_add_u32 m0, s{sLX}, {(sc % 3)*8192 + hf*4096 - o}", f"s_add_u32 s{sT0}, s{sXB if hf else sXA}, s{sXC[sc >> 1]}"]
        for i in range(4):
            out.append(f"buffer_load_dwordx4 v{vXD[i]}, {sr(sX,4)}, s{sT0} offen offset:{i*1024 + o} lds" + (" ; grpend:x" if hf == 1 and i == 3 else ""))
    return out
def x_reads(sc, nat):
    v = vXN if nat else vXR
    return [f"ds_read_b128 {ar(xa(rt, 2*sc + k2), 4)}, v{v[k2]} offset:{(sc % 3)*8192 + rt*2048}" for rt in range(4) for k2 in range(2)]
def w_lane_setup(stride, t, col, xc=sXC):
    o = [f"v_mad_u32_u24 v{vWD[0]}, v{vL3}, {stride}, v{vWC}", f"s_lshl_b32 s{t}, {stride}, 3", f"s_sub_u32 s{t}, s{t}, 1024",
         f"v_xor_b32 v{vWD[1]}, 64, v{vWD[0]}", f"v_add_u32 v{vWD[1]}, s{t}, v{vWD[1]}", f"s_lshl_b32 s{t}, s{t}, 1",
         f"v_add_u32 v{vWD[2]}, s{t}, v{vWD[0]}", f"v_add_u32 v{vWD[3]}, s{t}, v{vWD[1]}",
         f"s_mul_i32 s{sWOFF}, {stride}, s{sWAVE}", f"s_lshl_b32 s{sWOFF}, s{sWOFF}, 5", f"s_add_u32 s{sWOFF}, s{sWOFF}, {col}"]
    for kc in range(4):
        o += [f"s_lshr_b32 s{t}, s{xc[kc]}, 1", f"s_mul_i32 s{t}, s{t}, {stride}", f"s_add_u32 s{sKC[kc]}, s{sWOFF}, s{t}"]
    return o
def e_addr():
    return [f"s_lshr_b32 s{sT1}, s{sTE}, 1", f"s_mul_i32 s{sO0}, s{sT1}, s{T_TS1}", f"s_and_b32 s{sT1}, s{sTE}, 1", f"s_mul_i32 s{sT1}, s{sT1}, s{T_TS0}",
            f"s_add_u32 s{sO0}, s{sO0}, s{sT1}", f"s_add_u32 s{sO0}, s{sO0}, s{sB0}", f"s_add_u32 s{sTE}, s{sTE}, 1",
            f"s_add_u32 s{sO0+1}, s{sO0}, s{T_SJ0}", f"s_add_u32 s{sO0+2}, s{sO0}, s{T_SJ1}", f"s_add_u32 s{sO0+3}, s{sO0+2}, s{T_SJ0}"]
def pipeline(units):
    out = []; prev = None
    for pre, cv, post in units:
        out += pre + cv[:2]
        if prev: out += prev[:2]
        out += cv[2:]
        if prev: out += prev[2:]
        prev = post
    return out + ["s_nop 1"] + prev
def cvt4(T0, T1):
    return [f"v_cvt_pk_bf16_f32 v{T0}, v{T0}, v{T0+1}", f"v_cvt_pk_bf16_f32 v{T0+1}, v{T0+2}, v{T0+3}",
            f"v_cvt_pk_bf16_f32 v{T0+2}, v{T1}, v{T1+1}", f"v_cvt_pk_bf16_f32 v{T0+3}, v{T1+2}, v{T1+3}"]
def swaps(T0): return [f"v_permlane16_swap_b32 v{T0}, v{T0+2}", f"v_permlane16_swap_b32 v{T0+1}, v{T0+3}"]
def epilogue(p, mul):
    u = []
    for pp in range(2):
        for J in range(4):
            T0, T1 = acc(p, 2*pp, J), acc(p, 2*pp+1, J)
            pre = [f"v_mul_f32 v{T+r}, s{T_SC}, v{T+r}" for T in (T0, T1) for r in range(4)] if mul else []
            post = swaps(T0) + [f"buffer_store_dwordx4 {vr(T0,4)}, v{vEP}, {sr(sE,4)}, s{sO0+J} offen{SCE}" + (" ; grpend:st" if pp == 1 and J == 3 else "")]
            if pp == 0: post.append(f"s_add_u32 s{sO0+J}, s{sO0+J}, s{T_SP}")
            u.append((pre, cvt4(T0, T1), post))
    return e_addr() + pipeline(u)
def q_epilogue(p, u, a):
    un = []
    if True:
        for rt in range(4):
            T0, T1 = acc(p, 2*a, rt), acc(p, 2*a+1, rt); q = QA_ + 16*rt + 4*(2*u + a)
            un.append(([], cvt4(T0, T1), swaps(T0) + [f"v_accvgpr_write_b32 a{q+r}, v{T0+r}" for r in range(4)]))
    return pipeline(un)

TRG = [0, 1, 2, 4, 5, 6, 8, 9]; DMAG = [3, 7, 11, 15]; XRG = [3, 7, 10, 11, 12, 13, 14, 15]
def place_dma(S, g0, grp):
    S.add(g0 + 0, grp[0]); S.add(g0 + 1, grp[1])
    for i in range(4): S.add(g0 + DMAG[i], grp[2 + i])
class Block:
    def __init__(self, name, slots, nextpos, qx=None, qd=None):
        self.name = name
        qx = dict(qx or {}); qd = dict(qd or {})
        m = []
        for q, s in enumerate(slots):
            m += slot_mfmas(s["p"], s["o"], s["kc"])
            if s.get("xr") is not None: qx[4*q] = (s["xr"], s["xk"])
            if s.get("xd") is not None: qd[4*q+1] = x_dma(s["xd"])[:6]; qd[4*q+2] = x_dma(s["xd"])[6:]
            if "wstep" in s: qd[4*q+3] = w_dma(s["pos"], s["wstep"], s.get("nt", ""))
        S = self.S = Sched(m, 16)
        for q, s in enumerate(slots):
            for c in range(4):
                Q = 4 * q + c; g0 = Q * 16
                lg = "lgkmcnt(4)" if (Q - 1) in qx else "lgkmcnt(0)"
                pre = []
                if Q in qx: pre.append(f"s_waitcnt vmcnt(@{name}{Q}x:{qx[Q][1]}:x)")
                if c == 3 and not s.get("nobar"):
                    need = s.get("need", [f"{s.get('wk', 2)}:w"])
                    for k, nd in enumerate(need): pre.append(f"s_waitcnt vmcnt(@{name}{q}w{k}:{nd})")
                    pre[-1] += " " + lg
                    pre += s.get("prebar", []) + ["s_barrier"] + s.get("postbar", [])
                elif pre: pre[-1] += " " + lg
                else: pre.append("s_waitcnt " + lg)
                S.before(g0, pre)
                if c < 3: rd = tr_reads(s["pos"], c + 1)
                else:
                    np_ = slots[q+1]["pos"] if q + 1 < len(slots) else nextpos
                    rd = tr_reads(np_, 0) if np_ is not None else []
                for i, r in enumerate(rd): S.add(g0 + TRG[i], r)
                if Q in qx:
                    for i, r in enumerate(x_reads(qx[Q][0], s.get("nat", False))): S.add(g0 + XRG[i], r)
                if Q in qd: place_dma(S, g0, qd[Q])
    def emit(self):
        print("P1 block", self.name, "over", self.S.over())
        return self.S.emit()


def pair_slots(pa, pb, o, nat, tailw):
    sl = []
    for q in range(8):
        d = dict(p=pb if q & 1 else pa, o=o, kc=q >> 1, pos=q & 3, nat=nat)
        if q < 4: d["wstep"] = (q & 1, (q + 4) >> 1)
        if q < 6: d["xr"] = q + 2; d["xk"] = min(2, 5 - q)
        if q < 3: d["xd"] = q + 5
        if not tailw and q >= 4: d["wk"] = max(0, 6 - q)
        sl.append(d)
    return sl
def unit_slots(p, o): return [dict(p=p, o=o, kc=s, pos=s, wstep=(4, s)) for s in range(4)]

def flag_store(off_code, val):
    return off_code + [f"v_mov_b32 v{vFL}, {val}", "s_mov_b64 exec, 1", f"buffer_store_dword v{vFL}, off, {sr(sWS,4)}, s{sZ0}{SC}", "s_mov_b64 exec, -1"]
def w0only(code, lbl): return [f"s_cmp_lg_u32 s{sWAVE}, 0", f"s_cbranch_scc1 {lbl}"] + code + [f"{lbl}:"]
F1OFF = [f"s_lshl_b32 s{sZ0}, s{sCG}, 7", f"s_lshr_b32 s{sZ1}, s{sRT}, 1", f"s_add_u32 s{sZ0}, s{sZ0}, s{sZ1}", f"s_add_u32 s{sZ0}, s{sZ0}, {WS_F1}"]

NT = os.environ.get("NT", " nt")
def lin_touch():
    c = []; A = c.append
    A(f"v_and_b32 v31, 31, v{vLN}"); A("v_lshlrev_b32 v31, 7, v31")
    A("s_mov_b32 s99, 0x20000"); A(f"s_mov_b32 s98, {2*MB}"); A("s_lshl_b32 s100, s2, 1"); A(f"s_and_b32 s101, s{sWAVE}, 1"); A("s_add_u32 s100, s100, s101"); A("s_lshl_b32 s100, s100, 12")
    A(f"s_cmp_lt_u32 s{sWAVE}, 2"); A("s_cselect_b64 s[96:97], s[74:75], s[72:73]")
    A(f"buffer_load_dword v{vTCH}, v31, s[96:99], s100 offen")
    return c
def touch_setup():
    return [f"v_and_b32 v30, 15, v{vLN}", f"s_lshl_b32 s101, s{sRT}, 3", "v_add_u32 v30, s101, v30", f"v_mul_u32_u24 v28, s{T_STR}, v30",
            "v_lshl_add_u32 v30, v24, 7, v28", f"v_lshrrev_b32 v31, 4, v{vLN}", "v_min_u32 v31, 2, v31", "v_lshl_add_u32 v28, v31, 7, v28"]
def touch_w3(): return [f"buffer_load_dword v{vTCH}, v28, {sr(sW,4)}, s{T_WCOL} offen{NT}"]
def touch_w2(): return [f"buffer_load_dword v{vTCH}, v30, {sr(sW,4)}, s{T_WCOL} offen offset:384" + os.environ.get("NT2", "")]
def touch_q():
    return [f"s_mov_b64 s[96:97], {sr(sWQ,2)}", f"s_mov_b32 s98, {4*MB}", "s_mov_b32 s99, 0x20000", f"s_lshl_b32 s101, s{sH}, 8",
            f"buffer_load_dword v{vTCH}, v29, s[96:99], s101 offen" + os.environ.get("NT3", "")]
def touch_x(k):
    c = []
    if k == 0:
        c = [f"s_mov_b64 s[96:97], {sr(sXP,2)}", f"s_mov_b32 s98, {2*MB}", "s_lshr_b32 s100, s2, 3", "s_lshl_b32 s100, s100, 2", f"s_add_u32 s100, s100, s{sWAVE}",
             "s_lshl_b32 s100, s100, 14", f"v_and_b32 v31, 15, v{vLN}", "v_lshlrev_b32 v31, 10, v31", "v_lshl_add_u32 v31, v24, 7, v31"]
    return c + [f"buffer_load_dword v{vTCH}, v31, s[96:99], s100 offen offset:{256*k}"]
def code_touch(srd):
    return [f"s_mov_b64 {sr(srd,2)}, s[6:7]", f"s_mov_b32 s{srd+2}, P1_TAB-P1_PC", f"s_mov_b32 s{srd+3}, 0x20000", f"buffer_load_dword v{vTCH}, v{vCT}, {sr(srd,4)}, 0 offen"]
MK = [lambda n: []]
def version(o):
    mul = (o == 0)
    code = [f"P1_V{o}:"]
    code += [f"v_mad_u32_u24 v{vEP}, v24, s{T_A1}, v{vJQ if o == 0 else 26}", f"v_mad_u32_u24 v{vEP}, v25, s{T_A2}, v{vEP}"]
    if o == 0:
        code += [f"s_mul_i32 s{sT1}, s{T_XSEL}, {4096 - 128}", f"v_bfe_u32 v27, v{vLN}, 2, 1", f"v_mad_u32_u24 v{vEP}, v27, s{sT1}, v{vEP}"]
    code += [
             f"s_mul_i32 s{sT1}, s{T_SJ1 if o == 0 else T_SP}, s{sRT}", f"s_add_u32 s{sB0}, s{T_B0}, s{sT1}"]
    RO = os.environ.get("RO", "0") == "1"
    seq = [(q % 3, q // 3) for q in range(12)]
    if RO: seq = seq[:6] + [(0, 2), (0, 3), (1, 2), (1, 3), (2, 2), (2, 3)]
    seq += [(3, k) for k in range(4)]
    step = lambda e: seq[e]
    sl = [dict(p=seq[q][0], o=o, kc=seq[q][1], pos=q & 3, wstep=step(q + 4)) for q in range(12)]
    del sl[0]["wstep"]; del sl[1]["wstep"]
    X = lambda sc, h: x_dma(sc)[6*h:6*h+6]
    qd = {2: w_dma(3, step(3), NT), 3: X(2,0), 4: X(2,1), 5: X(3,0), 6: X(3,1), 7: w_dma(0, step(4), NT), 8: w_dma(1, step(5), NT),
          12: X(4,0), 13: X(4,1), 14: X(5,0), 16: X(5,1), 17: X(6,0), 18: X(6,1), 21: X(7,0), 22: X(7,1)}
    qx = {9: (2, 1), 10: (3, 0), 20: (4, 2), 22: (5, 1), 24: (6, 1), 28: (7, 0)}
    if True:
        for k in (12, 13, 14, 16, 17, 18, 21, 22): del qd[k]
        XL = [int(x) for x in os.environ.get("XL", "14,16,17,18,20,21,24,25").split(",")]
        for k, qq in enumerate(XL): qd[qq] = X(4 + k // 2, k & 1)
        XR = [int(x) for x in os.environ.get("XR", "21,22,28,30").split(",")]
        qx = {9: (2, 1), 10: (3, 0)}
        for k, qq in enumerate(XR):
            ended = sum(1 for j in range(4) if XL[2*j+1] < qq)
            assert ended > k and XL[2*k+1] < qq
            qx[qq] = (4 + k, ended - 1 - k)
        assert XR[1] <= 22 and XL[6] >= XR[0] + 3 - (XR[1] != XR[0] + 1)
    if RO: del qx[28]; qx[26] = (7, 0)
    sl[1]["wk"] = 1
    for q in range(8): sl[q]["nt"] = NT
    sl[2]["postbar"] = w0only([f"s_and_b32 s{sZ0}, s2, 1", f"s_lshl_b32 s{sZ0}, s{sZ0}, 7", f"v_mov_b32 v{vFL}, 1", "s_mov_b64 exec, 1",
                               f"buffer_atomic_add v{vFL}, off, {sr(sDBG,4)}, s{sZ0} sc1", "s_mov_b64 exec, -1"], f"P1_CL{o}")
    XQ = [int(x) for x in os.environ.get("XQ", "32,33,34,36,37,38").split(",")]
    for k, qq in enumerate(XQ): qd[qq] = X(k // 2, k & 1)
    B = Block(f"a{o}", sl, 0, qx, qd)
    TQ = [int(x) for x in os.environ.get("TQ", "12,26").split(",")]
    if TPOS == "q": B.S.before(9 * 16, [lin_touch()[-1]] + touch_w3())
    B.S.fill(touch_w2(), TQ[0] * 16, TQ[0] * 16 + 16)
    B.S.fill(touch_q(), TQ[1] * 16, TQ[1] * 16 + 16)
    sw = [f"s_mov_b64 {sr(sX,2)}, {sr(sXP,2)}",
          f"s_lshl_b32 s{sXA}, s{sI}, 2", f"s_add_u32 s{sXA}, s{sXA}, s{sWAVE}", f"s_sub_u32 s{sXB}, 63, s{sXA}",
          f"s_lshl_b32 s{sXA}, s{sXA}, 15", f"s_lshl_b32 s{sXB}, s{sXB}, 15", f"s_add_u32 s{sR2}, s{sH}, s{sI}", f"s_and_b32 s{sR2}, s{sR2}, {ROT2}", f"s_lshl_b32 s{sR2}, s{sR2}, 8",
          f"s_mov_b32 s{sR}, s{sXC[1]}"] + [f"s_xor_b32 s{sXC[kc]}, s{sR2}, {256*kc}" for kc in range(4)]
    B.S.pack(sw, 29 * 16, 30 * 16)
    if "1" in RT: B.S.fill(code_touch(96), 29 * 16, 30 * 16)
    e1, e2, e3 = epilogue(1, mul), epilogue(2, mul), epilogue(0, mul)
    stores = lambda e: [i for i, x in enumerate(e) if x.startswith("buffer_store")]
    if RO:
        E0, N1 = [int(x) for x in os.environ.get("E0", "8,4").split(",")]
        c1 = len(e1) if N1 == 8 else stores(e1)[N1 - 1] + 2
        B.S.fill(epilogue(0, mul), E0 * 64 + 3, 10 * 64 + 40); B.S.fill(e1[:c1], 10 * 64 + 40, 12 * 64 - 2); e1 = e1[c1:]
    else: B.S.fill(epilogue(0, mul), 10 * 64 + 3, 12 * 64 - 2)
    for q in range(1, 12): B.S.before(q * 64, MK[0](f"s{q}"))
    pair = B.emit()
    NC = int(os.environ.get("NC", "6"))
    cut = len(e2) if NC == 8 else stores(e2)[NC - 1] + 2
    B = Block(f"c{o}", unit_slots(0, o), 0)
    if "2" in RT: B.S.fill(code_touch(96), 128, 144)
    B.S.fill(e1 + e2[:cut], 3, 254)
    for q in range(1, 4): B.S.before(q * 64, MK[0](f'c{q}'))
    u3 = B.emit()
    sl = unit_slots(1, o)
    for q in range(4): sl[q]["wstep"] = (q & 1, q >> 1)
    sl[2].update(xr=0, xk=2, xd=3, nat=True); sl[3].update(xr=1, xk=2, xd=4, nat=True)
    B = Block(f"d{o}", sl, 0)
    sw2 = [f"s_mov_b64 {sr(sW,2)}, {sr(sWQ,2)}", f"s_mov_b32 s{sW+2}, {4*MB}", f"s_mov_b32 s{T_STR}, 8192", f"s_lshl_b32 s{T_WCOL}, s{sH}, 8"] + w_lane_setup(f"s{T_STR}", sZ1, f"s{T_WCOL}")
    B.S.pack(sw2, 0, 46)
    B.S.fill(e2[cut:] + [f"s_mov_b32 s{sE+2}, s{sEN}"] + e3 + [f"s_mov_b32 s{sE+2}, {WS_END}"], 3, int(os.environ.get("E3", "176")))
    for q in range(0, 4): B.S.before(q * 64, MK[0](f'd{q}'))
    u4 = B.emit()
    skip = [f"P1_SK{o}:", "s_nop 7"] + (gate_load() if o == 0 else []) + flat(e1) + (gate() if o == 0 else []) + flat(e2[:cut]) + \
           [f"s_mov_b32 s{sEN}, 0", f"s_sub_u32 s{sTE}, s{sTE}, 1", f"s_branch P1_U4{o}"]
    br = [f"s_bitcmp1_b32 s{T_FL}, 0", f"s_cbranch_scc1 P1_SK{o}"]
    return dict(head=code, pair=pair, br=br, u2=u3, u3=[], u4=[f"P1_U4{o}:"] + u4, skip=skip)

sGW = 72
def gate_load():
    c = [f"s_bitcmp1_b32 s{T_FL}, 1", "s_cbranch_scc0 P1_NG0"]; A = c.append
    G = ACC[0]
    A(f"v_lshrrev_b32 v27, 4, v{vLN}"); A("v_lshlrev_b32 v28, 4, v27")
    gx = [None, sR, 100, 101]
    c += chunk_next(gx)
    for ks in range(16):
        A(f"buffer_load_dwordx4 {vr(G+4*ks,4)}, v28, {sr(sGW,4)}, {'s%d' % gx[ks//4] if ks >= 4 else 0} offen offset:{(ks%4)*64}" + (" ; grpend:gw" if ks == 15 else ""))
    A("P1_NG0:")
    return c
def gate():
    c = [f"s_bitcmp1_b32 s{T_FL}, 1", "s_cbranch_scc0 P1_NG"]; A = c.append
    G = ACC[0]; D = WR[1]
    A("s_waitcnt vmcnt(@gw:0:gw)")
    for rt in range(4):
        for ks in range(16):
            A(f"v_mfma_f32_16x16x32_bf16 {vr(D+4*rt,4)}, {vr(G+4*ks,4)}, {ar(xa(rt,ks),4)}, " + ("0" if ks == 0 else vr(D+4*rt,4)))
    A("s_nop 7")
    for g in range(1, 4):
        A(f"v_cmp_eq_u32 vcc, {g}, v27"); A("s_nop 1"); A(f"v_cndmask_b32 v{D}, v{D}, v{D+4*g}, vcc")
    A(f"v_mul_f32 v{D}, {hex(fbits(-LOG2E))}, v{D}"); A(f"v_exp_f32 v{D}, v{D}"); A("s_nop 0")
    A(f"v_add_f32 v{D}, 1.0, v{D}"); A(f"v_rcp_f32 v{D}, v{D}")
    A(f"v_lshrrev_b32 v28, 2, v{vJQ}"); A("v_lshl_add_u32 v28, v27, 6, v28")
    A(f"s_lshl_b32 s{sT0}, s{sRT}, 7"); A(f"s_add_u32 s{sT0}, s{sT0}, {WS_GATE}")
    A(f"buffer_store_dword v{D}, v28, {sr(sWS,4)}, s{sT0} offen{SC}")
    A("s_nop 1")
    A("P1_NG:")
    return c

def chunk_order(r, xc):
    o = [f"s_lshl_b32 s{xc[1]}, s{r}, 8", f"s_add_u32 s{xc[1]}, s{xc[1]}, 256"]
    return o + chunk_next(xc)
def chunk_next(xc):
    o = []
    for k in (2, 3): o += [f"s_add_u32 s{xc[k]}, s{xc[k-1]}, 256", f"s_cmp_eq_u32 s{xc[k]}, 1024", f"s_cselect_b32 s{xc[k]}, 256, s{xc[k]}"]
    return o
def prologue(mk=lambda n: []):
    c = []; A = c.append
    A(f"s_load_dwordx4 s[72:75], s[0:1], {KA_X}")
    A(f"s_load_dwordx4 s[76:79], s[0:1], {KA_WUK}")
    A(f"s_load_dwordx2 {sr(sWQ,2)}, s[0:1], {KA_WQ}")
    A(f"s_load_dwordx2 s[6:7], s[0:1], {KA_WQKV}")
    A(f"s_load_dwordx2 {sr(sWS,2)}, s[0:1], {KA_WS}")
    A(f"s_load_dwordx2 {sr(sDBG,2)}, s[0:1], {KA_DBG}")
    A(f"s_load_dwordx2 s[32:33], s[0:1], {KA_GATE}")
    A("s_getpc_b64 s[4:5]"); A("P1_PC:")
    A("s_mov_b64 s[96:97], s[4:5]"); A("s_mov_b32 s98, P1_TAB-P1_PC"); A("s_mov_b32 s99, 0x20000")
    A("s_lshr_b32 s3, s2, 3"); A("s_mul_i32 s3, s3, 5120")
    A(f"v_mul_u32_u24 v{vCT}, 20, v0"); A(f"v_add_u32 v{vCT}, s3, v{vCT}")
    A(f"buffer_load_dword v{vTCH}, v{vCT}, s[96:99], 0 offen")
    A("s_add_u32 s4, s4, P1_TAB-P1_PC"); A("s_addc_u32 s5, s5, 0")
    A("s_and_b32 s3, s2, 7"); A(f"s_lshr_b32 s{sH}, s2, 3"); A(f"s_and_b32 s{sI}, s{sH}, 7")
    A(f"s_lshr_b32 s{sH}, s{sH}, 3"); A("s_lshl_b32 s3, s3, 2"); A(f"s_add_u32 s{sH}, s{sH}, s3")
    A(f"s_lshl_b32 s3, s{sH}, 6")
    A(f"s_load_dwordx16 {sr(sTB,16)}, s[4:5], s3")
    A("v_lshrrev_b32 v27, 6, v0"); A(f"v_and_b32 v{vLN}, 63, v0")
    A(f"v_readfirstlane_b32 s{sWAVE}, v27")
    A(f"v_lshrrev_b32 v27, 4, v{vLN}")
    A(f"v_and_b32 v28, 15, v{vLN}")
    A("v_and_b32 v24, 1, v27"); A("v_lshrrev_b32 v25, 1, v27"); A("v_lshlrev_b32 v26, 4, v28")
    A("v_and_b32 v29, 3, v28"); A("v_bfe_u32 v30, v28, 2, 1"); A("v_bfe_u32 v31, v28, 3, 1")
    A("v_lshl_add_u32 v29, v30, 3, v29"); A("v_lshl_add_u32 v29, v31, 2, v29")
    A(f"v_lshlrev_b32 v{vJQ}, 4, v29")
    A(f"s_lshl_b32 s{sLW}, s{sWAVE}, 12")
    A(f"s_mul_i32 s{sLX}, s{sWAVE}, 24576"); A(f"s_add_u32 s{sLX}, s{sLX}, {XB}")
    for src, dst in ((29, vXR), (28, vXN)):
        A(f"v_lshrrev_b32 v30, 1, v{src}"); A("v_xor_b32 v30, v30, v27"); A("v_lshlrev_b32 v30, 4, v30"); A(f"v_lshl_add_u32 v30, v{src}, 7, v30")
        A(f"v_add_u32 v{dst[0]}, s{sLX}, v30"); A(f"v_xor_b32 v{dst[1]}, 64, v{dst[0]}")
    A(f"v_lshrrev_b32 v{vL3}, 3, v{vLN}"); A(f"v_and_b32 v31, 7, v{vLN}")
    A("v_xor_b32 v30, v31, v27"); A("v_lshlrev_b32 v30, 4, v30"); A(f"v_lshl_add_u32 v{vXD[0]}, v{vL3}, 10, v30")
    A(f"v_xor_b32 v{vXD[1]}, 64, v{vXD[0]}"); A(f"v_add_u32 v{vXD[1]}, 7168, v{vXD[1]}")
    A(f"v_add_u32 v{vXD[2]}, 14336, v{vXD[0]}"); A(f"v_add_u32 v{vXD[3]}, 14336, v{vXD[1]}")
    A("v_lshlrev_b32 v30, 1, v24"); A("v_xor_b32 v30, v30, v31"); A(f"v_lshlrev_b32 v{vWC}, 4, v30")
    A("v_lshrrev_b32 v30, 2, v28"); A("v_lshl_add_u32 v29, v27, 3, v30"); A("v_lshlrev_b32 v29, 7, v29")
    A("v_and_b32 v31, 3, v28"); A("v_lshl_add_u32 v29, v31, 3, v29")
    A("v_lshrrev_b32 v30, 1, v30"); A("v_lshl_add_u32 v30, v24, 1, v30"); A("v_lshlrev_b32 v30, 5, v30")
    A(f"v_add_u32 v{vW[0]}, v29, v30")
    for ct in range(1, 4): A(f"v_xor_b32 v{vW[ct]}, {32*ct}, v{vW[0]}")
    A(f"s_lshl_b32 s{sRT}, s{sI}, 2"); A(f"s_add_u32 s{sRT}, s{sRT}, s{sWAVE}"); A(f"s_lshl_b32 s{sXA}, s{sRT}, 16")
    A(f"s_add_u32 s{sXB}, s{sXA}, 32768")
    A(f"s_and_b32 s{sZ1}, s{sH}, 3"); A(f"s_add_u32 s{sZ1}, s{sZ1}, s{sI}"); A(f"s_mul_i32 s{sZ0}, s{sZ1}, 11"); A(f"s_lshr_b32 s{sZ0}, s{sZ0}, 5"); A(f"s_mul_i32 s{sZ0}, s{sZ0}, 3")
    A(f"s_sub_u32 s{sZ1}, s{sZ1}, s{sZ0}" if ROT3 else f"s_mov_b32 s{sZ1}, 0")
    A(f"s_lshl_b32 s{sRT}, s{sRT}, 1")
    for s, n in ((sWS, WS_END), (sE, WS_END), (sX, 2*MB), (sDBG, 256), (sW, 4*MB)):
        A(f"s_mov_b32 s{s+2}, {n}"); A(f"s_mov_b32 s{s+3}, 0x20000")
    A("s_waitcnt lgkmcnt(0)")
    c += mk("ka")
    WSO = int(os.environ.get("WSO", "0")) * MB
    if WSO: A(f"s_add_u32 s{sWS}, s{sWS}, {WSO}"); A(f"s_addc_u32 s{sWS+1}, s{sWS+1}, 0")
    A(f"s_lshr_b32 s{sCG}, s{T_FL}, 16")
    A(f"s_cmp_eq_u32 s{T_XSEL}, 0"); A(f"s_cselect_b64 {sr(sX,2)}, s[72:73], s[74:75]")
    A(f"s_cmp_eq_u32 s{T_WSEL}, 0"); A(f"s_cselect_b64 {sr(sW,2)}, s[76:77], s[78:79]")
    A(f"s_mov_b32 s{sXC[0]}, 0")
    c += x_dma(0)
    c += chunk_order(sZ1, sXC)
    A(f"s_mov_b64 {sr(sXP,2)}, s[72:73]"); A(f"s_mov_b64 {sr(sE,2)}, {sr(sWS,2)}")
    A(f"s_cmp_eq_u32 s{T_WSEL}, 2"); A(f"s_cselect_b64 {sr(sW,2)}, s[6:7], {sr(sW,2)}"); A(f"s_cselect_b32 s{sW+2}, {512*3072}, s{sW+2}")
    A("s_mov_b64 s[6:7], s[96:97]")
    c += w_lane_setup(f"s{T_STR}", sT1, f"s{T_WCOL}")
    A(f"s_mov_b32 s{sEN}, {WS_END}")
    A(f"s_mov_b32 s{sTE}, s{T_T0}")
    c += touch_setup()
    if TPOS == "a": c += lin_touch() + touch_w3()
    c += mk("i0")
    c += w_dma(0, (0, 0), NT) + x_dma(1)
    c += mk("i1")
    if TPOS == "b": c += lin_touch() + touch_w3()
    vFL = 27
    z = F1OFF + [f"v_mov_b32 v{vFL}, 0", "s_mov_b64 exec, 1", f"buffer_store_dword v{vFL}, off, {sr(sWS,4)}, s{sZ0}{SC}",
                 f"s_lshl_b32 s{sZ0}, s{sI}, 7", f"s_lshl_b32 s{sZ1}, s{sH}, 2", f"s_add_u32 s{sZ0}, s{sZ0}, s{sZ1}", f"s_add_u32 s{sZ0}, s{sZ0}, {WS_F3}",
                 f"buffer_store_dword v{vFL}, off, {sr(sWS,4)}, s{sZ0}{SC}", f"buffer_store_dword v{vFL}, off, {sr(sWS,4)}, s{sZ0} offset:{WS_F4 - WS_F3}{SC}", "s_mov_b64 exec, -1"]
    c += w_dma(1, (1, 0), NT) + w_dma(2, (2, 0), NT)
    if TPOS == "c": c += lin_touch() + touch_w3()
    else: c += lin_touch()[:-1]
    A(f"s_mov_b64 {sr(sGW,2)}, s[32:33]"); A(f"s_mov_b32 s{sGW+2}, 1024"); A(f"s_mov_b32 s{sGW+3}, 0x20000")
    z = [f"buffer_load_dword v{vTCH}, v31, {sr(sGW,4)}, 0 offen"] + z
    c += w0only(z, "P1_Z")
    MAP = os.environ.get("MAP", "1")
    if MAP != "0":
        A(f"s_bfe_u32 s{sH}, s2, 0x20001"); A(f"s_lshl_b32 s{sH}, s{sH}, 3"); A(f"s_lshr_b32 s{sI}, s2, 5"); A(f"s_add_u32 s{sH}, s{sH}, s{sI}")
        A(f"s_and_b32 s{sI}, s2, 1")
        if MAP == "2": A(f"s_xor_b32 s{sI}, s{sI}, 1")
        A(f"s_lshl_b32 s{sI}, s{sI}, 2"); A(f"s_bfe_u32 s{sZ1}, s2, 0x20003"); A(f"s_add_u32 s{sI}, s{sI}, s{sZ1}")
    A(f"s_lshl_b32 s{sZ1}, s{sI}, 2"); A(f"s_add_u32 s{sZ1}, s{sZ1}, s{sWAVE}"); A(f"s_lshl_b32 s{sZ1}, s{sZ1}, 17")
    A(f"v_and_b32 v29, 15, v{vLN}"); A("v_lshlrev_b32 v29, 13, v29"); A("v_lshl_add_u32 v29, v24, 7, v29"); A(f"v_add_u32 v29, s{sZ1}, v29")
    c += mk("i2")
    A("s_waitcnt vmcnt(@Px0:1:x)"); c += mk("l0"); c += x_reads(0, False)
    A("s_waitcnt vmcnt(@Px1:0:x)"); c += mk("l1"); A("s_barrier"); c += tr_reads(0, 0) + x_reads(1, False)
    A(f"s_cmp_eq_u32 s{T_OR}, 0"); A("s_cbranch_scc0 P1_V1")
    return c

def p2(kv_setup, kv_dma0, kv_dma1, kv_dma2, mask_setup, wo_ptrs, wo_touch, out_ptr):
    sl = pair_slots(2, 0, 0, True, False)
    SG = int(os.environ.get("SG", "2"))
    sl[SG]["need"] = ["2:w", "0:st"]
    sl[SG]["postbar"] = w0only(flag_store(F1OFF, 1), "P2_S")
    def spin(lbl, load, cmp):
        return [f"s_mov_b32 s{sZ1}, 0x100000", f"s_waitcnt vmcnt(@{lbl}:0:fl)", f"{lbl}L:", cmp, "s_nop 0", f"s_cbranch_vccz {lbl}",
                "s_sleep 8", load, "s_waitcnt vmcnt(0)", f"s_sub_u32 s{sZ1}, s{sZ1}, 1", f"s_cmp_lg_u32 s{sZ1}, 0", f"s_cbranch_scc1 {lbl}L"]
    ld0 = f"buffer_load_dword v31, v29, {sr(sDBG,4)}, 0 offen sc1 ; grpend:fl"
    ld1 = f"buffer_load_dword v31, v{vPF}, {sr(sWS,4)}, 0 offen sc1 ; grpend:fl"
    sl[4]["prebar"] = w0only(spin("P2_C", ld0, "v_cmp_gt_u32 vcc, v30, v31"), "P2_C")
    sl[3]["postbar"] = sl[3].get("postbar", []) + w0only([ld0], "P2_L0")
    sl[5]["postbar"] = w0only([ld1], "P2_L1")
    sl[6]["prebar"] = w0only(spin("P2_D", ld1, "v_cmp_ne_u32 vcc, 1, v31"), "P2_D")
    sl[7]["nobar"] = True
    qx = qd = None
    if os.environ.get("P2J", "1") == "1":
        for d in sl:
            for k in ("xr", "xk", "xd"): d.pop(k, None)
        X = lambda sc, h: x_dma(sc)[6*h:6*h+6]
        qd = {9: X(5,0), 10: X(5,1), 12: X(6,0), 13: X(6,1), 16: X(7,0), 17: X(7,1)}
        qx = {0: (2, 2), 4: (3, 1), 8: (4, 0), 14: (5, 1), 20: (6, 1), 22: (7, 0)}
    B = Block("q", sl, None, qx, qd)
    B.S.fill(epilogue(1, True), 3, int(os.environ.get("EE", "120")))
    B.S.fill(paddr(), 3 * 64, 3 * 64 + 46)
    B.S.fill(code_touch(52)[:3] + (code_touch(52)[3:] if '3' in RT else []), 3 * 64 + 50, 4 * 64)
    B.S.fill(wo_ptrs, 3 * 64 + 50, 3 * 64 + 62)
    WQ = int(os.environ.get("WQ", "19"))
    k = max(i for i, x in enumerate(wo_touch) if x.startswith("s_lshl_b32 s7") ) + 1
    B.S.fill(wo_touch[:k], 18 * 16, 19 * 16); B.S.fill(wo_touch[k:], WQ * 16, WQ * 16 + 48)
    B.S.fill(out_ptr, 18 * 16, 18 * 16 + 8)
    B.S.fill(mask_setup, 4 * 64, 5 * 64 + 46)
    B.S.fill(kv_setup, 5 * 64 + 46, 6 * 64 + 30)
    B.S.fill(kv_dma0, 6 * 64 + 48, 7 * 64 + 16)
    B.S.fill(kv_dma1, 7 * 64 + 16, 7 * 64 + 56)
    B.S.fill(q_epilogue(2, 0, 0), 6 * 64 + 34, 7 * 64 + 2)
    B.S.fill(q_epilogue(2, 0, 1), 7 * 64 + 3, 7 * 64 + 34)
    B.S.fill(q_epilogue(0, 1, 0), 7 * 64 + 35, 8 * 64)
    for q in range(1, 8): B.S.before(q * 64, MK[0](f'q{q}'))
    if os.environ.get("QOV"): print([ (g, B.S.load(g) - 16) for g in range(B.S.n) if B.S.load(g) > 16])
    qe = flat(q_epilogue(0, 1, 1)); tail = []
    k2 = list(kv_dma2)
    for i, x in enumerate(qe):
        if i % 3 == 0 and k2 and not (i and qe[i-1].startswith("s_nop")): tail.append(k2.pop(0))
        tail.append(x)
    return ["P2:"] + B.emit() + ["s_nop 1"] + tail + k2
def paddr():
    m5 = (1 << 32) // 5 + 1
    o = [f"s_lshl_b32 s{sT1}, s{sH}, 1", f"s_mul_hi_u32 s72, s{sT1}, {m5}", f"s_add_u32 s{sT1}, s{sT1}, 1", f"s_mul_hi_u32 s73, s{sT1}, {m5}",
         "s_add_u32 s74, s72, 13", "s_add_u32 s75, s73, 13", f"s_lshr_b32 s{sT1}, s{sH}, 4", f"s_add_u32 s32, s{sT1}, 26", f"s_add_u32 s33, s{sT1}, 28", f"s_add_u32 s34, s{sT1}, 30",
         f"v_mov_b32 v{vPF}, {GATE_CG}"]
    for k in range(7):
        o += [f"v_cmp_eq_u32 vcc, {k}, v{vL3}", f"v_mov_b32 v29, s{72+k if k < 4 else 28+k}", "s_nop 0", f"v_cndmask_b32 v{vPF}, v{vPF}, v29, vcc"]
    o += [f"v_and_b32 v29, 7, v{vLN}", "v_lshlrev_b32 v29, 2, v29", f"v_lshl_add_u32 v{vPF}, v{vPF}, 7, v29", f"v_add_u32 v{vPF}, {WS_F1}, v{vPF}",
          f"v_and_b32 v29, 1, v{vLN}", "v_lshlrev_b32 v29, 7, v29", "v_mov_b32 v30, 128"]
    return o
def tabdata():
    return [".p2align 6", ".type P1_TAB,@object", "P1_TAB:"] + [".long " + ", ".join(hex(x) for x in e) for e in table()]
```

```python
import re

def vr(b, n=1, k='v'):
    return f"{k}{b}" if n == 1 else f"{k}[{b}:{b+n-1}]"
def ar(b, n=1): return vr(b, n, 'a')
def sr(b, n=1): return vr(b, n, 's')

TRANS = ("v_exp_f32", "v_log_f32", "v_rcp_f32", "v_rsq_f32", "v_sqrt_f32")

def cost(ins):
    m = ins.split()[0]
    if m in TRANS: return 8
    if m.startswith("v_mfma"): return 8
    if m == "s_nop": return 4 * (int(ins.split()[1]) + 1)
    if m.endswith(":") or m.startswith(";") or m.startswith("."): return 0
    return 4

def klass(ins):
    m = ins.split()[0]
    if m.startswith("LG"): return "s"
    if m.startswith("v_"): return "v"
    if m.startswith("ds_") or m.startswith("buffer_") or m.startswith("global_"): return "m"
    return "s"
def vcost(ins):
    m = ins.split()[0]
    if m in TRANS or m.startswith("v_permlane"): return 8
    if m == "s_nop": return 4 * (int(ins.split()[1]) + 1)
    return 4
def conflict(a, b):
    if a.startswith("LG") or b.startswith("LG"): return True
    ma, da, ua, ka = parse(a); mb_, db, ub, kb = parse(b)
    if ka == "ctl" or kb == "ctl": return True
    if "exec" in da or "exec" in db: return True
    return bool(set(da) & set(ub) or set(ua) & set(db) or set(da) & set(db))
def order(lst):
    out = []
    for ins in lst:
        p = len(out)
        if klass(ins) != "v":
            while p > 0 and klass(out[p-1]) == "v" and not conflict(out[p-1], ins): p -= 1
            if klass(ins) == "m":
                q = p
                while q > 0 and klass(out[q-1]) == "s" and not conflict(out[q-1], ins) and not out[q-1].startswith("s_"): q -= 1
        out.insert(p, ins)
    return out
import os
MMP = int(os.environ.get('MMP', '0'))
def gapcost(lst):
    t = 4; prev = None; nm = 0
    for ins in lst:
        k = klass(ins)
        if k == "v": t = max(t, 8) + vcost(ins)
        elif k == "s": t += vcost(ins)
        else:
            if prev == "v": t += 12
            elif prev == "m": t += 6
            else: t += 8
        prev = k
    if MMP and t == 16 and len([x for x in lst if klass(x) == "v"]) == 2: t += MMP
    return max(t, 8)

class Sched:
    def __init__(self, mfmas, budget):
        self.m = mfmas
        self.n = len(mfmas)
        self.gap = [[] for _ in mfmas]
        self.pre = [[] for _ in mfmas]
        self.budget = budget
        self.tail = []
    def load(self, g, extra=()):
        l = order(self.gap[g] + list(extra))
        l = l + (self.pre[g + 1] if g + 1 < self.n else self.tail)
        return gapcost(l)
    def add(self, g, ins):
        if isinstance(ins, str): ins = [ins]
        self.gap[g].extend(ins)
    def before(self, g, ins):
        if isinstance(ins, str): ins = [ins]
        self.pre[g].extend(ins)
    def _try(self, items, g0, g1, pace, bud):
        added = []; g = g0; n = len(items); ok = True
        for i, it in enumerate(items):
            grp = [it] if isinstance(it, str) else list(it)
            g = max(g, g0 + int(pace * i * (g1 - g0) / n))
            while g < g1 and self.load(g, grp) > max(bud(g), self.load(g)): g += 1
            if g >= g1: ok = False; break
            self.gap[g].extend(grp); added.append((g, len(grp)))
        if not ok:
            for g, k in reversed(added): del self.gap[g][-k:]
        return ok
    def fill(self, items, g0, g1):
        if not items: return
        B = self.budget
        for pace in (1.0, 0.9, 0.8, 0.6, 0.4, 0.2, 0.0):
            if self._try(items, g0, g1, pace, lambda g: B): return
        its = [[it] if isinstance(it, str) else list(it) for it in items]
        n = len(its); INF = 10 ** 9
        best = [0] + [INF] * n; back = []
        for g in range(g0, g1):
            base = max(self.load(g), B); nb = [INF] * (n + 1); bk = [0] * (n + 1)
            lo = max(0, n - (g1 - g) * 6 - 6);
            for i in range(lo, n + 1):
                if best[i] >= INF: continue
                ex = []
                for k in range(0, min(6, n - i) + 1):
                    if k: ex = ex + its[i + k - 1]
                    cst = best[i] + (max(self.load(g, ex), B) - base if k else 0)
                    if cst < nb[i + k]: nb[i + k] = cst; bk[i + k] = k
            best = nb; back.append(bk)
        if best[n] < INF:
            i = n; plan = []
            for g in range(g1 - 1, g0 - 1, -1):
                k = back[g - g0][i]; plan.append((g, i - k, i)); i -= k
            for g, a, b in reversed(plan):
                for x in its[a:b]: self.gap[g].extend(x)
            return
        raise Exception("fill failed")
    def pack(self, items, g0, g1):
        g = g0; pos = []
        for it in items:
            grp = [it] if isinstance(it, str) else list(it)
            while g < g1 - 1 and self.load(g, grp) > self.budget: g += 1
            self.gap[g].extend(grp); pos.append(g)
        return pos
    def emit(self):
        out = []
        for g in range(self.n):
            out += self.pre[g]; out.append(self.m[g]); out += order(self.gap[g])
        return out
    def over(self):
        return sum(max(0, self.load(g) - self.budget) for g in range(self.n))

_R = re.compile(r"^-?(?:abs\()?([vas])(?:\[(\d+):(\d+)\]|(\d+))\)?$")
def regs(op):
    op = op.strip()
    if op in ("vcc", "vcc_lo"): return ["vcc"]
    if op in ("exec",): return ["exec"]
    if op == "m0": return ["m0"]
    m = _R.match(op)
    if not m: return []
    if m.group(4) is not None: return [m.group(1) + m.group(4)]
    return [m.group(1) + str(i) for i in range(int(m.group(2)), int(m.group(3)) + 1)]

import functools
@functools.lru_cache(maxsize=None)
def parse(ins):
    ins = ins.split(";")[0].strip()
    p = ins.split(None, 1)
    m = p[0]
    ops = []
    if len(p) > 1:
        ops = [o.strip() for o in p[1].split(",")]
        last = ops[-1].split()
        ops[-1] = last[0] if last else ""
        mods = last[1:]
    else: mods = []
    R = [regs(o) for o in ops]
    flat = lambda l: [x for y in l for x in y]
    if m.startswith("v_mfma"): return m, R[0], flat(R[1:]), "mfma"
    if m.startswith("ds_read"): return m, R[0], flat(R[1:]), "ldsld"
    if m.startswith("ds_write") or m.startswith("ds_add"): return m, [], flat(R), "ldsst"
    if m.startswith("ds_bpermute") or m.startswith("ds_swizzle"): return m, R[0], flat(R[1:]), "ldsld"
    if m.startswith("buffer_load"):
        if "lds" in mods: return m, [], flat(R) + ["m0"], "dma"
        return m, R[0], flat(R[1:]), "vmld"
    if m.startswith("global_load"): return m, R[0], flat(R[1:]), "vmld"
    if m.startswith("buffer_store") or m.startswith("global_store") or m.startswith("buffer_atomic"): return m, [], flat(R), "vmst"
    if m.startswith("buffer_inv") or m.startswith("buffer_wbl2"): return m, [], [], "vmst"
    if m.startswith("s_load") : return m, R[0], flat(R[1:]), "smem"
    if m.startswith("s_memtime") or m.startswith("s_memrealtime"): return m, R[0], [], "smem"
    if m.startswith("v_permlane"): return m, R[0] + R[1], R[0] + R[1], "valu"
    if m.startswith("v_cmp"): return m, R[0], flat(R[1:]), "valu"
    if m.startswith("v_readfirstlane") or m.startswith("v_readlane"): return m, R[0], flat(R[1:]), "valu"
    if m.startswith("v_fmac") : return m, R[0], flat(R), "valu"
    if m.startswith("v_cndmask"):
        u = flat(R[1:])
        if len(ops) == 3: u.append("vcc")
        return m, R[0], u, "valu"
    if m.startswith("v_"): return m, R[0] if R else [], flat(R[1:]), "valu"
    if m in ("s_waitcnt", "s_barrier", "s_nop", "s_endpgm", "s_setprio", "s_sleep") or m.startswith("s_cbranch") or m == "s_branch": return m, [], [], "ctl"
    if m.startswith("s_cmp") or m.startswith("s_bitcmp"): return m, ["scc"], flat(R), "salu"
    if m.startswith("s_"):
        d = list(R[0]) if R else []; u = flat(R[1:])
        if m.startswith("s_cselect") or m.startswith("s_addc") or m.startswith("s_subb"): u = u + ["scc"]
        if not (m.startswith("s_mov") or m.startswith("s_cselect") or m.startswith("s_mul") or m.startswith("s_getpc") or m.startswith("s_getreg")): d = d + ["scc"]
        return m, d, u, "salu"
    raise Exception("unparsed " + ins)

def check_trace(trace, name=""):
    errs = []
    lg = []
    vm = []
    pend = {}
    last = {}
    lastC = {}
    laststore = {}
    st = 0
    for idx, ins in enumerate(trace):
        s = ins.split(";")[0].strip()
        if not s or s.endswith(":") or s.startswith("."): continue
        m, d, u, k = parse(s)
        def err(msg): errs.append(f"{name}[{idx}] {s}: {msg}")
        if m == "s_waitcnt":
            mm = re.search(r"vmcnt\((\d+)\)", s)
            if mm:
                n = int(mm.group(1))
                while len(vm) > n:
                    for r in vm.pop(0): pend.pop(r, None)
            mm = re.search(r"lgkmcnt\((\d+)\)", s)
            if mm:
                n = int(mm.group(1))
                if n > 0 and any(x[0] == "smem" for x in lg): err("counted lgkmcnt with smem outstanding")
                while len(lg) > n:
                    for r in lg.pop(0)[1]: pend.pop(r, None)
            st += 1; continue
        if m == "s_nop":
            st += int(s.split()[1]) + 1; continue
        if "scc" in u or m.startswith("s_cbranch_scc"):
            w = last.get("scc", (0, 0, 0, ""))[3]
            ok = w.startswith("s_cmp") or w.startswith("s_bitcmp")
            if m.startswith("s_addc"): ok = w == "s_add_u32"
            if m.startswith("s_cbranch"): ok = ok or w in ("s_or_b64", "s_sub_u32")
            if not ok: err(f"scc comes from {w}")
        for r in u + d:
            if r in pend and not (k == "vmld" and m == "buffer_load_dword" and r in d and r in ("v23", "v27", "v13")): err(f"{r} has outstanding {pend[r]} load")
        for r in u:
            if r in last:
                ws, wk, wp, wm = last[r]; dist = st - ws - 1
                if wk == "valu" and k == "mfma" and dist < 2: err(f"valu->mfma {r} dist {dist}")
                if wk == "valu" and m.startswith("v_permlane") and dist < 2: err(f"valu->permlane {r} dist {dist}")
                if wk == "valu" and (m.startswith("v_readfirstlane") or m.startswith("v_readlane")) and r[0] == 'v' and r != 'vcc' and dist < 1: err(f"valu->readlane {r}")
                if wk == "valu" and wm in TRANS and k == "valu" and m not in TRANS and dist < 1: err(f"trans->valu {r}")
                if wk == "valu" and (r[0] == 's' or r == 'vcc') and k == "valu" and dist < 2: err(f"valu sgpr->valu {r} dist {dist}")
                if wk == "valu" and r[0] == 's' and k in ("vmld", "vmst", "dma") and dist < 5: err(f"valu sgpr->vmem {r}")
                if wk == "salu" and r == "m0" and k == "dma" and dist < 1: err("m0->dma")
                if wk == "mfma":
                    need = {4: 8, 8: 12}[wp]
                    if k == "mfma":
                        ops = [o.strip() for o in s.split(None, 1)[1].split(",")]
                        inC = r in regs(ops[3]); inAB = r in regs(ops[1]) + regs(ops[2])
                        if inAB and dist < need: err(f"mfma D->mfma A/B {r} dist {dist}")
                        if inC and not inAB:
                            exact = (last[r][3] == (m, ops[3]))
                            if not exact and dist < need - 2: err(f"mfma D->mfma C overlap {r} dist {dist}")
                    elif dist < need: err(f"mfma D->{k} read {r} dist {dist} need {need}")
        for r in d:
            if r in last and last[r][1] == "mfma" and k in ("valu", "ldsld", "vmld"):
                need = {4: 8, 8: 12}[last[r][2]]; dist = st - last[r][0] - 1
                if dist < need: err(f"mfma D->{k} write {r} dist {dist}")
            if r in last and last[r][1] == "mfma" and k == "mfma":
                ops = [o.strip() for o in s.split(None, 1)[1].split(",")]
                if last[r][3] != (m, ops[0]):
                    need = {4: 8, 8: 12}[last[r][2]]; dist = st - last[r][0] - 1
                    if dist < need: err(f"mfma D->mfma D (waw, different shape) {r}")
            if r in lastC and k == "valu":
                need = {4: 3, 8: 7}[lastC[r][1]]; dist = st - lastC[r][0] - 1
                if dist < need: err(f"mfma srcC read -> valu write {r} dist {dist}")
            if r in laststore and k == "valu" and st - laststore[r] - 1 < 2: err(f"store data WAR {r}")
        if k == "mfma":
            passes = 8 if "32x32" in m else 4
            ops = [o.strip() for o in s.split(None, 1)[1].split(",")]
            for r in d: last[r] = (st, "mfma", passes, (m, ops[0]))
            for r in regs(ops[3]): lastC[r] = (st, passes)
        else:
            for r in d: last[r] = (st, k, 0, m)
        if k == "ldsld": lg.append(("lds", d)); [pend.__setitem__(r, "lds") for r in d]
        elif k == "ldsst": lg.append(("lds", []))
        elif k == "smem": lg.append(("smem", d)); [pend.__setitem__(r, "smem") for r in d]
        elif k == "vmld": vm.append(d); [pend.__setitem__(r, "vm") for r in d]
        elif k in ("vmst", "dma"):
            vm.append([])
            if k == "vmst" and ("x4" in m or "x3" in m):
                ops = [o.strip() for o in s.split(None, 1)[1].split(",")]
                for r in regs(ops[0] if m.startswith("buffer") else ops[1]): laststore[r] = st
        if len(vm) > 63: err("vmcnt overflow >63")
        st += 1
    return errs

def resolve_vm(traces):
    res = {}
    for tr in traces:
        ops = []
        for ins in tr:
            s = ins.split(";")[0].strip()
            if not s or s.endswith(":") or s.startswith("."): continue
            mm = re.search(r"vmcnt\(@(\w+):(\d+):(\w+)\)", s)
            if mm:
                wid, k, cls = mm.group(1), int(mm.group(2)), mm.group(3)
                ends = [i for i, o in enumerate(ops) if o == cls]
                if len(ends) > k:
                    n = len(ops) - 1 - ends[len(ends) - 1 - k]
                    res[wid] = min(res.get(wid, 63), n)
                else:
                    raise Exception(f"wait {wid}: no group to wait for")
                continue
            m = s.split()[0]
            if m.startswith("buffer_") or m.startswith("global_"):
                g = re.search(r"grpend:(\w+)", ins)
                ops.append(g.group(1) if g else None)
    return res

def apply_vm(code, res):
    def f(ins):
        return re.sub(r"vmcnt\(@(\w+):(\d+):(\w+)\)", lambda m: f"vmcnt({res[m.group(1)]})", ins)
    return [f(i) for i in code]

def kernel_desc(name, nvgpr, accum, nsgpr=102):
    return f""".amdhsa_kernel {name}
  .amdhsa_next_free_vgpr {nvgpr}
  .amdhsa_next_free_sgpr {nsgpr}
  .amdhsa_accum_offset {accum}
  .amdhsa_group_segment_fixed_size 0
  .amdhsa_kernarg_size 104
  .amdhsa_user_sgpr_count 2
  .amdhsa_user_sgpr_kernarg_segment_ptr 1
  .amdhsa_system_sgpr_workgroup_id_x 1
.end_amdhsa_kernel
"""
def fbits(x):
    import struct
    return struct.unpack("<I", struct.pack("<f", x))[0]

import os
PROF = int(os.environ.get("PROF", "0"))
WS_PROF = 79 * (1 << 20)
NMARK = 11
def prof_mark(i):
    if not PROF: return []
    op = "s_memtime" if (os.environ.get("PROFC") and i >= 1) else "s_memrealtime"
    return [f"{op} s[94:95]", "s_waitcnt lgkmcnt(0)", f"s_mov_b32 s{83+i}, s94"]
def prof_start():
    if not PROF: return []
    return ["s_memtime s[80:81]"] + [f"s_mov_b32 s{i}, 0" for i in range(83, 94)] + prof_mark(0)
def prof_end(kidx, sO, wave_sgpr):
    if not PROF: return []
    if os.environ.get("ECHO"):
        c = ["s_waitcnt vmcnt(0)", "s_memrealtime s[94:95]", "s_waitcnt lgkmcnt(0)"]
        c += ["s_sub_u32 s96, s94, s83"] if os.environ["ECHO"] == "end" else ["s_sub_u32 s96, s84, s83"]
        if os.environ.get("PREK") == "stamp":
            c += ["s_mov_b32 s97, 0x4f80000", "buffer_load_dword v1, off, s[8:11], s97 sc1", "s_waitcnt vmcnt(0)", "v_readfirstlane_b32 s83, v1", "s_nop 3"]
        if os.environ["ECHO"].startswith("fix"): c += [f"s_add_u32 s96, s83, {int(os.environ['ECHO'][3:]) * 100}", "s_mov_b32 s94, 0"]
        c += ["s_add_u32 s96, s96, s94", "s_mov_b32 s98, 4000", "ECHO_L:", "s_sub_u32 s98, s98, 1", "s_cbranch_scc1 F_END", "s_sleep 2", "s_memrealtime s[94:95]", "s_waitcnt lgkmcnt(0)", "s_sub_u32 s97, s94, s96", "s_cmp_lt_i32 s97, 0", "s_cbranch_scc1 ECHO_L"]
        return c
    c = ["s_waitcnt vmcnt(0)", "s_memtime s[96:97]", "s_memrealtime s[94:95]", "s_waitcnt lgkmcnt(0)", "s_mov_b32 s82, s96"]
    c += [f"s_lshl_b32 s96, s2, 2", f"s_add_u32 s96, s96, s{wave_sgpr}", "s_lshl_b32 s96, s96, 6", f"s_add_u32 s96, s96, {WS_PROF}",
          "s_mov_b64 exec, 1", "v_mov_b32 v20, 0"]
    for j, s in enumerate(list(range(83, 94)) + [94, 80, 82]):
        c += [f"v_mov_b32 v21, s{s}", f"buffer_store_dword v21, v20, s[{sO}:{sO+3}], s96 offen offset:{4*j}"]
    c += ["s_getreg_b32 s97, hwreg(HW_REG_XCC_ID)", "v_mov_b32 v21, s97", f"buffer_store_dword v21, v20, s[{sO}:{sO+3}], s96 offen offset:60"]
    return c
```

```python
from asmlib import *
from layout import *
import p1, p3, p4
def strip_w0(tr):
    out = []; i = 0
    while i < len(tr):
        if tr[i] == "s_cmp_lg_u32 s16, 0" and tr[i+1].startswith("s_cbranch_scc1 "):
            lbl = tr[i+1].split()[1] + ":"
            out += tr[i:i+2]
            while tr[i] != lbl: i += 1
        if tr[i].startswith("s_cbranch_scc0 P1_N") and not tr[i].startswith("s_cbranch_scc0 P1_NG"):
            lbl = tr[i].split()[1] + ":"
            out.append(tr[i])
            while tr[i] != lbl: i += 1
        out.append(tr[i]); i += 1
    return out
def gen():
    M = [prof_mark(i) for i in range(11)]
    sel = os.environ.get("MARKS", "pro,pair,p2,p3,ep,p4,b0,bf,st,pl").split(",")
    mk = lambda name: M[1 + sel.index(name)] if name in sel else []
    head = ["s_cmp_ge_u32 s2, 256", "s_cbranch_scc1 F_END"] + prof_start()
    P = p1.prologue(mk)
    P = P[:-2] + mk("pro") + P[-2:]
    p1.MK[0] = mk; p4.MK[0] = mk
    V = [p1.version(0), p1.version(1)]
    Q = p1.p2(p3.kv_setup(p1.vLN), p3.kv_dma0(), p3.kv_dma1(), p3.kv_dma2(), p3.mask_setup(p1.vLN), p3.wo_ptrs(), p3.wo_touch(p1.vLN), p3.out_ptr(), p3.start_parts(p1.vLN))
    Q = Q[:1] + mk("p2") + Q[1:] + mk("p3")
    A, Aslow, Atr = p3.gen(p1.vLN, p4.early(), mk("ep"), mk)
    B, Bslow, Btr = p4.gen(p3.h_stores(), mk("b0"), mk("bf"), mk("st"), mk("pl"))
    B = mk("p4") + B; Btr = [mk("p4") + t for t in Btr]
    end = prof_end(0, 8, 16) + ["F_END:", "s_endpgm"]
    pm = mk("pair")
    fronts = []
    for v in V:
        fronts.append(head + P + v["head"] + v["pair"] + pm + v["br"] + v["u2"] + v["u3"] + v["u4"])
        fronts.append(head + P + v["head"] + v["pair"] + pm + v["br"] + v["skip"] + v["u3"] + v["u4"])
    sk = V[0]["skip"]
    for l in ("P1_NG0", "P1_NG"):
        a = sk.index("s_cbranch_scc0 " + l); b = sk.index(l + ":"); sk = sk[:a+1] + sk[b:]
    fronts.append(head + P + V[0]["head"] + V[0]["pair"] + pm + V[0]["br"] + sk + V[0]["u3"] + V[0]["u4"])
    traces = [f + Q + Atr[3] + Btr[0] + end for f in fronts] + [fronts[0] + Q + t + Btr[0] + end for t in Atr] + [fronts[0] + Q + Atr[0] + Btr[1] + end]
    def noretry(tr):
        out = []; i = 0
        while i < len(tr):
            out.append(tr[i])
            if tr[i].startswith("s_cbranch_vccz ") or tr[i].endswith("; exit"):
                lbl = tr[i].split()[1] + ":"
                while tr[i] != lbl: i += 1
                out.append(tr[i])
            i += 1
        return out
    traces += [strip_w0(t) for t in traces] + [noretry(t) for t in traces[:6]]
    res = resolve_vm(traces)
    errs = []
    for i, t in enumerate(traces): errs += check_trace(apply_vm(t, res), f"tr{i}")
    if errs and not os.environ.get('K2X'):
        print("\n".join(errs[:40])); raise Exception("hazards")
    print("vm", res)
    v0, v1 = V
    code = head + P + v0["head"] + v0["pair"] + pm + v0["br"] + v0["u2"] + v0["u3"] + v0["u4"] + Q + A + B + end
    code += v1["head"] + v1["pair"] + pm + v1["br"] + v1["u2"] + v1["u3"] + v1["u4"] + ["s_branch P2"]
    code += v0["skip"] + v1["skip"] + Aslow + Bslow + p1.tabdata()
    code = apply_vm(code, res)
    if os.environ.get('AL8'):
        import align8; code = align8.align(code)
    return code
if __name__ == "__main__":
    print(len(gen()))
```

```python
from asmlib import *
from layout import *
import os
def flat(l):
    o = []
    for x in l: o += [x] if isinstance(x, str) else x
    return o
SC = " sc1"
NT = os.environ.get("NT", " nt")
SCE = os.environ.get("SCE", " sc1")
def table():
    rows = []; one = fbits(1.0)
    for cg in range(32):
        if cg < 13:
            t0 = 5 * cg; n = min(5, 64 - t0)
            e = [1, 0, 8192, 0, t0, 0, t0 * 128, 256, 512, 1024, 16384, 128, fbits(LOG2E * 128 ** -0.5), WS_KV, MB, 2048]
        elif cg < 26:
            t0 = 5 * (cg - 13); n = min(5, 64 - t0)
            e = [1, 1, 8192, 1, t0, 0, t0 * 128, 512, 256, 16384, 2048, 1024, one, WS_KV + 8192, MB, 4096]
        elif cg < 28:
            t0 = 4 * (cg - 26); n = 4
            e = [0, 2, 3072, 0, t0, 0, t0 * 128, 65536, 512, 131072, 1024, 256, fbits(LOG2E * 0.25), WS_QB, 8 * 65536, 4 * 65536]
        elif cg < 30:
            t0 = 4 * (cg - 28); n = 4
            e = [0, 2, 3072, 0, t0, 0, 1024 + t0 * 128, 131072, 512, 262144, 2048, 256, one, WS_KVB, 8 * 131072, 4 * 131072]
        else:
            t0 = 4 * (cg - 30); n = 4
            e = [0, 2, 3072, 1, t0, 0, 2048 + t0 * 128, 512, 256, 2048, 262144, 131072, one, WS_KVB + 1024, 8 * 131072, 4 * 131072]
        e[5] = (1 if n == 4 else 0) | (2 if cg == GATE_CG else 0)
        if n == 4: e[5] |= [12, 25, 26, 27, 28, 29, 30, 31].index(cg) << 8
        e[5] |= cg << 16
        rows.append(e)
    slack = [12, 25, 26, 27, 28, 29, 30, 31]; reg = [g for g in range(32) if g not in slack]
    order = []
    sl_order = [12, 26, 27, 28, 25, 29, 30, 31]
    for j in range(8): order += reg[3*j:3*j+3] + [sl_order[j]]
    return [rows[g] for g in order] if os.environ.get('SPREAD') else rows
GATE_CG = 28
TOUCH = os.environ.get("TOUCH", "cjwqo")
RT = os.environ.get("RT", "3")
TPOS = os.environ.get("TPOS", "c")
vTCH = 23
vCT = 22
ACC = [32, 96, 160]; WR = [224, 240]
vW = [1, 2, 3, 4]; vWD = [5, 6, 7, 8]; vXD = [9, 10, 11, 12]; vXR = [13, 14]; vXN = [15, 16]
vEP, vL3, vWC, vLN, vJQ, vFL, vPF = 17, 18, 19, 20, 21, 26, 27
sWS, sW, sWAVE, sH, sI, sDBG, sX, sE = 8, 12, 16, 17, 18, 40, 44, 48
sLW, sLX, sWOFF, sK128, sK128m, sUSW, sXA, sXB, sTE, sT0, sT1, sRT = 19, 20, 21, 22, 23, 24, 25, 26, 27, 28, 29, 30
sO0 = 32
sB0 = 36
sZ0, sZ1 = 37, 31
sK128t, sEN = 38, 39
sKC = [22, 23, 24, 38]
sR = 3
ROT1, ROT2 = [int(x) for x in os.environ.get('ROT', '0,3').split(',')]
sR2 = 5
sXC = [76, 77, 78, 79]
ROT3 = os.environ.get('ROT3', '0') == '1'
sPW, sCG = 5, 4
sWQ, sXP = 52, 54
sTB = 56
T_XSEL, T_WSEL, T_STR, T_OR, T_T0, T_FL, T_WCOL, T_A1, T_A2, T_SP, T_SJ1, T_SJ0, T_SC, T_B0, T_TS1, T_TS0 = [sTB + i for i in range(16)]
XB = 65536
QA_ = 0

def xa(rt, ks): return (ks * 4 + rt) * 4
def acc(p, I, J): return ACC[p] + (I * 4 + J) * 4
def slot_mfmas(p, o, kc):
    out = []
    for c in range(4):
        wb = WR[c & 1]
        for r in range(4):
            for ks in range(4):
                d = acc(p, c, r) if o == 0 else acc(p, r, c)
                w = vr(wb + 4 * ks, 4); x = ar(xa(r, 4 * kc + ks), 4)
                a, b = (w, x) if o == 0 else (x, w)
                cin = "0" if (kc == 0 and ks == 0) else vr(d, 4)
                out.append(f"v_mfma_f32_16x16x32_bf16 {vr(d,4)}, {a}, {b}, {cin}")
    return out
def tr_reads(pos, c):
    wb = WR[c & 1]
    return [f"ds_read_b64_tr_b16 {vr(wb + 4*ks + 2*e, 2)}, v{vW[c]} offset:{pos*16384 + ks*4096 + e*512}" for ks in range(4) for e in range(2)]
def w_dma(pos, el, nt=''):
    out = [f"s_add_u32 m0, s{sLW}, {pos*16384}", f"s_add_u32 s{sWOFF}, s{sKC[el[1]]}, {128*el[0]}"]
    for i in range(4):
        out.append(f"buffer_load_dwordx4 v{vWD[i]}, {sr(sW,4)}, s{sWOFF} offen offset:{i*1024}{nt} lds" + (" ; grpend:w" if i == 3 else ""))
    return out
def x_dma(sc):
    out = []; o = 128 * (sc & 1)
    for hf in range(2):
        out += [f"s_add_u32 m0, s{sLX}, {(sc % 3)*8192 + hf*4096 - o}", f"s_add_u32 s{sT0}, s{sXB if hf else sXA}, s{sXC[sc >> 1]}"]
        for i in range(4):
            out.append(f"buffer_load_dwordx4 v{vXD[i]}, {sr(sX,4)}, s{sT0} offen offset:{i*1024 + o} lds" + (" ; grpend:x" if hf == 1 and i == 3 else ""))
    return out
def x_reads(sc, nat):
    v = vXN if nat else vXR
    return [f"ds_read_b128 {ar(xa(rt, 2*sc + k2), 4)}, v{v[k2]} offset:{(sc % 3)*8192 + rt*2048}" for rt in range(4) for k2 in range(2)]
def w_lane_setup(stride, t, col, xc=sXC):
    o = [f"v_mad_u32_u24 v{vWD[0]}, v{vL3}, {stride}, v{vWC}", f"s_lshl_b32 s{t}, {stride}, 3", f"s_sub_u32 s{t}, s{t}, 1024",
         f"v_xor_b32 v{vWD[1]}, 64, v{vWD[0]}", f"v_add_u32 v{vWD[1]}, s{t}, v{vWD[1]}", f"s_lshl_b32 s{t}, s{t}, 1",
         f"v_add_u32 v{vWD[2]}, s{t}, v{vWD[0]}", f"v_add_u32 v{vWD[3]}, s{t}, v{vWD[1]}",
         f"s_mul_i32 s{sWOFF}, {stride}, s{sWAVE}", f"s_lshl_b32 s{sWOFF}, s{sWOFF}, 5", f"s_add_u32 s{sWOFF}, s{sWOFF}, {col}"]
    for kc in range(4):
        o += [f"s_lshr_b32 s{t}, s{xc[kc]}, 1", f"s_mul_i32 s{t}, s{t}, {stride}", f"s_add_u32 s{sKC[kc]}, s{sWOFF}, s{t}"]
    return o
def e_addr():
    return [f"s_lshr_b32 s{sT1}, s{sTE}, 1", f"s_mul_i32 s{sO0}, s{sT1}, s{T_TS1}", f"s_and_b32 s{sT1}, s{sTE}, 1", f"s_mul_i32 s{sT1}, s{sT1}, s{T_TS0}",
            f"s_add_u32 s{sO0}, s{sO0}, s{sT1}", f"s_add_u32 s{sO0}, s{sO0}, s{sB0}", f"s_add_u32 s{sTE}, s{sTE}, 1",
            f"s_add_u32 s{sO0+1}, s{sO0}, s{T_SJ0}", f"s_add_u32 s{sO0+2}, s{sO0}, s{T_SJ1}", f"s_add_u32 s{sO0+3}, s{sO0+2}, s{T_SJ0}"]
def pipeline(units):
    out = []; prev = None
    for pre, cv, post in units:
        out += pre + cv[:2]
        if prev: out += prev[:2]
        out += cv[2:]
        if prev: out += prev[2:]
        prev = post
    return out + ["s_nop 1"] + prev
def cvt4(T0, T1):
    return [f"v_cvt_pk_bf16_f32 v{T0}, v{T0}, v{T0+1}", f"v_cvt_pk_bf16_f32 v{T0+1}, v{T0+2}, v{T0+3}",
            f"v_cvt_pk_bf16_f32 v{T0+2}, v{T1}, v{T1+1}", f"v_cvt_pk_bf16_f32 v{T0+3}, v{T1+2}, v{T1+3}"]
def swaps(T0): return [f"v_permlane16_swap_b32 v{T0}, v{T0+2}", f"v_permlane16_swap_b32 v{T0+1}, v{T0+3}"]
def epilogue(p, mul):
    u = []
    for pp in range(2):
        for J in range(4):
            T0, T1 = acc(p, 2*pp, J), acc(p, 2*pp+1, J)
            pre = [f"v_mul_f32 v{T+r}, s{T_SC}, v{T+r}" for T in (T0, T1) for r in range(4)] if mul else []
            post = swaps(T0) + [f"buffer_store_dwordx4 {vr(T0,4)}, v{vEP}, {sr(sE,4)}, s{sO0+J} offen{SCE}" + (" ; grpend:st" if pp == 1 and J == 3 else "")]
            if pp == 0: post.append(f"s_add_u32 s{sO0+J}, s{sO0+J}, s{T_SP}")
            u.append((pre, cvt4(T0, T1), post))
    return e_addr() + pipeline(u)
def q_epilogue(p, u, a):
    un = []
    if True:
        for rt in range(4):
            T0, T1 = acc(p, 2*a, rt), acc(p, 2*a+1, rt); q = QA_ + 16*rt + 4*(2*u + a)
            un.append(([], cvt4(T0, T1), swaps(T0) + [f"v_accvgpr_write_b32 a{q+r}, v{T0+r}" for r in range(4)]))
    return pipeline(un)

TRG = [0, 1, 2, 4, 5, 6, 8, 9]; DMAG = [3, 7, 11, 15]; XRG = [3, 7, 10, 11, 12, 13, 14, 15]
def place_dma(S, g0, grp):
    S.add(g0 + 0, grp[0]); S.add(g0 + 1, grp[1])
    for i in range(4): S.add(g0 + DMAG[i], grp[2 + i])
class Block:
    def __init__(self, name, slots, nextpos, qx=None, qd=None):
        self.name = name
        qx = dict(qx or {}); qd = dict(qd or {})
        m = []
        for q, s in enumerate(slots):
            m += slot_mfmas(s["p"], s["o"], s["kc"])
            if s.get("xr") is not None: qx[4*q] = (s["xr"], s["xk"])
            if s.get("xd") is not None: qd[4*q+1] = x_dma(s["xd"])[:6]; qd[4*q+2] = x_dma(s["xd"])[6:]
            if "wstep" in s: qd[4*q+3] = w_dma(s["pos"], s["wstep"], s.get("nt", ""))
        S = self.S = Sched(m, 16)
        for q, s in enumerate(slots):
            for c in range(4):
                Q = 4 * q + c; g0 = Q * 16
                lg = "lgkmcnt(4)" if (Q - 1) in qx else "lgkmcnt(0)"
                pre = []
                if Q in qx: pre.append(f"s_waitcnt vmcnt(@{name}{Q}x:{qx[Q][1]}:x)")
                if c == 3 and not s.get("nobar"):
                    need = s.get("need", [f"{s.get('wk', 2)}:w"])
                    for k, nd in enumerate(need): pre.append(f"s_waitcnt vmcnt(@{name}{q}w{k}:{nd})")
                    pre[-1] += " " + lg
                    pre += s.get("prebar", []) + ["s_barrier"] + s.get("postbar", [])
                elif pre: pre[-1] += " " + lg
                else: pre.append("s_waitcnt " + lg)
                S.before(g0, pre)
                if c < 3: rd = tr_reads(s["pos"], c + 1)
                else:
                    np_ = slots[q+1]["pos"] if q + 1 < len(slots) else nextpos
                    rd = tr_reads(np_, 0) if np_ is not None else []
                for i, r in enumerate(rd): S.add(g0 + TRG[i], r)
                if Q in qx:
                    for i, r in enumerate(x_reads(qx[Q][0], s.get("nat", False))): S.add(g0 + XRG[i], r)
                if Q in qd: place_dma(S, g0, qd[Q])
    def emit(self):
        print("P1 block", self.name, "over", self.S.over())
        return self.S.emit()


def pair_slots(pa, pb, o, nat, tailw):
    sl = []
    for q in range(8):
        d = dict(p=pb if q & 1 else pa, o=o, kc=q >> 1, pos=q & 3, nat=nat)
        if q < 4: d["wstep"] = (q & 1, (q + 4) >> 1)
        if q < 6: d["xr"] = q + 2; d["xk"] = min(2, 5 - q)
        if q < 3: d["xd"] = q + 5
        if not tailw and q >= 4: d["wk"] = max(0, 6 - q)
        sl.append(d)
    return sl
def unit_slots(p, o): return [dict(p=p, o=o, kc=s, pos=s, wstep=(4, s)) for s in range(4)]

def flag_store(off_code, val):
    return off_code + [f"v_mov_b32 v{vFL}, {val}", "s_mov_b64 exec, 1", f"buffer_store_dword v{vFL}, off, {sr(sWS,4)}, s{sZ0}{SC}", "s_mov_b64 exec, -1"]
def w0only(code, lbl): return [f"s_cmp_lg_u32 s{sWAVE}, 0", f"s_cbranch_scc1 {lbl}"] + code + [f"{lbl}:"]
F1OFF = [f"s_lshl_b32 s{sZ0}, s{sCG}, 7", f"s_lshr_b32 s{sZ1}, s{sRT}, 1", f"s_add_u32 s{sZ0}, s{sZ0}, s{sZ1}", f"s_add_u32 s{sZ0}, s{sZ0}, {WS_F1}"]

NT = os.environ.get("NT", " nt")
def lin_touch():
    c = []; A = c.append
    A(f"v_and_b32 v31, 31, v{vLN}"); A("v_lshlrev_b32 v31, 7, v31")
    A("s_mov_b32 s99, 0x20000"); A(f"s_mov_b32 s98, {2*MB}"); A("s_lshl_b32 s100, s2, 1"); A(f"s_and_b32 s101, s{sWAVE}, 1"); A("s_add_u32 s100, s100, s101"); A("s_lshl_b32 s100, s100, 12")
    A(f"s_cmp_lt_u32 s{sWAVE}, 2"); A("s_cselect_b64 s[96:97], s[74:75], s[72:73]")
    A(f"buffer_load_dword v{vTCH}, v31, s[96:99], s100 offen")
    return c
def touch_setup():
    return [f"v_and_b32 v30, 15, v{vLN}", f"s_lshl_b32 s101, s{sRT}, 3", "v_add_u32 v30, s101, v30", f"v_mul_u32_u24 v28, s{T_STR}, v30",
            "v_lshl_add_u32 v30, v24, 7, v28", f"v_lshrrev_b32 v31, 4, v{vLN}", "v_min_u32 v31, 2, v31", "v_lshl_add_u32 v28, v31, 7, v28"]
def touch_w3(): return [f"buffer_load_dword v{vTCH}, v28, {sr(sW,4)}, s{T_WCOL} offen{NT}"]
def touch_w2(): return [f"buffer_load_dword v{vTCH}, v30, {sr(sW,4)}, s{T_WCOL} offen offset:384" + os.environ.get("NT2", "")]
def touch_q():
    return [f"s_mov_b64 s[96:97], {sr(sWQ,2)}", f"s_mov_b32 s98, {4*MB}", "s_mov_b32 s99, 0x20000", f"s_lshl_b32 s101, s{sH}, 8",
            f"buffer_load_dword v{vTCH}, v29, s[96:99], s101 offen" + os.environ.get("NT3", "")]
def touch_x(k):
    c = []
    if k == 0:
        c = [f"s_mov_b64 s[96:97], {sr(sXP,2)}", f"s_mov_b32 s98, {2*MB}", "s_lshr_b32 s100, s2, 3", "s_lshl_b32 s100, s100, 2", f"s_add_u32 s100, s100, s{sWAVE}",
             "s_lshl_b32 s100, s100, 14", f"v_and_b32 v31, 15, v{vLN}", "v_lshlrev_b32 v31, 10, v31", "v_lshl_add_u32 v31, v24, 7, v31"]
    return c + [f"buffer_load_dword v{vTCH}, v31, s[96:99], s100 offen offset:{256*k}"]
def code_touch(srd):
    return [f"s_mov_b64 {sr(srd,2)}, s[6:7]", f"s_mov_b32 s{srd+2}, P1_TAB-P1_PC", f"s_mov_b32 s{srd+3}, 0x20000", f"buffer_load_dword v{vTCH}, v{vCT}, {sr(srd,4)}, 0 offen"]
MK = [lambda n: []]
def version(o):
    mul = (o == 0)
    code = [f"P1_V{o}:"]
    code += [f"v_mad_u32_u24 v{vEP}, v24, s{T_A1}, v{vJQ if o == 0 else 26}", f"v_mad_u32_u24 v{vEP}, v25, s{T_A2}, v{vEP}"]
    if o == 0:
        code += [f"s_mul_i32 s{sT1}, s{T_XSEL}, {4096 - 128}", f"v_bfe_u32 v27, v{vLN}, 2, 1", f"v_mad_u32_u24 v{vEP}, v27, s{sT1}, v{vEP}"]
    code += [
             f"s_mul_i32 s{sT1}, s{T_SJ1 if o == 0 else T_SP}, s{sRT}", f"s_add_u32 s{sB0}, s{T_B0}, s{sT1}"]
    RO = os.environ.get("RO", "0") == "1"
    seq = [(q % 3, q // 3) for q in range(12)]
    if RO: seq = seq[:6] + [(0, 2), (0, 3), (1, 2), (1, 3), (2, 2), (2, 3)]
    seq += [(3, k) for k in range(4)]
    step = lambda e: seq[e]
    sl = [dict(p=seq[q][0], o=o, kc=seq[q][1], pos=q & 3, wstep=step(q + 4)) for q in range(12)]
    del sl[0]["wstep"]; del sl[1]["wstep"]
    X = lambda sc, h: x_dma(sc)[6*h:6*h+6]
    qd = {2: w_dma(3, step(3), NT), 3: X(2,0), 4: X(2,1), 5: X(3,0), 6: X(3,1), 7: w_dma(0, step(4), NT), 8: w_dma(1, step(5), NT),
          12: X(4,0), 13: X(4,1), 14: X(5,0), 16: X(5,1), 17: X(6,0), 18: X(6,1), 21: X(7,0), 22: X(7,1)}
    qx = {9: (2, 1), 10: (3, 0), 20: (4, 2), 22: (5, 1), 24: (6, 1), 28: (7, 0)}
    if True:
        for k in (12, 13, 14, 16, 17, 18, 21, 22): del qd[k]
        XL = [int(x) for x in os.environ.get("XL", "14,16,17,18,20,21,24,25").split(",")]
        for k, qq in enumerate(XL): qd[qq] = X(4 + k // 2, k & 1)
        XR = [int(x) for x in os.environ.get("XR", "21,22,28,30").split(",")]
        qx = {9: (2, 1), 10: (3, 0)}
        for k, qq in enumerate(XR):
            ended = sum(1 for j in range(4) if XL[2*j+1] < qq)
            assert ended > k and XL[2*k+1] < qq
            qx[qq] = (4 + k, ended - 1 - k)
        assert XR[1] <= 22 and XL[6] >= XR[0] + 3 - (XR[1] != XR[0] + 1)
    if RO: del qx[28]; qx[26] = (7, 0)
    sl[1]["wk"] = 1
    for q in range(8): sl[q]["nt"] = NT
    sl[2]["postbar"] = w0only([f"s_and_b32 s{sZ0}, s2, 1", f"s_lshl_b32 s{sZ0}, s{sZ0}, 7", f"v_mov_b32 v{vFL}, 1", "s_mov_b64 exec, 1",
                               f"buffer_atomic_add v{vFL}, off, {sr(sDBG,4)}, s{sZ0} sc1", "s_mov_b64 exec, -1"], f"P1_CL{o}")
    XQ = [int(x) for x in os.environ.get("XQ", "32,33,34,36,37,38").split(",")]
    for k, qq in enumerate(XQ): qd[qq] = X(k // 2, k & 1)
    B = Block(f"a{o}", sl, 0, qx, qd)
    TQ = [int(x) for x in os.environ.get("TQ", "12,26").split(",")]
    if TPOS == "q": B.S.before(9 * 16, [lin_touch()[-1]] + touch_w3())
    B.S.fill(touch_w2(), TQ[0] * 16, TQ[0] * 16 + 16)
    B.S.fill(touch_q(), TQ[1] * 16, TQ[1] * 16 + 16)
    sw = [f"s_mov_b64 {sr(sX,2)}, {sr(sXP,2)}",
          f"s_lshl_b32 s{sXA}, s{sI}, 2", f"s_add_u32 s{sXA}, s{sXA}, s{sWAVE}", f"s_sub_u32 s{sXB}, 63, s{sXA}",
          f"s_lshl_b32 s{sXA}, s{sXA}, 15", f"s_lshl_b32 s{sXB}, s{sXB}, 15", f"s_add_u32 s{sR2}, s{sH}, s{sI}", f"s_and_b32 s{sR2}, s{sR2}, {ROT2}", f"s_lshl_b32 s{sR2}, s{sR2}, 8",
          f"s_mov_b32 s{sR}, s{sXC[1]}"] + [f"s_xor_b32 s{sXC[kc]}, s{sR2}, {256*kc}" for kc in range(4)]
    B.S.pack(sw, 29 * 16, 30 * 16)
    if "1" in RT: B.S.fill(code_touch(96), 29 * 16, 30 * 16)
    e1, e2, e3 = epilogue(1, mul), epilogue(2, mul), epilogue(0, mul)
    stores = lambda e: [i for i, x in enumerate(e) if x.startswith("buffer_store")]
    if RO:
        E0, N1 = [int(x) for x in os.environ.get("E0", "8,4").split(",")]
        c1 = len(e1) if N1 == 8 else stores(e1)[N1 - 1] + 2
        B.S.fill(epilogue(0, mul), E0 * 64 + 3, 10 * 64 + 40); B.S.fill(e1[:c1], 10 * 64 + 40, 12 * 64 - 2); e1 = e1[c1:]
    else: B.S.fill(epilogue(0, mul), 10 * 64 + 3, 12 * 64 - 2)
    for q in range(1, 12): B.S.before(q * 64, MK[0](f"s{q}"))
    pair = B.emit()
    NC = int(os.environ.get("NC", "6"))
    cut = len(e2) if NC == 8 else stores(e2)[NC - 1] + 2
    B = Block(f"c{o}", unit_slots(0, o), 0)
    if "2" in RT: B.S.fill(code_touch(96), 128, 144)
    B.S.fill(e1 + e2[:cut], 3, 254)
    for q in range(1, 4): B.S.before(q * 64, MK[0](f'c{q}'))
    u3 = B.emit()
    sl = unit_slots(1, o)
    for q in range(4): sl[q]["wstep"] = (q & 1, q >> 1)
    sl[2].update(xr=0, xk=2, xd=3, nat=True); sl[3].update(xr=1, xk=2, xd=4, nat=True)
    B = Block(f"d{o}", sl, 0)
    sw2 = [f"s_mov_b64 {sr(sW,2)}, {sr(sWQ,2)}", f"s_mov_b32 s{sW+2}, {4*MB}", f"s_mov_b32 s{T_STR}, 8192", f"s_lshl_b32 s{T_WCOL}, s{sH}, 8"] + w_lane_setup(f"s{T_STR}", sZ1, f"s{T_WCOL}")
    B.S.pack(sw2, 0, 46)
    B.S.fill(e2[cut:] + [f"s_mov_b32 s{sE+2}, s{sEN}"] + e3 + [f"s_mov_b32 s{sE+2}, {WS_END}"], 3, int(os.environ.get("E3", "176")))
    for q in range(0, 4): B.S.before(q * 64, MK[0](f'd{q}'))
    u4 = B.emit()
    skip = [f"P1_SK{o}:", "s_nop 7"] + (gate_load() if o == 0 else []) + flat(e1) + (gate() if o == 0 else []) + flat(e2[:cut]) + \
           [f"s_mov_b32 s{sEN}, 0", f"s_sub_u32 s{sTE}, s{sTE}, 1", f"s_branch P1_U4{o}"]
    br = [f"s_bitcmp1_b32 s{T_FL}, 0", f"s_cbranch_scc1 P1_SK{o}"]
    return dict(head=code, pair=pair, br=br, u2=u3, u3=[], u4=[f"P1_U4{o}:"] + u4, skip=skip)

sGW = 72
def gate_load():
    c = [f"s_bitcmp1_b32 s{T_FL}, 1", "s_cbranch_scc0 P1_NG0"]; A = c.append
    G = ACC[0]
    A(f"v_lshrrev_b32 v27, 4, v{vLN}"); A("v_lshlrev_b32 v28, 4, v27")
    gx = [None, sR, 100, 101]
    c += chunk_next(gx)
    for ks in range(16):
        A(f"buffer_load_dwordx4 {vr(G+4*ks,4)}, v28, {sr(sGW,4)}, {'s%d' % gx[ks//4] if ks >= 4 else 0} offen offset:{(ks%4)*64}" + (" ; grpend:gw" if ks == 15 else ""))
    A("P1_NG0:")
    return c
def gate():
    c = [f"s_bitcmp1_b32 s{T_FL}, 1", "s_cbranch_scc0 P1_NG"]; A = c.append
    G = ACC[0]; D = WR[1]
    A("s_waitcnt vmcnt(@gw:0:gw)")
    for rt in range(4):
        for ks in range(16):
            A(f"v_mfma_f32_16x16x32_bf16 {vr(D+4*rt,4)}, {vr(G+4*ks,4)}, {ar(xa(rt,ks),4)}, " + ("0" if ks == 0 else vr(D+4*rt,4)))
    A("s_nop 7")
    for g in range(1, 4):
        A(f"v_cmp_eq_u32 vcc, {g}, v27"); A("s_nop 1"); A(f"v_cndmask_b32 v{D}, v{D}, v{D+4*g}, vcc")
    A(f"v_mul_f32 v{D}, {hex(fbits(-LOG2E))}, v{D}"); A(f"v_exp_f32 v{D}, v{D}"); A("s_nop 0")
    A(f"v_add_f32 v{D}, 1.0, v{D}"); A(f"v_rcp_f32 v{D}, v{D}")
    A(f"v_lshrrev_b32 v28, 2, v{vJQ}"); A("v_lshl_add_u32 v28, v27, 6, v28")
    A(f"s_lshl_b32 s{sT0}, s{sRT}, 7"); A(f"s_add_u32 s{sT0}, s{sT0}, {WS_GATE}")
    A(f"buffer_store_dword v{D}, v28, {sr(sWS,4)}, s{sT0} offen{SC}")
    A("s_nop 1")
    A("P1_NG:")
    return c

def chunk_order(r, xc):
    o = [f"s_lshl_b32 s{xc[1]}, s{r}, 8", f"s_add_u32 s{xc[1]}, s{xc[1]}, 256"]
    return o + chunk_next(xc)
def chunk_next(xc):
    o = []
    for k in (2, 3): o += [f"s_add_u32 s{xc[k]}, s{xc[k-1]}, 256", f"s_cmp_eq_u32 s{xc[k]}, 1024", f"s_cselect_b32 s{xc[k]}, 256, s{xc[k]}"]
    return o
def prologue(mk=lambda n: []):
    c = []; A = c.append
    A(f"s_load_dwordx4 s[72:75], s[0:1], {KA_X}")
    A(f"s_load_dwordx4 s[76:79], s[0:1], {KA_WUK}")
    A(f"s_load_dwordx2 {sr(sWQ,2)}, s[0:1], {KA_WQ}")
    A(f"s_load_dwordx2 s[6:7], s[0:1], {KA_WQKV}")
    A(f"s_load_dwordx2 {sr(sWS,2)}, s[0:1], {KA_WS}")
    A(f"s_load_dwordx2 {sr(sDBG,2)}, s[0:1], {KA_DBG}")
    A(f"s_load_dwordx2 s[32:33], s[0:1], {KA_GATE}")
    A("s_getpc_b64 s[4:5]"); A("P1_PC:")
    A("s_mov_b64 s[96:97], s[4:5]"); A("s_mov_b32 s98, P1_TAB-P1_PC"); A("s_mov_b32 s99, 0x20000")
    A("s_lshr_b32 s3, s2, 3"); A("s_mul_i32 s3, s3, 5120")
    A(f"v_mul_u32_u24 v{vCT}, 20, v0"); A(f"v_add_u32 v{vCT}, s3, v{vCT}")
    A(f"buffer_load_dword v{vTCH}, v{vCT}, s[96:99], 0 offen")
    A("s_add_u32 s4, s4, P1_TAB-P1_PC"); A("s_addc_u32 s5, s5, 0")
    A("s_and_b32 s3, s2, 7"); A(f"s_lshr_b32 s{sH}, s2, 3"); A(f"s_and_b32 s{sI}, s{sH}, 7")
    A(f"s_lshr_b32 s{sH}, s{sH}, 3"); A("s_lshl_b32 s3, s3, 2"); A(f"s_add_u32 s{sH}, s{sH}, s3")
    A(f"s_lshl_b32 s3, s{sH}, 6")
    A(f"s_load_dwordx16 {sr(sTB,16)}, s[4:5], s3")
    A("v_lshrrev_b32 v27, 6, v0"); A(f"v_and_b32 v{vLN}, 63, v0")
    A(f"v_readfirstlane_b32 s{sWAVE}, v27")
    A(f"v_lshrrev_b32 v27, 4, v{vLN}")
    A(f"v_and_b32 v28, 15, v{vLN}")
    A("v_and_b32 v24, 1, v27"); A("v_lshrrev_b32 v25, 1, v27"); A("v_lshlrev_b32 v26, 4, v28")
    A("v_and_b32 v29, 3, v28"); A("v_bfe_u32 v30, v28, 2, 1"); A("v_bfe_u32 v31, v28, 3, 1")
    A("v_lshl_add_u32 v29, v30, 3, v29"); A("v_lshl_add_u32 v29, v31, 2, v29")
    A(f"v_lshlrev_b32 v{vJQ}, 4, v29")
    A(f"s_lshl_b32 s{sLW}, s{sWAVE}, 12")
    A(f"s_mul_i32 s{sLX}, s{sWAVE}, 24576"); A(f"s_add_u32 s{sLX}, s{sLX}, {XB}")
    for src, dst in ((29, vXR), (28, vXN)):
        A(f"v_lshrrev_b32 v30, 1, v{src}"); A("v_xor_b32 v30, v30, v27"); A("v_lshlrev_b32 v30, 4, v30"); A(f"v_lshl_add_u32 v30, v{src}, 7, v30")
        A(f"v_add_u32 v{dst[0]}, s{sLX}, v30"); A(f"v_xor_b32 v{dst[1]}, 64, v{dst[0]}")
    A(f"v_lshrrev_b32 v{vL3}, 3, v{vLN}"); A(f"v_and_b32 v31, 7, v{vLN}")
    A("v_xor_b32 v30, v31, v27"); A("v_lshlrev_b32 v30, 4, v30"); A(f"v_lshl_add_u32 v{vXD[0]}, v{vL3}, 10, v30")
    A(f"v_xor_b32 v{vXD[1]}, 64, v{vXD[0]}"); A(f"v_add_u32 v{vXD[1]}, 7168, v{vXD[1]}")
    A(f"v_add_u32 v{vXD[2]}, 14336, v{vXD[0]}"); A(f"v_add_u32 v{vXD[3]}, 14336, v{vXD[1]}")
    A("v_lshlrev_b32 v30, 1, v24"); A("v_xor_b32 v30, v30, v31"); A(f"v_lshlrev_b32 v{vWC}, 4, v30")
    A("v_lshrrev_b32 v30, 2, v28"); A("v_lshl_add_u32 v29, v27, 3, v30"); A("v_lshlrev_b32 v29, 7, v29")
    A("v_and_b32 v31, 3, v28"); A("v_lshl_add_u32 v29, v31, 3, v29")
    A("v_lshrrev_b32 v30, 1, v30"); A("v_lshl_add_u32 v30, v24, 1, v30"); A("v_lshlrev_b32 v30, 5, v30")
    A(f"v_add_u32 v{vW[0]}, v29, v30")
    for ct in range(1, 4): A(f"v_xor_b32 v{vW[ct]}, {32*ct}, v{vW[0]}")
    A(f"s_lshl_b32 s{sRT}, s{sI}, 2"); A(f"s_add_u32 s{sRT}, s{sRT}, s{sWAVE}"); A(f"s_lshl_b32 s{sXA}, s{sRT}, 16")
    A(f"s_add_u32 s{sXB}, s{sXA}, 32768")
    A(f"s_and_b32 s{sZ1}, s{sH}, 3"); A(f"s_add_u32 s{sZ1}, s{sZ1}, s{sI}"); A(f"s_mul_i32 s{sZ0}, s{sZ1}, 11"); A(f"s_lshr_b32 s{sZ0}, s{sZ0}, 5"); A(f"s_mul_i32 s{sZ0}, s{sZ0}, 3")
    A(f"s_sub_u32 s{sZ1}, s{sZ1}, s{sZ0}" if ROT3 else f"s_mov_b32 s{sZ1}, 0")
    A(f"s_lshl_b32 s{sRT}, s{sRT}, 1")
    for s, n in ((sWS, WS_END), (sE, WS_END), (sX, 2*MB), (sDBG, 256), (sW, 4*MB)):
        A(f"s_mov_b32 s{s+2}, {n}"); A(f"s_mov_b32 s{s+3}, 0x20000")
    A("s_waitcnt lgkmcnt(0)")
    c += mk("ka")
    WSO = int(os.environ.get("WSO", "0")) * MB
    if WSO: A(f"s_add_u32 s{sWS}, s{sWS}, {WSO}"); A(f"s_addc_u32 s{sWS+1}, s{sWS+1}, 0")
    A(f"s_lshr_b32 s{sCG}, s{T_FL}, 16")
    A(f"s_cmp_eq_u32 s{T_XSEL}, 0"); A(f"s_cselect_b64 {sr(sX,2)}, s[72:73], s[74:75]")
    A(f"s_cmp_eq_u32 s{T_WSEL}, 0"); A(f"s_cselect_b64 {sr(sW,2)}, s[76:77], s[78:79]")
    A(f"s_mov_b32 s{sXC[0]}, 0")
    c += x_dma(0)
    c += chunk_order(sZ1, sXC)
    A(f"s_mov_b64 {sr(sXP,2)}, s[72:73]"); A(f"s_mov_b64 {sr(sE,2)}, {sr(sWS,2)}")
    A(f"s_cmp_eq_u32 s{T_WSEL}, 2"); A(f"s_cselect_b64 {sr(sW,2)}, s[6:7], {sr(sW,2)}"); A(f"s_cselect_b32 s{sW+2}, {512*3072}, s{sW+2}")
    A("s_mov_b64 s[6:7], s[96:97]")
    c += w_lane_setup(f"s{T_STR}", sT1, f"s{T_WCOL}")
    A(f"s_mov_b32 s{sEN}, {WS_END}")
    A(f"s_mov_b32 s{sTE}, s{T_T0}")
    c += touch_setup()
    if TPOS == "a": c += lin_touch() + touch_w3()
    c += mk("i0")
    c += w_dma(0, (0, 0), NT) + x_dma(1)
    c += mk("i1")
    if TPOS == "b": c += lin_touch() + touch_w3()
    vFL = 27
    z = F1OFF + [f"v_mov_b32 v{vFL}, 0", "s_mov_b64 exec, 1", f"buffer_store_dword v{vFL}, off, {sr(sWS,4)}, s{sZ0}{SC}",
                 f"s_lshl_b32 s{sZ0}, s{sI}, 7", f"s_lshl_b32 s{sZ1}, s{sH}, 2", f"s_add_u32 s{sZ0}, s{sZ0}, s{sZ1}", f"s_add_u32 s{sZ0}, s{sZ0}, {WS_F3}",
                 f"buffer_store_dword v{vFL}, off, {sr(sWS,4)}, s{sZ0}{SC}", f"buffer_store_dword v{vFL}, off, {sr(sWS,4)}, s{sZ0} offset:{WS_F4 - WS_F3}{SC}", "s_mov_b64 exec, -1"]
    c += w_dma(1, (1, 0), NT) + w_dma(2, (2, 0), NT)
    if TPOS == "c": c += lin_touch() + touch_w3()
    else: c += lin_touch()[:-1]
    A(f"s_mov_b64 {sr(sGW,2)}, s[32:33]"); A(f"s_mov_b32 s{sGW+2}, 1024"); A(f"s_mov_b32 s{sGW+3}, 0x20000")
    z = [f"buffer_load_dword v{vTCH}, v31, {sr(sGW,4)}, 0 offen"] + z
    if os.environ.get("PGT"):
        z = [f"v_lshlrev_b32 v27, {os.environ['PGT']}, v{vLN}", f"buffer_load_dword v{vTCH}, v27, {sr(sWS,4)}, 0 offen sc1"] + z
    c += w0only(z, "P1_Z")
    MAP = os.environ.get("MAP", "0")
    if MAP != "0":
        A(f"s_bfe_u32 s{sH}, s2, 0x20001"); A(f"s_lshl_b32 s{sH}, s{sH}, 3"); A(f"s_lshr_b32 s{sI}, s2, 5"); A(f"s_add_u32 s{sH}, s{sH}, s{sI}")
        A(f"s_and_b32 s{sI}, s2, 1")
        if MAP == "2": A(f"s_xor_b32 s{sI}, s{sI}, 1")
        A(f"s_lshl_b32 s{sI}, s{sI}, 2"); A(f"s_bfe_u32 s{sZ1}, s2, 0x20003"); A(f"s_add_u32 s{sI}, s{sI}, s{sZ1}")
    A(f"s_lshl_b32 s{sZ1}, s{sI}, 2"); A(f"s_add_u32 s{sZ1}, s{sZ1}, s{sWAVE}"); A(f"s_lshl_b32 s{sZ1}, s{sZ1}, 17")
    A(f"v_and_b32 v29, 15, v{vLN}"); A("v_lshlrev_b32 v29, 13, v29"); A("v_lshl_add_u32 v29, v24, 7, v29"); A(f"v_add_u32 v29, s{sZ1}, v29")
    c += mk("i2")
    A("s_waitcnt vmcnt(@Px0:1:x)"); c += mk("l0"); c += x_reads(0, False)
    A("s_waitcnt vmcnt(@Px1:0:x)"); c += mk("l1"); A("s_barrier"); c += tr_reads(0, 0) + x_reads(1, False)
    A(f"s_cmp_eq_u32 s{T_OR}, 0"); A("s_cbranch_scc0 P1_V1")
    return c

def p2(kv_setup, kv_dma0, kv_dma1, kv_dma2, mask_setup, wo_ptrs, wo_touch, out_ptr):
    sl = pair_slots(2, 0, 0, True, False)
    SG = int(os.environ.get("SG", "2"))
    sl[SG]["need"] = ["2:w", "0:st"]
    sl[SG]["postbar"] = w0only(flag_store(F1OFF, 1), "P2_S")
    def spin(lbl, load, cmp):
        return [f"s_mov_b32 s{sZ1}, 0x100000", f"s_waitcnt vmcnt(@{lbl}:0:fl)", f"{lbl}L:", cmp, "s_nop 0", f"s_cbranch_vccz {lbl}",
                "s_sleep 8", load, "s_waitcnt vmcnt(0)", f"s_sub_u32 s{sZ1}, s{sZ1}, 1", f"s_cmp_lg_u32 s{sZ1}, 0", f"s_cbranch_scc1 {lbl}L"]
    ld0 = f"buffer_load_dword v31, v29, {sr(sDBG,4)}, 0 offen sc1 ; grpend:fl"
    ld1 = f"buffer_load_dword v31, v{vPF}, {sr(sWS,4)}, 0 offen sc1 ; grpend:fl"
    sl[4]["prebar"] = w0only(spin("P2_C", ld0, "v_cmp_gt_u32 vcc, v30, v31"), "P2_C")
    sl[3]["postbar"] = sl[3].get("postbar", []) + w0only([ld0], "P2_L0")
    sl[5]["postbar"] = w0only([ld1], "P2_L1")
    sl[6]["prebar"] = w0only(spin("P2_D", ld1, "v_cmp_ne_u32 vcc, 1, v31"), "P2_D")
    sl[7]["nobar"] = True
    qx = qd = None
    if os.environ.get("P2J", "1") == "1":
        for d in sl:
            for k in ("xr", "xk", "xd"): d.pop(k, None)
        X = lambda sc, h: x_dma(sc)[6*h:6*h+6]
        qd = {9: X(5,0), 10: X(5,1), 12: X(6,0), 13: X(6,1), 16: X(7,0), 17: X(7,1)}
        qx = {0: (2, 2), 4: (3, 1), 8: (4, 0), 14: (5, 1), 20: (6, 1), 22: (7, 0)}
    B = Block("q", sl, None, qx, qd)
    B.S.fill(epilogue(1, True), 3, int(os.environ.get("EE", "120")))
    B.S.fill(paddr(), 3 * 64, 3 * 64 + 46)
    B.S.fill(code_touch(52)[:3] + (code_touch(52)[3:] if '3' in RT else []), 3 * 64 + 50, 4 * 64)
    B.S.fill(wo_ptrs, 3 * 64 + 50, 3 * 64 + 62)
    WQ = int(os.environ.get("WQ", "19"))
    k = max(i for i, x in enumerate(wo_touch) if x.startswith("s_lshl_b32 s7") ) + 1
    B.S.fill(wo_touch[:k], 18 * 16, 19 * 16); B.S.fill(wo_touch[k:], WQ * 16, WQ * 16 + 48)
    B.S.fill(out_ptr, 18 * 16, 18 * 16 + 8)
    B.S.fill(mask_setup, 4 * 64, 5 * 64 + 46)
    B.S.fill(kv_setup, 5 * 64 + 46, 6 * 64 + 30)
    B.S.fill(kv_dma0, 6 * 64 + 48, 7 * 64 + 16)
    B.S.fill(kv_dma1, 7 * 64 + 16, 7 * 64 + 56)
    B.S.fill(q_epilogue(2, 0, 0), 6 * 64 + 34, 7 * 64 + 2)
    B.S.fill(q_epilogue(2, 0, 1), 7 * 64 + 3, 7 * 64 + 34)
    B.S.fill(q_epilogue(0, 1, 0), 7 * 64 + 35, 8 * 64)
    for q in range(1, 8): B.S.before(q * 64, MK[0](f'q{q}'))
    if os.environ.get("QOV"): print([ (g, B.S.load(g) - 16) for g in range(B.S.n) if B.S.load(g) > 16])
    qe = flat(q_epilogue(0, 1, 1)); tail = []
    k2 = list(kv_dma2)
    for i, x in enumerate(qe):
        if i % 3 == 0 and k2 and not (i and qe[i-1].startswith("s_nop")): tail.append(k2.pop(0))
        tail.append(x)
    return ["P2:"] + B.emit() + ["s_nop 1"] + tail + k2
def paddr():
    m5 = (1 << 32) // 5 + 1
    o = [f"s_lshl_b32 s{sT1}, s{sH}, 1", f"s_mul_hi_u32 s72, s{sT1}, {m5}", f"s_add_u32 s{sT1}, s{sT1}, 1", f"s_mul_hi_u32 s73, s{sT1}, {m5}",
         "s_add_u32 s74, s72, 13", "s_add_u32 s75, s73, 13", f"s_lshr_b32 s{sT1}, s{sH}, 4", f"s_add_u32 s32, s{sT1}, 26", f"s_add_u32 s33, s{sT1}, 28", f"s_add_u32 s34, s{sT1}, 30",
         f"v_mov_b32 v{vPF}, {GATE_CG}"]
    for k in range(7):
        o += [f"v_cmp_eq_u32 vcc, {k}, v{vL3}", f"v_mov_b32 v29, s{72+k if k < 4 else 28+k}", "s_nop 0", f"v_cndmask_b32 v{vPF}, v{vPF}, v29, vcc"]
    o += [f"v_and_b32 v29, 7, v{vLN}", "v_lshlrev_b32 v29, 2, v29", f"v_lshl_add_u32 v{vPF}, v{vPF}, 7, v29", f"v_add_u32 v{vPF}, {WS_F1}, v{vPF}",
          f"v_and_b32 v29, 1, v{vLN}", "v_lshlrev_b32 v29, 7, v29", "v_mov_b32 v30, 128"]
    return o
def tabdata():
    return [".p2align 6", ".type P1_TAB,@object", "P1_TAB:"] + [".long " + ", ".join(hex(x) for x in e) for e in table()]
```

```python
import sys, importlib
from asmlib import *
NAME = "gated_mix__compressed_kv_cla__mha_block__prompt"
def build(kernels, path):
    ref = open(f"cdna_kernels/{NAME}.s.ref").read().splitlines()
    head = [l for l in ref if l.startswith(";") and "@launch" not in l and "Override" not in l and "grid=ceil" not in l]
    out = head[:]
    if len(kernels) == 1: out.append(f"; @launch grid=({kernels[0][2]},1,1) block=({kernels[0][3]},1,1) lds={kernels[0][4]}")
    else:
        for k in kernels: out.append(f"; @launch kernel={k[0]} grid=({k[2]},1,1) block=({k[3]},1,1) lds={k[4]}")
    out.append(open("header.txt").read().rstrip())
    out += ['.amdgcn_target "amdgcn-amd-amdhsa--gfx950"', ".text"]
    for k in kernels:
        out += [f".globl {k[0]}", ".p2align 8", f".type {k[0]},@function", f"{k[0]}:"]
        for ins in k[1]():
            out.append(ins if (ins.endswith(":") or ins.startswith(".")) else "  " + ins)
    out += ['.section .rodata,"a"']
    for k in kernels: out += [".p2align 6", kernel_desc(k[0], k[5], k[6])]
    open(path, "w").write("\n".join(out) + "\n")
if __name__ == "__main__":
    import fused
    ks = [(NAME + "_kernel", fused.gen, 256, 256, 163840, 512, 256)]
    if os.environ.get("PREK"):
        def pre():
            c = ["s_cmp_ge_u32 s2, 256", "s_cbranch_scc1 PRE_END"]
            if os.environ["PREK"] == "stamp":
                c += ["s_load_dwordx2 s[8:9], s[0:1], 96", "s_memrealtime s[4:5]", "s_mov_b32 s10, 0x5000000", "s_mov_b32 s11, 0x20000", "s_waitcnt lgkmcnt(0)",
                      "v_mov_b32 v1, s4", "s_mov_b32 s6, 0x4f80000", "s_cmp_lg_u32 s2, 0", "s_cbranch_scc1 PRE_END", "buffer_store_dword v1, off, s[8:11], s6 sc1"]
            return c + ["PRE_END:", "s_endpgm"]
        ks = [("pre_kernel", pre, 256, 64, 0, 8, 8)] + ks
    build(ks, os.environ.get("OUT") or (f"cdna_kernels/{NAME}.s" if not PROF else "prof.s"))
```

```python
from asmlib import *
from layout import *
import os
def flat(l):
    o = []
    for x in l: o += [x] if isinstance(x, str) else x
    return o
SC = " sc1"
NT = os.environ.get("NT", " nt")
SCE = os.environ.get("SCE", " sc1")
def table():
    rows = []; one = fbits(1.0)
    for cg in range(32):
        if cg < 13:
            t0 = 5 * cg; n = min(5, 64 - t0)
            e = [1, 0, 8192, 0, t0, 0, t0 * 128, 256, 512, 1024, 16384, 128, fbits(LOG2E * 128 ** -0.5), WS_KV, MB, 2048]
        elif cg < 26:
            t0 = 5 * (cg - 13); n = min(5, 64 - t0)
            e = [1, 1, 8192, 1, t0, 0, t0 * 128, 512, 256, 16384, 2048, 1024, one, WS_KV + 8192, MB, 4096]
        elif cg < 28:
            t0 = 4 * (cg - 26); n = 4
            e = [0, 2, 3072, 0, t0, 0, t0 * 128, 65536, 512, 131072, 1024, 256, fbits(LOG2E * 0.25), WS_QB, 8 * 65536, 4 * 65536]
        elif cg < 30:
            t0 = 4 * (cg - 28); n = 4
            e = [0, 2, 3072, 0, t0, 0, 1024 + t0 * 128, 131072, 512, 262144, 2048, 256, one, WS_KVB, 8 * 131072, 4 * 131072]
        else:
            t0 = 4 * (cg - 30); n = 4
            e = [0, 2, 3072, 1, t0, 0, 2048 + t0 * 128, 512, 256, 2048, 262144, 131072, one, WS_KVB + 1024, 8 * 131072, 4 * 131072]
        e[5] = (1 if n == 4 else 0) | (2 if cg == GATE_CG else 0)
        if n == 4: e[5] |= [12, 25, 26, 27, 28, 29, 30, 31].index(cg) << 8
        e[5] |= cg << 16
        rows.append(e)
    slack = [12, 25, 26, 27, 28, 29, 30, 31]; reg = [g for g in range(32) if g not in slack]
    order = []
    sl_order = [12, 26, 27, 28, 25, 29, 30, 31]
    for j in range(8): order += reg[3*j:3*j+3] + [sl_order[j]]
    return [rows[g] for g in order] if os.environ.get('SPREAD') else rows
GATE_CG = 28
TOUCH = os.environ.get("TOUCH", "cjwqo")
RT = os.environ.get("RT", "3")
TPOS = os.environ.get("TPOS", "c")
vTCH = 23
vCT = 22
ACC = [32, 96, 160]; WR = [224, 240]
vW = [1, 2, 3, 4]; vWD = [5, 6, 7, 8]; vXD = [9, 10, 11, 12]; vXR = [13, 14]; vXN = [15, 16]
vEP, vL3, vWC, vLN, vJQ, vFL, vPF = 17, 18, 19, 20, 21, 26, 27
sWS, sW, sWAVE, sH, sI, sDBG, sX, sE = 8, 12, 16, 17, 18, 40, 44, 48
sLW, sLX, sWOFF, sK128, sK128m, sUSW, sXA, sXB, sTE, sT0, sT1, sRT = 19, 20, 21, 22, 23, 24, 25, 26, 27, 28, 29, 30
sO0 = 32
sB0 = 36
sZ0, sZ1 = 37, 31
sK128t, sEN = 38, 39
sKC = [22, 23, 24, 38]
sR = 3
ROT1, ROT2 = [int(x) for x in os.environ.get('ROT', '0,2').split(',')]
sR2 = 5
sXC = [76, 77, 78, 79]
ROT3 = os.environ.get('ROT3', '0') == '1'
sPW, sCG = 5, 4
sWQ, sXP = 52, 54
sTB = 56
T_XSEL, T_WSEL, T_STR, T_OR, T_T0, T_FL, T_WCOL, T_A1, T_A2, T_SP, T_SJ1, T_SJ0, T_SC, T_B0, T_TS1, T_TS0 = [sTB + i for i in range(16)]
XB = 65536
QA_ = 0

def xa(rt, ks): return (ks * 4 + rt) * 4
def acc(p, I, J): return ACC[p] + (I * 4 + J) * 4
def slot_mfmas(p, o, kc):
    out = []
    for c in range(4):
        wb = WR[c & 1]
        for r in range(4):
            for ks in range(4):
                d = acc(p, c, r) if o == 0 else acc(p, r, c)
                w = vr(wb + 4 * ks, 4); x = ar(xa(r, 4 * kc + ks), 4)
                a, b = (w, x) if o == 0 else (x, w)
                cin = "0" if (kc == 0 and ks == 0) else vr(d, 4)
                out.append(f"v_mfma_f32_16x16x32_bf16 {vr(d,4)}, {a}, {b}, {cin}")
    return out
def tr_reads(pos, c):
    wb = WR[c & 1]
    return [f"ds_read_b64_tr_b16 {vr(wb + 4*ks + 2*e, 2)}, v{vW[c]} offset:{pos*16384 + ks*4096 + e*512}" for ks in range(4) for e in range(2)]
def w_dma(pos, el, nt=''):
    out = [f"s_add_u32 m0, s{sLW}, {pos*16384}", f"s_add_u32 s{sWOFF}, s{sKC[el[1]]}, {128*el[0]}"]
    for i in range(4):
        out.append(f"buffer_load_dwordx4 v{vWD[i]}, {sr(sW,4)}, s{sWOFF} offen offset:{i*1024}{nt} lds" + (" ; grpend:w" if i == 3 else ""))
    return out
def x_dma(sc):
    out = []; o = 128 * (sc & 1)
    for hf in range(2):
        out += [f"s_add_u32 m0, s{sLX}, {(sc % 3)*8192 + hf*4096 - o}", f"s_add_u32 s{sT0}, s{sXB if hf else sXA}, s{sXC[sc >> 1]}"]
        for i in range(4):
            out.append(f"buffer_load_dwordx4 v{vXD[i]}, {sr(sX,4)}, s{sT0} offen offset:{i*1024 + o} lds" + (" ; grpend:x" if hf == 1 and i == 3 else ""))
    return out
def x_reads(sc, nat):
    v = vXN if nat else vXR
    return [f"ds_read_b128 {ar(xa(rt, 2*sc + k2), 4)}, v{v[k2]} offset:{(sc % 3)*8192 + rt*2048}" for rt in range(4) for k2 in range(2)]
def w_lane_setup(stride, t, col, xc=sXC):
    o = [f"v_mad_u32_u24 v{vWD[0]}, v{vL3}, {stride}, v{vWC}", f"s_lshl_b32 s{t}, {stride}, 3", f"s_sub_u32 s{t}, s{t}, 1024",
         f"v_xor_b32 v{vWD[1]}, 64, v{vWD[0]}", f"v_add_u32 v{vWD[1]}, s{t}, v{vWD[1]}", f"s_lshl_b32 s{t}, s{t}, 1",
         f"v_add_u32 v{vWD[2]}, s{t}, v{vWD[0]}", f"v_add_u32 v{vWD[3]}, s{t}, v{vWD[1]}",
         f"s_mul_i32 s{sWOFF}, {stride}, s{sWAVE}", f"s_lshl_b32 s{sWOFF}, s{sWOFF}, 5", f"s_add_u32 s{sWOFF}, s{sWOFF}, {col}"]
    for kc in range(4):
        o += [f"s_lshr_b32 s{t}, s{xc[kc]}, 1", f"s_mul_i32 s{t}, s{t}, {stride}", f"s_add_u32 s{sKC[kc]}, s{sWOFF}, s{t}"]
    return o
def e_addr():
    return [f"s_lshr_b32 s{sT1}, s{sTE}, 1", f"s_mul_i32 s{sO0}, s{sT1}, s{T_TS1}", f"s_and_b32 s{sT1}, s{sTE}, 1", f"s_mul_i32 s{sT1}, s{sT1}, s{T_TS0}",
            f"s_add_u32 s{sO0}, s{sO0}, s{sT1}", f"s_add_u32 s{sO0}, s{sO0}, s{sB0}", f"s_add_u32 s{sTE}, s{sTE}, 1",
            f"s_add_u32 s{sO0+1}, s{sO0}, s{T_SJ0}", f"s_add_u32 s{sO0+2}, s{sO0}, s{T_SJ1}", f"s_add_u32 s{sO0+3}, s{sO0+2}, s{T_SJ0}"]
def pipeline(units):
    out = []; prev = None
    for pre, cv, post in units:
        out += pre + cv[:2]
        if prev: out += prev[:2]
        out += cv[2:]
        if prev: out += prev[2:]
        prev = post
    return out + ["s_nop 1"] + prev
def cvt4(T0, T1):
    return [f"v_cvt_pk_bf16_f32 v{T0}, v{T0}, v{T0+1}", f"v_cvt_pk_bf16_f32 v{T0+1}, v{T0+2}, v{T0+3}",
            f"v_cvt_pk_bf16_f32 v{T0+2}, v{T1}, v{T1+1}", f"v_cvt_pk_bf16_f32 v{T0+3}, v{T1+2}, v{T1+3}"]
def swaps(T0): return [f"v_permlane16_swap_b32 v{T0}, v{T0+2}", f"v_permlane16_swap_b32 v{T0+1}, v{T0+3}"]
def epilogue(p, mul):
    u = []
    for pp in range(2):
        for J in range(4):
            T0, T1 = acc(p, 2*pp, J), acc(p, 2*pp+1, J)
            pre = [f"v_mul_f32 v{T+r}, s{T_SC}, v{T+r}" for T in (T0, T1) for r in range(4)] if mul else []
            post = swaps(T0) + [f"buffer_store_dwordx4 {vr(T0,4)}, v{vEP}, {sr(sE,4)}, s{sO0+J} offen{SCE}" + (" ; grpend:st" if pp == 1 and J == 3 else "")]
            if pp == 0: post.append(f"s_add_u32 s{sO0+J}, s{sO0+J}, s{T_SP}")
            u.append((pre, cvt4(T0, T1), post))
    return e_addr() + pipeline(u)
def q_epilogue(p, u, a):
    un = []
    if True:
        for rt in range(4):
            T0, T1 = acc(p, 2*a, rt), acc(p, 2*a+1, rt); q = QA_ + 16*rt + 4*(2*u + a)
            un.append(([], cvt4(T0, T1), swaps(T0) + [f"v_accvgpr_write_b32 a{q+r}, v{T0+r}" for r in range(4)]))
    return pipeline(un)

TRG = [0, 1, 2, 4, 5, 6, 8, 9]; DMAG = [3, 7, 11, 15]; XRG = [3, 7, 10, 11, 12, 13, 14, 15]
def place_dma(S, g0, grp):
    S.add(g0 + 0, grp[0]); S.add(g0 + 1, grp[1])
    for i in range(4): S.add(g0 + DMAG[i], grp[2 + i])
class Block:
    def __init__(self, name, slots, nextpos, qx=None, qd=None):
        self.name = name
        qx = dict(qx or {}); qd = dict(qd or {})
        m = []
        for q, s in enumerate(slots):
            m += slot_mfmas(s["p"], s["o"], s["kc"])
            if s.get("xr") is not None: qx[4*q] = (s["xr"], s["xk"])
            if s.get("xd") is not None: qd[4*q+1] = x_dma(s["xd"])[:6]; qd[4*q+2] = x_dma(s["xd"])[6:]
            if "wstep" in s: qd[4*q+3] = w_dma(s["pos"], s["wstep"], s.get("nt", ""))
        S = self.S = Sched(m, 16)
        for q, s in enumerate(slots):
            for c in range(4):
                Q = 4 * q + c; g0 = Q * 16
                lg = "lgkmcnt(4)" if (Q - 1) in qx else "lgkmcnt(0)"
                pre = []
                if Q in qx: pre.append(f"s_waitcnt vmcnt(@{name}{Q}x:{qx[Q][1]}:x)")
                if c == 3 and not s.get("nobar"):
                    need = s.get("need", [f"{s.get('wk', 2)}:w"])
                    for k, nd in enumerate(need): pre.append(f"s_waitcnt vmcnt(@{name}{q}w{k}:{nd})")
                    pre[-1] += " " + lg
                    pre += s.get("prebar", []) + ["s_barrier"] + s.get("postbar", [])
                elif pre: pre[-1] += " " + lg
                else: pre.append("s_waitcnt " + lg)
                S.before(g0, pre)
                if c < 3: rd = tr_reads(s["pos"], c + 1)
                else:
                    np_ = slots[q+1]["pos"] if q + 1 < len(slots) else nextpos
                    rd = tr_reads(np_, 0) if np_ is not None else []
                for i, r in enumerate(rd): S.add(g0 + TRG[i], r)
                if Q in qx:
                    for i, r in enumerate(x_reads(qx[Q][0], s.get("nat", False))): S.add(g0 + XRG[i], r)
                if Q in qd: place_dma(S, g0, qd[Q])
    def emit(self):
        print("P1 block", self.name, "over", self.S.over())
        return self.S.emit()


def pair_slots(pa, pb, o, nat, tailw):
    sl = []
    for q in range(8):
        d = dict(p=pb if q & 1 else pa, o=o, kc=q >> 1, pos=q & 3, nat=nat)
        if q < 4: d["wstep"] = (q & 1, (q + 4) >> 1)
        if q < 6: d["xr"] = q + 2; d["xk"] = min(2, 5 - q)
        if q < 3: d["xd"] = q + 5
        if not tailw and q >= 4: d["wk"] = max(0, 6 - q)
        sl.append(d)
    return sl
def unit_slots(p, o): return [dict(p=p, o=o, kc=s, pos=s, wstep=(4, s)) for s in range(4)]

def flag_store(off_code, val):
    return off_code + [f"v_mov_b32 v{vFL}, {val}", "s_mov_b64 exec, 1", f"buffer_store_dword v{vFL}, off, {sr(sWS,4)}, s{sZ0}{SC}", "s_mov_b64 exec, -1"]
def w0only(code, lbl): return [f"s_cmp_lg_u32 s{sWAVE}, 0", f"s_cbranch_scc1 {lbl}"] + code + [f"{lbl}:"]
F1OFF = [f"s_lshl_b32 s{sZ0}, s{sCG}, 7", f"s_lshr_b32 s{sZ1}, s{sRT}, 1", f"s_add_u32 s{sZ0}, s{sZ0}, s{sZ1}", f"s_add_u32 s{sZ0}, s{sZ0}, {WS_F1}"]

NT = os.environ.get("NT", " nt")
def lin_touch():
    c = []; A = c.append
    A(f"v_and_b32 v31, 31, v{vLN}"); A("v_lshlrev_b32 v31, 7, v31")
    A("s_mov_b32 s99, 0x20000"); A(f"s_mov_b32 s98, {2*MB}"); A("s_lshl_b32 s100, s2, 1"); A(f"s_and_b32 s101, s{sWAVE}, 1"); A("s_add_u32 s100, s100, s101"); A("s_lshl_b32 s100, s100, 12")
    A(f"s_cmp_lt_u32 s{sWAVE}, 2"); A("s_cselect_b64 s[96:97], s[74:75], s[72:73]")
    A(f"buffer_load_dword v{vTCH}, v31, s[96:99], s100 offen")
    return c
def touch_setup():
    return [f"v_and_b32 v30, 15, v{vLN}", f"s_lshl_b32 s101, s{sRT}, 3", "v_add_u32 v30, s101, v30", f"v_mul_u32_u24 v28, s{T_STR}, v30",
            "v_lshl_add_u32 v30, v24, 7, v28", f"v_lshrrev_b32 v31, 4, v{vLN}", "v_min_u32 v31, 2, v31", "v_lshl_add_u32 v28, v31, 7, v28"]
def touch_w3(): return [f"buffer_load_dword v{vTCH}, v28, {sr(sW,4)}, s{T_WCOL} offen{NT}"]
def touch_w2(): return [f"buffer_load_dword v{vTCH}, v30, {sr(sW,4)}, s{T_WCOL} offen offset:384" + os.environ.get("NT2", "")]
def touch_q():
    return [f"s_mov_b64 s[96:97], {sr(sWQ,2)}", f"s_mov_b32 s98, {4*MB}", "s_mov_b32 s99, 0x20000", f"s_lshl_b32 s101, s{sH}, 8",
            f"buffer_load_dword v{vTCH}, v29, s[96:99], s101 offen" + os.environ.get("NT3", "")]
def touch_x(k):
    c = []
    if k == 0:
        c = [f"s_mov_b64 s[96:97], {sr(sXP,2)}", f"s_mov_b32 s98, {2*MB}", "s_lshr_b32 s100, s2, 3", "s_lshl_b32 s100, s100, 2", f"s_add_u32 s100, s100, s{sWAVE}",
             "s_lshl_b32 s100, s100, 14", f"v_and_b32 v31, 15, v{vLN}", "v_lshlrev_b32 v31, 10, v31", "v_lshl_add_u32 v31, v24, 7, v31"]
    return c + [f"buffer_load_dword v{vTCH}, v31, s[96:99], s100 offen offset:{256*k}"]
def code_touch(srd):
    return [f"s_mov_b64 {sr(srd,2)}, s[6:7]", f"s_mov_b32 s{srd+2}, P1_TAB-P1_PC", f"s_mov_b32 s{srd+3}, 0x20000", f"buffer_load_dword v{vTCH}, v{vCT}, {sr(srd,4)}, 0 offen"]
MK = [lambda n: []]
def version(o):
    mul = (o == 0)
    code = [f"P1_V{o}:"]
    code += [f"v_mad_u32_u24 v{vEP}, v24, s{T_A1}, v{vJQ if o == 0 else 26}", f"v_mad_u32_u24 v{vEP}, v25, s{T_A2}, v{vEP}"]
    if o == 0:
        code += [f"s_mul_i32 s{sT1}, s{T_XSEL}, {4096 - 128}", f"v_bfe_u32 v27, v{vLN}, 2, 1", f"v_mad_u32_u24 v{vEP}, v27, s{sT1}, v{vEP}"]
    code += [
             f"s_mul_i32 s{sT1}, s{T_SJ1 if o == 0 else T_SP}, s{sRT}", f"s_add_u32 s{sB0}, s{T_B0}, s{sT1}"]
    RO = os.environ.get("RO", "0") == "1"
    seq = [(q % 3, q // 3) for q in range(12)]
    if RO: seq = seq[:6] + [(0, 2), (0, 3), (1, 2), (1, 3), (2, 2), (2, 3)]
    seq += [(3, k) for k in range(4)]
    step = lambda e: seq[e]
    sl = [dict(p=seq[q][0], o=o, kc=seq[q][1], pos=q & 3, wstep=step(q + 4)) for q in range(12)]
    del sl[0]["wstep"]; del sl[1]["wstep"]
    X = lambda sc, h: x_dma(sc)[6*h:6*h+6]
    qd = {2: w_dma(3, step(3), NT), 3: X(2,0), 4: X(2,1), 5: X(3,0), 6: X(3,1), 7: w_dma(0, step(4), NT), 8: w_dma(1, step(5), NT),
          12: X(4,0), 13: X(4,1), 14: X(5,0), 16: X(5,1), 17: X(6,0), 18: X(6,1), 21: X(7,0), 22: X(7,1)}
    qx = {9: (2, 1), 10: (3, 0), 20: (4, 2), 22: (5, 1), 24: (6, 1), 28: (7, 0)}
    if True:
        for k in (12, 13, 14, 16, 17, 18, 21, 22): del qd[k]
        XL = [int(x) for x in os.environ.get("XL", "14,16,17,18,20,21,24,25").split(",")]
        for k, qq in enumerate(XL): qd[qq] = X(4 + k // 2, k & 1)
        XR = [int(x) for x in os.environ.get("XR", "21,22,28,30").split(",")]
        qx = {9: (2, 1), 10: (3, 0)}
        for k, qq in enumerate(XR):
            ended = sum(1 for j in range(4) if XL[2*j+1] < qq)
            assert ended > k and XL[2*k+1] < qq
            qx[qq] = (4 + k, ended - 1 - k)
        assert XR[1] <= 22 and XL[6] >= XR[0] + 3 - (XR[1] != XR[0] + 1)
    if RO: del qx[28]; qx[26] = (7, 0)
    sl[1]["wk"] = 1
    for q in range(8): sl[q]["nt"] = NT
    sl[2]["postbar"] = w0only([f"s_and_b32 s{sZ0}, s2, 1", f"s_lshl_b32 s{sZ0}, s{sZ0}, 7", f"v_mov_b32 v{vFL}, 1", "s_mov_b64 exec, 1",
                               f"buffer_atomic_add v{vFL}, off, {sr(sDBG,4)}, s{sZ0} sc1", "s_mov_b64 exec, -1"], f"P1_CL{o}")
    XQ = [int(x) for x in os.environ.get("XQ", "32,33,34,36,37,38").split(",")]
    for k, qq in enumerate(XQ): qd[qq] = X(k // 2, k & 1)
    B = Block(f"a{o}", sl, 0, qx, qd)
    TQ = [int(x) for x in os.environ.get("TQ", "12,26").split(",")]
    if TPOS == "q": B.S.before(9 * 16, [lin_touch()[-1]] + touch_w3())
    B.S.fill(touch_w2(), TQ[0] * 16, TQ[0] * 16 + 16)
    B.S.fill(touch_q(), TQ[1] * 16, TQ[1] * 16 + 16)
    sw = [f"s_mov_b64 {sr(sX,2)}, {sr(sXP,2)}",
          f"s_lshl_b32 s{sXA}, s{sI}, 2", f"s_add_u32 s{sXA}, s{sXA}, s{sWAVE}", f"s_sub_u32 s{sXB}, 63, s{sXA}",
          f"s_lshl_b32 s{sXA}, s{sXA}, 15", f"s_lshl_b32 s{sXB}, s{sXB}, 15", f"s_add_u32 s{sR2}, s{sH}, s{sI}", f"s_and_b32 s{sR2}, s{sR2}, {ROT2}", f"s_lshl_b32 s{sR2}, s{sR2}, 8",
          f"s_mov_b32 s{sR}, s{sXC[1]}"] + [f"s_xor_b32 s{sXC[kc]}, s{sR2}, {256*kc}" for kc in range(4)]
    B.S.pack(sw, 29 * 16, 30 * 16)
    if "1" in RT: B.S.fill(code_touch(96), 29 * 16, 30 * 16)
    e1, e2, e3 = epilogue(1, mul), epilogue(2, mul), epilogue(0, mul)
    stores = lambda e: [i for i, x in enumerate(e) if x.startswith("buffer_store")]
    if RO:
        E0, N1 = [int(x) for x in os.environ.get("E0", "8,4").split(",")]
        c1 = len(e1) if N1 == 8 else stores(e1)[N1 - 1] + 2
        B.S.fill(epilogue(0, mul), E0 * 64 + 3, 10 * 64 + 40); B.S.fill(e1[:c1], 10 * 64 + 40, 12 * 64 - 2); e1 = e1[c1:]
    else: B.S.fill(epilogue(0, mul), 10 * 64 + 3, 12 * 64 - 2)
    for q in range(1, 12): B.S.before(q * 64, MK[0](f"s{q}"))
    pair = B.emit()
    NC = int(os.environ.get("NC", "6"))
    cut = len(e2) if NC == 8 else stores(e2)[NC - 1] + 2
    B = Block(f"c{o}", unit_slots(0, o), 0)
    if "2" in RT: B.S.fill(code_touch(96), 128, 144)
    B.S.fill(e1 + e2[:cut], 3, 254)
    for q in range(1, 4): B.S.before(q * 64, MK[0](f'c{q}'))
    u3 = B.emit()
    sl = unit_slots(1, o)
    for q in range(4): sl[q]["wstep"] = (q & 1, q >> 1)
    sl[2].update(xr=0, xk=2, xd=3, nat=True); sl[3].update(xr=1, xk=2, xd=4, nat=True)
    B = Block(f"d{o}", sl, 0)
    sw2 = [f"s_mov_b64 {sr(sW,2)}, {sr(sWQ,2)}", f"s_mov_b32 s{sW+2}, {4*MB}", f"s_mov_b32 s{T_STR}, 8192", f"s_lshl_b32 s{T_WCOL}, s{sH}, 8"] + w_lane_setup(f"s{T_STR}", sZ1, f"s{T_WCOL}")
    B.S.pack(sw2, 0, 46)
    B.S.fill(e2[cut:] + [f"s_mov_b32 s{sE+2}, s{sEN}"] + e3 + [f"s_mov_b32 s{sE+2}, {WS_END}"], 3, int(os.environ.get("E3", "176")))
    for q in range(0, 4): B.S.before(q * 64, MK[0](f'd{q}'))
    u4 = B.emit()
    skip = [f"P1_SK{o}:", "s_nop 7"] + (gate_load() if o == 0 else []) + flat(e1) + (gate() if o == 0 else []) + flat(e2[:cut]) + \
           [f"s_mov_b32 s{sEN}, 0", f"s_sub_u32 s{sTE}, s{sTE}, 1", f"s_branch P1_U4{o}"]
    br = [f"s_bitcmp1_b32 s{T_FL}, 0", f"s_cbranch_scc1 P1_SK{o}"]
    return dict(head=code, pair=pair, br=br, u2=u3, u3=[], u4=[f"P1_U4{o}:"] + u4, skip=skip)

sGW = 72
def gate_load():
    c = [f"s_bitcmp1_b32 s{T_FL}, 1", "s_cbranch_scc0 P1_NG0"]; A = c.append
    G = ACC[0]
    A(f"v_lshrrev_b32 v27, 4, v{vLN}"); A("v_lshlrev_b32 v28, 4, v27")
    gx = [None, sR, 100, 101]
    c += chunk_next(gx)
    for ks in range(16):
        A(f"buffer_load_dwordx4 {vr(G+4*ks,4)}, v28, {sr(sGW,4)}, {'s%d' % gx[ks//4] if ks >= 4 else 0} offen offset:{(ks%4)*64}" + (" ; grpend:gw" if ks == 15 else ""))
    A("P1_NG0:")
    return c
def gate():
    c = [f"s_bitcmp1_b32 s{T_FL}, 1", "s_cbranch_scc0 P1_NG"]; A = c.append
    G = ACC[0]; D = WR[1]
    A("s_waitcnt vmcnt(@gw:0:gw)")
    for rt in range(4):
        for ks in range(16):
            A(f"v_mfma_f32_16x16x32_bf16 {vr(D+4*rt,4)}, {vr(G+4*ks,4)}, {ar(xa(rt,ks),4)}, " + ("0" if ks == 0 else vr(D+4*rt,4)))
    A("s_nop 7")
    for g in range(1, 4):
        A(f"v_cmp_eq_u32 vcc, {g}, v27"); A("s_nop 1"); A(f"v_cndmask_b32 v{D}, v{D}, v{D+4*g}, vcc")
    A(f"v_mul_f32 v{D}, {hex(fbits(-LOG2E))}, v{D}"); A(f"v_exp_f32 v{D}, v{D}"); A("s_nop 0")
    A(f"v_add_f32 v{D}, 1.0, v{D}"); A(f"v_rcp_f32 v{D}, v{D}")
    A(f"v_lshrrev_b32 v28, 2, v{vJQ}"); A("v_lshl_add_u32 v28, v27, 6, v28")
    A(f"s_lshl_b32 s{sT0}, s{sRT}, 7"); A(f"s_add_u32 s{sT0}, s{sT0}, {WS_GATE}")
    A(f"buffer_store_dword v{D}, v28, {sr(sWS,4)}, s{sT0} offen{SC}")
    A("s_nop 1")
    A("P1_NG:")
    return c

def chunk_order(r, xc):
    o = [f"s_lshl_b32 s{xc[1]}, s{r}, 8", f"s_add_u32 s{xc[1]}, s{xc[1]}, 256"]
    return o + chunk_next(xc)
def chunk_next(xc):
    o = []
    for k in (2, 3): o += [f"s_add_u32 s{xc[k]}, s{xc[k-1]}, 256", f"s_cmp_eq_u32 s{xc[k]}, 1024", f"s_cselect_b32 s{xc[k]}, 256, s{xc[k]}"]
    return o
def prologue(mk=lambda n: []):
    c = []; A = c.append
    A(f"s_load_dwordx4 s[72:75], s[0:1], {KA_X}")
    A(f"s_load_dwordx4 s[76:79], s[0:1], {KA_WUK}")
    A(f"s_load_dwordx2 {sr(sWQ,2)}, s[0:1], {KA_WQ}")
    A(f"s_load_dwordx2 s[6:7], s[0:1], {KA_WQKV}")
    A(f"s_load_dwordx2 {sr(sWS,2)}, s[0:1], {KA_WS}")
    A(f"s_load_dwordx2 {sr(sDBG,2)}, s[0:1], {KA_DBG}")
    A(f"s_load_dwordx2 s[32:33], s[0:1], {KA_GATE}")
    A("s_getpc_b64 s[4:5]"); A("P1_PC:")
    A("s_mov_b64 s[96:97], s[4:5]"); A("s_mov_b32 s98, P1_TAB-P1_PC"); A("s_mov_b32 s99, 0x20000")
    A("s_lshr_b32 s3, s2, 3"); A("s_mul_i32 s3, s3, 5120")
    A(f"v_mul_u32_u24 v{vCT}, 20, v0"); A(f"v_add_u32 v{vCT}, s3, v{vCT}")
    A(f"buffer_load_dword v{vTCH}, v{vCT}, s[96:99], 0 offen")
    A("s_add_u32 s4, s4, P1_TAB-P1_PC"); A("s_addc_u32 s5, s5, 0")
    A("s_and_b32 s3, s2, 7"); A(f"s_lshr_b32 s{sH}, s2, 3"); A(f"s_and_b32 s{sI}, s{sH}, 7")
    A(f"s_lshr_b32 s{sH}, s{sH}, 3"); A("s_lshl_b32 s3, s3, 2"); A(f"s_add_u32 s{sH}, s{sH}, s3")
    A(f"s_lshl_b32 s3, s{sH}, 6")
    A(f"s_load_dwordx16 {sr(sTB,16)}, s[4:5], s3")
    A("v_lshrrev_b32 v27, 6, v0"); A(f"v_and_b32 v{vLN}, 63, v0")
    A(f"v_readfirstlane_b32 s{sWAVE}, v27")
    A(f"v_lshrrev_b32 v27, 4, v{vLN}")
    A(f"v_and_b32 v28, 15, v{vLN}")
    A("v_and_b32 v24, 1, v27"); A("v_lshrrev_b32 v25, 1, v27"); A("v_lshlrev_b32 v26, 4, v28")
    A("v_and_b32 v29, 3, v28"); A("v_bfe_u32 v30, v28, 2, 1"); A("v_bfe_u32 v31, v28, 3, 1")
    A("v_lshl_add_u32 v29, v30, 3, v29"); A("v_lshl_add_u32 v29, v31, 2, v29")
    A(f"v_lshlrev_b32 v{vJQ}, 4, v29")
    A(f"s_lshl_b32 s{sLW}, s{sWAVE}, 12")
    A(f"s_mul_i32 s{sLX}, s{sWAVE}, 24576"); A(f"s_add_u32 s{sLX}, s{sLX}, {XB}")
    for src, dst in ((29, vXR), (28, vXN)):
        A(f"v_lshrrev_b32 v30, 1, v{src}"); A("v_xor_b32 v30, v30, v27"); A("v_lshlrev_b32 v30, 4, v30"); A(f"v_lshl_add_u32 v30, v{src}, 7, v30")
        A(f"v_add_u32 v{dst[0]}, s{sLX}, v30"); A(f"v_xor_b32 v{dst[1]}, 64, v{dst[0]}")
    A(f"v_lshrrev_b32 v{vL3}, 3, v{vLN}"); A(f"v_and_b32 v31, 7, v{vLN}")
    A("v_xor_b32 v30, v31, v27"); A("v_lshlrev_b32 v30, 4, v30"); A(f"v_lshl_add_u32 v{vXD[0]}, v{vL3}, 10, v30")
    A(f"v_xor_b32 v{vXD[1]}, 64, v{vXD[0]}"); A(f"v_add_u32 v{vXD[1]}, 7168, v{vXD[1]}")
    A(f"v_add_u32 v{vXD[2]}, 14336, v{vXD[0]}"); A(f"v_add_u32 v{vXD[3]}, 14336, v{vXD[1]}")
    A("v_lshlrev_b32 v30, 1, v24"); A("v_xor_b32 v30, v30, v31"); A(f"v_lshlrev_b32 v{vWC}, 4, v30")
    A("v_lshrrev_b32 v30, 2, v28"); A("v_lshl_add_u32 v29, v27, 3, v30"); A("v_lshlrev_b32 v29, 7, v29")
    A("v_and_b32 v31, 3, v28"); A("v_lshl_add_u32 v29, v31, 3, v29")
    A("v_lshrrev_b32 v30, 1, v30"); A("v_lshl_add_u32 v30, v24, 1, v30"); A("v_lshlrev_b32 v30, 5, v30")
    A(f"v_add_u32 v{vW[0]}, v29, v30")
    for ct in range(1, 4): A(f"v_xor_b32 v{vW[ct]}, {32*ct}, v{vW[0]}")
    A(f"s_lshl_b32 s{sRT}, s{sI}, 2"); A(f"s_add_u32 s{sRT}, s{sRT}, s{sWAVE}"); A(f"s_lshl_b32 s{sXA}, s{sRT}, 16")
    A(f"s_add_u32 s{sXB}, s{sXA}, 32768")
    A(f"s_and_b32 s{sZ1}, s{sH}, 3"); A(f"s_add_u32 s{sZ1}, s{sZ1}, s{sI}"); A(f"s_mul_i32 s{sZ0}, s{sZ1}, 11"); A(f"s_lshr_b32 s{sZ0}, s{sZ0}, 5"); A(f"s_mul_i32 s{sZ0}, s{sZ0}, 3")
    A(f"s_sub_u32 s{sZ1}, s{sZ1}, s{sZ0}" if ROT3 else f"s_mov_b32 s{sZ1}, 0")
    A(f"s_lshl_b32 s{sRT}, s{sRT}, 1")
    for s, n in ((sWS, WS_END), (sE, WS_END), (sX, 2*MB), (sDBG, 256), (sW, 4*MB)):
        A(f"s_mov_b32 s{s+2}, {n}"); A(f"s_mov_b32 s{s+3}, 0x20000")
    A("s_waitcnt lgkmcnt(0)")
    c += mk("ka")
    WSO = int(os.environ.get("WSO", "0")) * MB
    if WSO: A(f"s_add_u32 s{sWS}, s{sWS}, {WSO}"); A(f"s_addc_u32 s{sWS+1}, s{sWS+1}, 0")
    A(f"s_lshr_b32 s{sCG}, s{T_FL}, 16")
    A(f"s_cmp_eq_u32 s{T_XSEL}, 0"); A(f"s_cselect_b64 {sr(sX,2)}, s[72:73], s[74:75]")
    A(f"s_cmp_eq_u32 s{T_WSEL}, 0"); A(f"s_cselect_b64 {sr(sW,2)}, s[76:77], s[78:79]")
    A(f"s_mov_b32 s{sXC[0]}, 0")
    c += x_dma(0)
    c += chunk_order(sZ1, sXC)
    A(f"s_mov_b64 {sr(sXP,2)}, s[72:73]"); A(f"s_mov_b64 {sr(sE,2)}, {sr(sWS,2)}")
    A(f"s_cmp_eq_u32 s{T_WSEL}, 2"); A(f"s_cselect_b64 {sr(sW,2)}, s[6:7], {sr(sW,2)}"); A(f"s_cselect_b32 s{sW+2}, {512*3072}, s{sW+2}")
    A("s_mov_b64 s[6:7], s[96:97]")
    c += w_lane_setup(f"s{T_STR}", sT1, f"s{T_WCOL}")
    A(f"s_mov_b32 s{sEN}, {WS_END}")
    A(f"s_mov_b32 s{sTE}, s{T_T0}")
    c += touch_setup()
    if TPOS == "a": c += lin_touch() + touch_w3()
    c += mk("i0")
    c += w_dma(0, (0, 0), NT) + x_dma(1)
    c += mk("i1")
    if TPOS == "b": c += lin_touch() + touch_w3()
    vFL = 27
    z = F1OFF + [f"v_mov_b32 v{vFL}, 0", "s_mov_b64 exec, 1", f"buffer_store_dword v{vFL}, off, {sr(sWS,4)}, s{sZ0}{SC}",
                 f"s_lshl_b32 s{sZ0}, s{sI}, 7", f"s_lshl_b32 s{sZ1}, s{sH}, 2", f"s_add_u32 s{sZ0}, s{sZ0}, s{sZ1}", f"s_add_u32 s{sZ0}, s{sZ0}, {WS_F3}",
                 f"buffer_store_dword v{vFL}, off, {sr(sWS,4)}, s{sZ0}{SC}", f"buffer_store_dword v{vFL}, off, {sr(sWS,4)}, s{sZ0} offset:{WS_F4 - WS_F3}{SC}", "s_mov_b64 exec, -1"]
    c += w_dma(1, (1, 0), NT) + w_dma(2, (2, 0), NT)
    if TPOS == "c": c += lin_touch() + touch_w3()
    else: c += lin_touch()[:-1]
    A(f"s_mov_b64 {sr(sGW,2)}, s[32:33]"); A(f"s_mov_b32 s{sGW+2}, 1024"); A(f"s_mov_b32 s{sGW+3}, 0x20000")
    z = [f"buffer_load_dword v{vTCH}, v31, {sr(sGW,4)}, 0 offen"] + z
    if os.environ.get("PGT"):
        z = [f"v_lshlrev_b32 v27, {os.environ['PGT']}, v{vLN}", f"buffer_load_dword v{vTCH}, v27, {sr(sWS,4)}, 0 offen sc1"] + z
    c += w0only(z, "P1_Z")
    MAP = os.environ.get("MAP", "0")
    if MAP != "0":
        A(f"s_bfe_u32 s{sH}, s2, 0x20001"); A(f"s_lshl_b32 s{sH}, s{sH}, 3"); A(f"s_lshr_b32 s{sI}, s2, 5"); A(f"s_add_u32 s{sH}, s{sH}, s{sI}")
        A(f"s_and_b32 s{sI}, s2, 1")
        if MAP == "2": A(f"s_xor_b32 s{sI}, s{sI}, 1")
        A(f"s_lshl_b32 s{sI}, s{sI}, 2"); A(f"s_bfe_u32 s{sZ1}, s2, 0x20003"); A(f"s_add_u32 s{sI}, s{sI}, s{sZ1}")
    A(f"s_lshl_b32 s{sZ1}, s{sI}, 2"); A(f"s_add_u32 s{sZ1}, s{sZ1}, s{sWAVE}"); A(f"s_lshl_b32 s{sZ1}, s{sZ1}, 17")
    A(f"v_and_b32 v29, 15, v{vLN}"); A("v_lshlrev_b32 v29, 13, v29"); A("v_lshl_add_u32 v29, v24, 7, v29"); A(f"v_add_u32 v29, s{sZ1}, v29")
    c += mk("i2")
    A("s_waitcnt vmcnt(@Px0:1:x)"); c += mk("l0"); c += x_reads(0, False)
    A("s_waitcnt vmcnt(@Px1:0:x)"); c += mk("l1"); A("s_barrier"); c += tr_reads(0, 0) + x_reads(1, False)
    A(f"s_cmp_eq_u32 s{T_OR}, 0"); A("s_cbranch_scc0 P1_V1")
    return c

def p2(kv_setup, kv_dma0, kv_dma1, kv_dma2, mask_setup, wo_ptrs, wo_touch, out_ptr, sp):
    sl = pair_slots(2, 0, 0, True, False)
    SG = int(os.environ.get("SG", "2"))
    sl[SG]["need"] = ["2:w", "0:st"]
    sl[SG]["postbar"] = w0only(flag_store(F1OFF, 1), "P2_S")
    def spin(lbl, load, cmp):
        return [f"s_mov_b32 s{sZ1}, 0x100000", f"s_waitcnt vmcnt(@{lbl}:0:fl)", f"{lbl}L:", cmp, "s_cmp_eq_u32 vcc_lo, 0", f"s_cbranch_scc1 {lbl} ; exit",
                "s_sleep 8", load, "s_waitcnt vmcnt(0)", f"s_sub_u32 s{sZ1}, s{sZ1}, 1", f"s_cmp_lg_u32 s{sZ1}, 0", f"s_cbranch_scc1 {lbl}L"]
    ld0 = f"buffer_load_dword v31, v29, {sr(sDBG,4)}, 0 offen sc1 ; grpend:fl"
    ld1 = f"buffer_load_dword v31, v{vPF}, {sr(sWS,4)}, 0 offen sc1 ; grpend:fl"
    sl[4]["prebar"] = w0only(spin("P2_C", ld0, "v_cmp_gt_u32 vcc, v30, v31"), "P2_C")
    sl[3]["postbar"] = sl[3].get("postbar", []) + w0only([ld0], "P2_L0")
    PE_ = int(os.environ.get("PEARLY", "1"))
    sl[5 - PE_]["postbar"] = w0only([ld1], "P2_L1")
    sl[6 - PE_]["prebar"] = w0only(spin("P2_D", ld1, "v_cmp_ne_u32 vcc, 1, v31"), "P2_D")
    sl[7]["need"] = ["1:kv"]
    qx = qd = None
    if os.environ.get("P2J", "1") == "1":
        for d in sl:
            for k in ("xr", "xk", "xd"): d.pop(k, None)
        X = lambda sc, h: x_dma(sc)[6*h:6*h+6]
        qd = {9: X(5,0), 10: X(5,1), 12: X(6,0), 13: X(6,1), 16: X(7,0), 17: X(7,1)}
        qx = {0: (2, 2), 4: (3, 1), 8: (4, 0), 14: (5, 1), 20: (6, 1), 22 - PE_: (7, 0)}
    B = Block("q", sl, None, qx, qd)
    B.S.fill(epilogue(1, True), 3, int(os.environ.get("EE", "120")))
    B.S.fill(paddr(), 3 * 64, 3 * 64 + 46)
    B.S.fill(code_touch(52)[:3] + (code_touch(52)[3:] if '3' in RT else []), 3 * 64 + 50, 4 * 64)
    B.S.fill(wo_ptrs, 3 * 64 + 50, 3 * 64 + 62)
    WQ = int(os.environ.get("WQ", "19"))
    k = max(i for i, x in enumerate(wo_touch) if x.startswith("s_lshl_b32 s7") ) + 1
    B.S.fill(wo_touch[:k], 18 * 16, 19 * 16); B.S.fill(wo_touch[k:], WQ * 16, WQ * 16 + 48)
    B.S.fill(out_ptr, 18 * 16, 18 * 16 + 8)
    if PE_:
        KD = [int(x) for x in os.environ.get("KD", "376,432,432,494").split(",")]
        B.S.fill(kv_setup, 4 * 64, 5 * 64 + 40)
        B.S.fill(kv_dma0, KD[0], KD[1]); B.S.fill(kv_dma1, KD[2], KD[3])
        B.S.fill(mask_setup, 5 * 64 + 20, 6 * 64 + 34)
    else:
        B.S.fill(mask_setup, 4 * 64, 5 * 64 + 46)
        B.S.fill(kv_setup, 5 * 64 + 46, 6 * 64 + 30)
        B.S.fill(kv_dma0, 6 * 64 + 48, 7 * 64 + 16)
        B.S.fill(kv_dma1, 7 * 64 + 16, 7 * 64 + 56)
    B.S.fill(sp["vk"], 28 * 16, 29 * 16)
    B.S.before(29 * 16, sp["wt"][0])
    for g, x in zip([10, 11, 12, 13, 26, 27, 28, 28], sp["wt"][1:]): B.S.add(29 * 16 + g, x)
    for g, x in zip(TRG, sp["k"]): B.S.add(31 * 16 + g, x)
    B.S.fill(sp["late"], 31 * 16, 32 * 16)
    B.S.fill(q_epilogue(2, 0, 0), 6 * 64 + 34, 7 * 64 + 2)
    B.S.fill(q_epilogue(2, 0, 1), 7 * 64 + 3, 7 * 64 + 34)
    B.S.fill(q_epilogue(0, 1, 0), 7 * 64 + 35, 8 * 64)
    for q in range(1, 8): B.S.before(q * 64, MK[0](f'q{q}'))
    if os.environ.get("QOV"): print([ (g, B.S.load(g) - 16) for g in range(B.S.n) if B.S.load(g) > 16])
    qe = flat(q_epilogue(0, 1, 1)); tail = []
    k2 = list(kv_dma2)
    for i, x in enumerate(qe):
        if i % 3 == 0 and k2 and not (i and qe[i-1].startswith("s_nop")): tail.append(k2.pop(0))
        tail.append(x)
    return ["P2:"] + B.emit() + ["s_nop 1"] + tail + k2
def paddr():
    m5 = (1 << 32) // 5 + 1
    o = [f"s_lshl_b32 s{sT1}, s{sH}, 1", f"s_mul_hi_u32 s72, s{sT1}, {m5}", f"s_add_u32 s{sT1}, s{sT1}, 1", f"s_mul_hi_u32 s73, s{sT1}, {m5}",
         "s_add_u32 s74, s72, 13", "s_add_u32 s75, s73, 13", f"s_lshr_b32 s{sT1}, s{sH}, 4", f"s_add_u32 s32, s{sT1}, 26", f"s_add_u32 s33, s{sT1}, 28", f"s_add_u32 s34, s{sT1}, 30",
         f"v_mov_b32 v{vPF}, {GATE_CG}"]
    for k in range(7):
        o += [f"v_cmp_eq_u32 vcc, {k}, v{vL3}", f"v_mov_b32 v29, s{72+k if k < 4 else 28+k}", "s_nop 0", f"v_cndmask_b32 v{vPF}, v{vPF}, v29, vcc"]
    o += [f"v_and_b32 v29, 7, v{vLN}", "v_lshlrev_b32 v29, 2, v29", f"v_lshl_add_u32 v{vPF}, v{vPF}, 7, v29", f"v_add_u32 v{vPF}, {WS_F1}, v{vPF}",
          f"v_and_b32 v29, 1, v{vLN}", "v_lshlrev_b32 v29, 7, v29", "v_mov_b32 v30, 128"]
    return o
def tabdata():
    return [".p2align 6", ".type P1_TAB,@object", "P1_TAB:"] + [".long " + ", ".join(hex(x) for x in e) for e in table()]
```

```python
from asmlib import *
from layout import *
import os

O_ = {'L': 32, 'H': 160}
S_ = [224, 144]; P_ = [128, 136]; CM = 112; TRI = 96
vK, vV, vL16, vDMA, vLO, vHI, vG = 1, 2, 3, 24, 25, 28, {'L': [29, 8], 'H': [9, 10]}
SC = ' sc1'
SUM_ = {'L': 208, 'H': 216}
ONE = 4
vT = 13
Q_ = {'L': 0, 'H': 32}; K_ = 64; V_ = 96
sWS = 8
sKV = 12
sWAVE, sH, sI = 16, 17, 18
sCNT, sSEQ, sRD, sRK, sRV, sLW, sT0, sT1, sNST, sQL, sQH, sDT, sOFF, s2I = range(56, 70)
sBS = [72, 73, 74]
sM3 = 75
BIG = fbits(-1.0e30)
RING = 5

MF = "v_mfma_f32_16x16x32_bf16"
def qk(j, sb, masked):
    o = []
    for s in range(2):
        for qs in range(2):
            x = (qs * 2 + s) * 4; d = vr(S_[sb] + x, 4)
            for ks in range(4):
                c = (vr((CM if masked == "cm" else TRI) + x, 4) if masked else "0") if ks == 0 else d
                o.append(f"{MF} {d}, {ar(K_+4*(s*4+ks),4)}, {ar(Q_[j]+4*(qs*4+ks),4)}, {c}")
    return o
def pv(j, pb, first=False):
    o = []
    for dt in range(8):
        for qs in range(2):
            d = vr(O_[j] + (dt*2+qs)*4, 4)
            o.append(f"{MF} {d}, {ar(V_+4*dt,4)}, {vr(P_[pb]+4*qs,4)}, {'0' if first else d}")
    for qs in range(2):
        d = ar(SUM_[j] + 4*qs, 4)
        o.append(f"{MF} {d}, {vr(ONE,4)}, {vr(P_[pb]+4*qs,4)}, {'0' if first else d}")
    return o
def kread(t, i): return f"ds_read_b128 {ar(K_+4*i,4)}, v{vK} offset:{t*16384 + i*1024}"
def vread(t, i): return f"ds_read_b128 {ar(V_+4*i,4)}, v{vV} offset:{t*16384 + 8192 + i*1024}"
def sm(sb, pb):
    S = S_[sb]
    e = lambda r: f"v_exp_f32 v{S+r}, v{S+r}"
    c = lambda k: f"v_cvt_pk_bf16_f32 v{P_[pb]+k}, v{S+2*k}, v{S+2*k+1}"
    seq = [e(0)]
    for r in range(1, 16):
        seq.append(e(r))
        if r % 2 == 0 and r < 14: seq.append(c(r // 2 - 1))
    return seq + [c(6), c(7)]
def cm_ops():
    o = [[f"s_cmp_lt_i32 s{sDT}, 0", f"s_cselect_b32 s{sT0}, 0, {hex(BIG)}"], f"v_mov_b32 v{vLO}, s{sT0}",
         [f"s_cmp_le_i32 s{sDT}, 0", f"s_cselect_b32 s{sT0}, 0, {hex(BIG)}"], f"v_mov_b32 v{vHI}, s{sT0}", f"s_add_u32 s{sDT}, s{sDT}, 1"]
    o += [f"v_med3_f32 v{CM+r}, v{TRI+r}, v{vLO}, v{vHI}" for r in range(16)]
    return o
def ring3(s, src=None, zero="0"):
    return [f"s_add_u32 s{s}, s{src if src else s}, 32768", [f"s_cmp_ge_u32 s{s}, {RING*32768}", f"s_cselect_b32 s{s}, {zero}, s{s}"]]
def ring_adv(s, v): return ring3(s) + [f"v_add_u32 v{v}, s{s}, v{vL16}"]
def dma_ops(dual=True):
    if dual: o = [f"s_sub_u32 s{sOFF}, 32, s{sSEQ}", [f"s_cmp_le_u32 s{sSEQ}, s{s2I}", f"s_cselect_b32 s{sOFF}, s{sSEQ}, s{sOFF}"], f"s_lshl_b32 s{sOFF}, s{sOFF}, 15"]
    else: o = [None, [None, None], f"s_lshl_b32 s{sOFF}, s{sSEQ}, 15"]
    o += [f"s_mov_b32 m0, s{sRD}", f"s_add_u32 s{sSEQ}, s{sSEQ}, 1"]
    for i in range(8):
        if i == 4: o += [f"s_add_u32 m0, s{sRD}, 4096", f"s_add_u32 s{sOFF}, s{sOFF}, 4096"]
        o.append(f"buffer_load_dwordx4 v{vDMA}, {sr(sKV,4)}, s{sOFF} offen offset:{(i%4)*1024}{SC} lds" + (" ; grpend:kv" if i == 7 else ""))
    return o + ring3(sRD, zero=f"s{sLW}")
def d_items(w):
    ld = lambda t: (0 if t < 2 else 3, t & 1); hd = lambda t: (2 if t < 2 else 1, t & 1)
    it = [('L', "cm") + ld(0), ('H', False) + ld(0), ('H', False) + ld(1)]
    it += [('L', k + 1 == w) + ld(k + 1) if k < w else ('H', k == w) + hd(3 - k) for k in range(4)]
    return it + [('H', False) + ld(2), ('H', False) + ld(3)]

DP = os.environ.get('DP', 'a')
cnt = [0]
EG = [0, 2, 3, 5, 7, 9, 11, 13, 16, 18, 20, 22, 24, 26, 28, 30]
CG = [4, 6, 10, 14, 19, 23, 27, 31]
KG = [4, 6, 8, 10, 12, 14, 15, 17]; VG = [19, 21, 23, 25, 27, 29, 31, 32]
def slot(qi, si, pi, n, kre, vre, bar=False, kadv=False, vadv=False, dma=None, bark=1, extra=None, prek=False, nextk=False, loop=None,
         rid=(), kset=None, vset=None, dual=False, sal=(), spill=None, prebar=(), pfirst=False):
    m = []
    if qi: m += qk(qi[0], (n + 1) & 1, qi[1])
    nq = len(m)
    if pi: m += pv(pi, (n + 1) & 1, pfirst)
    S = Sched(m, 16); N = len(m)
    cnt[0] += 1; tag = f"A{cnt[0]}"
    full = (N == 34)
    if qi and not prek: S.before(0, "LGK")
    if bar:
        if bark is not None: S.add(0, f"s_waitcnt vmcnt(@{tag}:{bark}:kv)")
        if prebar: S.before(2, list(prebar) + ["s_barrier"])
        else: S.add(1, "s_barrier")
    if pi:
        if full: S.add(13, "LGV")
        else: S.before(nq, "LGV")
    if nextk: S.add(28, "LGK")
    if loop: S.add(30, f"s_sub_u32 s{sCNT}, s{sCNT}, 1"); S.add(33, f"s_cbranch_scc0 {loop}")
    S.tail = [] if nextk else ["s_nop 0"]
    d = []
    for x in dma_ops(dual): d += x if isinstance(x, list) else [x]
    def put(gs, xs):
        for g, x in zip(gs, xs):
            if x: S.add(g, x)
    if full:
        e, cv = [x for x in sm(n & 1, n & 1) if "exp" in x], [x for x in sm(n & 1, n & 1) if "cvt" in x]
        if kre is not None: put(KG, [kread(kre, i) for i in range(8)])
        if vre is not None: put(VG, [vread(vre, i) for i in range(8)])
        if dma == 1:
            if dual: put([2, 3, 5, 7, 9, 16], d[0:6]); put([12, 17, 25, 29] if loop else [12, 17, 25, 33], d[6:10])
            else:
                put([2, 3, 16], d[3:6])
                put({"a": [8, 17, 25, 29 if loop else 33], "b": [5, 18, 24, 29 if loop else 33], "c": [7, 20, 26, 29 if loop else 33]}[DP], d[6:10])
        if dma in (2, 21):
            S.add(0, d[10]); S.add(1, [d[11], d[12]])
            S.add({"a": 12, "b": 9, "c": 11}[DP] if dma == 2 else 17, d[13])
        if dma in (2, 22):
            put([{"a": 25, "b": 30, "c": 25}[DP], 33] if dma == 2 else [1, 33], d[14:16]); put([22, 24, 26], d[16:19])
        if dma == 23:
            S.add(0, d[10]); S.add(1, [d[11], d[12]]); put([6, 8, 12], d[13:16]); put([2, 3, 5], d[16:19])
            put([16, 18, 20, 22, 24], [f"s_sub_u32 s{sSEQ}, s{sSEQ}, 2", d[3], d[4], d[5], f"s_sub_u32 s{sKV+2}, s{sKV+2}, 65536"])
            put([21, 25, 29, 33], d[6:10])
        if vadv: put([9, 11, 12, 15], flat(ring_adv(sRV, vV)))
        if kadv: put([16, 18, 20, 21], flat(ring_adv(sRK, vK)))
        if kset is not None: S.add(21, f"v_add_u32 v{vK}, s{kset}, v{vL16}")
        if vset is not None: S.add(15, f"v_add_u32 v{vV}, s{vset}, v{vL16}")
        for g, x in sal: S.add(g, x)
        if rid:
            gs = [8, 12, 17, 21, 25, 29, 32, 33]
            step = len(gs) / len(rid)
            for i, x in enumerate(rid): S.add(gs[int(i * step)], x)
        if si: put(EG, e); put(CG, cv)
    else:
        if vre is not None: put([1, 3, 5, 7, 9, 11, 13, 15], [vread(vre, i) for i in range(8)])
        if si: S.fill(sm(n & 1, n & 1), 0, N)
    if extra: S.fill(extra, 0, N)
    return S.emit(), None, S.over()

def flat(l):
    o = []
    for x in l: o += [x] if isinstance(x, str) else x
    return o

def resolve_lg(traces):
    res = {}
    for tr in traces:
        q = []
        for ins in tr:
            if ins.startswith("LG"):
                lo = K_ if ins[2] == "K" else V_
                need = [i for i, b in enumerate(q) if b is not None and lo <= b < lo + 32]
                n = len(q) - 1 - need[-1] if need else 15
                n = min(n, 15)
                res[ins] = min(res.get(ins, 15), n)
                continue
            mm = re.match(r"ds_read_b128 a\[(\d+):", ins)
            if mm: q.append(int(mm.group(1)))
            elif ins.startswith("ds_"): q.append(None)
    return res

def uniq_lg(code, pfx):
    o = []
    for i, ins in enumerate(code):
        o.append(f"{ins}#{pfx}{i}" if ins in ("LGK", "LGV") else ins)
    return o

def section(slots, name, spill_in):
    code = []; sp = spill_in; ov = 0
    for kw in slots:
        c, sp, o = slot(spill=sp, **kw); code += c; ov += o
    print("K2", name, "over", ov)
    return uniq_lg(code, name), sp

def kv_setup(vLN):
    c = []; A = c.append
    A(f"s_lshl_b32 s{s2I}, s{sI}, 1")
    A(f"s_lshl_b32 s{sLW}, s{sWAVE}, 13")
    A(f"v_lshlrev_b32 v{vDMA}, 4, v{vLN}"); A(f"v_add_u32 v{vDMA}, s{sLW}, v{vDMA}")
    A(f"s_lshl_b32 s{sQL}, s{sI}, 2"); A(f"s_add_u32 s{sQL}, s{sQL}, s{sWAVE}"); A(f"s_sub_u32 s{sQH}, 63, s{sQL}")
    A(f"s_sub_u32 s{sNST}, 32, s{s2I}")
    A(f"s_lshl_b32 s{sT1}, s{sH}, 20"); A(f"s_add_u32 s{sT1}, s{sT1}, {WS_KV}")
    A(f"s_lshl_b32 s{sKV+2}, s{sNST}, 15")
    A([f"s_add_u32 s{sKV}, s{sWS}, s{sT1}", f"s_addc_u32 s{sKV+1}, s{sWS+1}, 0"])
    A(f"s_add_u32 s{sRD}, s{sLW}, 65536"); A(f"s_mov_b32 s{sSEQ}, 0")
    A(f"s_mov_b32 s{sRK}, 65536"); A(f"s_mov_b32 s{sRV}, 32768")
    return c
def kv_dma0(): return dma_ops()
def kv_dma1(): return dma_ops()
E2 = os.environ.get('E2', '0') == '1'
def kv_dma2(): return flat(dma_ops()[:9]) if E2 else []
def mask_setup(vLN):
    c = []; A = c.append
    t0, t1 = P_[1], P_[1] + 1
    A(f"v_lshrrev_b32 v{t0}, 5, v{vLN}"); A(f"v_lshlrev_b32 v{t0}, 4, v{t0}"); A(f"v_and_b32 v{t1}, 15, v{vLN}"); A(f"v_sub_u32 v{t0}, v{t1}, v{t0}")
    A(f"v_bfe_u32 v{t1}, v{vLN}, 4, 1"); A(f"v_lshlrev_b32 v{t1}, 2, v{t1}"); A(f"v_sub_u32 v{t0}, v{t0}, v{t1}")
    A(f"v_mov_b32 v{t1}, {hex(BIG)}")
    pr = ["s[72:73]", "s[74:75]", "s[32:33]", "s[70:71]"]
    for r0 in range(0, 16, 4):
        for r in range(r0, r0 + 4): A(f"v_cmp_gt_i32 {pr[r&3]}, {8*((r>>2)&1) + (r&3) - 16*(r>>3)}, v{t0}")
        for r in range(r0, r0 + 4): A(f"v_cndmask_b32 v{TRI+r}, 0, v{t1}, {pr[r&3]}")
    A(f"s_sub_u32 s{sDT}, 0, s{sWAVE}")
    c += cm_ops()
    for r in range(16): A(f"v_mov_b32 v{P_[0]+r}, 0")
    return c
def wo_ptrs():
    return [f"s_load_dwordx2 s[96:97], s[0:1], {KA_WO}", f"s_load_dwordx2 s[48:49], s[0:1], {KA_BWO}",
            f"s_mov_b32 s98, {4*MB}", "s_mov_b32 s99, 0x20000", f"s_mov_b32 s50, {MB//2}"]
def out_ptr(): return [f"s_load_dwordx2 s[44:45], s[0:1], {KA_OUT}"]
def wo_touch(vLN):
    c = []; A = c.append
    A(f"v_lshrrev_b32 v9, 3, v{vLN}"); A(f"v_and_b32 v10, 7, v{vLN}"); A(f"v_bfe_u32 v11, v{vLN}, 4, 1"); A("v_lshlrev_b32 v11, 2, v11"); A("v_xor_b32 v10, v10, v11")
    A("v_lshlrev_b32 v10, 4, v10"); A("v_lshl_add_u32 v9, v9, 10, v10")
    A(f"s_lshl_b32 s100, s{sH}, 2"); A(f"s_add_u32 s100, s100, s{sWAVE}"); A("s_lshl_b32 s101, s100, 15"); A(f"s_lshl_b32 s7, s{sI}, 7"); A("s_add_u32 s101, s101, s7")
    A(f"s_lshl_b32 s7, s{sWAVE}, 12")
    for i in range(4):
        A(f"s_add_u32 m0, s7, {i*1024}"); A(f"s_add_u32 s6, s101, {i*8192}")
        A("buffer_load_dwordx4 v9, s[96:99], s6 offen" + os.environ.get("WNT", " nt") + " lds" + (" ; grpend:wt" if i == 3 else ""))
    A(f"v_and_b32 v10, 3, v{vLN}"); A("v_lshlrev_b32 v10, 7, v10"); A("s_lshl_b32 s6, s2, 2"); A(f"s_add_u32 s6, s6, s{sWAVE}"); A("s_lshl_b32 s6, s6, 9")
    A("buffer_load_dword v23, v10, s[48:51], s6 offen")
    A(f"v_lshrrev_b32 v9, 5, v{vLN}"); A(f"v_bfe_u32 v10, v{vLN}, 2, 2"); A("v_lshl_add_u32 v9, v9, 2, v10"); A("v_lshlrev_b32 v9, 7, v9")
    A(f"v_bfe_u32 v10, v{vLN}, 3, 1"); A("v_lshl_add_u32 v9, v10, 6, v9")
    A(f"v_bfe_u32 v10, v{vLN}, 4, 1"); A("v_lshl_add_u32 v9, v10, 5, v9")
    A(f"v_and_b32 v10, 3, v{vLN}"); A("v_lshl_add_u32 v9, v10, 3, v9"); A("v_add_u32 v9, s7, v9"); A("v_xor_b32 v10, 64, v9")
    A("s_lshl_b32 s100, s100, 12"); A(f"s_lshl_b32 s101, s{sI}, 19"); A("s_add_u32 s100, s100, s101")
    return c
def wt_read(): return ["s_waitcnt vmcnt(@wt:0:wt)"] + [f"ds_read_b64_tr_b16 {ar(128+8*j+4*mt+2*e,2)}, v{9+mt} offset:{j*1024 + e*2048}" for j in range(2) for mt in range(2) for e in range(2)]
def wt_store(): return [f"buffer_store_dwordx4 {ar(128+4*k,4)}, v{vL16}, {sr(sWS,4)}, s100 offen offset:{k*1024}{SC}" for k in range(4)]
def start_parts(vLN):
    return dict(vk=[f"v_lshlrev_b32 v{vK}, 4, v{vLN}", f"v_add_u32 v{vK}, s{sRK}, v{vK}"], wt=wt_read(),
                k=[kread(0, ks) for ks in range(8)], late=[f"v_lshlrev_b32 v{vL16}, 4, v{vLN}"] + ones(vLN) + dma_ops()[:9])
def prologue(vLN): return []
def ones(vLN):
    return [f"v_and_b32 v21, 3, v{vLN}", "v_cmp_eq_u32 vcc, 0, v21", "v_mov_b32 v21, 0x3f803f80", "s_nop 0"] + [f"v_cndmask_b32 v{ONE+r}, 0, v21, vcc" for r in range(4)]
def gate_parts(vLN):
    v = [f"v_and_b32 v21, 15, v{vLN}", "v_lshlrev_b32 v18, 2, v21", f"v_lshrrev_b32 v{vCS}, 4, v{vLN}", f"v_lshlrev_b32 v{vCS}, 9, v{vCS}", f"v_lshl_add_u32 v{vCS}, v21, 4, v{vCS}"]
    sc = [f"s_lshl_b32 s78, s{sQL}, 7", f"s_add_u32 s78, s78, {WS_GATE}", f"s_lshl_b32 s79, s{sQH}, 7", f"s_add_u32 s79, s79, {WS_GATE}"]
    ld = [f"buffer_load_dword v{vG[j][qs]}, v18, {sr(sWS,4)}, s{b} offen offset:{64*qs}{SC}" + (" ; grpend:ga" if j == 'H' and qs else "") for j, b in (('L', 78), ('H', 79)) for qs in range(2)]
    return v, sc, ld

sBAD = 70
sCA = 76
HP = 32
vLS = [11, 12]
def rowsum(j): return [f"v_accvgpr_read_b32 v{vLS[qs]}, a{SUM_[j]+4*qs}" for qs in range(2)]
def check(j):
    c = []
    for qs in range(2):
        c += [f"v_cmp_nle_f32 vcc, {hex(fbits(2.0**-40))}, v{vLS[qs]}"]
        c += [f"s_mov_b64 {sr(sBAD,2)}, vcc"] if (j == 'L' and qs == 0) else [f"s_or_b64 {sr(sBAD,2)}, {sr(sBAD,2)}, vcc"]
        c += [f"v_cmp_nge_f32 vcc, {hex(fbits(2.0**64))}, v{vLS[qs]}", f"s_or_b64 {sr(sBAD,2)}, {sr(sBAD,2)}, vcc"]
    return c
def ctx_off(sq, a):
    return [f"s_mul_i32 s{a}, s{sq}, {288*1024}", f"s_lshl_b32 s{a+1}, s{sH}, 13", f"s_add_u32 s{a}, s{a}, s{a+1}",
            f"s_add_u32 s{a}, s{a}, {WS_CTX}", f"s_add_u32 s{a+1}, s{a}, 4096"]
def scale_pack(j, store, inplace=False):
    c = []; A = c.append
    sc = [vT + 1, vT + 2]
    for qs in range(2): A(f"v_rcp_f32 v{sc[qs]}, v{vLS[qs]}")
    c += ctx_off(sQL if j == 'L' else sQH, sCA)
    for qs in range(2): A(f"v_mul_f32 v{sc[qs]}, v{sc[qs]}, v{vG[j][qs]}")
    prev = []
    for fr in range(8):
        a, qs = fr >> 1, fr & 1
        T = [O_[j] + (4*a + qs)*4, O_[j] + (4*a + 2 + qs)*4]; t = T[0] if (store or inplace) else HP + 4 * fr
        for b in T:
            for r in (0, 2): A(f"v_pk_mul_f32 {vr(b+r,2)}, {vr(b+r,2)}, {vr(sc[0],2)} op_sel:[0,{qs}] op_sel_hi:[1,{qs}]")
        for r in range(4): A(f"v_cvt_pk_bf16_f32 v{t+r}, v{T[r>>1]+2*(r&1)}, v{T[r>>1]+2*(r&1)+1}")
        if store: A(cstore(t, fr))
    return c
vCS = 30
def cstore(t, fr): return f"buffer_store_dwordx4 {vr(t,4)}, v{vCS}, {sr(sWS,4)}, s{sCA + fr//4} offen offset:{((fr>>1)&1)*2048 + (fr&1)*256}{SC}"
def h_stores(): return [cstore(HP + 4*fr, fr) + (" ; grpend:ca" if fr == 7 else "") for fr in range(8)]
def epilogue(early):
    c = ['s_nop 7'] + rowsum('H') + check('H')
    c.append("s_cbranch_scc1 K2_SLOW" if not os.environ.get("K2X") else "s_cbranch_execz K2_SLOW")
    c.append("K2_STORE:")
    return c + scale_pack('H', False)

def slow():
    c = ["K2_SLOW:", "s_waitcnt vmcnt(0)", f"s_lshl_b32 s{sKV+2}, s{sNST}, 15"]; A = c.append
    S = S_[0]; P = P_[0]; vM = [16, 17]; vX = 18
    def loads(base, extra):
        o = [f"s_lshl_b32 s{sT0}, s{sCNT}, 14", f"s_add_u32 s{sT0}, s{sT0}, {extra}", f"s_add_u32 s{sT1}, s{sT0}, 4096"]
        o += [f"buffer_load_dwordx4 {ar(base+4*i,4)}, v{vL16}, {sr(sKV,4)}, s{sT0 if i < 4 else sT1} offen offset:{(i%4)*1024}{SC}" for i in range(8)]
        return o
    def mask(sq):
        return [f"s_sub_u32 s{sDT}, s{sCNT}, s{sq}"] + flat(cm_ops()) + ["s_nop 1"]
    for j, sq in (('L', sQL), ('H', sQH)):
        for qs in range(2): A(f"v_mov_b32 v{vM[qs]}, {hex(BIG)}")
        A(f"s_mov_b32 s{sCNT}, 0")
        A(f"K2_SM{j}:")
        c += loads(K_, 0) + mask(sq); A("s_waitcnt vmcnt(0)")
        c += qk(j, 0, "cm"); A("s_nop 15")
        for r in range(16): A(f"v_max_f32 v{vM[r>>3]}, v{vM[r>>3]}, v{S+r}")
        A(f"s_add_u32 s{sCNT}, s{sCNT}, 1"); A(f"s_cmp_le_u32 s{sCNT}, s{sq}"); A(f"s_cbranch_scc1 K2_SM{j}")
        for qs in range(2):
            for op in ("v_permlane16_swap_b32", "v_permlane32_swap_b32"):
                A(f"v_mov_b32 v{vX}, v{vM[qs]}"); A("s_nop 1"); A(f"{op} v{vM[qs]}, v{vX}"); A(f"v_max_f32 v{vM[qs]}, v{vM[qs]}, v{vX}")
        for r in range(64): A(f"v_mov_b32 v{O_[j]+r}, 0")
        for r in range(8): A(f"v_accvgpr_write_b32 a{SUM_[j]+r}, 0")
        A(f"s_mov_b32 s{sCNT}, 0")
        A(f"K2_SP{j}:")
        c += loads(K_, 0) + loads(V_, 8192) + mask(sq); A("s_waitcnt vmcnt(0)")
        c += qk(j, 0, "cm"); A("s_nop 15")
        for r in range(16): A(f"v_sub_f32 v{S+r}, v{S+r}, v{vM[r>>3]}")
        for r in range(16): A(f"v_exp_f32 v{S+r}, v{S+r}")
        A("s_nop 0")
        for r in range(8): A(f"v_cvt_pk_bf16_f32 v{P+r}, v{S+2*r}, v{S+2*r+1}")
        A("s_nop 1")
        c += pv(j, 0)
        A(f"s_add_u32 s{sCNT}, s{sCNT}, 1"); A(f"s_cmp_le_u32 s{sCNT}, s{sq}"); A(f"s_cbranch_scc1 K2_SP{j}")
        A("s_nop 15")
        c += rowsum(j)
        if j == 'L': c += scale_pack('L', True)
    A("s_branch K2_STORE")
    return c

def gen(vLN, early, mark, mk=lambda n: []):
    cnt[0] = 0
    P = prologue(vLN)
    L, H = 'L', 'H'
    K = dict(prek=True, nextk=True)
    gv, gs_, gl = gate_parts(vLN)
    ld = early["ld"]; ev = gv + early["valu"]; s1 = gs_ + early["s1"]; s2 = early["s2"]
    assert len(s2) <= 17 and len(s1) <= 20
    WTS = int(os.environ.get('WTS', '3'))
    WOT = os.environ.get("WOT", "p2")
    EC = [int(x) for x in os.environ.get("EC", "18,25,38,48,52,56,60,64").split(",")]
    NF = int(os.environ.get('NF', '60'))
    base = lambda st: sRK if st == 0 else sBS[st - 1]
    w0 = lambda code, lbl: [f"s_cmp_lg_u32 s{sWAVE}, 0", f"s_cbranch_scc1 {lbl}"] + code + [f"{lbl}:"]
    fld = f"buffer_load_dword v31, v27, {sr(sWS,4)}, 0 offen sc1 ; grpend:fl"
    chk = w0([f"s_mov_b32 s{sDT}, 0x100000", "s_waitcnt vmcnt(@K2_C:0:fl)", "K2_CL:", "v_cmp_ne_u32 s[70:71], 1, v31", "s_cmp_eq_u64 s[70:71], 0", "s_cbranch_scc1 K2_C ; exit",
              "s_sleep 8", fld, "s_waitcnt vmcnt(0)", f"s_sub_u32 s{sDT}, s{sDT}, 1", f"s_cmp_lg_u32 s{sDT}, 0", "s_cbranch_scc1 K2_CL"], "K2_C")
    def dslot(j, w):
        it = d_items(w); prev = [('L',), ('H',)] + it
        d = dict(qi=it[j][:2], si=prev[j+1][0], pi=prev[j][0], n=j + 1, kre=None, vre=None, **K)
        if 1 <= j < 8: d["kre"] = it[j+1][3]
        if j == 2: d["kre"] = 0
        if j == 8: d["kre"] = 0
        if j == 1: d["kset"] = sM3
        if 2 <= j < 7: d["kset"] = base(it[j+2][2])
        if j == 2: d["kset"] = sT0
        if j == 1 or j >= 3: d["vre"] = it[j-1][3]; d["vset"] = base(it[j-1][2])
        d["extra"] = ev[NF:] if j == 2 else []
        if j == 0: d.update(dma=23, sal=list(zip([7, 9, 11, 26, 30, 32], flat(ring3(sBS[0], sRK) + ring3(sBS[1], sBS[0])))))
        if j == 1: d.update(dma=2, sal=list(zip([2, 3, 5, 7, 9, 11, 16, 18], flat(ring3(sBS[2], sBS[1])) +
                        [f"s_cmp_eq_u32 s{sWAVE}, 0", f"s_cselect_b32 s{sM3}, s{sBS[0]}, s{sRK}", f"s_add_u32 s{sM3}, s{sM3}, 16384",
                         f"s_cmp_lt_u32 s{sWAVE}, 2", f"s_cselect_b32 s{sT0}, s{sBS[0]}, s{sBS[2]}"])))
        if j == 2: d.update(prebar=chk, bar=True, bark=2, sal=list(zip([2, 3, 5, 7, 9, 11, 16, 18, 20, 22, 24, 26, 30], s1[:13])), rid=[[], []] + gl + [[], []])
        if j == 3: d.update(bar=True, bark=0, dma=1, sal=list(zip([5, 7, 9, 11, 18, 20, 22], s1[13:])))
        if j == 4: d.update(dma=2, rid=ld[0:4])
        if j == 3 and WTS == 3: d['sal'] += list(zip([12, 21, 29, 32], wt_store()))
        if j == 5: d.update(rid=ld[4:12], sal=list(zip([0, 1, 1, 1, 2, 3, 5, 7, 9, 11, 16, 18, 20, 22, 24, 26, 30], s2)))
        if j == 6: d.update(bar=True, bark=None, dma=1, rid=ld[12:15])
        if j == 7: d.update(dma=2, rid=ld[15:], kadv=True, sal=[(2, f"s_mov_b32 s{sRV}, s{sBS[2]}"), (15, f"s_mov_b32 s{sRK}, s{sBS[2]}")])
        if j == 8:
            d.update(bar=True, dma=1)
            if WTS == 8: d.update(sal=list(zip([12, 21, 29, 32], wt_store())))
            if WOT == "d8": d.update(sal=[(1, wt[0]), (12, wt[1]), (18, wt[2]), (20, wt[3]), (22, wt[4]), (29, wt[5]), (32, wt[6])])
        return d
    D0, _ = section([dslot(j, 0) for j in range(2)], "d0", None)
    D2, _ = section([dslot(2, 0)], "d2", None)
    def first(sl):
        a, b = dict(sl[0]), dict(sl[1]); a.update(si=None, pfirst=True, extra=ev[:NF]); b.update(pfirst=True)
        return [a, b]
    G0, _ = section(first([dslot(0, 0), dslot(1, 0)]), "g0", None)
    DV = [section([dslot(j, w) for j in range(3, 8)], f"dv{w}", None)[0] for w in range(4)]
    D8, _ = section([dslot(8, 0)], "d8", None)
    def dual(loop): return [
        dict(qi=(L, False), si=H, pi=L, n=3, kre=None, vre=None, dma=21, **K),
        dict(qi=(H, False), si=L, pi=H, n=0, kre=1, vre=0, vadv=True, **K),
        dict(qi=(L, False), si=H, pi=L, n=1, kre=None, vre=None, kadv=True, dma=22, **K),
        dict(qi=(H, False), si=L, pi=H, n=2, kre=0, vre=1, bar=True, dma=1, dual=True, loop=loop, **K)]
    ct = [(8, "buffer_load_dword v23, v22, s[52:55], 0 offen")] if "4" in os.environ.get("RT", "") else []
    dd = dual(None) + dual("K2_DL"); dd[0]["sal"] = ct
    Da, _ = section(dd[:2], "dualA", None); Db, _ = section(dd[2:], "dualB", None)
    F0, _ = section(first(dd[:2]), "f0", None)
    def single(loop=None): return [
        dict(qi=(H, False), si=H, pi=H, n=0, kre=1, vre=1, kadv=True, dma=2, **K),
        dict(qi=(H, False), si=H, pi=H, n=1, kre=0, vre=0, bar=True, vadv=True, dma=1, loop=loop, **K)]
    ss = single() + single() + single() + single(loop="K2_SL"); ss[0]["sal"] = ct
    S_1, _ = section(ss, "single", None)
    E3, _ = section([dict(qi=None, si=H, pi=H, n=0, kre=None, vre=1), dict(qi=None, si=None, pi=H, n=1, kre=None, vre=None)], "drain", None)
    EP = epilogue(early); SL = slow()
    P = P + ["s_waitcnt lgkmcnt(0)"] + mk('a0')
    sel = [f"s_cmp_eq_u32 s{sWAVE}, 1", "s_cbranch_scc1 K2_V1", f"s_cmp_eq_u32 s{sWAVE}, 2", "s_cbranch_scc1 K2_V2", f"s_cmp_eq_u32 s{sWAVE}, 3", "s_cbranch_scc1 K2_V3"]
    lD = [f"s_sub_u32 s{sCNT}, s{sI}, 1", "s_cbranch_scc1 K2_G"]
    G0 = ["K2_G:"] + w0([fld], "K2_F0") + G0 + ["s_branch K2_D2"]
    lB = ["K2_B:"] + mk('a1') + w0([fld], "K2_F")
    LE = mk('a2') + ["s_waitcnt vmcnt(@gate:0:ga)", "s_nop 4"] + rowsum('L') + check('L') + scale_pack('L', True) + mk('a3')
    lS = mk('a4') + [f"s_sub_u32 s{sCNT}, 6, s{sI}", "s_cbranch_scc1 K2_E", ".p2align 4", "K2_SL:"]
    lE = ["K2_E:"] + mk('a5')
    traces = []
    for i in range(8):
        for w in ([0, 1, 2, 3] if i in (0, 7) else [i & 3]):
            tr = P + lD
            if i:
                tr = tr + F0 + ["s_branch K2_DB"] + Db
                for _ in range(i - 1): tr = tr + Da + Db
                tr = tr + lB + D0
            else: tr = tr + G0
            tr = tr + D2 + sel + DV[w] + LE + D8 + lS
            for _ in range(7 - i): tr = tr + S_1
            traces.append(tr + lE + E3 + mark + EP)
    lg = resolve_lg(traces)
    fix = lambda code: [f"s_waitcnt lgkmcnt({lg[x]})" if x.startswith("LG") else x for x in code]
    traces = [fix(t) for t in traces]
    k = [i for i, x in enumerate(EP) if x == "K2_STORE:"][0]
    slowtraces = [t[:len(t) - len(EP)] + EP[:k] + SL + EP[k:] for t in (traces[5], traces[-1])]
    code = P + lD + F0 + ["s_branch K2_DB", ".p2align 4", "K2_DL:"] + Da + ["K2_DB:"] + Db + lB + D0 + ["K2_D2:"] + D2 + sel + DV[0] + ["K2_J:"] + LE + D8 + lS + S_1 + lE + E3 + mark + EP
    out = list(G0)
    for w in range(1, 4): out += [f"K2_V{w}:"] + DV[w] + ["s_branch K2_J"]
    return fix(code), fix(out) + SL, traces + slowtraces
```

```python
from asmlib import *
from layout import *
import os
BIG = fbits(-1.0e30)
def flat(l):
    o = []
    for x in l: o += [x] if isinstance(x, str) else x
    return o
SC = " sc1"
O_ = 64; S_ = [192, 208]; P_ = [224, 232]; WF = [16, 24]
vL16 = 3
vVA, vG, vL16b, vTR, vWD, vLN = 240, [241, 242], 243, [244, 245], [246, 247, 248, 249], 250
T0_, T1_, T2_, T3_, T4_ = 251, 252, 253, 254, 255
ACC = 0; CX = 64; Q_ = 128; KB = [160 + 4*b for b in range(4)]; VB = [176 + 8*b for b in range(4)]
sWS, sW, sDBG, sOUT = 8, 12, 40, 44
sWAVE, sH, sQB = 16, 17, 18
sRT, sCT = 17, 18
sCNT, sKK, sKV, sT0, sT1, sC0, sWO, sLW, sCB, sWC = range(19, 29)
sM, sWB, sWA = 30, 32, 34
sZ0, sZ1 = 36, 37
sC1, sW1 = 38, 39
STG = int(os.environ.get('STG', '0'))
CT4 = [int(x) for x in os.environ.get('CT4', '').split(',') if x]
CTOUCH = 'buffer_load_dword v13, v30, s[52:55], 0 offen'
RED = 65536
PD = int(os.environ.get("PD", "4"))
PE = int(os.environ.get("PE", "8"))

def b_qk(j, kb, sb): return f"v_mfma_f32_32x32x16_bf16 {vr(S_[sb],16)}, {ar(KB[kb],4)}, {ar(Q_+4*j,4)}, 0"
def b_pv(j, vb, pb, f, first=False):
    d = vr(O_ + 16*j, 16)
    return f"v_mfma_f32_32x32x16_bf16 {d}, {ar(VB[vb]+4*f,4)}, {vr(P_[pb]+4*f,4)}, {'0' if first and f == 0 else d}"
def b_kload(b): return [f"buffer_load_dwordx4 {ar(KB[b],4)}, v{vL16}, {sr(sWS,4)}, s{sKK} offen{SC} ; grpend:k{b}", f"s_add_u32 s{sKK}, s{sKK}, 2048"]
def b_vload(b):
    return [f"s_mov_b64 exec, {sr(sM,2)}"] + [f"buffer_load_dwordx4 {ar(VB[b]+4*f,4)}, v{vVA}, {sr(sWS,4)}, s{sKV} offen offset:{1024 + 512*f}{SC}" + (f" ; grpend:v{b}" if f else "") for f in range(2)] + \
           ["s_mov_b64 exec, -1", f"s_add_u32 s{sKV}, s{sKV}, 2048"]
def wreg(s, mt): return ar(208 + 8*s + 4*mt, 4) if s < 6 else vr(16 + 8*(s - 6) + 4*mt, 4)
def o_mf(s, i):
    qt, mt = i >> 1, i & 1
    d = ar(ACC + (mt*2+qt)*16, 16)
    return f"v_mfma_f32_32x32x16_bf16 {d}, {wreg(s, mt)}, {ar(CX+8*s+4*qt,4)}, {d}"
def o_ctx(s, qt): return f"buffer_load_dwordx4 {ar(CX+8*s+4*qt,4)}, v{vL16b if qt else vL16}, {sr(sWS,4)}, s{sC0} offen offset:{(s%4)*1024}{SC}" + (" ; grpend:o" if qt else "")
def o_w(s, mt): return f"buffer_load_dwordx4 {wreg(s, mt)}, v{vL16}, {sr(sWS,4)}, s{sW1} offen offset:{(s&1)*2048 + mt*1024}{SC}"
def o_post(s): return ([f"s_add_u32 s{sW1}, s{sW1}, 4096"] if s & 1 else []) + ([f"s_add_u32 s{sC0}, s{sC0}, 4096"] if s % 4 == 3 else [])
def wb_dma():
    o = []
    for s in range(8):
        for i in range(2):
            k = (s & 1) * 2 + i
            pre = [f"s_add_u32 m0, s{sLW}, {s*2048}", f"s_add_u32 s{sWO}, s{sWO}, 32768"] if k == 0 else []
            o.append(pre + [f"buffer_load_dwordx4 v{vWD[k]}, {sr(sW,4)}, s{sWO} offen offset:{k*1024} lds" + (" ; grpend:wb" if s == 7 and i else "")])
    return o
def w0only(code, lbl): return [f"s_cmp_lg_u32 s{sWAVE}, 0", f"s_cbranch_scc1 {lbl}"] + code + [f"{lbl}:"]
def flag_store(base):
    return [f"s_lshl_b32 s{sZ0}, s{sQB}, 7", f"s_lshl_b32 s{sZ1}, s{sH}, 2", f"s_add_u32 s{sZ0}, s{sZ0}, s{sZ1}", f"s_add_u32 s{sZ0}, s{sZ0}, {base}",
            f"v_mov_b32 v{T1_}, 1", "s_mov_b64 exec, 1", f"buffer_store_dword v{T1_}, off, {sr(sWS,4)}, s{sZ0}{SC}", "s_mov_b64 exec, -1"]
def flag_load(): return f"buffer_load_dword v{T1_}, v{T2_}, {sr(sWS,4)}, s{sZ0} offen{SC} ; grpend:fl"
def flag_lane(): return [f"v_and_b32 v{T2_}, 31, v{vLN}", f"v_lshlrev_b32 v{T2_}, 2, v{T2_}"]
def spin(lbl):
    SL = os.environ.get("SL", "4")
    if SL == "p":
        ld = lambda r: flag_load().replace(f"v{T1_},", f"v{r},", 1)
        return [f"s_mov_b32 s{sZ1}, 0x100000", f"s_waitcnt vmcnt(@{lbl}:0:fl)", f"v_cmp_ne_u32 vcc, 1, v{T1_}", "s_nop 0", f"s_cbranch_vccz {lbl}",
                ld(15), "s_sleep 5", f"{lbl}L:", ld(14), "s_waitcnt vmcnt(1)", "v_cmp_ne_u32 vcc, 1, v15", "s_nop 0", f"s_cbranch_vccz {lbl}X",
                ld(15), "s_waitcnt vmcnt(1)", "v_cmp_ne_u32 vcc, 1, v14", "s_nop 0", f"s_cbranch_vccz {lbl}X",
                f"s_sub_u32 s{sZ1}, s{sZ1}, 1", f"s_cmp_lg_u32 s{sZ1}, 0", f"s_cbranch_scc1 {lbl}L", f"{lbl}X:"]
    return [f"s_mov_b32 s{sZ1}, 0x100000", f"s_waitcnt vmcnt(@{lbl}:0:fl)", f"{lbl}L:", f"v_cmp_ne_u32 vcc, 1, v{T1_}", "s_nop 0", f"s_cbranch_vccz {lbl}",
            f"s_sleep {SL}", flag_load(), "s_waitcnt vmcnt(0)", f"s_sub_u32 s{sZ1}, s{sZ1}, 1", f"s_cmp_lg_u32 s{sZ1}, 0", f"s_cbranch_scc1 {lbl}L"]

def smseq(n):
    S = S_[n & 1]; P = P_[n & 1]
    e = lambda r: f"v_exp_f32 v{S+r}, v{S+r}"
    c = lambda k: f"v_cvt_pk_bf16_f32 v{P+k}, v{S+2*k}, v{S+2*k+1}"
    return [e(0), e(1), e(2), c(0), e(3), e(4), c(1), e(5), e(6), c(2), e(7), e(8), c(3), e(9), e(10), c(4), e(11), e(12), c(5), e(13), e(14), e(15), c(6), c(7)]

def red_writes(j):
    return [f"ds_write_b128 v{T0_}, {vr(O_+16*j+4*k,4)} offset:{j*2048 + k*1024}" for k in range(2)] + [f"ds_write_b32 v{T3_}, v{O_+16*j+8} offset:{j*512}"]
def body(fused, tag, extra=None, first=False, last=False):
    o = []
    for n in range(32):
        qn = (n + 1) % 32; pn = (n - 1) % 32
        QK = [b_qk(qn % 8, qn // 8, (n + 1) & 1)]; PV = [[b_pv(pn % 8, pn // 8, (n + 1) & 1, f, first and pn < 8)] for f in range(2)]
        if first and n == 0: PV = [[], []]
        if last and n == 31: QK = []
        xq = []; xp = []
        if n % 8 == 6 and not last: xq = b_kload(n // 8)
        if n % 8 == 0 and not (first and n == 0) and not (last and n > 0): xp = b_vload((n // 8 - 1) % 4)
        if n % 8 == 6 and not (last and n == 30): xp = xp + [f"s_waitcnt vmcnt(@{tag}{n}:0:k{(n // 8 + 1) % 4})"]
        if n % 8 == 1: xq = xq + [f"s_waitcnt vmcnt(@{tag}{n}:0:v{n // 8})"]
        q = smseq(n)
        ex = (extra or {}).get(n, [[], [], []])
        o += QK + xq + ex[0] + q[:8] + PV[0] + ex[1] + q[8:16] + PV[1] + xp + ex[2] + q[16:]
    return o

NS = int(os.environ.get("NS", "56"))
def fused_all(wb):
    o = []; NSL = 96
    oms = [(k, i) for k in range(NS) for i in range(4)]
    q_mem = []
    issued = PD
    done = (-1, 3); om = 0
    totg = min(NS + PE, 64)
    lastmem = False
    for n in range(NSL):
        it = 32 + n; nn = it % 32; last = it >= 96
        qn = (nn + 1) % 32; pn = (nn - 1) % 32
        QK = b_qk(qn % 8, qn // 8, (nn + 1) & 1) if n < NSL - 1 else None
        PV = [b_pv(pn % 8, pn // 8, (nn + 1) & 1, f) for f in range(2)]
        xq = []; xp = []
        if nn % 8 == 6 and not last: xq = b_kload(nn // 8)
        if nn % 8 == 0 and not (last and nn > 0): xp = b_vload((nn // 8 - 1) % 4)
        if nn % 8 == 6 and not (last and nn == 30): xp = xp + [f"s_waitcnt vmcnt(@u{n}:0:k{(nn // 8 + 1) % 4})"]
        if nn % 8 == 1: xq = xq + [f"s_waitcnt vmcnt(@u{n}:0:v{nn // 8})"]
        if wb and n % 4 == 3: xq = wb.pop(0) + xq
        if n in CT4: xq = [CTOUCH.replace('v30', 'v12')] + xq
        cnt = (len(oms) * (n + 1)) // NSL - om
        mine = oms[om:om + cnt]; om += cnt
        M = [("q", QK)] + [("o", x) for x in mine[:1]] + [("p", PV[0])] + [("o", x) for x in mine[1:2]] + [("P", PV[1])] + [("o", x) for x in mine[2:]]
        q = smseq(nn); G = len(M)
        cum = []; t = 0
        for x in q: t += vcost(x); cum.append(t)
        cuts = [0] + [min(range(len(q) + 1), key=lambda j: abs((cum[j-1] if j else 0) - t * (g + 1) / G)) for g in range(G - 1)] + [len(q)]
        rw = red_writes(nn - 26) if last and nn >= 26 else []
        for g, (kind, x) in enumerate(M):
            sh = []
            if kind == "o":
                k, i = x; o.append(o_mf(k % 8, i)); done = x
                if i == 0:
                    want = min(totg, PD + ((totg - PD) * (k + 1) + NS - 1) // NS)
                    while issued < want:
                        p = issued % 8; w = issued - 8
                        q_mem += [([o_ctx(p, 0)], (w, 1)), ([o_w(p, 0)], (w, 2)), ([o_w(p, 1)], (w, 3)), ([o_ctx(p, 1)], (w, 3))] + [([y], None) for y in o_post(p)]
                        issued += 1
            elif x: o.append(x)
            if kind == "q": sh += xq
            if rw and g >= 2: sh.append(rw.pop(0))
            if kind == "P": sh += xp
            nxt = M[g + 1] if g + 1 < G else None
            if nxt and nxt[0] == "o" and nxt[1][1] == 0:
                k = nxt[1][0]
                ended = issued - sum(1 for y in q_mem if "grpend:o" in y[0][0])
                sh.append(f"s_waitcnt vmcnt(@uo{k}:{ended - (k + 1)}:o)")
            elif not sh and q_mem and (q_mem[0][1] is None or q_mem[0][1] <= done):
                ismem = q_mem[0][0][0].startswith("buffer")
                if not (ismem and lastmem and len(q_mem) < 5): sh += q_mem.pop(0)[0]
            lastmem = any(y.startswith("buffer") for y in sh)
            o += sh + q[cuts[g]:cuts[g+1]]
        assert not rw
    for y in q_mem: o += y[0]
    return o
def early():
    c = []; A = c.append
    A(f"v_and_b32 v{vLN}, 63, v0")
    A(f"v_and_b32 v{T0_}, 15, v{vLN}"); A(f"v_lshrrev_b32 v{T1_}, 5, v{vLN}"); A(f"v_lshl_add_u32 v{T0_}, v{T1_}, 4, v{T0_}"); A(f"v_lshlrev_b32 v{vVA}, 4, v{T0_}")
    A(f"v_and_b32 v{T2_}, 27, v{vLN}"); A(f"v_cmp_eq_u32 vcc, 16, v{T2_}"); A(f"v_and_b32 v{T2_}, 31, v{vLN}"); A(f"v_mov_b32 v{T1_}, 0x3f803f80")
    A(f"v_lshlrev_b32 v{T2_}, 2, v{T2_}"); A(f"v_cndmask_b32 v{T1_}, 0, v{T1_}, vcc")
    for r in range(32): A(f"v_accvgpr_write_b32 a{VB[0]+r}, v{T1_}")
    A(f"v_add_u32 v{vL16b}, {288*1024}, v{vL16}")
    A(f"v_lshrrev_b32 v{T3_}, 3, v{vLN}"); A(f"v_and_b32 v{T4_}, 7, v{vLN}"); A(f"v_bfe_u32 v{vWD[1]}, v{vLN}, 4, 1"); A(f"v_lshlrev_b32 v{vWD[1]}, 2, v{vWD[1]}"); A(f"v_xor_b32 v{T4_}, v{T4_}, v{vWD[1]}")
    A(f"v_lshlrev_b32 v{T4_}, 4, v{T4_}"); A(f"v_lshl_add_u32 v{vWD[0]}, v{T3_}, 10, v{T4_}")
    for k in range(1, 4): A(f"v_add_u32 v{vWD[k]}, {k*7168}, v{vWD[0]}")
    A(f"v_lshrrev_b32 v{T3_}, 5, v{vLN}"); A(f"v_bfe_u32 v{T4_}, v{vLN}, 2, 2"); A(f"v_lshl_add_u32 v{T3_}, v{T3_}, 3, v{T4_}"); A(f"v_lshlrev_b32 v{T3_}, 7, v{T3_}")
    A(f"v_bfe_u32 v{T4_}, v{vLN}, 3, 1"); A(f"v_lshl_add_u32 v{T3_}, v{T4_}, 6, v{T3_}")
    A(f"v_bfe_u32 v{T4_}, v{vLN}, 4, 1"); A(f"v_lshl_add_u32 v{T3_}, v{T4_}, 5, v{T3_}")
    A(f"v_and_b32 v{T4_}, 3, v{vLN}"); A(f"v_lshl_add_u32 v{T3_}, v{T4_}, 3, v{T3_}")
    A(f"v_lshrrev_b32 v{T4_}, 6, v0"); A(f"v_lshl_add_u32 v{vTR[0]}, v{T4_}, 14, v{T3_}"); A(f"v_xor_b32 v{vTR[1]}, 64, v{vTR[0]}")
    cuts = [int(x) for x in os.environ.get("ECUT", "12,18,24,30").split(",")]
    parts = [c[:cuts[0]], c[cuts[0]:cuts[1]], c[cuts[1]:cuts[2]], c[cuts[2]:cuts[3]]]
    valu = c
    c = []; A = c.append
    A(f"s_mov_b64 {sr(sWB,2)}, s[48:49]")
    A(f"s_lshl_b32 s{sLW}, s{sWAVE}, 14")
    A(f"s_mul_i32 s{sCB}, s{sRT}, {2*288*1024}"); A(f"s_add_u32 s{sCB}, s{sCB}, {WS_CTX}")
    A(f"s_lshl_b32 s{sC0}, s{sWAVE}, 16"); A(f"s_add_u32 s{sC0}, s{sC0}, s{sCB}")
    A(f"s_lshl_b32 s{sW1}, s{sCT}, 19"); A(f"s_lshl_b32 s{sWO}, s{sWAVE}, 17"); A(f"s_add_u32 s{sW1}, s{sW1}, s{sWO}")
    A(f"s_lshl_b32 s{sWC}, s{sCT}, 7"); A(f"s_sub_u32 s{sWC}, s{sWC}, 32768"); A(f"s_add_u32 s{sWO}, s{sWO}, s{sWC}")
    assert WS_WT == 0
    A(f"s_add_u32 s{sKK}, s{sZ0}, 8192"); A(f"s_mov_b32 s{sKV}, s{sKK}")
    scal2 = c
    c = []; A = c.append
    A(f"s_mov_b32 s{sM}, 0xffff"); A(f"s_mov_b32 s{sM+1}, 0xffff")
    A(f"s_lshl_b32 s{sZ0}, s{sH}, 17")
    A(f"s_lshl_b32 s{sT0}, s{sWAVE}, 15"); A(f"s_add_u32 s{sZ0}, s{sZ0}, s{sT0}"); A(f"s_add_u32 s{sZ0}, s{sZ0}, {WS_KVB}"); A(f"s_add_u32 s{sZ1}, s{sZ0}, 4096")
    A(f"s_lshl_b32 s{sT0}, s{sQB}, 10"); A(f"s_lshl_b32 s{sT1}, s{sWAVE}, 8"); A(f"s_add_u32 s{sT0}, s{sT0}, s{sT1}"); A(f"s_add_u32 s{sCNT}, s{sT0}, {WS_GATE}")
    A(f"s_lshl_b32 s{sT0}, s{sH}, 16"); A(f"s_lshl_b32 s{sT1}, s{sQB}, 13"); A(f"s_add_u32 s{sT0}, s{sT0}, s{sT1}"); A(f"s_add_u32 s{sT0}, s{sT0}, {WS_QB}")
    A(f"s_add_u32 s{sT1}, s{sT0}, 4096")
    scal = c
    ld = [f"buffer_load_dwordx4 {ar(Q_+4*j,4)}, v{vL16}, {sr(sWS,4)}, s{sT0 if j < 4 else sT1} offen offset:{(j%4)*1024}{SC}" for j in range(8)]
    kl = lambda b: f"buffer_load_dwordx4 {ar(KB[b],4)}, v{vL16}, {sr(sWS,4)}, s{sZ0 if b < 2 else sZ1} offen offset:{(b&1)*2048}{SC} ; grpend:k{b}"
    vl = lambda b: [f"s_mov_b64 exec, {sr(sM,2)}"] + [f"buffer_load_dwordx4 {ar(VB[b]+4*f,4)}, v{vVA}, {sr(sWS,4)}, s{sZ0 if b < 2 else sZ1} offen offset:{(b&1)*2048 + 1024 + 512*f}{SC}" + (f" ; grpend:v{b}" if f else "") for f in range(2)] + ["s_mov_b64 exec, -1"]
    for b in range(4): ld += [kl(b), vl(b)]
    ld += [f"buffer_load_dword v{vG[k]}, v{T2_}, {sr(sWS,4)}, s{sCNT} offen offset:{128*k}{SC}" for k in range(2)]
    return dict(valu=valu, s1=scal, s2=scal2, ld=ld)
def o_setup():
    return [f"s_mov_b64 {sr(sW,2)}, {sr(sWB,2)}", f"s_mov_b32 s{sW+2}, {MB//2}"]
R = 64
MK = [lambda n: []]
sCS = 29
def red_addr():
    return [f"s_add_u32 s{sT0}, s{sLW}, {RED}", f"v_add_u32 v{T0_}, s{sT0}, v{vL16}",
            f"v_and_b32 v{T4_}, 0x1f0, v{vL16}", f"v_lshrrev_b32 v{T1_}, 5, v{vLN}", f"v_lshl_add_u32 v{T1_}, v{T1_}, 10, v{T4_}",
            f"s_lshl_b32 s{sT0}, s{sWAVE}, 12", f"s_add_u32 s{sT0}, s{sT0}, {RED}", f"v_add_u32 v{T1_}, s{sT0}, v{T1_}",
            f"s_lshl_b32 s{sT0}, s{sWAVE}, 2", f"s_add_u32 s{sT0}, s{sT0}, 131072", f"v_add_u32 v{T3_}, s{sT0}, v{T4_}",
            f"s_lshl_b32 s{sT0}, s{sWAVE}, 10", f"s_add_u32 s{sT0}, s{sT0}, 131072", f"v_add_u32 v{T2_}, s{sT0}, v{T4_}",
            f"v_sub_f32 v{vG[0]}, 1.0, v{vG[0]}", f"v_sub_f32 v{vG[1]}, 1.0, v{vG[1]}",
            f"s_lshl_b32 s{sCS}, s{sQB}, 2", f"s_add_u32 s{sCS}, s{sCS}, s{sWAVE}", f"s_mul_i32 s{sCS}, s{sCS}, {2*288*1024}",
            f"s_lshl_b32 s{sT1}, s{sH}, 10", f"s_add_u32 s{sCS}, s{sCS}, s{sT1}", f"s_add_u32 s{sCS}, s{sCS}, {WS_CTX + 256*1024}"]
RB = [192, 32]
LB = 4
def b_scale_store(k, tag=""):
    b = RB[k]; l = LB + 4*k
    c = [f"v_pk_mul_f32 {vr(b+r,2)}, {vr(b+r,2)}, {vr(l+2,2)} op_sel_hi:[1,0]" for r in range(0, 8, 2)]
    c += [f"v_cvt_pk_bf16_f32 v{b+8+r}, v{b+2*r}, v{b+2*r+1}" for r in range(4)]
    return c + [f"buffer_store_dwordx4 {vr(b+8,4)}, v{vL16b if k else vL16}, {sr(sWS,4)}, s{sCS} offen{SC}" + tag]
def b_finish():
    c = []; A = c.append
    A("s_nop 0"); A(b_pv(7, 3, 1, 0)); A(b_pv(7, 3, 1, 1))
    A("s_nop 3")
    c += red_writes(6)
    A("s_nop 4")
    c += red_writes(7)
    A("s_waitcnt vmcnt(@p4w:0:wb) lgkmcnt(0)"); c += MK[0]("t1"); A("s_barrier"); c += MK[0]("t2")
    for k in range(2): A(f"ds_read_b128 {vr(LB+4*k,4)}, v{T2_} offset:{k*512}")
    for k in range(2):
        for w in range(4):
            for hh in range(2): A(f"ds_read_b128 {vr(RB[k]+8*w+4*hh,4)}, v{T1_} offset:{w*16384 + k*2048 + hh*512}")
    A("s_waitcnt lgkmcnt(15)")
    for k in range(2): A(f"v_pk_add_f32 {vr(LB+4*k,2)}, {vr(LB+4*k,2)}, {vr(LB+4*k+2,2)}")
    for k in range(2): A(f"v_add_f32 v{LB+4*k}, v{LB+4*k}, v{LB+4*k+1}")
    for k in range(2): A(f"v_rcp_f32 v{LB+4*k+2}, v{LB+4*k}")
    A("s_nop 0")
    for k in range(2): A(f"v_mul_f32 v{LB+4*k+2}, v{LB+4*k+2}, v{vG[k]}")
    for k in range(2):
        b = RB[k]
        A(f"s_waitcnt lgkmcnt({12 - 8*k})")
        for r in range(0, 8, 2): A(f"v_pk_add_f32 {vr(b+r,2)}, {vr(b+r,2)}, {vr(b+8+r,2)}")
        A(f"s_waitcnt lgkmcnt({8 - 8*k})")
        for r in range(0, 8, 2): A(f"v_pk_add_f32 {vr(b+16+r,2)}, {vr(b+16+r,2)}, {vr(b+24+r,2)}")
        for r in range(0, 8, 2): A(f"v_pk_add_f32 {vr(b+r,2)}, {vr(b+r,2)}, {vr(b+16+r,2)}")
        c += b_scale_store(k, " ; grpend:cb" if k else "")
    for k in range(2):
        A(f"v_cmp_nle_f32 vcc, {hex(fbits(2.0**-40))}, v{LB+4*k}"); A("s_mov_b64 s[70:71], vcc" if k == 0 else "s_or_b64 s[70:71], s[70:71], vcc")
        A(f"v_cmp_nge_f32 vcc, {hex(fbits(2.0**64))}, v{LB+4*k}"); A("s_or_b64 s[70:71], s[70:71], vcc")
    A("s_cbranch_scc1 P4_SLOW")
    return c
def b_store(): return ["P4_STORE:"]
def wb_trs(): return [f"ds_read_b64_tr_b16 {vr(64+4*k+2*e,2)}, v{vTR[0]} offset:{(k>>3)*16384 + (k&7)*2048 + e*512}" for k in range(32) for e in range(2)]
def last8(sig, pl, SG, PL):
    c = []; A = c.append
    fp = final_pre(); wr = [x for x in fp if x.startswith("ds_write")]; sa = [x for x in fp[:-1] if not x.startswith("ds_write")]
    c += ["s_waitcnt vmcnt(@l8:0:o)"]
    trs = wb_trs()
    n = 0
    for t in range(4):
        mt, qt = t >> 1, t & 1; d = ar(ACC + t*16, 16)
        for s in range(8):
            if n == SG: c += sig
            if n == PL: c += pl
            A(f"v_mfma_f32_32x32x16_bf16 {d}, {wreg(s, mt)}, {ar(CX+8*s+4*qt,4)}, {d}")
            if n >= 4: c += trs[:3]; trs = trs[3:]
            if t == 0: c += sa[3*s:3*s+3]
            if t and s >= 4: A(wr[(t-1)*4 + s - 4])
            elif t and s < 4 and not trs: A("s_nop 2")
            n += 1
    assert len(sa) <= 24 and not trs
    c += ["s_nop 11"] + wr[12:] + fp[-1:]
    return c
def final_pre():
    c = []; A = c.append
    A(f"s_add_u32 s{sT0}, s{sLW}, {RED}"); A(f"v_add_u32 v{T0_}, s{sT0}, v{vL16}")
    A(f"s_lshl_b32 s{sT0}, s{sWAVE}, 12"); A(f"s_add_u32 s{sT0}, s{sT0}, {RED}"); A(f"v_add_u32 v{T3_}, s{sT0}, v{vL16}")
    A(f"v_subrev_u32 v{vTR[0]}, s{sLW}, v{vTR[0]}"); A(f"s_lshr_b32 s{sT0}, s{sWAVE}, 1"); A(f"s_lshl_b32 s{sT0}, s{sT0}, 6"); A(f"v_xor_b32 v{vTR[0]}, s{sT0}, v{vTR[0]}")
    A(f"s_and_b32 s{sT0}, s{sWAVE}, 1"); A(f"s_lshl_b32 s{sT0}, s{sT0}, 13"); A(f"s_add_u32 s{sT0}, s{sT0}, {RED}"); A(f"v_add_u32 v{vTR[1]}, s{sT0}, v{vL16}")
    A(f"v_add_u32 v{T4_}, 65536, v{vTR[1]}")
    A(f"s_lshr_b32 s{sT0}, s{sWAVE}, 1"); A(f"s_mul_i32 s{sT0}, s{sT0}, {288*1024}"); A(f"s_add_u32 s{sC0}, s{sCB}, s{sT0}")
    A(f"s_and_b32 s{sT0}, s{sWAVE}, 1"); A(f"s_lshl_b32 s{sT0}, s{sT0}, 12"); A(f"s_add_u32 s{sC0}, s{sC0}, s{sT0}"); A(f"s_add_u32 s{sC0}, s{sC0}, {256*1024}")
    A(f"s_lshr_b32 s{sLW}, s{sLW}, 2")
    for k in range(16): A(f"ds_write_b128 v{T0_}, {ar(ACC+4*k,4)} offset:{k*1024}")
    A("s_waitcnt lgkmcnt(0)")
    return c
def final():
    c = []; A = c.append
    WB_ = 64
    def dma(st):
        o = [f"s_add_u32 m0, s{sLW}, {(131072 if st < 2 else RED) + (st & 1)*16384}", f"s_add_u32 s{sT1}, s{sC0}, {st*8192}"]
        return o + [f"buffer_load_dwordx4 v{vL16}, {sr(sWS,4)}, s{sT1} offen offset:{i*1024}{SC} lds" + (" ; grpend:cf" if i == 3 else "") for i in range(4)]
    rb = [192, 208, 224, 32]
    rds = [f"ds_read_b128 {vr(rb[w]+4*k,4)}, v{T3_} offset:{w*16384 + k*1024}" for w in range(4) for k in range(4)]
    for x in dma(0) + dma(1):
        A(x)
        if x.startswith("buffer"): c += rds[:3]; rds = rds[3:]
    A("s_waitcnt lgkmcnt(0)"); A("s_barrier"); c += MK[0]("f1")
    v = []
    for r in range(0, 16, 2):
        v += [f"v_pk_add_f32 {vr(rb[0]+r,2)}, {vr(rb[0]+r,2)}, {vr(rb[1]+r,2)}", f"v_pk_add_f32 {vr(rb[2]+r,2)}, {vr(rb[2]+r,2)}, {vr(rb[3]+r,2)}"]
    v += [f"v_pk_add_f32 {vr(rb[0]+r,2)}, {vr(rb[0]+r,2)}, {vr(rb[2]+r,2)}" for r in range(0, 16, 2)]
    for x in dma(2) + dma(3):
        A(x)
        if x.startswith("buffer"): c += v[:3]; v = v[3:]
    ad = [f"v_and_b32 v{T2_}, 31, v{vLN}", f"v_lshlrev_b32 v{T2_}, 10, v{T2_}", f"v_lshrrev_b32 v{T0_}, 5, v{vLN}", f"v_lshl_add_u32 v{T2_}, v{T0_}, 4, v{T2_}",
          f"s_lshl_b32 s{sT0}, s{sRT}, 16", f"s_and_b32 s{sT1}, s{sWAVE}, 1", f"s_lshl_b32 s{sT1}, s{sT1}, 15", f"s_add_u32 s{sT0}, s{sT0}, s{sT1}",
          f"s_lshl_b32 s{sT1}, s{sCT}, 7", f"s_add_u32 s{sT0}, s{sT0}, s{sT1}",
          f"s_lshr_b32 s{sT1}, s{sWAVE}, 1", f"s_lshl_b32 s{sT1}, s{sT1}, 6", f"s_add_u32 s{sT0}, s{sT0}, s{sT1}"]
    d = vr(rb[0], 16)
    rd = lambda k: f"ds_read_b128 {ar(64+4*k,4)}, v{T4_ if k < 16 else vTR[1]} offset:{((k>>3)&1)*16384 + (k&7)*1024}"
    mf = lambda k: f"v_mfma_f32_32x32x16_bf16 {d}, {vr(WB_+4*k,4)}, {ar(64+4*k,4)}, {d}"
    c += MK[0]("f2")
    A("s_waitcnt vmcnt(@p5a:2:cf)"); A("s_barrier"); c += MK[0]("f3")
    c += [rd(k) for k in range(12)]
    for k in range(32):
        if k in (10, 18):
            A(f"s_waitcnt vmcnt(@p5b{k}:{1 if k == 10 else 0}:cf)"); A("s_barrier")
            if k == 18: c += MK[0]("f4")
        if k in (0, 2): A(f"s_waitcnt lgkmcnt({10 if k == 0 else 8})")
        if k in (8, 16, 24): A("s_waitcnt lgkmcnt(0)")
        A(mf(k))
        if k < 2: c += [rd(12 + 2*k), rd(13 + 2*k)]
        if 10 <= k < 14: c += [rd(16 + 2*(k - 10)), rd(17 + 2*(k - 10))]
        if 18 <= k < 22: c += [rd(24 + 2*(k - 18)), rd(25 + 2*(k - 18))]
        if 24 <= k < 29: c += ad[3*(k-24):3*(k-24)+3]
    A("s_nop 11"); c += MK[0]("f5")
    for r in range(8): A(f"v_cvt_pk_bf16_f32 v{32+r}, v{rb[0]+2*r}, v{rb[0]+2*r+1}")
    A("s_nop 0")
    for pr in range(2):
        b = 32 + 4 * pr
        A(f"v_permlane32_swap_b32 v{b}, v{b+2}"); A(f"v_permlane32_swap_b32 v{b+1}, v{b+3}")
        A(f"buffer_store_dwordx4 {vr(b,4)}, v{T2_}, {sr(sOUT,4)}, s{sT0} offen offset:{32*pr}")
    return c
def b_slow():
    c = ["P4_SLOW:"]; A = c.append
    S = S_[1]; P = P_[0]; vM = T0_; QS = 176; OA = 160
    strip = lambda x: x.split(" ;")[0]
    for k in range(2):
        b = RB[k]
        A(f"s_lshl_b32 s{sT0}, s{sH}, 16"); A(f"s_lshl_b32 s{sT1}, s{sQB}, 13"); A(f"s_add_u32 s{sT0}, s{sT0}, s{sT1}")
        A(f"s_lshl_b32 s{sT1}, s{sWAVE}, 11"); A(f"s_add_u32 s{sT0}, s{sT0}, s{sT1}"); A(f"s_add_u32 s{sT0}, s{sT0}, {WS_QB + 1024*k}")
        A("s_waitcnt vmcnt(0)")
        A(f"buffer_load_dwordx4 {vr(QS,4)}, v{vL16}, {sr(sWS,4)}, s{sT0} offen{SC}")
        A(f"v_mov_b32 v{vM}, {hex(BIG)}")
        for ps in range(2):
            A(f"s_lshl_b32 s{sKK}, s{sH}, 17"); A(f"s_add_u32 s{sKK}, s{sKK}, {WS_KVB}"); A(f"s_mov_b32 s{sKV}, s{sKK}"); A(f"s_mov_b32 s{sCNT}, 64")
            if ps == 1:
                for r in range(16): A(f"v_mov_b32 v{OA+r}, 0")
            A(f"P4_S{k}{ps}:")
            c += [strip(x) for x in b_kload(0)]
            if ps == 1: c += [strip(x) for x in b_vload(0)]
            A("s_waitcnt vmcnt(0)")
            A(f"v_mfma_f32_32x32x16_bf16 {vr(S,16)}, {ar(KB[0],4)}, {vr(QS,4)}, 0"); A("s_nop 15")
            if ps == 0:
                for r in range(16): A(f"v_max_f32 v{vM}, v{vM}, v{S+r}")
            else:
                for r in range(16): A(f"v_sub_f32 v{S+r}, v{S+r}, v{vM}")
                for r in range(16): A(f"v_exp_f32 v{S+r}, v{S+r}")
                A("s_nop 0")
                for r in range(8): A(f"v_cvt_pk_bf16_f32 v{P+r}, v{S+2*r}, v{S+2*r+1}")
                A("s_nop 1")
                for f in range(2): A(f"v_mfma_f32_32x32x16_bf16 {vr(OA,16)}, {ar(VB[0]+4*f,4)}, {vr(P+4*f,4)}, {vr(OA,16)}")
                A("s_nop 7")
            A(f"s_sub_u32 s{sCNT}, s{sCNT}, 1"); A(f"s_cmp_lg_u32 s{sCNT}, 0"); A(f"s_cbranch_scc1 P4_S{k}{ps}")
            if ps == 0:
                A(f"v_mov_b32 v{vM+1}, v{vM}"); A("s_nop 1"); A(f"v_permlane32_swap_b32 v{vM}, v{vM+1}"); A(f"v_max_f32 v{vM}, v{vM}, v{vM+1}")
        A("s_nop 7")
        for r in range(8): A(f"v_mov_b32 v{b+r}, v{OA+r}")
        A(f"v_rcp_f32 v{LB+4*k+2}, v{OA+8}"); A("s_nop 0"); A(f"v_mul_f32 v{LB+4*k+2}, v{LB+4*k+2}, v{vG[k]}")
        for r in range(4): A(f"v_permlane32_swap_b32 v{b+r}, v{b+4+r}")
        c += b_scale_store(k, " ; grpend:cb" if k else "")
    A("s_branch P4_STORE")
    return c

def gen(hst, mark_a, mark_b, mark_c, mark_d):
    SIG, PL, CHK = [int(x) for x in os.environ.get("P4T", "10,17,21").split(",")]
    c = []; A = c.append
    A("s_waitcnt vmcnt(@p4q:0:k0)")
    A(b_qk(0, 0, 0))
    c += hst[:2]
    c += [f"v_mov_b32 v{P_[1]+r}, 0" for r in range(4)]
    c += o_setup() + ["v_mov_b32 v12, v22", "s_nop 0"]
    pro = c
    ex = {n: [[], [], []] for n in range(32)}
    z = vr(P_[1], 4)
    zm = [f"v_mfma_f32_32x32x16_bf16 {ar(ACC+16*k,16)}, {z}, {z}, 0" for k in range(4)]
    pro += [zm[0], hst[2]]
    ex[0][1] += [zm[1], hst[3]]; ex[0][2] += [zm[2]]
    k = 4
    for n in range(1, 4):
        ex[n][0] += hst[k:k+1]; k += 1
        if n != 2: ex[n][2] += hst[k:k+1]; k += 1
    assert k >= 8
    if 'b' in os.environ.get('RT', ''): ex[5][1] += [CTOUCH.replace('v30', 'v12')]
    ex[SIG][1] = ["s_waitcnt vmcnt(@p4s:0:ca)", "s_barrier"] + w0only(flag_store(WS_F3), "P4_S3")
    f3 = [f"s_lshr_b32 s{sZ0}, s{sRT}, 1", f"s_sub_u32 s{sZ1}, 15, s{sZ0}", f"s_min_u32 s{sZ0}, s{sZ0}, s{sZ1}", f"v_mov_b32 v{T3_}, s{sZ0}", f"v_mov_b32 v{T4_}, s{sCT}",
          f"v_cmp_gt_u32 vcc, 32, v{vLN}", f"s_mov_b32 s{sZ0}, {WS_F3}"] + flag_lane() + [f"v_cndmask_b32 v{T3_}, v{T4_}, v{T3_}, vcc", f"v_lshl_add_u32 v{T2_}, v{T3_}, 7, v{T2_}"]
    ex[PL][2] = ex[PL][2] + w0only(f3 + [flag_load()], "P4_L3")
    ex[CHK][1] = ex[CHK][1] + w0only(spin("P4_C3"), "P4_C3") + ["s_barrier"]
    fl = []
    for s in range(PD): fl += [[o_ctx(s, 0)], [o_w(s, 0)], [o_w(s, 1)], [o_ctx(s, 1)] + o_post(s)]
    slots_ = [(CHK, 2)] + [(n, k) for n in range(CHK + 1, 32) for k in range(3)]
    FS = float(os.environ.get("FS", "1.8"))
    for i, it in enumerate(fl):
        n, k = slots_[min(len(slots_) - 1, int(i * FS))]; ex[n][k] += it
    wb = wb_dma()
    WBP = os.environ.get("WBP", "b0")
    if WBP == "b0":
        sl2 = [(n, k) for n in range(SIG + 1, PL + 1) for k in range(3)][:-1]
        for i, it in enumerate(wb):
            n, k = sl2[i * len(sl2) // len(wb)]; ex[n][k] += it
    b0 = body(False, "b", ex, first=True)
    i = b0.index(zm[2]); b0 = b0[:i+5] + [zm[3]] + b0[i+5:]
    b0 += mark_a
    loop = []
    lastb = red_addr() + fused_all(wb if WBP != 'b0' else [])
    fin = lastb + mark_b + b_finish()
    st = b_store() + mark_c
    sig4 = ["s_waitcnt vmcnt(@p4u:0:cb)", "s_barrier"] + w0only(flag_store(WS_F4), "P4_S4")
    f4 = [f"s_lshr_b32 s{sZ0}, s{sRT}, 2", f"s_lshl_b32 s{sZ0}, s{sZ0}, 7", f"s_add_u32 s{sZ0}, s{sZ0}, {WS_F4}"]
    SG4, PL4 = [int(x) for x in os.environ.get("P5T", "8,26").split(",")]
    assert NS == 56 and PE == 8 and SG4 <= 12
    tail = last8(sig4, w0only(f4 + flag_lane() + [flag_load()], "P4_L4"), SG4, PL4)
    tail += w0only(spin("P4_C4"), "P4_C4") + ["s_barrier"] + mark_d
    tail += final()
    slow = b_slow()
    return pro + b0 + loop + fin + st + tail, slow, [pro + b0 + loop * 2 + fin + st + tail, pro + b0 + loop * 2 + fin + slow + st + tail]
```
